```python
import torch

def _softmax(x, axis=-1):
    return torch.softmax(x, dim=axis)
def _gelu(x):
    return torch.nn.functional.gelu(x, approximate="tanh")
def _silu(x):
    return torch.nn.functional.silu(x)
def _sigmoid(x):
    return torch.sigmoid(x)
def _layernorm(x, axis=-1, eps=1e-5):
    m = x.mean(dim=axis, keepdim=True)
    v = x.var(dim=axis, keepdim=True, unbiased=False)
    return (x - m) / torch.sqrt(v + eps)
def _scatter_add(tgt, idx, src, axis=0):
    return tgt.clone().index_add_(axis, idx, src)
def _segment_sum(src, seg, n):
    out = torch.zeros((n,) + src.shape[1:], dtype=src.dtype)
    return out.index_add_(0, seg, src)
def _pad(x, pw):
    flat = tuple(v for pair in reversed(pw) for v in pair)
    return torch.nn.functional.pad(x, flat)

kernel_name = 'standalone__edge_featured_mpnn_mpnn__graph'

def setup_inputs():

    _w = (lambda a: (lambda t: t.to(torch.bfloat16) if t.is_floating_point() else t)(torch.as_tensor(a)))
    N, deg, D, De = 10000, 16, 128, max(0, 1)
    E = N * deg
    H = 2 * D
    return {
        "x": _w((lambda *s: torch.randn(*s, dtype=torch.bfloat16) * 0.05)(N, D)),
        "e_attr": _w((lambda *s: torch.randn(*s, dtype=torch.bfloat16) * 1.6)(E, De)),
        "src": _w((lambda lo, hi, *s: torch.randint(lo, hi, s))(0, N, E).to(torch.int64)),
        "dst": _w((lambda lo, hi, *s: torch.randint(lo, hi, s))(0, N, E).to(torch.int64)),
        "w1": _w((lambda *s: torch.randn(*s, dtype=torch.bfloat16) * 1.6)(2 * D + De, H) * (1.0 / (2 * D + De) ** 0.5)),
        "b1": _w((lambda *s: torch.randn(*s, dtype=torch.bfloat16) * 1.6)(H) * 0.01),
        "w2": _w((lambda *s: torch.randn(*s, dtype=torch.bfloat16) * 0.05)(H, D) * (1.0 / H ** 0.5)),
        "b2": _w((lambda *s: torch.randn(*s, dtype=torch.bfloat16) * 0.05)(D) * 0.01),
    }

def reference(x, e_attr, src, dst, w1, b1, w2, b2):
    N, D = x.shape
    h_src = x[src]
    h_dst = x[dst]
    m_in = torch.concatenate([h_src, h_dst, e_attr], axis=-1)
    h = _silu(m_in @ w1 + b1)
    msg = h @ w2 + b2
    return _segment_sum(msg, dst, N)
```

```python
import sys, struct

N, E, D_, H = 10000, 160000, 128, 256
NCH = 64
CH_E = E // NCH
CAP = 31
WS_P = 0
WS_CELLS = 0x500000
WS_WQ = 0x900000
WS_W2 = 0x910000
WS_END = 0x920000

def f32bits(x): return struct.unpack('<I', struct.pack('<f', x))[0]
S_LOG2E = f32bits(-1.4426950408889634)
S_LN2 = f32bits(-0.6931471805599453)

class Asm:
    def __init__(self): self.l = []
    def __call__(self, s): self.l.append("    " + s)
    def lab(self, s): self.l.append(s + ":")
    def c(self, s): self.l.append("    ; " + s)
    def raw(self, s): self.l.append(s)
    def text(self): return "\n".join(self.l) + "\n"

def vr(a, n): return f"v[{a}:{a+n-1}]"
def sr(a, n): return f"s[{a}:{a+n-1}]"

def srd(a, d, base, nrec, stride=0, add=0):
    if add:
        a(f"s_add_u32 s{d}, s{base}, {hex(add)}")
        a(f"s_addc_u32 s{d+1}, s{base+1}, 0")
    else:
        a(f"s_mov_b32 s{d}, s{base}")
        a(f"s_mov_b32 s{d+1}, s{base+1}")
    if stride:
        a(f"s_or_b32 s{d+1}, s{d+1}, {hex(stride << 16)}")
    a(f"s_mov_b32 s{d+2}, {hex(nrec)}")
    a(f"s_mov_b32 s{d+3}, 0x20000")

PX, PE, PSRC, PDST, PW1, PB1, PW2, PB2 = 16, 18, 20, 22, 24, 26, 28, 30

DEBUG = False
def gen_k1(a, TPW):
    NG = (625 + TPW - 1) // TPW
    GRID = NCH + 4 + NG
    a.raw(".globl k1_kernel"); a.raw(".p2align 8"); a.raw(".type k1_kernel,@function")
    a.lab("k1_kernel")
    a(f"s_cmp_ge_u32 s2, {GRID}")
    a("s_cbranch_scc1 K1_EXIT")
    a("s_load_dwordx16 s[16:31], s[0:1], 0")
    a("s_load_dwordx2 s[32:33], s[0:1], 80")
    if DEBUG: a("s_memrealtime s[56:57]")
    def k1end():
        if DEBUG:
            a("s_waitcnt vmcnt(0)")
            a("s_memrealtime s[58:59]")
            a("s_lshl_b32 s60, s2, 4")
            a("s_add_u32 s60, s60, 0xB00000")
            a("v_mov_b32 v1, s60")
            a("s_waitcnt lgkmcnt(0)")
            a("v_mov_b32 v2, s56")
            a("v_mov_b32 v3, s58")
            a("v_cmp_eq_u32 vcc, 0, v0")
            a("s_and_saveexec_b64 s[60:61], vcc")
            a("s_cbranch_execz K1_EXIT")
            a("global_store_dwordx2 v1, v[2:3], s[32:33]")
        a("s_endpgm")
    a(f"s_cmp_lt_u32 s2, {NCH}")
    a("s_cbranch_scc1 K1_SORT")
    a(f"s_cmp_lt_u32 s2, {NCH+4}")
    a("s_cbranch_scc1 K1_TRANS")
    a.c("GEMM role: P' = -log2e * x @ W1a")
    a("v_lshrrev_b32 v1, 6, v0")
    a("v_and_b32 v2, 15, v0")
    a("v_bfe_u32 v3, v0, 4, 2")
    a("v_lshlrev_b32 v4, 7, v1")
    a("v_lshl_add_u32 v4, v2, 3, v4")
    a("v_lshl_add_u32 v5, v3, 12, v4")
    a("v_lshl_add_u32 v6, v3, 11, v4")
    a("v_lshlrev_b32 v7, 8, v2")
    a("v_lshl_add_u32 v7, v3, 4, v7")
    a(f"s_sub_u32 s3, s2, {NCH+4}")
    a(f"s_mul_i32 s3, s3, {TPW}")
    a("s_lshl_b32 s4, s3, 12")
    a("s_lshl_b32 s5, s3, 13")
    a("s_mov_b32 s6, 0x4000"); a("s_mov_b32 s7, 0x8000"); a("s_mov_b32 s8, 0xc000")
    a("s_mov_b32 s9, 0x05040100"); a("s_mov_b32 s10, 0x07060302")
    a(f"v_mov_b32 v8, {hex(S_LOG2E)}")
    a("s_waitcnt lgkmcnt(0)")
    srd(a, 36, PX, N*256)
    srd(a, 40, PW1, 257*512)
    srd(a, 44, 32, N*512, add=WS_P)
    RAW = 64; FR = 128; XF = 16; ACC = 192
    def xload(t):
        if t:
            a(f"s_add_u32 s11, s4, {t*4096}")
        else:
            a("s_mov_b32 s11, s4")
        for s in range(4):
            a(f"buffer_load_dwordx4 {vr(XF+16*(t%3)+4*s,4)}, v7, s[36:39], s11 offen offset:{64*s}")
    so = ["0", "s6", "s7", "s8"]
    for s in range(4):
        for m in range(8):
            a(f"buffer_load_dwordx2 {vr(RAW+16*s+2*m,2)}, v5, s[40:43], {so[s]} offen offset:{512*m}")
    npre = min(TPW, 3)
    for t in range(npre): xload(t)
    for s in range(4):
        a(f"s_waitcnt vmcnt({4*npre + 8*(3-s)})")
        for t in range(4):
            for p in range(4):
                a(f"v_perm_b32 v{FR+16*s+4*t+p}, v{RAW+16*s+2*(2*p+1)+(t>>1)}, v{RAW+16*s+2*(2*p)+(t>>1)}, s{9+(t&1)}")
    outstanding = []
    for t in range(npre): outstanding += [("x", t)]*4
    def wait_for(tag):
        idx = max(i for i, x in enumerate(outstanding) if x == tag)
        n = len(outstanding) - 1 - idx
        a(f"s_waitcnt vmcnt({n})")
        del outstanding[:idx+1]
    for t in range(TPW):
        wait_for(("x", t))
        acc = ACC + 16*(t & 1)
        for s in range(4):
            for tt in range(4):
                c = "0" if s == 0 else vr(acc+4*tt, 4)
                a(f"v_mfma_f32_16x16x32_bf16 {vr(acc+4*tt,4)}, {vr(XF+16*(t%3)+4*s,4)}, {vr(FR+16*s+4*tt,4)}, {c}")
        if t + 3 < TPW:
            xload(t+3); outstanding.extend([("x", t+3)]*4)
        a(f"s_add_u32 s12, s5, {t*8192}")
        a("s_nop 7")
        for tt in range(4):
            for r in range(4):
                a(f"v_mul_f32 v{acc+4*tt+r}, v8, v{acc+4*tt+r}")
        ob = RAW + 8*(t & 3)
        for r in range(4):
            a(f"v_cvt_pk_bf16_f32 v{ob+2*r}, v{acc+0+r}, v{acc+4+r}")
            a(f"v_cvt_pk_bf16_f32 v{ob+2*r+1}, v{acc+8+r}, v{acc+12+r}")
        for r in range(4):
            a(f"buffer_store_dwordx2 {vr(ob+2*r,2)}, v6, s[44:47], s12 offen offset:{512*r}")
            outstanding.append(("st", t))
    k1end()
    a.lab("K1_TRANS")
    a.c("fragment transposer for W1b (WQ) and w2 (W2F)")
    a(f"s_sub_u32 s3, s2, {NCH}")
    a("s_and_b32 s4, s3, 1")
    a("s_lshl_b32 s4, s4, 8")
    a("v_add_u32 v1, s4, v0")
    a("s_mov_b32 s9, 0x05040100"); a("s_mov_b32 s10, 0x07060302")
    a("s_waitcnt lgkmcnt(0)")
    a("s_cmp_ge_u32 s3, 2")
    a("s_cbranch_scc1 K1_TR_W2")
    a("v_and_b32 v2, 31, v1")
    a("v_lshrrev_b32 v3, 5, v1")
    a("v_lshlrev_b32 v4, 4, v2")
    a("v_lshl_add_u32 v4, v3, 12, v4")
    a("v_add_u32 v4, 0x10000, v4")
    a("v_lshrrev_b32 v5, 1, v2")
    a("v_lshlrev_b32 v5, 12, v5")
    a("v_lshl_add_u32 v5, v3, 8, v5")
    a("v_and_b32 v6, 1, v2")
    a("v_lshl_add_u32 v5, v6, 7, v5")
    srd(a, 36, PW1, 257*512)
    srd(a, 40, 32, 0x10000, add=WS_WQ)
    a("s_mov_b32 s5, 512")
    a("s_branch K1_TR_GO")
    a.lab("K1_TR_W2")
    a("v_and_b32 v2, 15, v1")
    a("v_bfe_u32 v3, v1, 4, 3")
    a("v_lshrrev_b32 v7, 7, v1")
    a("v_lshlrev_b32 v4, 4, v2")
    a("v_lshl_add_u32 v4, v3, 13, v4")
    a("v_lshl_add_u32 v4, v7, 11, v4")
    a("v_lshrrev_b32 v5, 1, v2")
    a("v_lshlrev_b32 v5, 13, v5")
    a("v_lshl_add_u32 v5, v3, 10, v5")
    a("v_lshl_add_u32 v5, v7, 8, v5")
    a("v_and_b32 v6, 1, v2")
    a("v_lshl_add_u32 v5, v6, 7, v5")
    srd(a, 36, PW2, 256*256)
    srd(a, 40, 32, 0x10000, add=WS_W2)
    a("s_mov_b32 s5, 256")
    a.lab("K1_TR_GO")
    a("s_mov_b32 s6, 0")
    for m in range(8):
        a(f"buffer_load_dwordx4 {vr(16+4*m,4)}, v4, s[36:39], s6 offen")
        if m < 7: a("s_add_u32 s6, s6, s5")
    a("s_waitcnt vmcnt(0)")
    for cc in range(8):
        for p in range(4):
            a(f"v_perm_b32 v{48+4*cc+p}, v{16+4*(2*p+1)+(cc>>1)}, v{16+4*(2*p)+(cc>>1)}, s{9+(cc&1)}")
        a(f"buffer_store_dwordx4 {vr(48+4*cc,4)}, v5, s[40:43], 0 offen offset:{16*cc}")
    k1end()
    a.lab("K1_SORT")
    a.c("bucket the edges of chunk s2 by dst&255")
    a("v_lshlrev_b32 v1, 2, v0")
    a("v_mov_b32 v2, 0")
    a("ds_write_b32 v1, v2")
    a("v_lshlrev_b32 v3, 4, v0")
    a("v_lshlrev_b32 v4, 3, v0")
    a("v_mov_b32 v5, 1")
    a("v_mov_b32 v6, 0x80000000")
    a("v_mov_b32 v7, 0xffff")
    a(f"s_mul_i32 s3, s2, {CH_E*4}")
    a(f"s_mul_i32 s4, s2, {CH_E*2}")
    a("s_lshl_b32 s5, s2, 8")
    a("s_add_u32 s6, s3, 4096"); a("s_add_u32 s7, s3, 8192")
    a("s_waitcnt lgkmcnt(0)")
    srd(a, 36, PDST, E*4)
    srd(a, 40, PSRC, E*4)
    srd(a, 44, PE, E*2)
    srd(a, 48, 32, 256*NCH*256, add=WS_CELLS)
    DST, SRC, EA = 16, 28, 40
    RK, OFF, REC = 48, 60, 72
    so = ["s3", "s6", "s7"]
    nlast = CH_E//4 - 512
    for r in range(2):
        a(f"buffer_load_dwordx4 {vr(DST+4*r,4)}, v3, s[36:39], {so[r]} offen")
    for r in range(2):
        a(f"buffer_load_dwordx4 {vr(SRC+4*r,4)}, v3, s[40:43], {so[r]} offen")
        a(f"buffer_load_dwordx2 {vr(EA+2*r,2)}, v4, s[44:47], s4 offen offset:{2048*r}")
    a(f"buffer_load_dwordx4 {vr(DST+8,4)}, v3, s[36:39], s7 offen")
    a(f"buffer_load_dwordx4 {vr(SRC+8,4)}, v3, s[40:43], s7 offen")
    a("s_add_u32 s8, s4, 4096")
    a(f"buffer_load_dwordx2 {vr(EA+4,2)}, v4, s[44:47], s8 offen")
    a(f"v_cmp_gt_u32 vcc, {nlast}, v0")
    a("s_nop 1")
    a("s_mov_b64 s[10:11], vcc")
    a("s_barrier")
    def atomics(r):
        for i in range(4):
            k = 4*r+i
            a(f"v_and_b32 v{OFF+k}, 0xff, v{DST+k}")
            a(f"v_lshlrev_b32 v8, 2, v{OFF+k}")
            a(f"ds_add_rtn_u32 v{RK+k}, v8, v5")
    def emit(r):
        for i in range(4):
            k = 4*r+i
            a(f"v_lshlrev_b32 v{OFF+k}, 14, v{OFF+k}")
            a(f"v_lshl_add_u32 v{OFF+k}, v{RK+k}, 3, v{OFF+k}")
            a(f"v_sub_u32 v8, {CAP-1}, v{RK+k}")
            a(f"v_and_or_b32 v{OFF+k}, v8, v6, v{OFF+k}")
            a(f"v_mov_b32 v{REC+2*k}, v{SRC+k}")
            a(f"v_lshlrev_b32 v9, 8, v{DST+k}")
            e = EA + 2*r + (i >> 1)
            if i & 1:
                a(f"v_lshrrev_b32 v10, 16, v{e}")
                a(f"v_bfi_b32 v{REC+2*k+1}, v7, v10, v9")
            else:
                a(f"v_bfi_b32 v{REC+2*k+1}, v7, v{e}, v9")
            a(f"buffer_store_dwordx2 {vr(REC+2*k,2)}, v{OFF+k}, s[48:51], s5 offen offset:8")
    a("s_waitcnt vmcnt(7)")
    atomics(0); atomics(1)
    a("s_waitcnt vmcnt(0) lgkmcnt(0)")
    emit(0); emit(1)
    a("s_and_saveexec_b64 s[12:13], s[10:11]")
    a("s_cbranch_execz K1_S_SKIP")
    atomics(2)
    a("s_waitcnt lgkmcnt(0)")
    emit(2)
    a.lab("K1_S_SKIP")
    a("s_mov_b64 exec, s[12:13]")
    a("s_waitcnt lgkmcnt(0)")
    a("s_barrier")
    a("ds_read_b32 v2, v1")
    a("v_lshlrev_b32 v3, 14, v0")
    a("s_waitcnt lgkmcnt(0)")
    a("buffer_store_dword v2, v3, s[48:51], s5 offen")
    k1end()
    a.lab("K1_EXIT")
    a("s_endpgm")
    return GRID

ROWP = 1040
L_S = 0
L_Q = L_S + 40*ROWP
NSLOT = 2112
L_EP = L_Q + 48*ROWP
L_IDX = L_EP + NSLOT*16
L_CNT = L_IDX + NSLOT*4
L_CC = L_CNT + 256
L_MAXR = L_CC + 256
L_ZERO = L_MAXR + 16
L_BZEND = L_ZERO + 512
L_DEG = L_BZEND
L_FLAG = L_DEG + 256
L_END = L_FLAG + 16

def gen_k2(a, DP):
    assert DP % 2 == 0
    def stamp(i):
        if not DEBUG: return
        a("s_memtime s[94:95]")
        a("s_waitcnt lgkmcnt(0)")
        a(f"s_mov_b32 s{76+i}, s94")
    def dump():
        if not DEBUG: return
        stamp(7)
        a("s_cmp_lg_u32 s3, 0")
        a("s_cbranch_scc1 K2_NODUMP")
        a("s_memrealtime s[88:89]")
        a("s_lshl_b32 s93, s2, 6")
        a("s_add_u32 s93, s93, 0xA00000")
        a("v_mov_b32 v1, s93")
        a("s_waitcnt lgkmcnt(0)")
        for i in range(8):
            a(f"s_sub_u32 s93, s{76+i}, s76")
            a("v_mov_b32 v2, s93")
            a(f"global_store_dword v1, v2, s[34:35] offset:{4*i}")
        a("v_mov_b32 v2, s90")
        a(f"global_store_dword v1, v2, s[34:35] offset:32")
        a("v_mov_b32 v2, s88")
        a(f"global_store_dword v1, v2, s[34:35] offset:36")
        a("v_mov_b32 v2, s92")
        a(f"global_store_dword v1, v2, s[34:35] offset:40")
        a.lab("K2_NODUMP")
    a.raw(".globl k2_kernel"); a.raw(".p2align 8"); a.raw(".type k2_kernel,@function")
    a.lab("k2_kernel")
    a("s_cmp_ge_u32 s2, 256")
    a("s_cbranch_scc1 K2_EXIT")
    a("s_load_dwordx16 s[16:31], s[0:1], 0")
    a("s_load_dwordx2 s[32:33], s[0:1], 64")
    a("s_load_dwordx2 s[34:35], s[0:1], 80")
    if DEBUG: a("s_memrealtime s[90:91]")
    stamp(0)
    U = [8, 12]; EX, ACC, Q, CARRY = 16, 20, 24, 28
    IP = [32, 34]
    VEA, VIA = 52, 53
    AB = 54
    ES = [56, 60]
    BS = 64
    def slotP(d): return BS + 6*(d >> 1) + (4 if d & 1 else 0)
    assert BS + 3*DP <= 112
    M = 112
    VES, VEND, VQA, VSTA, VLANE = M, M+1, M+2, M+3, M+4
    VW = M + 6
    VT = M + 8
    NV = VT + 6
    XF = 64
    WF = 8
    QA = 24
    R0 = 36
    HD = 40
    RK = 60
    B1 = 42
    WE = 44
    ZT = 46
    BI = 54
    sW, sV0, sV1, sNE, sMASK = 3, 52, 54, 56, 58
    sS0, sS1, sSEG, sREM, sCUR, sT, sT2, sHEAD, sCN, sSLOW, sBATCH = 60, 61, 62, 63, 64, 65, 66, 67, 68, 70, 71
    sSV, sCR, sRND = 72, 73, 74
    a(f"v_and_b32 v{VLANE}, 63, v0")
    a("v_lshrrev_b32 v1, 6, v0")
    a("v_and_b32 v2, 15, v0")
    a("v_bfe_u32 v3, v0, 4, 2")
    a("v_readfirstlane_b32 s3, v1")
    a("v_lshlrev_b32 v4, 4, v0")
    a("v_and_b32 v5, 0xffffff00, v4")
    a("s_lshl_b32 s4, s2, 14")
    a(f"s_add_u32 s4, s4, {hex(WS_CELLS)}")
    a("v_lshlrev_b32 v6, 16, v2")
    a("v_lshl_add_u32 v6, v3, 4, v6")
    a("s_lshl_b32 s5, s2, 8")
    a("s_add_u32 s6, s5, 0x100000")
    a("s_add_u32 s7, s5, 0x200000")
    a(f"v_lshlrev_b32 v7, 4, v{VLANE}")
    a("s_lshl_b32 s8, s3, 12")
    a(f"s_add_u32 s8, s8, {hex(WS_WQ)}")
    a(f"s_mov_b32 s{sSLOW}, 0")
    a(f"s_mov_b32 s{sBATCH}, 0")
    a("s_waitcnt lgkmcnt(0)")
    srd(a, 40, 34, WS_END)
    a(f"buffer_load_dwordx4 {vr(R0,4)}, v4, s[40:43], s4 offen")
    a(f"buffer_load_dword v{HD}, v5, s[40:43], s4 offen")
    srd(a, 36, PX, N*256)
    for s in range(4):
        a(f"buffer_load_dwordx4 {vr(WF+4*s,4)}, v7, s[40:43], s8 offen offset:{1024*s}")
    so = ["s5", "s6", "s7"]
    for nt in range(3):
        for s in range(4):
            a(f"buffer_load_dwordx4 {vr(XF+16*nt+4*s,4)}, v6, s[36:39], {so[nt]} offen offset:{64*s}")
    srd(a, 44, 34, N, stride=512, add=WS_P)
    srd(a, 48, 32, N*256)
    a(f"v_lshlrev_b32 v{VT}, 5, v1")
    a(f"v_lshl_add_u32 v{VT}, v3, 3, v{VT}")
    a(f"global_load_dwordx2 {vr(B1,2)}, v{VT}, s[{PB1}:{PB1+1}]")
    a(f"v_lshlrev_b32 v{VT+2}, 3, v{VLANE}")
    a(f"v_add_u32 v{VT+3}, 0x20000, v{VT+2}")
    a(f"global_load_dwordx2 {vr(WE,2)}, v{VT+3}, s[{PW1}:{PW1+1}]")
    NLOAD = 2 + 4 + 12 + 2
    a(f"v_add_u32 v{VQA}, {L_Q}, v7")
    assert L_S == 0
    a.c("zero LDS")
    for k in range(4): a(f"v_mov_b32 v{ZT+k}, 0")
    a(f"ds_write_b128 v4, {vr(ZT,4)} offset:{L_S}")
    a(f"ds_write_b128 v4, {vr(ZT,4)} offset:{L_S+16384}")
    a(f"ds_write_b128 v4, {vr(ZT,4)} offset:{L_S+32768}")
    def zero_batch(upto):
        zsz = upto - L_EP
        assert 2*16384 < zsz <= 3*16384 and zsz % 16 == 0
        a(f"v_add_u32 v{ZT+4}, {L_EP}, v4")
        a(f"ds_write_b128 v{ZT+4}, {vr(ZT,4)}")
        a(f"ds_write_b128 v{ZT+4}, {vr(ZT,4)} offset:16384")
        a(f"ds_write_b128 v{ZT+4}, {vr(ZT,4)} offset:{zsz-16384}")
    zero_batch(L_END)
    a("s_waitcnt lgkmcnt(0)")
    a("s_barrier")
    stamp(1)
    a(f"s_waitcnt vmcnt({NLOAD-2})")
    a(f"v_lshlrev_b32 v{VT}, 1, v2")
    a(f"v_cmp_le_u32 s[{sV0}:{sV0+1}], v{VT}, v{HD}")
    a(f"v_cmp_ne_u32 vcc, 0, v2")
    a(f"v_cmp_lt_u32 s[{sV1}:{sV1+1}], v{VT}, v{HD}")
    a(f"s_and_b64 s[{sV0}:{sV0+1}], s[{sV0}:{sV0+1}], vcc")
    a(f"v_cmp_lt_u32 vcc, {CAP}, v{HD}")
    a(f"v_mov_b32 v{VT+1}, 1")
    a(f"v_mov_b32 v{VT+2}, {L_FLAG}")
    a("s_and_saveexec_b64 s[10:11], vcc")
    a(f"ds_write_b32 v{VT+2}, v{VT+1}")
    a("s_mov_b64 exec, s[10:11]")
    def rank_atomics():
        for i, sv in ((0, sV0), (1, sV1)):
            a(f"v_bfe_u32 v{VT+2+i}, v{R0+2*i+1}, 16, 6")
            a(f"v_lshlrev_b32 v{VT+2+i}, 2, v{VT+2+i}")
            a(f"v_add_u32 v{VT+4+i}, {L_CNT}, v{VT+2+i}")
        for i, sv in ((0, sV0), (1, sV1)):
            a(f"s_mov_b64 exec, s[{sv}:{sv+1}]")
            a(f"ds_add_rtn_u32 v{RK+i}, v{VT+4+i}, v{VT+1}")
        a("s_mov_b64 exec, -1")
    rank_atomics()
    a.c("Q' = -log2e*(x@W1b + b1), transposed MFMA: rows=channels, cols=nodes")
    a("s_waitcnt vmcnt(0)")
    a(f"v_lshlrev_b32 v{BI}, 16, v{B1}")
    a(f"v_and_b32 v{BI+1}, 0xffff0000, v{B1}")
    a(f"v_lshlrev_b32 v{BI+2}, 16, v{B1+1}")
    a(f"v_and_b32 v{BI+3}, 0xffff0000, v{B1+1}")
    a(f"v_mov_b32 v{ZT}, {hex(S_LOG2E)}")
    a("s_nop 0")
    for s in range(4):
        for nt in range(3):
            c = vr(BI, 4) if s == 0 else vr(QA+4*nt, 4)
            a(f"v_mfma_f32_16x16x32_bf16 {vr(QA+4*nt,4)}, {vr(WF+4*s,4)}, {vr(XF+16*nt+4*s,4)}, {c}")
    for q in range(2):
        a(f"v_lshlrev_b32 v{ZT+1}, 16, v{WE+q}")
        a(f"v_and_b32 v{ZT+2}, 0xffff0000, v{WE+q}")
        a(f"v_mul_f32 v{ZT+1}, v{ZT}, v{ZT+1}")
        a(f"v_mul_f32 v{ZT+2}, v{ZT}, v{ZT+2}")
        a(f"v_cvt_pk_bf16_f32 v{VW+q}, v{ZT+1}, v{ZT+2}")
    a(f"v_mul_u32_u24 v{ZT+1}, {ROWP}, v2")
    a(f"v_lshl_add_u32 v{ZT+1}, v1, 6, v{ZT+1}")
    a(f"v_lshl_add_u32 v{ZT+1}, v3, 4, v{ZT+1}")
    a(f"v_add_u32 v{ZT+1}, {L_Q}, v{ZT+1}")
    for k in range(12):
        a(f"v_mul_f32 v{QA+k}, v{ZT}, v{QA+k}")
    for nt in range(3):
        a(f"ds_write_b128 v{ZT+1}, {vr(QA+4*nt,4)} offset:{16*nt*ROWP}")
    a("s_waitcnt lgkmcnt(0)")
    a("s_barrier")
    stamp(2)
    a(f"v_mov_b32 v{ZT}, {L_FLAG}")
    a(f"ds_read_b32 v{ZT+1}, v{ZT}")
    a(f"v_lshlrev_b32 v{ZT+2}, 2, v{VLANE}")
    a(f"v_add_u32 v{ZT+3}, {L_CNT}, v{ZT+2}")
    a(f"ds_read_b32 v{ZT+4}, v{ZT+3}")
    a("s_waitcnt lgkmcnt(0)")
    a(f"v_readfirstlane_b32 s{sSLOW}, v{ZT+1}")
    a("s_nop 3")
    a(f"s_cmp_lg_u32 s{sSLOW}, 0")
    a("s_cbranch_scc1 K2_SLOW_NEXT")
    a("s_branch K2_SCAN2")
    a.lab("K2_SCAN")
    a(f"v_lshlrev_b32 v{ZT+2}, 2, v{VLANE}")
    a(f"v_add_u32 v{ZT+3}, {L_CNT}, v{ZT+2}")
    a(f"ds_read_b32 v{ZT+4}, v{ZT+3}")
    a("s_waitcnt lgkmcnt(0)")
    a.lab("K2_SCAN2")
    VC = ZT+4
    a(f"v_mov_b32 v{VEND}, v{VC}")
    a(f"s_cmp_lg_u32 s{sW}, 0")
    a("s_cbranch_scc1 K2_NODEG")
    a(f"v_add_u32 v{ZT+3}, {L_DEG}, v{ZT+2}")
    a(f"ds_add_u32 v{ZT+3}, v{VC}")
    a.lab("K2_NODEG")
    for sh in (1, 2, 4, 8):
        a("s_nop 1")
        a(f"v_add_u32_dpp v{VEND}, v{VEND}, v{VEND} row_shr:{sh} row_mask:0xf bank_mask:0xf bound_ctrl:0")
    a("s_nop 1")
    a(f"v_add_u32_dpp v{VEND}, v{VEND}, v{VEND} row_bcast:15 row_mask:0xa bank_mask:0xf")
    a("s_nop 1")
    a(f"v_add_u32_dpp v{VEND}, v{VEND}, v{VEND} row_bcast:31 row_mask:0xc bank_mask:0xf")
    a(f"v_cmp_ne_u32 s[{sNE}:{sNE+1}], 0, v{VC}")
    a(f"v_sub_u32 v{VSTA}, v{VEND}, v{VC}")
    a(f"v_readlane_b32 s{sT}, v{VEND}, 63")
    a(f"ds_bpermute_b32 v{ZT+2}, v{VT+2}, v{VSTA}")
    a(f"ds_bpermute_b32 v{ZT+3}, v{VT+3}, v{VSTA}")
    for i in range(2):
        a(f"v_and_b32 v{8+2*i}, 0xffff, v{R0+2*i+1}")
        a(f"v_lshlrev_b32 v{9+2*i}, 16, v{R0+2*i+1}")
    if DEBUG: a(f"s_mov_b32 s92, s{sT}")
    a(f"s_mul_i32 s{sS0}, s{sT}, s{sW}")
    a(f"s_add_u32 s{sS1}, s{sS0}, s{sT}")
    a(f"s_lshr_b32 s{sS0}, s{sS0}, 4")
    a(f"s_lshr_b32 s{sS1}, s{sS1}, 4")
    a("s_waitcnt lgkmcnt(0)")
    for i, sv in ((0, sV0), (1, sV1)):
        a(f"v_add_u32 v{ZT+2+i}, v{ZT+2+i}, v{RK+i}")
        a(f"v_lshlrev_b32 v{12+2*i}, 2, v{ZT+2+i}")
        a(f"v_add_u32 v{12+2*i}, {L_IDX}, v{12+2*i}")
        a(f"v_lshlrev_b32 v{13+2*i}, 4, v{ZT+2+i}")
        a(f"v_add_u32 v{13+2*i}, {L_EP}, v{13+2*i}")
    for i, sv in ((0, sV0), (1, sV1)):
        a(f"s_mov_b64 exec, s[{sv}:{sv+1}]")
        a(f"ds_write_b32 v{12+2*i}, v{R0+2*i}")
        a(f"ds_write2_b32 v{13+2*i}, v{8+2*i}, v{9+2*i} offset0:1 offset1:3")
    a("s_mov_b64 exec, -1")
    a.c("main loop constants")
    T0, T1, T2, T3 = VT, VT+1, VT+2, VT+3
    a(f"v_bfe_u32 v{T0}, v{VLANE}, 2, 2")
    a(f"v_bfe_u32 v{T1}, v{VLANE}, 4, 2")
    a(f"v_cmp_eq_u32 s[10:11], v{T0}, v{T1}")
    a(f"v_and_b32 v{T0}, 3, v{VLANE}")
    a(f"v_and_b32 v{T1}, 1, v{VLANE}")
    a(f"v_lshlrev_b32 v{T1}, 4, v{T1}")
    a(f"v_mov_b32 v{T2}, 0x3f80")
    a(f"v_lshlrev_b32 v{T2}, v{T1}, v{T2}")
    a(f"v_cmp_gt_u32 s[8:9], 2, v{T0}")
    a(f"s_and_b64 s[12:13], s[10:11], s[8:9]")
    a(f"s_andn2_b64 s[14:15], s[10:11], s[8:9]")
    a(f"v_cndmask_b32 v{AB}, 0, v{T2}, s[12:13]")
    a(f"v_cndmask_b32 v{AB+1}, 0, v{T2}, s[14:15]")
    for k in (4, 8):
        a(f"v_mov_b32 v{AB+k}, v{AB}")
        a(f"v_mov_b32 v{AB+k+1}, v{AB+1}")
    a(f"v_lshrrev_b32 v{T1}, 1, v{T1}")
    a(f"v_cndmask_b32 v{T2}, 0, 4, s[8:9]")
    a(f"s_lshl_b32 s{sT2}, s{sS0}, 4")
    a(f"s_add_u32 s{sT2}, s{sT2}, {L_EP}")
    a(f"v_add3_u32 v{T1}, v{T1}, v{T2}, s{sT2}")
    a(f"v_mov_b32 v{T2}, {L_ZERO}")
    a(f"v_cndmask_b32 v{VEA}, v{T2}, v{T1}, s[10:11]")
    a(f"v_mov_b32 v{T2}, {16*DP}")
    a(f"v_cndmask_b32 v{VES}, 0, v{T2}, s[10:11]")
    a(f"s_lshl_b32 s{sT2}, s{sS0}, 2")
    a(f"s_add_u32 s{sT2}, s{sT2}, {L_IDX}")
    a(f"v_mov_b32 v{VIA}, s{sT2}")
    a(f"v_lshlrev_b32 v{IP[0]+1}, 3, v{VLANE}")
    a(f"v_mov_b32 v{IP[1]+1}, v{IP[0]+1}")
    for d in range(0, DP, 2):
        a(f"v_mov_b32 v{BS+3*d+2}, v{VW}")
        a(f"v_mov_b32 v{BS+3*d+3}, v{VW+1}")
    a(f"v_cmp_lt_u32 vcc, s{sS0}, v{VEND}")
    a(f"s_mov_b32 s{sCN}, -1")
    a("s_waitcnt lgkmcnt(0)")
    a("s_barrier")
    stamp(3)
    a(f"s_cmp_eq_u32 s{sS0}, s{sS1}")
    a("s_cbranch_scc1 K2_LOOP_DONE")
    FI = 36
    assert FI + DP + 1 <= VEA
    for t in range(0, DP+1, 2):
        a(f"ds_read2_b32 {vr(FI+t,2)}, v{VIA} offset0:{t} offset1:{t+1}")
    a(f"s_and_b64 s[{sMASK}:{sMASK+1}], s[{sNE}:{sNE+1}], vcc")
    a(f"s_ff1_i32_b64 s{sCUR}, s[{sMASK}:{sMASK+1}]")
    a(f"s_bitset0_b64 s[{sMASK}:{sMASK+1}], s{sCUR}")
    a(f"v_readlane_b32 s{sT}, v{VEND}, s{sCUR}")
    a(f"v_readlane_b32 s{sT2}, v{VSTA}, s{sCUR}")
    a(f"s_lshl_b32 s{sSV}, s{sCUR}, 2")
    a(f"s_mul_i32 s{sCUR}, s{sCUR}, {ROWP}")
    a(f"v_add_u32 v{T0}, s{sCUR}, v{VQA}")
    a(f"v_subrev_u32 v{T1}, {L_Q}, v{T0}")
    a(f"ds_read_b128 {vr(Q,4)}, v{T0}")
    a(f"ds_read_b128 {vr(ACC,4)}, v{T1}")
    a(f"ds_read2_b32 {vr(ES[0],2)}, v{VEA} offset0:0 offset1:1")
    def seg_setup(start):
        a(f"s_sub_u32 s{sREM}, -1, s{start}")
        a(f"s_min_u32 s{sSEG}, s{sT}, s{sS1}")
        a(f"s_add_u32 s{sREM}, s{sREM}, s{sSEG}")
        a(f"s_min_u32 s{sREM}, s{sREM}, 4096")
    seg_setup(sS0)
    a(f"s_cmp_lt_u32 s{sT2}, s{sS0}")
    a(f"s_cselect_b32 s{sHEAD}, 1, 0")
    a("s_waitcnt lgkmcnt(0)")
    def pload(slot, pair):
        a(f"buffer_load_dwordx2 {vr(slotP(slot),2)}, {vr(pair,2)}, s[44:47], 0 idxen offen")
    def mfma(slot, es, u):
        if slot & 1:
            a(f"v_mfma_f32_16x16x32_bf16 {vr(u,4)}, {vr(es,4)}, {vr(slotP(slot)-2,4)}, {vr(Q,4)}")
        else:
            a(f"v_mfma_f32_16x16x32_bf16 {vr(u,4)}, {vr(es-2,4)}, {vr(slotP(slot),4)}, {vr(Q,4)}")
    for t in range(DP):
        a(f"v_mov_b32 v{IP[t&1]}, v{FI+t}")
        pload(t, IP[t & 1])
    a(f"v_mov_b32 v{IP[0]}, v{FI+DP}")
    a(f"s_cbranch_scc0 K2_NOHEAD")
    for k in range(4): a(f"v_mov_b32 v{ACC+k}, 0")
    a(f"s_mov_b32 s{sCN}, s{sCUR}")
    a(f"s_add_u32 s{sSV}, s{sSV}, {L_CC}")
    a(f"v_mov_b32 v{T2}, s{sSV}")
    a(f"v_mov_b32 v{T3}, 1")
    a("s_mov_b64 exec, 1")
    a(f"ds_add_rtn_u32 v{T2}, v{T2}, v{T3}")
    a(f"v_mov_b32 v{T0}, {L_MAXR}")
    a("s_waitcnt lgkmcnt(0)")
    a(f"v_readfirstlane_b32 s{sCR}, v{T2}")
    a(f"v_add_u32 v{T2}, 1, v{T2}")
    a(f"ds_max_u32 v{T0}, v{T2}")
    a("s_mov_b64 exec, -1")
    a.lab("K2_NOHEAD")
    a(f"s_waitcnt vmcnt({DP-1})")
    mfma(0, ES[0], U[0])
    pload(0, IP[0])
    a(f"ds_read2_b32 {vr(ES[1],2)}, v{VEA} offset0:4 offset1:5")
    a(f"ds_read_b32 v{IP[1]}, v{VIA} offset:{4*(DP+1)}")
    stamp(4)
    a("s_branch K2_SUB0")
    def valu(u):
        for c in range(4): a(f"v_exp_f32 v{EX+c}, v{u+c}")
        for c in range(0, 4, 2): a(f"v_pk_add_f32 {vr(EX+c,2)}, {vr(EX+c,2)}, 1.0 op_sel_hi:[1,0]")
        for c in range(4): a(f"v_rcp_f32 v{EX+c}, v{EX+c}")
        for c in range(0, 4, 2): a(f"v_pk_fma_f32 {vr(ACC+c,2)}, {vr(u+c,2)}, {vr(EX+c,2)}, {vr(ACC+c,2)}")
    uid = [0]
    def flush():
        uid[0] += 1
        a(f"s_cmp_lg_u32 s{sHEAD}, 0")
        a(f"s_cbranch_scc1 K2_FH{uid[0]}")
        a(f"ds_write_b128 v{T1}, {vr(ACC,4)}")
        a(f"s_branch K2_FD{uid[0]}")
        a.lab(f"K2_FH{uid[0]}")
        for c in range(4): a(f"v_mov_b32 v{CARRY+c}, v{ACC+c}")
        a(f"s_mov_b32 s{sHEAD}, 0")
        a.lab(f"K2_FD{uid[0]}")
    def nextloads(k):
        pload((k+1) % DP, IP[(k+1) & 1])
        a(f"ds_read2_b32 {vr(ES[k&1],2)}, v{VEA} offset0:{4*(k+2)} offset1:{4*(k+2)+1}")
        a(f"ds_read_b32 v{IP[k&1]}, v{VIA} offset:{4*(k+2+DP)}")
    a.raw(".p2align 3")
    a.lab("K2_LOOP")
    a(f"v_add_u32 v{VEA}, v{VES}, v{VEA}")
    a(f"v_add_u32 v{VIA}, {4*DP}, v{VIA}")
    for k in range(DP):
        a.lab(f"K2_SUB{k}")
        a(f"s_sub_u32 s{sREM}, s{sREM}, 1")
        a(f"s_cbranch_scc1 K2_BND{k}")
        a(f"s_waitcnt vmcnt({DP-1}) lgkmcnt(0)")
        mfma((k+1) % DP, ES[(k+1) & 1], U[(k+1) & 1])
        nextloads(k)
        valu(U[k & 1])
    a("s_branch K2_LOOP")
    for k in range(DP):
        a.lab(f"K2_BND{k}")
        a(f"s_cmp_eq_u32 s{sSEG}, s{sS1}")
        a(f"s_cbranch_scc1 K2_FIN{k&1}")
        a(f"s_ff1_i32_b64 s{sT2}, s[{sMASK}:{sMASK+1}]")
        a(f"s_cmp_lt_i32 s{sT2}, 0")
        a(f"s_cbranch_scc1 K2_FIN{k&1}")
        a(f"s_bitset0_b64 s[{sMASK}:{sMASK+1}], s{sT2}")
        a(f"v_readlane_b32 s{sT}, v{VEND}, s{sT2}")
        a(f"s_mul_i32 s{sCUR}, s{sT2}, {ROWP}")
        a(f"v_add_u32 v{T0}, s{sCUR}, v{VQA}")
        a(f"ds_read_b128 {vr(Q,4)}, v{T0}")
        a("s_waitcnt lgkmcnt(1)")
        valu(U[k & 1])
        flush()
        a(f"v_subrev_u32 v{T1}, {L_Q}, v{T0}")
        a(f"ds_read_b128 {vr(ACC,4)}, v{T1}")
        a(f"s_mov_b32 s{sSV}, s{sSEG}")
        seg_setup(sSV)
        a(f"s_waitcnt vmcnt({DP-1}) lgkmcnt(1)")
        mfma((k+1) % DP, ES[(k+1) & 1], U[(k+1) & 1])
        nextloads(k)
        a("s_nop 1")
        a(f"s_branch K2_SUB{k+1}" if k < DP-1 else "s_branch K2_LOOP")
    for p in range(2):
        a.lab(f"K2_FIN{p}")
        a("s_nop 3")
        a("s_waitcnt lgkmcnt(0)")
        valu(U[p])
        flush()
        if p == 0: a("s_branch K2_LOOP_DONE")
    a.lab("K2_LOOP_DONE")
    stamp(5)
    a("s_waitcnt vmcnt(0)")
    a(f"s_cmp_lg_u32 s{sSLOW}, 0")
    a("s_cbranch_scc1 K2_CARRY")
    a.lab("K2_EPI")
    a.c("out = -ln2 * S @ w2 + deg*b2 ; waves 0..11: node tile nt = w>>2, oc pair op = w&3")
    AF = 48
    SB = 8
    SF = 32
    OA = 40
    B2 = 24
    DG = VT+4
    a(f"s_cmp_ge_u32 s{sW}, 12")
    a("s_cbranch_scc1 K2_CARRY")
    a(f"s_and_b32 s4, s{sW}, 3")
    a(f"s_lshr_b32 s5, s{sW}, 2")
    a("s_lshl_b32 s6, s4, 14")
    a(f"s_add_u32 s6, s6, {hex(WS_W2)}")
    a(f"v_lshlrev_b32 v7, 4, v{VLANE}")
    for q in range(4):
        if q: a("s_add_u32 s6, s6, 4096")
        for s in range(4):
            a(f"buffer_load_dwordx4 {vr(AF+16*q+4*s,4)}, v7, s[40:43], s6 offen offset:{1024*s}")
    a("v_bfe_u32 v3, v0, 4, 2")
    a("v_and_b32 v2, 15, v0")
    a("s_lshl_b32 s7, s4, 6")
    a("v_lshlrev_b32 v5, 3, v3")
    a("v_add_u32 v5, s7, v5")
    a(f"global_load_dwordx2 {vr(B2,2)}, v5, s[{PB2}:{PB2+1}]")
    a(f"global_load_dwordx2 {vr(B2+2,2)}, v5, s[{PB2}:{PB2+1}] offset:32")
    a("s_lshl_b32 s8, s5, 4")
    a("v_add_u32 v6, s8, v2")
    a(f"v_mul_u32_u24 v4, {ROWP}, v6")
    a("v_lshl_add_u32 v4, v3, 5, v4")
    a(f"v_lshlrev_b32 v1, 2, v6")
    a(f"v_add_u32 v1, {L_DEG}, v1")
    a("v_lshl_add_u32 v5, v6, 16, v5")
    a("s_lshl_b32 s9, s2, 8")
    a("v_add_u32 v5, s9, v5")
    a.lab("K2_CARRY")
    a(f"v_mov_b32 v{T0}, {L_MAXR}")
    a(f"v_subrev_u32 v{T1}, {L_Q}, v{VQA}")
    a(f"v_add_u32 v{T1}, s{sCN}, v{T1}")
    a(f"s_mov_b32 s{sRND}, 0")
    a("s_waitcnt lgkmcnt(0)")
    a("s_barrier")
    a(f"ds_read_b32 v{T2}, v{T0}")
    a(f"s_cmp_lt_i32 s{sCN}, 0")
    a(f"s_cselect_b32 s{sCR}, -1, s{sCR}")
    a("s_waitcnt lgkmcnt(0)")
    a(f"v_readfirstlane_b32 s{sT}, v{T2}")
    a("s_nop 3")
    a(f"s_min_u32 s{sT}, s{sT}, 16")
    a.lab("K2_CR_LOOP")
    a(f"s_cmp_ge_u32 s{sRND}, s{sT}")
    a("s_cbranch_scc1 K2_CR_DONE")
    a(f"s_cmp_lg_u32 s{sRND}, s{sCR}")
    a("s_cbranch_scc1 K2_CR_SKIP")
    a(f"ds_read_b128 {vr(EX,4)}, v{T1}")
    a("s_waitcnt lgkmcnt(0)")
    for c in range(4): a(f"v_add_f32 v{EX+c}, v{EX+c}, v{CARRY+c}")
    a(f"ds_write_b128 v{T1}, {vr(EX,4)}")
    a.lab("K2_CR_SKIP")
    a(f"s_add_u32 s{sRND}, s{sRND}, 1")
    a("s_waitcnt lgkmcnt(0)")
    a("s_barrier")
    a("s_branch K2_CR_LOOP")
    a.lab("K2_CR_DONE")
    a(f"s_cmp_lg_u32 s{sSLOW}, 0")
    a("s_cbranch_scc1 K2_SLOW_SYNC")
    a(f"s_cmp_ge_u32 s{sW}, 12")
    a("s_cbranch_scc1 K2_EXIT")
    stamp(6)
    a(f"ds_read_b32 v{DG}, v1")
    def sread(s):
        a(f"ds_read_b128 {vr(SB+8*(s&1),4)}, v4 offset:{128*s}")
        a(f"ds_read_b128 {vr(SB+8*(s&1)+4,4)}, v4 offset:{128*s+16}")
    sread(0); sread(1)
    a("s_waitcnt vmcnt(0)")
    for s in range(8):
        a(f"s_waitcnt lgkmcnt({2 if s < 7 else 0})")
        for q in range(4):
            a(f"v_cvt_pk_bf16_f32 v{SF+4*(s&1)+q}, v{SB+8*(s&1)+2*q}, v{SB+8*(s&1)+2*q+1}")
        if s + 2 < 8: sread(s+2)
        else: a("s_nop 1")
        for t in range(2):
            c = "0" if s == 0 else vr(OA+4*t, 4)
            a(f"v_mfma_f32_16x16x32_bf16 {vr(OA+4*t,4)}, {vr(AF+32*t+4*s,4)}, {vr(SF+4*(s&1),4)}, {c}")
    a(f"v_cvt_f32_u32 v{DG}, v{DG}")
    a(f"v_mov_b32 v{DG+1}, {hex(S_LN2)}")
    for t in range(2):
        a(f"v_lshlrev_b32 v{SB+4*t}, 16, v{B2+2*t}")
        a(f"v_and_b32 v{SB+4*t+1}, 0xffff0000, v{B2+2*t}")
        a(f"v_lshlrev_b32 v{SB+4*t+2}, 16, v{B2+2*t+1}")
        a(f"v_and_b32 v{SB+4*t+3}, 0xffff0000, v{B2+2*t+1}")
    for k in range(8):
        a(f"v_mul_f32 v{SB+k}, v{DG}, v{SB+k}")
    for k in range(8):
        a(f"v_fma_f32 v{SB+k}, v{OA+k}, v{DG+1}, v{SB+k}")
    for t in range(2):
        a(f"v_cvt_pk_bf16_f32 v{SF+2*t}, v{SB+4*t}, v{SB+4*t+1}")
        a(f"v_cvt_pk_bf16_f32 v{SF+2*t+1}, v{SB+4*t+2}, v{SB+4*t+3}")
        a(f"buffer_store_dwordx2 {vr(SF+2*t,2)}, v5, s[48:51], 0 offen offset:{32*t}")
    dump()
    a.lab("K2_EXIT")
    a("s_endpgm")
    a.lab("K2_SLOW_SYNC")
    a("s_barrier")
    a.lab("K2_SLOW_NEXT")
    a(f"s_cmp_lt_u32 s{sBATCH}, {E}")
    a("s_cbranch_scc1 K2_SLOW_GO")
    a(f"s_mov_b32 s{sSLOW}, 0")
    a(f"s_mov_b32 s{sCN}, -1")
    a("s_branch K2_EPI")
    a.lab("K2_SLOW_GO")
    srd(a, 76, PDST, E*4)
    srd(a, 80, PSRC, E*4)
    srd(a, 84, PE, E*2)
    a("v_lshlrev_b32 v4, 4, v0")
    a("v_lshlrev_b32 v5, 3, v0")
    a("v_lshlrev_b32 v6, 2, v0")
    a(f"s_lshl_b32 s4, s{sBATCH}, 2")
    a(f"s_lshl_b32 s5, s{sBATCH}, 1")
    a("buffer_load_dwordx2 v[8:9], v5, s[76:79], s4 offen")
    a("buffer_load_dwordx2 v[10:11], v5, s[80:83], s4 offen")
    a("buffer_load_dword v12, v6, s[84:87], s5 offen")
    for k in range(4): a(f"v_mov_b32 v{ZT+k}, 0")
    zero_batch(L_BZEND)
    a("v_lshlrev_b32 v13, 1, v0")
    a(f"v_add_u32 v13, s{sBATCH}, v13")
    a(f"v_mov_b32 v14, {E}")
    a("v_cmp_lt_u32 vcc, v13, v14")
    a("v_mov_b32 v15, 0xffff")
    a(f"v_mov_b32 v{VT+1}, 1")
    a("s_waitcnt vmcnt(0) lgkmcnt(0)")
    a("s_barrier")
    for i, sv in ((0, sV0), (1, sV1)):
        a(f"v_and_b32 v13, 0xff, v{8+i}")
        a(f"v_cmp_eq_u32 s[{sv}:{sv+1}], s2, v13")
        a(f"v_mov_b32 v{R0+2*i}, v{10+i}")
        a(f"v_lshlrev_b32 v13, 8, v{8+i}")
        if i: a("v_lshrrev_b32 v12, 16, v12")
        a(f"v_bfi_b32 v{R0+2*i+1}, v15, v12, v13")
        a(f"s_and_b64 s[{sv}:{sv+1}], s[{sv}:{sv+1}], vcc")
    rank_atomics()
    a(f"s_add_u32 s{sBATCH}, s{sBATCH}, 2048")
    a("s_waitcnt lgkmcnt(0)")
    a("s_barrier")
    a("s_branch K2_SCAN")
    return NV

HEADER = open('standalone__edge_featured_mpnn_mpnn__graph.s.ref').read().split("; Override launch")[0]

def kd(name, nv, ns):
    acc = (nv + 3) // 4 * 4
    return f""".p2align 6
.amdhsa_kernel {name}
  .amdhsa_next_free_vgpr {nv}
  .amdhsa_next_free_sgpr {ns}
  .amdhsa_accum_offset {acc}
  .amdhsa_group_segment_fixed_size 0
  .amdhsa_kernarg_size 88
  .amdhsa_user_sgpr_count 2
  .amdhsa_user_sgpr_kernarg_segment_ptr 1
  .amdhsa_system_sgpr_workgroup_id_x 1
.end_amdhsa_kernel
"""

def build(TPW=4, DP=12):
    a = Asm()
    g1 = gen_k1(a, TPW)
    nv2 = gen_k2(a, DP)
    out = HEADER
    out += f"; @launch kernel=k1_kernel grid=({g1},1,1) block=(256,1,1) lds=1024\n"
    out += f"; @launch kernel=k2_kernel grid=(256,1,1) block=(1024,1,1) lds={L_END}\n"
    out += '.amdgcn_target "amdgcn-amd-amdhsa--gfx950"\n.text\n'
    out += a.text()
    out += '.section .rodata,"a"\n'
    out += kd("k1_kernel", 224, 64)
    out += kd("k2_kernel", 128, 96)
    return out

if __name__ == "__main__":
    import argparse
    ap = argparse.ArgumentParser()
    ap.add_argument("-o", default="standalone__edge_featured_mpnn_mpnn__graph.s")
    ap.add_argument("--tpw", type=int, default=4)
    ap.add_argument("--dp", type=int, default=12)
    ap.add_argument("--debug", action="store_true")
    args = ap.parse_args()
    DEBUG = args.debug
    open(args.o, "w").write(build(args.tpw, args.dp))
```

```python
import sys, struct

N, E, D_, H = 10000, 160000, 128, 256
NCH = 64
CH_E = E // NCH
CAP = 31
WS_P = 0
WS_CELLS = 0x500000
WS_WQ = 0x900000
WS_W2 = 0x910000
WS_END = 0x920000

def f32bits(x): return struct.unpack('<I', struct.pack('<f', x))[0]
S_LOG2E = f32bits(-1.4426950408889634)
S_LN2 = f32bits(-0.6931471805599453)

class Asm:
    def __init__(self): self.l = []
    def __call__(self, s): self.l.append("    " + s)
    def lab(self, s): self.l.append(s + ":")
    def c(self, s): self.l.append("    ; " + s)
    def raw(self, s): self.l.append(s)
    def text(self): return "\n".join(self.l) + "\n"

def vr(a, n): return f"v[{a}:{a+n-1}]"
def sr(a, n): return f"s[{a}:{a+n-1}]"

def srd(a, d, base, nrec, stride=0, add=0):
    if add:
        a(f"s_add_u32 s{d}, s{base}, {hex(add)}")
        a(f"s_addc_u32 s{d+1}, s{base+1}, 0")
    else:
        a(f"s_mov_b32 s{d}, s{base}")
        a(f"s_mov_b32 s{d+1}, s{base+1}")
    if stride:
        a(f"s_or_b32 s{d+1}, s{d+1}, {hex(stride << 16)}")
    a(f"s_mov_b32 s{d+2}, {hex(nrec)}")
    a(f"s_mov_b32 s{d+3}, 0x20000")

PX, PE, PSRC, PDST, PW1, PB1, PW2, PB2 = 16, 18, 20, 22, 24, 26, 28, 30

DEBUG = False
SRCMASK = 0
EXP = set()
PF = 0
def gen_k1(a, TPW):
    NG = (625 + TPW - 1) // TPW
    GRID = NCH + 4 + NG
    a.raw(".globl k1_kernel"); a.raw(".p2align 8"); a.raw(".type k1_kernel,@function")
    a.lab("k1_kernel")
    a(f"s_cmp_ge_u32 s2, {GRID}")
    a("s_cbranch_scc1 K1_EXIT")
    a("s_load_dwordx16 s[16:31], s[0:1], 0")
    a("s_load_dwordx2 s[32:33], s[0:1], 80")
    if DEBUG: a("s_memrealtime s[56:57]")
    def k1end():
        if DEBUG:
            a("s_waitcnt vmcnt(0)")
            a("s_memrealtime s[58:59]")
            a("s_lshl_b32 s60, s2, 4")
            a("s_add_u32 s60, s60, 0xB00000")
            a("v_mov_b32 v1, s60")
            a("s_waitcnt lgkmcnt(0)")
            a("v_mov_b32 v2, s56")
            a("v_mov_b32 v3, s58")
            a("v_cmp_eq_u32 vcc, 0, v0")
            a("s_and_saveexec_b64 s[60:61], vcc")
            a("s_cbranch_execz K1_EXIT")
            a("global_store_dwordx2 v1, v[2:3], s[32:33]")
        a("s_endpgm")
    a(f"s_cmp_lt_u32 s2, {NCH}")
    a("s_cbranch_scc1 K1_SORT")
    a(f"s_cmp_lt_u32 s2, {NCH+4}")
    a("s_cbranch_scc1 K1_TRANS")
    a.c("GEMM role: P' = -log2e * x @ W1a")
    a("v_lshrrev_b32 v1, 6, v0")
    a("v_and_b32 v2, 15, v0")
    a("v_bfe_u32 v3, v0, 4, 2")
    a("v_lshlrev_b32 v4, 7, v1")
    a("v_lshl_add_u32 v4, v2, 3, v4")
    a("v_lshl_add_u32 v5, v3, 12, v4")
    a("v_lshl_add_u32 v6, v3, 11, v4")
    a("v_lshlrev_b32 v7, 8, v2")
    a("v_lshl_add_u32 v7, v3, 4, v7")
    a(f"s_sub_u32 s3, s2, {NCH+4}")
    a(f"s_mul_i32 s3, s3, {TPW}")
    a("s_lshl_b32 s4, s3, 12")
    a("s_lshl_b32 s5, s3, 13")
    a("s_mov_b32 s6, 0x4000"); a("s_mov_b32 s7, 0x8000"); a("s_mov_b32 s8, 0xc000")
    a("s_mov_b32 s9, 0x05040100"); a("s_mov_b32 s10, 0x07060302")
    a(f"v_mov_b32 v8, {hex(S_LOG2E)}")
    a("s_waitcnt lgkmcnt(0)")
    srd(a, 36, PX, N*256)
    srd(a, 40, PW1, 257*512)
    srd(a, 44, 32, N*512, add=WS_P)
    RAW = 64; FR = 128; XF = 16; ACC = 192
    def xload(t):
        if t:
            a(f"s_add_u32 s11, s4, {t*4096}")
        else:
            a("s_mov_b32 s11, s4")
        for s in range(4):
            a(f"buffer_load_dwordx4 {vr(XF+16*(t%3)+4*s,4)}, v7, s[36:39], s11 offen offset:{64*s}")
    so = ["0", "s6", "s7", "s8"]
    for s in range(4):
        for m in range(8):
            a(f"buffer_load_dwordx2 {vr(RAW+16*s+2*m,2)}, v5, s[40:43], {so[s]} offen offset:{512*m}")
    npre = min(TPW, 3)
    for t in range(npre): xload(t)
    for s in range(4):
        a(f"s_waitcnt vmcnt({4*npre + 8*(3-s)})")
        for t in range(4):
            for p in range(4):
                a(f"v_perm_b32 v{FR+16*s+4*t+p}, v{RAW+16*s+2*(2*p+1)+(t>>1)}, v{RAW+16*s+2*(2*p)+(t>>1)}, s{9+(t&1)}")
    outstanding = []
    for t in range(npre): outstanding += [("x", t)]*4
    def wait_for(tag):
        idx = max(i for i, x in enumerate(outstanding) if x == tag)
        n = len(outstanding) - 1 - idx
        a(f"s_waitcnt vmcnt({n})")
        del outstanding[:idx+1]
    for t in range(TPW):
        wait_for(("x", t))
        acc = ACC + 16*(t & 1)
        for s in range(4):
            for tt in range(4):
                c = "0" if s == 0 else vr(acc+4*tt, 4)
                a(f"v_mfma_f32_16x16x32_bf16 {vr(acc+4*tt,4)}, {vr(XF+16*(t%3)+4*s,4)}, {vr(FR+16*s+4*tt,4)}, {c}")
        if t + 3 < TPW:
            xload(t+3); outstanding.extend([("x", t+3)]*4)
        a(f"s_add_u32 s12, s5, {t*8192}")
        a("s_nop 7")
        for tt in range(4):
            for r in range(4):
                a(f"v_mul_f32 v{acc+4*tt+r}, v8, v{acc+4*tt+r}")
        ob = RAW + 8*(t & 3)
        for r in range(4):
            a(f"v_cvt_pk_bf16_f32 v{ob+2*r}, v{acc+0+r}, v{acc+4+r}")
            a(f"v_cvt_pk_bf16_f32 v{ob+2*r+1}, v{acc+8+r}, v{acc+12+r}")
        for r in range(4):
            a(f"buffer_store_dwordx2 {vr(ob+2*r,2)}, v6, s[44:47], s12 offen offset:{512*r}")
            outstanding.append(("st", t))
    k1end()
    a.lab("K1_TRANS")
    a.c("fragment transposer for W1b (WQ) and w2 (W2F)")
    a(f"s_sub_u32 s3, s2, {NCH}")
    a("s_and_b32 s4, s3, 1")
    a("s_lshl_b32 s4, s4, 8")
    a("v_add_u32 v1, s4, v0")
    a("s_mov_b32 s9, 0x05040100"); a("s_mov_b32 s10, 0x07060302")
    a("s_waitcnt lgkmcnt(0)")
    a("s_cmp_ge_u32 s3, 2")
    a("s_cbranch_scc1 K1_TR_W2")
    a("v_and_b32 v2, 31, v1")
    a("v_lshrrev_b32 v3, 5, v1")
    a("v_lshlrev_b32 v4, 4, v2")
    a("v_lshl_add_u32 v4, v3, 12, v4")
    a("v_add_u32 v4, 0x10000, v4")
    a("v_lshrrev_b32 v5, 1, v2")
    a("v_lshlrev_b32 v5, 12, v5")
    a("v_lshl_add_u32 v5, v3, 8, v5")
    a("v_and_b32 v6, 1, v2")
    a("v_lshl_add_u32 v5, v6, 7, v5")
    srd(a, 36, PW1, 257*512)
    srd(a, 40, 32, 0x10000, add=WS_WQ)
    a("s_mov_b32 s5, 512")
    a("s_branch K1_TR_GO")
    a.lab("K1_TR_W2")
    a("v_and_b32 v2, 15, v1")
    a("v_bfe_u32 v3, v1, 4, 3")
    a("v_lshrrev_b32 v7, 7, v1")
    a("v_lshlrev_b32 v4, 4, v2")
    a("v_lshl_add_u32 v4, v3, 13, v4")
    a("v_lshl_add_u32 v4, v7, 11, v4")
    a("v_lshrrev_b32 v5, 1, v2")
    a("v_lshlrev_b32 v5, 13, v5")
    a("v_lshl_add_u32 v5, v3, 10, v5")
    a("v_lshl_add_u32 v5, v7, 8, v5")
    a("v_and_b32 v6, 1, v2")
    a("v_lshl_add_u32 v5, v6, 7, v5")
    srd(a, 36, PW2, 256*256)
    srd(a, 40, 32, 0x10000, add=WS_W2)
    a("s_mov_b32 s5, 256")
    a.lab("K1_TR_GO")
    a("s_mov_b32 s6, 0")
    for m in range(8):
        a(f"buffer_load_dwordx4 {vr(16+4*m,4)}, v4, s[36:39], s6 offen")
        if m < 7: a("s_add_u32 s6, s6, s5")
    a("s_waitcnt vmcnt(0)")
    for cc in range(8):
        for p in range(4):
            a(f"v_perm_b32 v{48+4*cc+p}, v{16+4*(2*p+1)+(cc>>1)}, v{16+4*(2*p)+(cc>>1)}, s{9+(cc&1)}")
        a(f"buffer_store_dwordx4 {vr(48+4*cc,4)}, v5, s[40:43], 0 offen offset:{16*cc}")
    k1end()
    a.lab("K1_SORT")
    a.c("bucket the edges of chunk s2 by dst&255")
    a("v_lshlrev_b32 v1, 2, v0")
    a("v_mov_b32 v2, 0")
    a("ds_write_b32 v1, v2")
    a("v_lshlrev_b32 v3, 4, v0")
    a("v_lshlrev_b32 v4, 3, v0")
    a("v_mov_b32 v5, 1")
    a("v_mov_b32 v6, 0x80000000")
    a("v_mov_b32 v7, 0xffff")
    a(f"s_mul_i32 s3, s2, {CH_E*4}")
    a(f"s_mul_i32 s4, s2, {CH_E*2}")
    a("s_lshl_b32 s5, s2, 8")
    a("s_add_u32 s6, s3, 4096"); a("s_add_u32 s7, s3, 8192")
    a("s_waitcnt lgkmcnt(0)")
    srd(a, 36, PDST, E*4)
    srd(a, 40, PSRC, E*4)
    srd(a, 44, PE, E*2)
    srd(a, 48, 32, 256*NCH*256, add=WS_CELLS)
    DST, SRC, EA = 16, 28, 40
    RK, OFF, REC = 48, 60, 72
    so = ["s3", "s6", "s7"]
    nlast = CH_E//4 - 512
    for r in range(2):
        a(f"buffer_load_dwordx4 {vr(DST+4*r,4)}, v3, s[36:39], {so[r]} offen")
    for r in range(2):
        a(f"buffer_load_dwordx4 {vr(SRC+4*r,4)}, v3, s[40:43], {so[r]} offen")
        a(f"buffer_load_dwordx2 {vr(EA+2*r,2)}, v4, s[44:47], s4 offen offset:{2048*r}")
    a(f"buffer_load_dwordx4 {vr(DST+8,4)}, v3, s[36:39], s7 offen")
    a(f"buffer_load_dwordx4 {vr(SRC+8,4)}, v3, s[40:43], s7 offen")
    a("s_add_u32 s8, s4, 4096")
    a(f"buffer_load_dwordx2 {vr(EA+4,2)}, v4, s[44:47], s8 offen")
    a(f"v_cmp_gt_u32 vcc, {nlast}, v0")
    a("s_nop 1")
    a("s_mov_b64 s[10:11], vcc")
    a("s_barrier")
    def atomics(r):
        for i in range(4):
            k = 4*r+i
            a(f"v_and_b32 v{OFF+k}, 0xff, v{DST+k}")
            a(f"v_lshlrev_b32 v8, 2, v{OFF+k}")
            a(f"ds_add_rtn_u32 v{RK+k}, v8, v5")
    def emit(r):
        for i in range(4):
            k = 4*r+i
            a(f"v_lshlrev_b32 v{OFF+k}, 14, v{OFF+k}")
            a(f"v_lshl_add_u32 v{OFF+k}, v{RK+k}, 3, v{OFF+k}")
            a(f"v_sub_u32 v8, {CAP-1}, v{RK+k}")
            a(f"v_and_or_b32 v{OFF+k}, v8, v6, v{OFF+k}")
            if SRCMASK: a(f"v_and_b32 v{REC+2*k}, {SRCMASK}, v{SRC+k}")
            else: a(f"v_mov_b32 v{REC+2*k}, v{SRC+k}")
            a(f"v_lshlrev_b32 v9, 8, v{DST+k}")
            e = EA + 2*r + (i >> 1)
            if i & 1:
                a(f"v_lshrrev_b32 v10, 16, v{e}")
                a(f"v_bfi_b32 v{REC+2*k+1}, v7, v10, v9")
            else:
                a(f"v_bfi_b32 v{REC+2*k+1}, v7, v{e}, v9")
            a(f"buffer_store_dwordx2 {vr(REC+2*k,2)}, v{OFF+k}, s[48:51], s5 offen offset:8")
    a("s_waitcnt vmcnt(7)")
    atomics(0); atomics(1)
    a("s_waitcnt vmcnt(0) lgkmcnt(0)")
    emit(0); emit(1)
    a("s_and_saveexec_b64 s[12:13], s[10:11]")
    a("s_cbranch_execz K1_S_SKIP")
    atomics(2)
    a("s_waitcnt lgkmcnt(0)")
    emit(2)
    a.lab("K1_S_SKIP")
    a("s_mov_b64 exec, s[12:13]")
    a("s_waitcnt lgkmcnt(0)")
    a("s_barrier")
    a("ds_read_b32 v2, v1")
    a("v_lshlrev_b32 v3, 14, v0")
    a("s_waitcnt lgkmcnt(0)")
    a("buffer_store_dword v2, v3, s[48:51], s5 offen")
    k1end()
    a.lab("K1_EXIT")
    a("s_endpgm")
    return GRID

ROWP = 1040
SBROW = 528
BATCH = 1024
L_S = 0
L_Q = L_S + 40*ROWP
L_SB = L_Q
NSLOT = BATCH + 16
L_EP = L_Q + 40*ROWP
L_IDX = L_EP + NSLOT*16
L_CNT = L_IDX + NSLOT*4
L_HN = L_CNT + 256
L_ZERO = L_HN + 128
L_BZEND = L_ZERO + 256
L_DEG = L_BZEND
L_FLAG = L_DEG + 256
L_ZEND = L_FLAG + 16
XROW = 272
L_CR = L_ZEND
L_XS = L_CR
L_END = L_CR + 32*ROWP

def gen_k2(a, DP):
    assert DP % 2 == 0
    INF = 0x7fffffff
    def stamp(i):
        if not DEBUG: return
        a("s_memtime s[94:95]")
        a("s_waitcnt lgkmcnt(0)")
        a(f"s_mov_b32 s{84+i}, s94")
    a.raw(".globl k2_kernel"); a.raw(".p2align 8"); a.raw(".type k2_kernel,@function")
    a.lab("k2_kernel")
    a("s_cmp_ge_u32 s2, 256")
    a("s_cbranch_scc1 K2_EXIT")
    a("s_load_dwordx16 s[16:31], s[0:1], 0")
    a("s_load_dwordx2 s[32:33], s[0:1], 64")
    a("s_load_dwordx2 s[34:35], s[0:1], 80")
    if DEBUG: a("s_memrealtime s[96:97]")
    stamp(0)
    U = [8, 16]; EX, ACC, Q, CARRY = 24, 32, 40, 48
    IP = [56, 58]
    AB = 60
    ES = [62, 66]
    BS = 70
    M = 118
    assert BS + 8*DP <= M
    VEA, VIA, VES, VEND, VQA, VSTA, VI0, VI1, VPO, VEO = range(M, M+10)
    T0, T1, T2, T3 = 1, 2, 3, 4
    WF = 8
    B1 = 68
    XP = 24
    R0 = 28
    HD = 32
    RK = 33
    LA = 35
    WE = 38
    ZT = 42
    XF = 24
    QA = 56
    BI = 64
    sW, sV0, sV1, sNE = 3, 52, 54, 56
    sT, sT2, sREM, sTEV, sSLOW, sBATCH, sQD, sRND, sLEFT, sX = 58, 59, 60, 61, 62, 63, 64, 65, 66, 68
    sMASK = [70, 72]; sPOS = [74, 75]; sEND = [76, 77]; sSEGL = [78, 79]; sHEAD = [80, 81]; sCR = [82, 83]
    sROW = [4, 5]
    HM = ["0x00000000ffffffff", "0xffffffff00000000"]
    def exec_half(x):
        a(f"s_mov_b32 exec_lo, {-1 if x == 0 else 0}")
        a(f"s_mov_b32 exec_hi, {0 if x == 0 else -1}")
    a("v_lshrrev_b32 v1, 6, v0")
    a("v_and_b32 v2, 15, v0")
    a("v_bfe_u32 v3, v0, 4, 2")
    a("v_readfirstlane_b32 s3, v1")
    a("v_lshlrev_b32 v4, 4, v0")
    a("v_and_b32 v5, 0xffffff00, v4")
    a("s_lshl_b32 s4, s2, 14")
    a(f"s_add_u32 s4, s4, {hex(WS_CELLS)}")
    a("v_lshrrev_b32 v6, 4, v0")
    a("v_lshlrev_b32 v7, 16, v6")
    a("v_lshl_add_u32 v7, v2, 4, v7")
    a("s_lshl_b32 s5, s2, 8")
    a("v_add_u32 v7, s5, v7")
    a(f"v_and_b32 v{ZT+4}, 0x3f0, v4")
    a("s_lshl_b32 s8, s3, 12")
    a(f"s_add_u32 s8, s8, {hex(WS_WQ)}")
    for k in range(4): a(f"v_mov_b32 v{ZT+k}, 0")
    a(f"v_add_u32 v{ZT+5}, {L_EP}, v4")
    a("s_waitcnt lgkmcnt(0)")
    srd(a, 40, 34, WS_END)
    a(f"buffer_load_dwordx4 {vr(R0,4)}, v4, s[40:43], s4 offen")
    a(f"buffer_load_dword v{HD}, v5, s[40:43], s4 offen")
    srd(a, 36, PX, N*256)
    a(f"buffer_load_dwordx4 {vr(XP,4)}, v7, s[36:39], 0 offen")
    a(f"v_and_b32 v{VPO}, 0x1f0, v4")
    a(f"v_add_u32 v{ZT+12}, 0x20000, v{VPO}")
    a(f"v_lshlrev_b32 v{ZT+13}, 5, v1")
    a(f"v_lshl_add_u32 v{ZT+13}, v3, 3, v{ZT+13}")
    a(f"s_mov_b32 s67, s8")
    def zero_batch(upto):
        zsz = upto - L_EP
        assert 16384 < zsz <= 2*16384 and zsz % 16 == 0
        a(f"ds_write_b128 v{ZT+5}, {vr(ZT,4)} offset:{zsz-16384}")
        a(f"ds_write_b128 v{ZT+5}, {vr(ZT,4)}")
    zero_batch(L_ZEND)
    a(f"ds_write_b128 v4, {vr(ZT,4)} offset:{L_S}")
    a(f"ds_write_b128 v4, {vr(ZT,4)} offset:{L_S+16384}")
    a(f"ds_write_b128 v4, {vr(ZT,4)} offset:{L_S+40*ROWP-16384}")
    srd(a, 44, 34, N, stride=512, add=WS_P)
    srd(a, 48, 32, N*256)
    a(f"s_mov_b32 s{sSLOW}, 0")
    a(f"s_mov_b32 s{sBATCH}, 0")
    a(f"s_mov_b32 s{sQD}, 0")
    a(f"v_lshlrev_b32 v{VQA}, 1, v{VPO}")
    a(f"v_add_u32 v{VQA}, {L_Q}, v{VQA}")
    a(f"v_bfe_u32 v{ZT+6}, v0, 2, 2")
    a(f"v_cmp_eq_u32 s[10:11], v{ZT+6}, v3")
    a(f"v_and_b32 v{ZT+7}, 1, v0")
    a(f"v_lshlrev_b32 v{ZT+7}, 4, v{ZT+7}")
    a(f"v_mov_b32 v{ZT+8}, 0x3f80")
    a(f"v_lshlrev_b32 v{ZT+8}, v{ZT+7}, v{ZT+8}")
    a(f"v_and_b32 v{ZT+6}, 2, v0")
    a(f"v_cmp_eq_u32 s[8:9], 0, v{ZT+6}")
    a(f"s_and_b64 s[12:13], s[10:11], s[8:9]")
    a(f"s_andn2_b64 s[14:15], s[10:11], s[8:9]")
    a(f"v_cndmask_b32 v{VI0}, 0, v{ZT+8}, s[12:13]")
    a(f"v_cndmask_b32 v{VI1}, 0, v{ZT+8}, s[14:15]")
    a(f"v_lshrrev_b32 v{ZT+7}, 1, v{ZT+7}")
    a(f"v_cndmask_b32 v{ZT+8}, 0, 4, s[8:9]")
    a(f"v_add_u32 v{ZT+7}, v{ZT+7}, v{ZT+8}")
    a(f"v_add_u32 v{ZT+7}, {L_EP}, v{ZT+7}")
    a(f"v_mov_b32 v{ZT+8}, {L_ZERO}")
    a(f"v_cndmask_b32 v{VEO}, v{ZT+8}, v{ZT+7}, s[10:11]")
    a(f"v_cndmask_b32 v{VES}, 0, 16, s[10:11]")
    a(f"v_mul_u32_u24 v6, {XROW}, v6")
    a(f"v_lshl_add_u32 v6, v2, 4, v6")
    a(f"v_add_u32 v6, {L_XS}, v6")
    a(f"v_lshlrev_b32 v{ZT+6}, 1, v2")
    a(f"v_mov_b32 v{ZT+7}, 1")
    a(f"v_mov_b32 v{ZT+8}, {L_FLAG}")
    a("s_waitcnt lgkmcnt(0)")
    a("s_barrier")
    stamp(1)
    a(f"global_load_dwordx4 {vr(WE,4)}, v{ZT+12}, s[{PW1}:{PW1+1}]")
    for s in range(4):
        a(f"buffer_load_dwordx4 {vr(WF+4*s,4)}, v{ZT+4}, s[40:43], s67 offen offset:{1024*s}")
    a(f"global_load_dwordx2 {vr(B1,2)}, v{ZT+13}, s[{PB1}:{PB1+1}]")
    NLOAD = 9
    a(f"s_waitcnt vmcnt({NLOAD-2})")
    a(f"v_cmp_le_u32 s[{sV0}:{sV0+1}], v{ZT+6}, v{HD}")
    a(f"v_cmp_ne_u32 vcc, 0, v2")
    a(f"v_cmp_lt_u32 s[{sV1}:{sV1+1}], v{ZT+6}, v{HD}")
    a(f"s_and_b64 s[{sV0}:{sV0+1}], s[{sV0}:{sV0+1}], vcc")
    a(f"v_cmp_lt_u32 vcc, {CAP}, v{HD}")
    def rank_atomics():
        for i, sv in ((0, sV0), (1, sV1)):
            a(f"v_bfe_u32 v{LA+i}, v{R0+2*i+1}, 16, 6")
            a(f"v_lshlrev_b32 v{LA+i}, 2, v{LA+i}")
            a(f"v_add_u32 v{ZT+9+i}, {L_CNT}, v{LA+i}")
        for i, sv in ((0, sV0), (1, sV1)):
            a(f"s_mov_b64 exec, s[{sv}:{sv+1}]")
            a(f"ds_add_rtn_u32 v{RK+i}, v{ZT+9+i}, v{ZT+7}")
    rank_atomics()
    a("s_mov_b64 exec, vcc")
    a(f"ds_write_b32 v{ZT+8}, v{ZT+7}")
    a("s_mov_b64 exec, -1")
    a(f"s_waitcnt vmcnt({NLOAD-3})")
    a(f"s_cmp_ge_u32 s{sW}, 12")
    a("s_cbranch_scc1 K2_NOXS")
    a(f"ds_write_b128 v6, {vr(XP,4)}")
    a.lab("K2_NOXS")
    NPF = 0
    if PF:
        a("s_lshr_b32 s9, s2, 3")
        a(f"s_mul_i32 s9, s9, {N*512//32}")
        a(f"v_lshlrev_b32 v{ZT+9}, 7, v0")
        a(f"v_cmp_gt_u32 vcc, {PF}, v0")
        a(f"v_mov_b32 v{ZT+10}, 0x7ffffff0")
        a("s_nop 0")
        a(f"v_cndmask_b32 v{ZT+9}, v{ZT+10}, v{ZT+9}, vcc")
        assert DP <= 4
        a(f"buffer_load_dword v117, v{ZT+9}, s[40:43], s9 offen")
        NPF = 1
    a(f"v_and_b32 v{ZT+9}, 63, v0")
    a(f"v_lshlrev_b32 v{ZT+9}, 2, v{ZT+9}")
    a(f"v_add_u32 v{ZT+10}, {L_CNT}, v{ZT+9}")
    a("s_waitcnt lgkmcnt(0)")
    a("s_barrier")
    stamp(2)
    VC = ZT+11
    a(f"ds_read_b32 v{VC}, v{ZT+10}")
    a(f"ds_read_b32 v{ZT+6}, v{ZT+8}")
    a(f"s_waitcnt vmcnt({NLOAD-4+NPF})")
    a(f"v_mov_b32 v{ZT}, {hex(S_LOG2E)}")
    wpos = [0, 1, 6, 7]
    for q in range(4):
        a(f"v_lshlrev_b32 v{ZT+1}, 16, v{WE+q}")
        a(f"v_and_b32 v{ZT+2}, 0xffff0000, v{WE+q}")
        a(f"v_mul_f32 v{ZT+1}, v{ZT}, v{ZT+1}")
        a(f"v_mul_f32 v{ZT+2}, v{ZT}, v{ZT+2}")
        a(f"v_cvt_pk_bf16_f32 v{BS+wpos[q]}, v{ZT+1}, v{ZT+2}")
    a("s_waitcnt lgkmcnt(0)")
    a(f"v_readfirstlane_b32 s{sSLOW}, v{ZT+6}")
    a(f"v_mov_b32 v{VEND}, v{VC}")
    a("s_nop 2")
    a(f"s_cmp_lg_u32 s{sSLOW}, 0")
    a("s_cbranch_scc1 K2_SLOW_NEXT")
    a("s_branch K2_SCAN2")
    a.lab("K2_SCAN")
    a(f"v_and_b32 v{ZT+9}, 63, v0")
    a(f"v_lshlrev_b32 v{ZT+9}, 2, v{ZT+9}")
    a(f"v_add_u32 v{ZT+10}, {L_CNT}, v{ZT+9}")
    a(f"ds_read_b32 v{VC}, v{ZT+10}")
    a("s_waitcnt lgkmcnt(0)")
    a(f"v_mov_b32 v{VEND}, v{VC}")
    a("s_nop 1")
    a.lab("K2_SCAN2")
    fill = [f"v_and_b32 v{ZT+0}, 0xffff, v{R0+1}", f"v_lshlrev_b32 v{ZT+1}, 16, v{R0+1}",
            f"v_and_b32 v{ZT+2}, 0xffff, v{R0+3}", f"v_lshlrev_b32 v{ZT+3}, 16, v{R0+3}",
            f"v_cmp_ne_u32 s[{sNE}:{sNE+1}], 0, v{VC}", f"v_add_u32 v{ZT+10}, {L_DEG}, v{ZT+9}",
            "v_lshrrev_b32 v5, 5, v0", "v_and_b32 v5, 1, v5", "s_nop 0", "s_nop 0"]
    dpp = [f"row_shr:{sh} row_mask:0xf bank_mask:0xf bound_ctrl:0" for sh in (1, 2, 4, 8)] + \
          ["row_bcast:15 row_mask:0xa bank_mask:0xf", "row_bcast:31 row_mask:0xc bank_mask:0xf"]
    for i, d in enumerate(dpp):
        a(f"v_add_u32_dpp v{VEND}, v{VEND}, v{VEND} {d}")
        if i < 5:
            a(fill[2*i]); a(fill[2*i+1])
    a(f"v_sub_u32 v{VSTA}, v{VEND}, v{VC}")
    a(f"v_readlane_b32 s{sT}, v{VEND}, 63")
    a(f"ds_bpermute_b32 v{ZT+4}, v{LA}, v{VSTA}")
    a(f"ds_bpermute_b32 v{ZT+5}, v{LA+1}, v{VSTA}")
    a(f"s_cmp_gt_u32 s{sT}, {BATCH}")
    a("s_cbranch_scc1 K2_SLOW_BIG")
    a(f"s_cmp_lg_u32 s{sW}, 0")
    a("s_cbranch_scc1 K2_NODEG")
    a(f"ds_add_u32 v{ZT+10}, v{VC}")
    a.lab("K2_NODEG")
    if DEBUG: a(f"s_mov_b32 s92, s{sT}")
    a(f"s_lshl_b32 s{sT2}, s{sW}, 1")
    a(f"s_mul_i32 s{sPOS[0]}, s{sT}, s{sT2}")
    a(f"s_add_u32 s{sPOS[1]}, s{sPOS[0]}, s{sT}")
    a(f"s_add_u32 s{sEND[1]}, s{sPOS[1]}, s{sT}")
    a(f"s_lshr_b32 s{sPOS[0]}, s{sPOS[0]}, 5")
    a(f"s_lshr_b32 s{sPOS[1]}, s{sPOS[1]}, 5")
    a(f"s_lshr_b32 s{sEND[1]}, s{sEND[1]}, 5")
    a(f"s_mov_b32 s{sEND[0]}, s{sPOS[1]}")
    a(f"s_sub_u32 s{sT2}, s{sPOS[1]}, s{sPOS[0]}")
    a(f"v_mul_u32_u24 v5, s{sT2}, v5")
    a(f"v_add_u32 v5, s{sPOS[0]}, v5")
    a(f"v_mad_u32_u24 v{VEA}, v5, v{VES}, v{VEO}")
    a(f"v_lshlrev_b32 v{VIA}, 2, v5")
    a(f"v_add_u32 v{VIA}, {L_IDX}, v{VIA}")
    a(f"v_cmp_lt_u32 s[{sMASK[0]}:{sMASK[0]+1}], s{sPOS[0]}, v{VEND}")
    a(f"v_cmp_lt_u32 s[{sMASK[1]}:{sMASK[1]+1}], s{sPOS[1]}, v{VEND}")
    a("s_waitcnt lgkmcnt(0)")
    for i, sv in ((0, sV0), (1, sV1)):
        a(f"v_add_u32 v{ZT+4+i}, v{ZT+4+i}, v{RK+i}")
        a(f"v_lshlrev_b32 v{ZT+6+2*i}, 2, v{ZT+4+i}")
        a(f"v_add_u32 v{ZT+6+2*i}, {L_IDX}, v{ZT+6+2*i}")
        a(f"v_lshlrev_b32 v{ZT+7+2*i}, 4, v{ZT+4+i}")
        a(f"v_add_u32 v{ZT+7+2*i}, {L_EP}, v{ZT+7+2*i}")
    for i, sv in ((0, sV0), (1, sV1)):
        a(f"s_mov_b64 exec, s[{sv}:{sv+1}]")
        a(f"ds_write_b32 v{ZT+6+2*i}, v{R0+2*i}")
        a(f"ds_write2_b32 v{ZT+7+2*i}, v{ZT+2*i}, v{ZT+2*i+1} offset0:1 offset1:3")
    a("s_mov_b64 exec, -1")
    a(f"v_mov_b32 v{IP[0]+1}, v{VPO}")
    a("s_waitcnt lgkmcnt(0)")
    a("s_barrier")
    stamp(3)
    FI = 2
    assert DP <= 6
    for t in range(0, DP, 2):
        a(f"ds_read2_b32 {vr(FI+t,2)}, v{VIA} offset0:{t} offset1:{t+1}")
    for d in range(1, DP):
        for q in wpos: a(f"v_mov_b32 v{BS+8*d+q}, v{BS+q}")
    a(f"v_and_b32 v1, 15, v0")
    a(f"v_mul_u32_u24 v{QA+4}, {XROW}, v1")
    a(f"v_and_b32 v{QA+5}, 0x30, v0")
    a(f"v_add3_u32 v{QA+4}, v{QA+4}, v{QA+5}, v{QA+5}")
    a(f"v_sub_u32 v{QA+4}, v{QA+4}, v{QA+5}")
    a(f"v_add_u32 v{QA+4}, {L_XS}, v{QA+4}")
    a("s_waitcnt lgkmcnt(0)")
    def pload(slot, pair):
        if "novm" in EXP: return
        a(f"buffer_load_dwordx4 {vr(BS+8*slot+2,4)}, {vr(pair,2)}, s[44:47], 0 idxen offen")
    for t in range(DP):
        a(f"v_mov_b32 v{IP[0]}, v{FI+t}")
        a(f"buffer_load_dwordx4 {vr(BS+8*t+2,4)}, {vr(IP[0],2)}, s[44:47], 0 idxen offen")
    a(f"s_cmp_lg_u32 s{sQD}, 0")
    a("s_cbranch_scc1 K2_NOGEMM")
    a.c("Q' = -log2e*(x@W1b + b1), transposed MFMA: rows=channels, cols=nodes")
    a(f"v_mov_b32 v7, v{QA+4}")
    def xread(f):
        nt, s = divmod(f, 4)
        a(f"ds_read_b128 {vr(XF+4*(f%8),4)}, v7 offset:{16*nt*XROW+64*s}")
    for f in range(8): xread(f)
    a(f"s_mov_b32 s{sQD}, 1")
    a(f"v_mul_u32_u24 v6, {ROWP}, v1")
    a(f"s_lshl_b32 s4, s{sW}, 6")
    a(f"s_add_u32 s4, s4, {L_Q}")
    a(f"v_add3_u32 v6, v6, v{QA+5}, s4")
    a(f"v_mov_b32 v5, {hex(S_LOG2E)}")
    a(f"s_waitcnt vmcnt({DP+NPF})")
    a(f"v_lshlrev_b32 v{BI}, 16, v{B1}")
    a(f"v_and_b32 v{BI+1}, 0xffff0000, v{B1}")
    a(f"v_lshlrev_b32 v{BI+2}, 16, v{B1+1}")
    a(f"v_and_b32 v{BI+3}, 0xffff0000, v{B1+1}")
    def qout(nt):
        qa = QA + 4*(nt & 1)
        for k in range(4): a(f"v_mul_f32 v{qa+k}, v5, v{qa+k}")
        if nt == 2:
            a("s_mov_b32 exec_lo, 0x00ff00ff")
            a("s_mov_b32 exec_hi, 0x00ff00ff")
        a(f"ds_write_b128 v6, {vr(qa,4)} offset:{16*nt*ROWP}")
        if nt == 2: a("s_mov_b64 exec, -1")
    a("s_nop 0")
    a("s_waitcnt lgkmcnt(4)")
    for s in range(4):
        a(f"v_mfma_f32_16x16x32_bf16 {vr(QA,4)}, {vr(WF+4*s,4)}, {vr(XF+4*s,4)}, {vr(BI,4) if s == 0 else vr(QA,4)}")
    for f in range(8, 12): xread(f)
    a("s_waitcnt lgkmcnt(4)")
    for s in range(4):
        a(f"v_mfma_f32_16x16x32_bf16 {vr(QA+4,4)}, {vr(WF+4*s,4)}, {vr(XF+16+4*s,4)}, {vr(BI,4) if s == 0 else vr(QA+4,4)}")
    a("s_nop 3")
    qout(0)
    a("s_waitcnt lgkmcnt(1)")
    for s in range(4):
        a(f"v_mfma_f32_16x16x32_bf16 {vr(QA,4)}, {vr(WF+4*s,4)}, {vr(XF+4*s,4)}, {vr(BI,4) if s == 0 else vr(QA,4)}")
    a("s_nop 3")
    qout(1)
    a("s_nop 2")
    qout(2)
    a.lab("K2_NOGEMM")
    def seg_next(x, lbl):
        a(f"s_add_u32 s{sT2}, s{sSEGL[x]}, s{sPOS[x]}")
        a(f"s_mov_b32 s{sROW[x]}, -1")
        a(f"s_cmp_ge_u32 s{sT2}, s{sEND[x]}")
        a(f"s_cselect_b32 s{sSEGL[x]}, {hex(INF)}, s{sSEGL[x]}")
        a(f"s_cbranch_scc1 {lbl}")
        a(f"s_ff1_i32_b64 s{sT2}, s[{sMASK[x]}:{sMASK[x]+1}]")
        a(f"s_and_b32 s{sT2}, s{sT2}, 63")
        a(f"s_bitset0_b64 s[{sMASK[x]}:{sMASK[x]+1}], s{sT2}")
        a(f"v_readlane_b32 s{sT}, v{VEND}, s{sT2}")
        a(f"s_mul_i32 s{sROW[x]}, s{sT2}, {ROWP}")
        a(f"s_add_u32 s{sSEGL[x]}, s{sSEGL[x]}, 1")
        a(f"s_min_u32 s{sT}, s{sT}, s{sEND[x]}")
        a(f"s_sub_u32 s{sT}, s{sT}, s{sPOS[x]}")
        a(f"s_max_i32 s{sSEGL[x]}, s{sSEGL[x]}, s{sT}")
        a.lab(lbl)
    for x in range(2):
        a(f"s_and_b64 s[{sMASK[x]}:{sMASK[x]+1}], s[{sMASK[x]}:{sMASK[x]+1}], s[{sNE}:{sNE+1}]")
        a(f"s_mov_b32 s{sSEGL[x]}, 0")
        a(f"s_mov_b32 s{sHEAD[x]}, 0")
        seg_next(x, f"K2_INI{x}")
        a(f"s_mov_b32 s{sCR[x]}, s{sROW[x]}")
        a(f"s_cmp_lt_i32 s{sROW[x]}, 0")
        a(f"s_cbranch_scc1 K2_INJ{x}")
        a(f"v_readlane_b32 s{sT}, v{VSTA}, s{sT2}")
        a(f"s_add_u32 s{sT2}, s{sT2}, 1")
        a(f"v_mov_b32 v{T3}, s{sT2}")
        a(f"s_lshl_b32 s{sT2}, s{sW}, 1")
        a(f"s_add_u32 s{sT2}, s{sT2}, {x}")
        a(f"s_cmp_ge_u32 s{sT}, s{sPOS[x]}")
        a(f"s_cbranch_scc1 K2_INJ{x}")
        a(f"s_mov_b32 s{sHEAD[x]}, 1")
        a(f"s_mul_i32 s{sCR[x]}, s{sT2}, {ROWP}")
        a(f"s_add_u32 s{sCR[x]}, s{sCR[x]}, {L_CR}")
        a(f"s_lshl_b32 s{sT2}, s{sT2}, 2")
        a(f"s_add_u32 s{sT2}, s{sT2}, {L_HN}")
        a(f"v_mov_b32 v6, s{sT2}")
        a(f"ds_write_b32 v6, v{T3}")
        a.lab(f"K2_INJ{x}")
    for x in range(2):
        a(f"s_max_i32 s{sROW[x]}, s{sROW[x]}, 0")
        a(f"s_max_i32 s{sCR[x]}, s{sCR[x]}, 0")
        a(f"s_sub_u32 s{sCR[x]}, s{sCR[x]}, {L_Q}")
    a(f"v_add_u32 v{T0}, s{sROW[0]}, v{VQA}")
    a(f"v_add_u32 v{T1}, s{sCR[0]}, v{VQA}")
    exec_half(1)
    a(f"v_add_u32 v{T0}, s{sROW[1]}, v{VQA}")
    a(f"v_add_u32 v{T1}, s{sCR[1]}, v{VQA}")
    a("s_mov_b64 exec, -1")
    for k in (0, 4, 8):
        a(f"v_mov_b32 v{AB+k}, v{VI0}")
        a(f"v_mov_b32 v{AB+k+1}, v{VI1}")
    a(f"v_mov_b32 v{IP[0]+1}, v{VPO}")
    a(f"v_mov_b32 v{IP[1]+1}, v{VPO}")
    a(f"v_lshlrev_b32 v5, 0, v{VES}")
    a(f"v_mul_u32_u24 v5, {DP}, v{VES}")
    a(f"s_min_u32 s{sTEV}, s{sSEGL[0]}, s{sSEGL[1]}")
    a(f"s_sub_u32 s{sREM}, s{sTEV}, 1")
    a(f"s_sub_u32 s{sLEFT}, s{sEND[1]}, s{sPOS[1]}")
    a(f"ds_read2_b32 {vr(ES[0],2)}, v{VEA} offset0:0 offset1:1")
    a(f"ds_read2_b32 {vr(ES[1],2)}, v{VEA} offset0:4 offset1:5")
    a(f"ds_read_b32 v{IP[0]}, v{VIA} offset:{4*DP}")
    a(f"ds_read_b32 v{IP[1]}, v{VIA} offset:{4*(DP+1)}")
    a(f"ds_read_b128 {vr(ACC,4)}, v{T1}")
    a(f"ds_read_b128 {vr(ACC+4,4)}, v{T1} offset:16")
    a("s_waitcnt lgkmcnt(0)")
    a("s_barrier")
    a(f"s_cmp_eq_u32 s{sTEV}, {hex(INF)}")
    a("s_cbranch_scc1 K2_LOOP_DONE")
    a(f"ds_read_b128 {vr(Q,4)}, v{T0}")
    a(f"ds_read_b128 {vr(Q+4,4)}, v{T0} offset:16")
    a(f"s_sub_u32 exec_lo, 0, s{sHEAD[0]}")
    a(f"s_sub_u32 exec_hi, 0, s{sHEAD[1]}")
    for k in range(8): a(f"v_mov_b32 v{ACC+k}, 0")
    a("s_mov_b64 exec, -1")
    def mfma(slot, es, u, which):
        if "nomfma" in EXP: return
        if which == 0:
            a(f"v_mfma_f32_16x16x32_bf16 {vr(u,4)}, {vr(es,4)}, {vr(BS+8*slot,4)}, {vr(Q,4)}")
        else:
            a(f"v_mfma_f32_16x16x32_bf16 {vr(u+4,4)}, {vr(es-2,4)}, {vr(BS+8*slot+4,4)}, {vr(Q+4,4)}")
    a(f"s_waitcnt vmcnt({DP-1}) lgkmcnt(0)")
    mfma(0, ES[0], U[0], 0); mfma(0, ES[0], U[0], 1)
    pload(0, IP[0])
    stamp(4)
    a(f"s_sub_u32 s{sREM}, s{sREM}, 1")
    if "noprio" not in EXP: a("s_setprio 3")
    a("s_nop 5")
    a("s_cbranch_scc1 K2_BND0")
    a("s_branch K2_SUB0")
    def rdE(k):
        if "nods" in EXP: return
        a(f"ds_read2_b32 {vr(ES[k&1],2)}, v{VEA} offset0:{4*(k+2)} offset1:{4*(k+2)+1}")
    def rdI(k):
        if "nods" in EXP: return
        a(f"ds_read_b32 v{IP[k&1]}, v{VIA} offset:{4*(k+2+DP)}")
    def ex(c, u): a(f"v_exp_f32 v{EX+c}, v{u+c}")
    def rc(c): a(f"v_rcp_f32 v{EX+c}, v{EX+c}")
    def pa(c): a(f"v_pk_add_f32 {vr(EX+c,2)}, {vr(EX+c,2)}, 1.0 op_sel_hi:[1,0]")
    def pf(c, u): a(f"v_pk_fma_f32 {vr(ACC+c,2)}, {vr(u+c,2)}, {vr(EX+c,2)}, {vr(ACC+c,2)}")
    def valu(u):
        for c in range(8): ex(c, u)
        for c in range(0, 8, 2): pa(c)
        for c in range(8): rc(c)
        for c in range(0, 8, 2): pf(c, u)
    def tail(u):
        rc(7)
        for c in range(0, 8, 2): pf(c, u)
    uid = [0]
    def prio():
        if "noprio" in EXP: return
        uid[0] += 1
        lbl = f"K2_PR{uid[0]}"
        a(f"s_cmp_gt_i32 s{sLEFT}, {2*DP}")
        a(f"s_cbranch_scc1 {lbl}_HI")
        a(f"s_cmp_gt_i32 s{sLEFT}, {DP}")
        a(f"s_cbranch_scc1 {lbl}_1")
        a("s_setprio 0")
        a(f"s_branch {lbl}_D")
        a.lab(f"{lbl}_1")
        a("s_setprio 1")
        a(f"s_branch {lbl}_D")
        a.lab(f"{lbl}_HI")
        a(f"s_cmp_gt_i32 s{sLEFT}, {3*DP}")
        a(f"s_cbranch_scc1 {lbl}_D")
        a("s_setprio 2")
        a.lab(f"{lbl}_D")
    def advance():
        a(f"v_add_u32 v{VEA}, v5, v{VEA}")
        a(f"v_add_u32 v{VIA}, {4*DP}, v{VIA}")
        a(f"s_sub_u32 s{sLEFT}, s{sLEFT}, {DP}")
        prio()
    a.raw(".p2align 3")
    a.lab("K2_LOOP")
    advance()
    for k in range(DP):
        u = U[k & 1]
        a.lab(f"K2_SUB{k}")
        ex(0, u)
        a(f"s_waitcnt vmcnt({DP-1}) lgkmcnt(0)")
        ex(1, u)
        mfma((k+1) % DP, ES[(k+1) & 1], U[(k+1) & 1], 0)
        ex(2, u)
        mfma((k+1) % DP, ES[(k+1) & 1], U[(k+1) & 1], 1)
        ex(3, u)
        pload((k+1) % DP, IP[(k+1) & 1])
        ex(4, u)
        rdE(k)
        ex(5, u)
        rdI(k)
        ex(6, u); ex(7, u)
        for c in range(0, 8, 2): pa(c)
        for c in range(6): rc(c)
        a(f"s_sub_u32 s{sREM}, s{sREM}, 1")
        rc(6)
        a(f"s_cbranch_scc1 K2_BNDT{k}")
        tail(u)
    a("s_branch K2_LOOP")
    for k in range(DP):
        kp = (k - 1) % DP
        a.lab(f"K2_BNDT{kp}")
        tail(U[kp & 1])
        if k == 0: advance()
        a.lab(f"K2_BND{k}")
        a(f"s_mov_b64 s[{sX}:{sX+1}], 0")
        a("s_mov_b64 s[6:7], 0")
        for x in range(2):
            a(f"s_cmp_lg_u32 s{sSEGL[x]}, s{sTEV}")
            a(f"s_cbranch_scc1 K2_B{k}_N{x}")
            a(f"s_mov_b32 s{sX+x}, -1")
            seg_next(x, f"K2_B{k}_S{x}")
            a(f"s_cmp_lt_i32 s{sROW[x]}, 0")
            a(f"s_cbranch_scc1 K2_B{k}_N{x}")
            a(f"s_mov_b32 s{6+x}, -1")
            exec_half(x)
            a(f"v_add_u32 v{T0}, s{sROW[x]}, v{VQA}")
            a.lab(f"K2_B{k}_N{x}")
        a("s_mov_b64 exec, s[6:7]")
        a("s_waitcnt lgkmcnt(0)")
        a(f"ds_read_b128 {vr(Q,4)}, v{T0}")
        a(f"ds_read_b128 {vr(Q+4,4)}, v{T0} offset:16")
        a("s_mov_b64 exec, -1")
        valu(U[k & 1])
        a(f"s_mov_b64 exec, s[{sX}:{sX+1}]")
        a(f"ds_write_b128 v{T1}, {vr(ACC,4)}")
        a(f"ds_write_b128 v{T1}, {vr(ACC+4,4)} offset:16")
        a("s_mov_b64 exec, s[6:7]")
        a(f"v_subrev_u32 v{T1}, {L_Q}, v{T0}")
        a(f"ds_read_b128 {vr(ACC,4)}, v{T1}")
        a(f"ds_read_b128 {vr(ACC+4,4)}, v{T1} offset:16")
        a("s_mov_b64 exec, -1")
        a(f"s_sub_u32 s{sREM}, -1, s{sTEV}")
        a(f"s_min_u32 s{sTEV}, s{sSEGL[0]}, s{sSEGL[1]}")
        a(f"s_cmp_eq_u32 s{sTEV}, {hex(INF)}")
        a("s_cbranch_scc1 K2_LOOP_DONE")
        a(f"s_add_u32 s{sREM}, s{sREM}, s{sTEV}")
        a(f"s_waitcnt vmcnt({DP-1}) lgkmcnt(2)")
        mfma((k+1) % DP, ES[(k+1) & 1], U[(k+1) & 1], 0)
        mfma((k+1) % DP, ES[(k+1) & 1], U[(k+1) & 1], 1)
        pload((k+1) % DP, IP[(k+1) & 1])
        rdE(k); rdI(k)
        a(f"s_sub_u32 s{sREM}, s{sREM}, 1")
        a("s_nop 3")
        if k < DP-1:
            a(f"s_cbranch_scc1 K2_BND{k+1}")
            a(f"s_branch K2_SUB{k+1}")
        else:
            a(f"s_cbranch_scc0 K2_LOOP")
            advance()
            a(f"s_branch K2_BND0")
    a.lab("K2_LOOP_DONE")
    a("s_setprio 0")
    stamp(5)
    if DEBUG:
        a("s_lshl_b32 s93, s2, 4")
        a("s_add_u32 s93, s93, s3")
        a("s_lshl_b32 s93, s93, 4")
        a("s_add_u32 s93, s93, 0xA80000")
        a("v_mov_b32 v1, s93")
        a("s_sub_u32 s93, s88, s84")
        a("v_mov_b32 v8, s93")
        a("s_sub_u32 s93, s89, s84")
        a("v_mov_b32 v9, s93")
        a("s_getreg_b32 s93, hwreg(HW_REG_HW_ID)")
        a("v_mov_b32 v10, s93")
        a("v_mov_b32 v11, s84")
        a("global_store_dwordx4 v1, v[8:11], s[34:35]")
    a("s_waitcnt vmcnt(0)")
    a(f"s_cmp_lg_u32 s{sSLOW}, 0")
    a("s_cbranch_scc1 K2_COMB")
    a.lab("K2_EPI")
    a.c("out = -ln2 * S @ w2 + deg*b2")
    AF = 56
    SF = 8
    OA = 32
    B2 = 120
    DG = 124
    a(f"s_cmp_ge_u32 s{sW}, 4")
    a("s_cbranch_scc1 K2_COMB")
    a(f"s_lshl_b32 s6, s{sW}, 14")
    a(f"s_add_u32 s6, s6, {hex(WS_W2)}")
    a("v_and_b32 v7, 63, v0")
    a("v_lshlrev_b32 v7, 4, v7")
    for q in range(4):
        if q: a("s_add_u32 s6, s6, 4096")
        for s in range(4):
            a(f"buffer_load_dwordx4 {vr(AF+16*q+4*s,4)}, v7, s[40:43], s6 offen offset:{1024*s}")
    a("v_bfe_u32 v7, v0, 4, 2")
    a(f"s_lshl_b32 s7, s{sW}, 6")
    a("v_lshlrev_b32 v5, 3, v7")
    a("v_add_u32 v5, s7, v5")
    a(f"global_load_dwordx2 {vr(B2,2)}, v5, s[{PB2}:{PB2+1}]")
    a(f"global_load_dwordx2 {vr(B2+2,2)}, v5, s[{PB2}:{PB2+1}] offset:32")
    a.lab("K2_COMB")
    a("v_and_b32 v1, 63, v0")
    a("v_lshlrev_b32 v2, 2, v1")
    a(f"v_add_u32 v2, {L_HN}, v2")
    a(f"s_mul_i32 s4, s{sW}, {ROWP}")
    a("v_lshlrev_b32 v3, 4, v1")
    a("v_add_u32 v4, s4, v3")
    a(f"v_add_u32 v3, {L_CR}, v3")
    a(f"s_mul_i32 s4, s{sW}, {SBROW}")
    a(f"s_add_u32 s4, s4, {L_SB}")
    a("v_lshlrev_b32 v6, 3, v1")
    a("v_add_u32 v6, s4, v6")
    a("s_waitcnt lgkmcnt(0)")
    a("s_barrier")
    a("ds_read_b32 v2, v2")
    for r in range(3):
        a(f"ds_read_b128 {vr(8+4*r,4)}, v4 offset:{16*r*ROWP}")
    a(f"s_add_u32 s4, s{sW}, 1")
    a("s_waitcnt lgkmcnt(0)")
    for r in range(3):
        a(f"v_cmp_eq_u32 s[6:7], s4, v2")
        a(f"s_add_u32 s4, s4, 16")
        a.lab(f"K2_CB{r}")
        a("s_cmp_eq_u64 s[6:7], 0")
        a(f"s_cbranch_scc1 K2_CB{r}D")
        a("s_ff1_i32_b64 s8, s[6:7]")
        a("s_bitset0_b64 s[6:7], s8")
        a(f"s_mul_i32 s8, s8, {ROWP}")
        a("v_add_u32 v7, s8, v3")
        a(f"ds_read_b128 v[20:23], v7")
        a("s_waitcnt lgkmcnt(0)")
        for c in range(4): a(f"v_add_f32 v{8+4*r+c}, v{8+4*r+c}, v{20+c}")
        a(f"s_branch K2_CB{r}")
        a.lab(f"K2_CB{r}D")
    a(f"s_cmp_lg_u32 s{sSLOW}, 0")
    a("s_cbranch_scc1 K2_SLOW_WB")
    for r in range(3):
        a(f"v_cvt_pk_bf16_f32 v{24+2*r}, v{8+4*r}, v{9+4*r}")
        a(f"v_cvt_pk_bf16_f32 v{25+2*r}, v{10+4*r}, v{11+4*r}")
    a(f"ds_write_b64 v6, v[24:25]")
    a(f"ds_write_b64 v6, v[26:27] offset:{16*SBROW}")
    a(f"ds_write_b64 v6, v[28:29] offset:{32*SBROW}")
    a("v_and_b32 v2, 15, v0")
    a("v_bfe_u32 v7, v0, 4, 2")
    a(f"v_mul_u32_u24 v4, {SBROW}, v2")
    a("v_lshl_add_u32 v4, v7, 4, v4")
    a(f"v_add_u32 v4, {L_SB}, v4")
    a(f"v_lshlrev_b32 v1, 2, v2")
    a(f"v_add_u32 v1, {L_DEG}, v1")
    a("v_lshl_add_u32 v5, v2, 16, v5")
    a("s_lshl_b32 s9, s2, 8")
    a("v_add_u32 v5, s9, v5")
    a("s_waitcnt lgkmcnt(0)")
    a("s_barrier")
    a(f"s_cmp_ge_u32 s{sW}, 4")
    a("s_cbranch_scc1 K2_EXIT")
    stamp(6)
    seq = [(s, nt) for s in range(8) for nt in range(3)]
    def sread(i):
        s, nt = seq[i]
        a(f"ds_read_b128 {vr(SF+4*(i%6),4)}, v4 offset:{64*s+16*nt*SBROW}")
    for nt in range(3): a(f"ds_read_b32 v{DG+nt}, v1 offset:{64*nt}")
    for i in range(6): sread(i)
    a("s_waitcnt vmcnt(0)")
    for i, (s, nt) in enumerate(seq):
        a(f"s_waitcnt lgkmcnt({min(5, len(seq)-1-i)})")
        for t in range(2):
            o = OA + 8*nt + 4*t
            c = "0" if s == 0 else vr(o, 4)
            a(f"v_mfma_f32_16x16x32_bf16 {vr(o,4)}, {vr(AF+32*t+4*s,4)}, {vr(SF+4*(i%6),4)}, {c}")
        if i + 6 < len(seq): sread(i+6)
    a(f"v_mov_b32 v{DG+3}, {hex(S_LN2)}")
    BU = 8
    for t in range(2):
        a(f"v_lshlrev_b32 v{BU+4*t}, 16, v{B2+2*t}")
        a(f"v_and_b32 v{BU+4*t+1}, 0xffff0000, v{B2+2*t}")
        a(f"v_lshlrev_b32 v{BU+4*t+2}, 16, v{B2+2*t+1}")
        a(f"v_and_b32 v{BU+4*t+3}, 0xffff0000, v{B2+2*t+1}")
    a("s_mov_b32 s4, 0x100000")
    a("s_mov_b32 s5, 0x200000")
    for nt in range(3):
        a(f"v_cvt_f32_u32 v{DG+nt}, v{DG+nt}")
        for k in range(8):
            a(f"v_mul_f32 v{OA+8*nt+k}, v{DG+3}, v{OA+8*nt+k}")
        for k in range(8):
            a(f"v_fmac_f32 v{OA+8*nt+k}, v{DG+nt}, v{BU+k}")
        if nt: a(f"v_add_u32 v5, 0x100000, v5")
        for t in range(2):
            o = OA + 8*nt + 4*t
            a(f"v_cvt_pk_bf16_f32 v{16+4*nt+2*t}, v{o}, v{o+1}")
            a(f"v_cvt_pk_bf16_f32 v{17+4*nt+2*t}, v{o+2}, v{o+3}")
            a(f"buffer_store_dwordx2 {vr(16+4*nt+2*t,2)}, v5, s[48:51], 0 offen offset:{32*t}")
    if DEBUG:
        stamp(7)
        a("s_cmp_lg_u32 s3, 0")
        a("s_cbranch_scc1 K2_EXIT")
        a("s_memrealtime s[98:99]")
        a("s_lshl_b32 s93, s2, 6")
        a("s_add_u32 s93, s93, 0xA00000")
        a("v_mov_b32 v1, s93")
        a("s_waitcnt lgkmcnt(0)")
        for i in range(8):
            a(f"s_sub_u32 s93, s{84+i}, s84")
            a("v_mov_b32 v2, s93")
            a(f"global_store_dword v1, v2, s[34:35] offset:{4*i}")
        for off, sr_ in ((32, 96), (36, 98), (40, 92)):
            a(f"v_mov_b32 v2, s{sr_}")
            a(f"global_store_dword v1, v2, s[34:35] offset:{off}")
    a.lab("K2_EXIT")
    a("s_endpgm")
    a.lab("K2_SLOW_WB")
    a(f"ds_write_b128 v4, v[8:11]")
    a(f"ds_write_b128 v4, v[12:15] offset:{16*ROWP}")
    a(f"s_cmp_ge_u32 s{sW}, 8")
    a("s_cbranch_scc1 K2_SLOW_SYNC")
    a(f"ds_write_b128 v4, v[16:19] offset:{32*ROWP}")
    a("s_branch K2_SLOW_SYNC")
    a.lab("K2_SLOW_BIG")
    a(f"s_mov_b32 s{sSLOW}, 1")
    a.lab("K2_SLOW_SYNC")
    a("s_waitcnt lgkmcnt(0)")
    a("s_barrier")
    a.lab("K2_SLOW_NEXT")
    a("v_lshlrev_b32 v4, 4, v0")
    for k in range(4): a(f"v_mov_b32 v{ZT+k}, 0")
    a(f"v_add_u32 v{ZT+5}, {L_EP}, v4")
    zero_batch(L_BZEND)
    a(f"s_cmp_lt_u32 s{sBATCH}, {E}")
    a("s_cbranch_scc1 K2_SLOW_GO")
    a(f"s_mov_b32 s{sSLOW}, 0")
    a("s_branch K2_EPI")
    a.lab("K2_SLOW_GO")
    a(f"v_add_u32 v5, s{sBATCH}, v0")
    a(f"v_mov_b32 v6, {E}")
    a("v_cmp_lt_u32 vcc, v5, v6")
    a(f"v_min_u32 v5, {E-1}, v5")
    a("v_lshlrev_b32 v6, 2, v5")
    a("v_lshlrev_b32 v7, 1, v5")
    SD, SE = 24, 25
    a(f"global_load_dword v{SD}, v6, s[{PDST}:{PDST+1}]")
    a(f"global_load_dword v{R0}, v6, s[{PSRC}:{PSRC+1}]")
    a(f"global_load_ushort v{SE}, v7, s[{PE}:{PE+1}]")
    a("v_mov_b32 v6, 0xffff")
    a(f"v_mov_b32 v{ZT+7}, 1")
    a("s_waitcnt vmcnt(0) lgkmcnt(0)")
    a("s_barrier")
    a(f"v_and_b32 v7, 0xff, v{SD}")
    a(f"v_cmp_eq_u32 s[{sV0}:{sV0+1}], s2, v7")
    a(f"v_lshlrev_b32 v7, 8, v{SD}")
    a(f"v_bfi_b32 v{R0+1}, v6, v{SE}, v7")
    a(f"s_and_b64 s[{sV0}:{sV0+1}], s[{sV0}:{sV0+1}], vcc")
    a(f"s_mov_b64 s[{sV1}:{sV1+1}], 0")
    rank_atomics()
    a("s_mov_b64 exec, -1")
    a(f"s_add_u32 s{sBATCH}, s{sBATCH}, {BATCH}")
    a("s_waitcnt lgkmcnt(0)")
    a("s_barrier")
    a("s_branch K2_SCAN")
    return 128

HEADER = open('standalone__edge_featured_mpnn_mpnn__graph.s.ref').read().split("; Override launch")[0]

def kd(name, nv, ns):
    acc = (nv + 3) // 4 * 4
    return f""".p2align 6
.amdhsa_kernel {name}
  .amdhsa_next_free_vgpr {nv}
  .amdhsa_next_free_sgpr {ns}
  .amdhsa_accum_offset {acc}
  .amdhsa_group_segment_fixed_size 0
  .amdhsa_kernarg_size 88
  .amdhsa_user_sgpr_count 2
  .amdhsa_user_sgpr_kernarg_segment_ptr 1
  .amdhsa_system_sgpr_workgroup_id_x 1
.end_amdhsa_kernel
"""

def build(TPW=4, DP=6):
    a = Asm()
    g1 = gen_k1(a, TPW)
    nv2 = gen_k2(a, DP)
    out = HEADER
    out += f"; @launch kernel=k1_kernel grid=({g1},1,1) block=(256,1,1) lds=1024\n"
    out += f"; @launch kernel=k2_kernel grid=(256,1,1) block=(1024,1,1) lds={L_END}\n"
    out += '.amdgcn_target "amdgcn-amd-amdhsa--gfx950"\n.text\n'
    out += a.text()
    out += '.section .rodata,"a"\n'
    out += kd("k1_kernel", 224, 64)
    out += kd("k2_kernel", 128, 100)
    return out

if __name__ == "__main__":
    import argparse
    ap = argparse.ArgumentParser()
    ap.add_argument("-o", default="standalone__edge_featured_mpnn_mpnn__graph.s")
    ap.add_argument("--tpw", type=int, default=4)
    ap.add_argument("--dp", type=int, default=4)
    ap.add_argument("--debug", action="store_true")
    ap.add_argument("--srcmask", type=int, default=0)
    ap.add_argument("--exp", default="")
    ap.add_argument("--pf", type=int, default=0)
    args = ap.parse_args()
    DEBUG = args.debug
    SRCMASK = args.srcmask
    PF = args.pf
    EXP = set(args.exp.split(",")) if args.exp else set()
    open(args.o, "w").write(build(args.tpw, args.dp))
```

```python
import sys, struct

N, E, D_, H = 10000, 160000, 128, 256
NCH = 64
CH_E = E // NCH
CAP = 31
WS_P = 0
WS_CELLS = 0x500000
WS_WQ = 0x900000
WS_W2 = 0x910000
WS_WE = 0x920000
WS_B1 = 0x920400
WS_END = 0x921000

def f32bits(x): return struct.unpack('<I', struct.pack('<f', x))[0]
S_LOG2E = f32bits(-1.4426950408889634)
S_LN2 = f32bits(-0.6931471805599453)

class Asm:
    def __init__(self): self.l = []
    def __call__(self, s): self.l.append("    " + s)
    def lab(self, s): self.l.append(s + ":")
    def c(self, s): self.l.append("    ; " + s)
    def raw(self, s): self.l.append(s)
    def text(self): return "\n".join(self.l) + "\n"

def vr(a, n): return f"v[{a}:{a+n-1}]"
def sr(a, n): return f"s[{a}:{a+n-1}]"

def srd(a, d, base, nrec, stride=0, add=0):
    if add:
        a(f"s_add_u32 s{d}, s{base}, {hex(add)}")
        a(f"s_addc_u32 s{d+1}, s{base+1}, 0")
    else:
        a(f"s_mov_b32 s{d}, s{base}")
        a(f"s_mov_b32 s{d+1}, s{base+1}")
    if stride:
        a(f"s_or_b32 s{d+1}, s{d+1}, {hex(stride << 16)}")
    a(f"s_mov_b32 s{d+2}, {hex(nrec)}")
    a(f"s_mov_b32 s{d+3}, 0x20000")

PX, PE, PSRC, PDST, PW1, PB1, PW2, PB2 = 16, 18, 20, 22, 24, 26, 28, 30

DEBUG = False
SRCMASK = 0
EXP = set()
PF = 0
WQSPLIT = 2
PR1 = 10
PR0 = 4
WQSPLIT2 = 5
def gen_k1(a, TPW):
    NG = (625 + TPW - 1) // TPW
    GRID = NCH + 4 + NG
    a.raw(".globl k1_kernel"); a.raw(".p2align 8"); a.raw(".type k1_kernel,@function")
    a.lab("k1_kernel")
    a(f"s_cmp_ge_u32 s2, {GRID}")
    a("s_cbranch_scc1 K1_EXIT")
    a("s_load_dwordx16 s[16:31], s[0:1], 0")
    a("s_load_dwordx2 s[32:33], s[0:1], 80")
    if DEBUG: a("s_memrealtime s[56:57]")
    def k1end():
        if DEBUG:
            a("s_waitcnt vmcnt(0)")
            a("s_memrealtime s[58:59]")
            a("s_lshl_b32 s60, s2, 4")
            a("s_add_u32 s60, s60, 0xB00000")
            a("v_mov_b32 v1, s60")
            a("s_waitcnt lgkmcnt(0)")
            a("v_mov_b32 v2, s56")
            a("v_mov_b32 v3, s58")
            a("v_cmp_eq_u32 vcc, 0, v0")
            a("s_and_saveexec_b64 s[60:61], vcc")
            a("s_cbranch_execz K1_EXIT")
            a("global_store_dwordx2 v1, v[2:3], s[32:33]")
        a("s_endpgm")
    a(f"s_cmp_lt_u32 s2, {NCH}")
    a("s_cbranch_scc1 K1_SORT")
    a(f"s_cmp_lt_u32 s2, {NCH+4}")
    a("s_cbranch_scc1 K1_TRANS")
    a.c("GEMM role: P' = -log2e * x @ W1a")
    a("v_lshrrev_b32 v1, 6, v0")
    a("v_and_b32 v2, 15, v0")
    a("v_bfe_u32 v3, v0, 4, 2")
    a("v_lshlrev_b32 v4, 7, v1")
    a("v_lshl_add_u32 v4, v2, 3, v4")
    a("v_lshl_add_u32 v5, v3, 12, v4")
    a("v_lshl_add_u32 v6, v3, 11, v4")
    a("v_lshlrev_b32 v7, 8, v2")
    a("v_lshl_add_u32 v7, v3, 4, v7")
    a(f"s_sub_u32 s3, s2, {NCH+4}")
    a(f"s_mul_i32 s3, s3, {TPW}")
    a("s_lshl_b32 s4, s3, 12")
    a("s_lshl_b32 s5, s3, 13")
    a("s_mov_b32 s6, 0x4000"); a("s_mov_b32 s7, 0x8000"); a("s_mov_b32 s8, 0xc000")
    a("s_mov_b32 s9, 0x05040100"); a("s_mov_b32 s10, 0x07060302")
    a(f"v_mov_b32 v8, {hex(S_LOG2E)}")
    a("s_waitcnt lgkmcnt(0)")
    srd(a, 36, PX, N*256)
    srd(a, 40, PW1, 257*512)
    srd(a, 44, 32, N*512, add=WS_P)
    RAW = 64; FR = 128; XF = 16; ACC = 192
    def xload(t):
        if t:
            a(f"s_add_u32 s11, s4, {t*4096}")
        else:
            a("s_mov_b32 s11, s4")
        for s in range(4):
            a(f"buffer_load_dwordx4 {vr(XF+16*(t%3)+4*s,4)}, v7, s[36:39], s11 offen offset:{64*s}")
    so = ["0", "s6", "s7", "s8"]
    for s in range(4):
        for m in range(8):
            a(f"buffer_load_dwordx2 {vr(RAW+16*s+2*m,2)}, v5, s[40:43], {so[s]} offen offset:{512*m}")
    npre = min(TPW, 3)
    for t in range(npre): xload(t)
    for s in range(4):
        a(f"s_waitcnt vmcnt({4*npre + 8*(3-s)})")
        for t in range(4):
            for p in range(4):
                a(f"v_perm_b32 v{FR+16*s+4*t+p}, v{RAW+16*s+2*(2*p+1)+(t>>1)}, v{RAW+16*s+2*(2*p)+(t>>1)}, s{9+(t&1)}")
    outstanding = []
    for t in range(npre): outstanding += [("x", t)]*4
    def wait_for(tag):
        idx = max(i for i, x in enumerate(outstanding) if x == tag)
        n = len(outstanding) - 1 - idx
        a(f"s_waitcnt vmcnt({n})")
        del outstanding[:idx+1]
    for t in range(TPW):
        wait_for(("x", t))
        acc = ACC + 16*(t & 1)
        for s in range(4):
            for tt in range(4):
                c = "0" if s == 0 else vr(acc+4*tt, 4)
                a(f"v_mfma_f32_16x16x32_bf16 {vr(acc+4*tt,4)}, {vr(XF+16*(t%3)+4*s,4)}, {vr(FR+16*s+4*tt,4)}, {c}")
        if t + 3 < TPW:
            xload(t+3); outstanding.extend([("x", t+3)]*4)
        a(f"s_add_u32 s12, s5, {t*8192}")
        a("s_nop 7")
        for tt in range(4):
            for r in range(4):
                a(f"v_mul_f32 v{acc+4*tt+r}, v8, v{acc+4*tt+r}")
        ob = RAW + 8*(t & 3)
        for r in range(4):
            a(f"v_cvt_pk_bf16_f32 v{ob+2*r}, v{acc+0+r}, v{acc+4+r}")
            a(f"v_cvt_pk_bf16_f32 v{ob+2*r+1}, v{acc+8+r}, v{acc+12+r}")
        for r in range(4):
            fl = " sc1" if "psc1" in EXP else " nt" if "pnt" in EXP else " sc0 sc1" if "psc01" in EXP else ""
            if "nop" not in EXP: a(f"buffer_store_dwordx2 {vr(ob+2*r,2)}, v6, s[44:47], s12 offen offset:{512*r}{fl}")
            else: a(f"buffer_store_dwordx2 {vr(ob+2*r,2)}, v6, s[44:47], 0 offen offset:{512*r}")
            outstanding.append(("st", t))
    k1end()
    a.lab("K1_TRANS")
    a.c("fragment transposer for W1b (WQ) and w2 (W2F)")
    a(f"s_sub_u32 s3, s2, {NCH}")
    a("s_and_b32 s4, s3, 1")
    a("s_lshl_b32 s4, s4, 8")
    a("v_add_u32 v1, s4, v0")
    a("s_mov_b32 s9, 0x05040100"); a("s_mov_b32 s10, 0x07060302")
    a("s_waitcnt lgkmcnt(0)")
    a("s_cmp_ge_u32 s3, 2")
    a("s_cbranch_scc1 K1_TR_W2")
    a("v_and_b32 v2, 31, v1")
    a("v_lshrrev_b32 v3, 5, v1")
    a("v_lshlrev_b32 v4, 4, v2")
    a("v_lshl_add_u32 v4, v3, 12, v4")
    a("v_add_u32 v4, 0x10000, v4")
    a("v_lshrrev_b32 v5, 1, v2")
    a("v_lshlrev_b32 v5, 12, v5")
    a("v_lshl_add_u32 v5, v3, 8, v5")
    a("v_and_b32 v6, 1, v2")
    a("v_lshl_add_u32 v5, v6, 7, v5")
    srd(a, 36, PW1, 257*512)
    srd(a, 40, 32, 0x10000, add=WS_WQ)
    a("s_mov_b32 s5, 512")
    a("s_branch K1_TR_GO")
    a.lab("K1_TR_W2")
    a("v_and_b32 v2, 15, v1")
    a("v_bfe_u32 v3, v1, 4, 3")
    a("v_lshrrev_b32 v7, 7, v1")
    a("v_lshlrev_b32 v4, 4, v2")
    a("v_lshl_add_u32 v4, v3, 13, v4")
    a("v_lshl_add_u32 v4, v7, 11, v4")
    a("v_lshrrev_b32 v5, 1, v2")
    a("v_lshlrev_b32 v5, 13, v5")
    a("v_lshl_add_u32 v5, v3, 10, v5")
    a("v_lshl_add_u32 v5, v7, 8, v5")
    a("v_and_b32 v6, 1, v2")
    a("v_lshl_add_u32 v5, v6, 7, v5")
    srd(a, 36, PW2, 256*256)
    srd(a, 40, 32, 0x10000, add=WS_W2)
    a("s_mov_b32 s5, 256")
    a.lab("K1_TR_GO")
    a("s_mov_b32 s6, 0")
    for m in range(8):
        a(f"buffer_load_dwordx4 {vr(16+4*m,4)}, v4, s[36:39], s6 offen")
        if m < 7: a("s_add_u32 s6, s6, s5")
    a("s_waitcnt vmcnt(0)")
    for cc in range(8):
        for p in range(4):
            a(f"v_perm_b32 v{48+4*cc+p}, v{16+4*(2*p+1)+(cc>>1)}, v{16+4*(2*p)+(cc>>1)}, s{9+(cc&1)}")
        a(f"buffer_store_dwordx4 {vr(48+4*cc,4)}, v5, s[40:43], 0 offen offset:{16*cc}")
    a("s_cmp_lg_u32 s3, 0")
    a("s_cbranch_scc1 K1_TR_END")
    a("v_lshlrev_b32 v4, 1, v0")
    a(f"s_add_u32 s6, s{PW1}, 0x20000")
    a(f"s_addc_u32 s7, s{PW1+1}, 0")
    a("global_load_ushort v8, v4, s[6:7]")
    a(f"global_load_ushort v9, v4, s[{PB1}:{PB1+1}]")
    a(f"s_add_u32 s6, s32, {hex(WS_WE)}")
    a("s_addc_u32 s7, s33, 0")
    a(f"v_mov_b32 v10, {hex(S_LOG2E)}")
    a("v_lshlrev_b32 v5, 2, v0")
    a("s_waitcnt vmcnt(0)")
    a("v_lshlrev_b32 v8, 16, v8")
    a("v_lshlrev_b32 v9, 16, v9")
    a("v_mul_f32 v8, v10, v8")
    a("v_mul_f32 v9, v10, v9")
    a("v_cvt_pk_bf16_f32 v8, v8, v8")
    a("global_store_short v4, v8, s[6:7]")
    a(f"global_store_dword v5, v9, s[6:7] offset:{WS_B1-WS_WE}")
    a.lab("K1_TR_END")
    k1end()
    a.lab("K1_SORT")
    a.c("bucket the edges of chunk s2 by dst&255")
    a("v_lshlrev_b32 v1, 2, v0")
    a("v_mov_b32 v2, 0")
    a("ds_write_b32 v1, v2")
    a("v_lshlrev_b32 v3, 4, v0")
    a("v_lshlrev_b32 v4, 3, v0")
    a("v_mov_b32 v5, 1")
    a("v_mov_b32 v6, 0x80000000")
    a("v_mov_b32 v7, 0xfffc0000")
    a(f"s_mul_i32 s3, s2, {CH_E*4}")
    a(f"s_mul_i32 s4, s2, {CH_E*2}")
    a("s_lshl_b32 s5, s2, 8")
    a("s_add_u32 s6, s3, 4096"); a("s_add_u32 s7, s3, 8192")
    a("s_waitcnt lgkmcnt(0)")
    srd(a, 36, PDST, E*4)
    srd(a, 40, PSRC, E*4)
    srd(a, 44, PE, E*2)
    srd(a, 48, 32, 256*NCH*256, add=WS_CELLS)
    DST, SRC, EA = 16, 28, 40
    RK, OFF, REC = 48, 60, 72
    so = ["s3", "s6", "s7"]
    nlast = CH_E//4 - 512
    for r in range(2):
        a(f"buffer_load_dwordx4 {vr(DST+4*r,4)}, v3, s[36:39], {so[r]} offen")
    for r in range(2):
        a(f"buffer_load_dwordx4 {vr(SRC+4*r,4)}, v3, s[40:43], {so[r]} offen")
        a(f"buffer_load_dwordx2 {vr(EA+2*r,2)}, v4, s[44:47], s4 offen offset:{2048*r}")
    a(f"buffer_load_dwordx4 {vr(DST+8,4)}, v3, s[36:39], s7 offen")
    a(f"buffer_load_dwordx4 {vr(SRC+8,4)}, v3, s[40:43], s7 offen")
    a("s_add_u32 s8, s4, 4096")
    a(f"buffer_load_dwordx2 {vr(EA+4,2)}, v4, s[44:47], s8 offen")
    a(f"v_cmp_gt_u32 vcc, {nlast}, v0")
    a("s_nop 1")
    a("s_mov_b64 s[10:11], vcc")
    a("s_barrier")
    def atomics(r):
        for i in range(4):
            k = 4*r+i
            a(f"v_and_b32 v{OFF+k}, 0xff, v{DST+k}")
            a(f"v_lshlrev_b32 v8, 2, v{OFF+k}")
            a(f"ds_add_rtn_u32 v{RK+k}, v8, v5")
    def emit(r):
        for i in range(4):
            k = 4*r+i
            a(f"v_lshlrev_b32 v{OFF+k}, 14, v{OFF+k}")
            a(f"v_lshl_add_u32 v{OFF+k}, v{RK+k}, 3, v{OFF+k}")
            a(f"v_sub_u32 v8, {CAP-1}, v{RK+k}")
            a(f"v_and_or_b32 v{OFF+k}, v8, v6, v{OFF+k}")
            if SRCMASK: a(f"v_and_b32 v{REC+2*k}, {SRCMASK}, v{SRC+k}")
            else: a(f"v_mov_b32 v{REC+2*k}, v{SRC+k}")
            a(f"v_lshlrev_b32 v9, 10, v{DST+k}")
            e = EA + 2*r + (i >> 1)
            if i & 1: a(f"v_lshrrev_b32 v10, 16, v{e}")
            else: a(f"v_and_b32 v10, 0xffff, v{e}")
            a(f"v_and_or_b32 v{REC+2*k+1}, v9, v7, v10")
            fl = " sc1" if "csc1" in EXP else " nt" if "cnt" in EXP else ""
            if "ccomp" in EXP:
                a("s_lshl_b32 s14, s2, 15")
                a(f"s_add_u32 s14, s14, {k*2048}")
                a(f"buffer_store_dwordx2 {vr(REC+2*k,2)}, v4, s[48:51], s14 offen")
            elif "nocell" not in EXP: a(f"buffer_store_dwordx2 {vr(REC+2*k,2)}, v{OFF+k}, s[48:51], s5 offen offset:8{fl}")
    a("s_waitcnt vmcnt(7)")
    atomics(0); atomics(1)
    a("s_waitcnt vmcnt(0) lgkmcnt(0)")
    emit(0); emit(1)
    a("s_and_saveexec_b64 s[12:13], s[10:11]")
    a("s_cbranch_execz K1_S_SKIP")
    atomics(2)
    a("s_waitcnt lgkmcnt(0)")
    emit(2)
    a.lab("K1_S_SKIP")
    a("s_mov_b64 exec, s[12:13]")
    a("s_waitcnt lgkmcnt(0)")
    a("s_barrier")
    a("ds_read_b32 v2, v1")
    a("v_lshlrev_b32 v3, 14, v0")
    a("s_waitcnt lgkmcnt(0)")
    if "nohdr" not in EXP: a("buffer_store_dword v2, v3, s[48:51], s5 offen")
    k1end()
    a.lab("K1_EXIT")
    a("s_endpgm")
    return GRID

ROWP = 1040
SBROW = 528
BATCH = 1024
NSLOT = BATCH + 16
L_EP = 0
L_IDX = L_EP + NSLOT*16
L_CNT = L_IDX + NSLOT*4
L_HN = L_CNT + 256
L_ZERO = L_HN + 128
L_BZEND = L_ZERO + 256
L_DEG = L_BZEND
L_FLAG = L_DEG + 256
L_ZEND = L_FLAG + 32
L_S = L_ZEND
L_Q = L_S + 40*ROWP
L_SB = L_Q
XROW = 272
L_CR = L_Q + 40*ROWP
L_XS = L_CR
L_END = L_CR + 32*ROWP
QS = L_Q - L_S

def gen_k2(a, DP):
    assert DP % 2 == 0
    INF = 0x7fffffff
    SMAP = {0:0, 1:1, 2:2, 3:3, 4:4, 5:5, 6:6, 7:7}
    if "fine" in EXP: SMAP = {0:0, 1:1, "a":2, "b":3, 2:4, 3:5, "c":6, "d":7}
    if "fine2" in EXP: SMAP = {0:0, 4:1, 5:2, "e":3, "f":4, "g":5, 6:6, 7:7}
    def stamp(i):
        if not DEBUG or i not in SMAP: return
        a("s_memtime s[94:95]")
        a("s_waitcnt lgkmcnt(0)")
        a(f"s_mov_b32 s{84+SMAP[i]}, s94")
    a.raw(".globl k2_kernel"); a.raw(".p2align 8"); a.raw(".type k2_kernel,@function")
    a.lab("k2_kernel")
    a("s_cmp_ge_u32 s2, 256")
    a("s_cbranch_scc1 K2_EXIT")
    a("s_load_dwordx16 s[16:31], s[0:1], 0")
    a("s_load_dwordx2 s[32:33], s[0:1], 64")
    a("s_load_dwordx2 s[34:35], s[0:1], 80")
    if DEBUG: a("s_memrealtime s[96:97]")
    stamp(0)
    assert DP == 4
    U = [8, 16]; EX, ACC, Q = 24, 32, 40
    IP = [56, 58]
    AB = 60
    ES = [62, 66]
    BS = 70
    M = 118
    VEA, VIA, VES, VEND, VQA, VSTA, VEO, VH, VXA, VQW = range(M, M+10)
    T0, T1, T3 = 1, 2, 4
    WF = 8
    R0 = 8
    HD = 16
    RK = 17
    LA = 21
    PS = 25
    XP = 40
    VC = 53
    PB = 54
    XF = 40
    QA = 102
    ZT = 102
    B1 = 106
    BI = 110
    WE = 48
    sW, sNE = 3, 56
    sV = [52, 54, 10, 12]
    sT, sT2, sREM, sTEV, sSLOW, sBATCH, sLEFT, sX = 58, 59, 60, 61, 62, 63, 66, 68
    sMASK = [70, 72]; sPOS = [74, 75]; sEND = [76, 77]; sSEGL = [78, 79]; sHEAD = [80, 81]; sCR = [82, 83]
    sROW = [4, 5]
    sSM = 100
    sWQ = 64
    uid0 = [0]
    def L(p):
        uid0[0] += 1
        return f"K2_{p}{uid0[0]}"
    def exec_half(x):
        a(f"s_mov_b32 exec_lo, {-1 if x == 0 else 0}")
        a(f"s_mov_b32 exec_hi, {0 if x == 0 else -1}")
    wpos = [0, 1, 6, 7]
    a("v_lshlrev_b32 v4, 4, v0")
    for k in range(4): a(f"v_mov_b32 v{ZT+k}, 0")
    a("v_lshrrev_b32 v1, 6, v0")
    a("v_and_b32 v5, 0x3f0, v4")
    a(f"ds_write_b128 v5, {vr(ZT,4)} offset:{L_ZEND-1024}")
    a("v_readfirstlane_b32 s3, v1")
    a(f"v_and_b32 v{IP[0]+1}, 0x1f0, v4")
    a("v_lshlrev_b32 v2, 5, v0")
    a("v_and_b32 v3, 0xffffff00, v2")
    a("s_lshl_b32 s4, s2, 14")
    a(f"s_add_u32 s4, s4, {hex(WS_CELLS)}")
    a("s_lshl_b32 s5, s2, 8")
    a("s_waitcnt lgkmcnt(0)")
    a("s_barrier")
    stamp(1)
    srd(a, 40, 34, WS_END)
    a(f"s_add_u32 s6, s34, {hex(WS_WE)}")
    a(f"s_addc_u32 s7, s35, 0")
    a(f"global_load_dwordx4 {vr(WE,4)}, v{IP[0]+1}, s[6:7]")
    a(f"s_cmp_ge_u32 s{sW}, 8")
    a("s_cbranch_scc1 K2_GEMMER")

    def lane_consts():
        srd(a, 44, 34, N, stride=512, add=WS_P)
        srd(a, 48, 32, N*256)
        a(f"s_mov_b32 s{sSLOW}, 0")
        a(f"s_mov_b32 s{sBATCH}, 0")
        a(f"s_mov_b64 s[{sSM}:{sSM+1}], 0")
        a(f"v_mov_b32 v{IP[1]+1}, v{IP[0]+1}")
        a(f"v_mov_b32 v{IP[0]}, 0")
        a(f"v_mov_b32 v{IP[1]}, 0")
        a(f"v_lshlrev_b32 v{VQA}, 1, v{IP[0]+1}")
        a(f"v_add_u32 v{VQA}, {L_Q}, v{VQA}")
        a("s_mov_b32 s10, 0x00f0000f")
        a("s_mov_b32 s11, 0xf0000f00")
        a("s_mov_b32 s12, 0x00300003")
        a("s_mov_b32 s13, 0x30000300")
        a("s_mov_b32 s14, 0x00c0000c")
        a("s_mov_b32 s15, 0xc0000c00")
        a(f"v_and_b32 v6, 16, v4")
        a(f"v_mov_b32 v{PB}, 0x3f80")
        a(f"v_lshlrev_b32 v{PB}, v6, v{PB}")
        for k in (0, 4, 8):
            a(f"v_cndmask_b32 v{AB+k}, 0, v{PB}, s[12:13]")
            a(f"v_cndmask_b32 v{AB+k+1}, 0, v{PB}, s[14:15]")
        a(f"v_lshrrev_b32 v6, 1, v6")
        a(f"v_mov_b32 v{VEO}, {L_ZERO}")
        a(f"v_or_b32 v{PB}, 4, v6")
        a(f"v_cndmask_b32 v{VEO}, v{VEO}, v{PB}, s[12:13]")
        a(f"v_cndmask_b32 v{VEO}, v{VEO}, v6, s[14:15]")
        a(f"v_cndmask_b32 v{VES}, 0, 4, s[10:11]")
        a(f"v_bfe_u32 v{VH}, v0, 5, 1")
        a(f"v_mov_b32 v7, 4")
        a(f"v_lshrrev_b32 v5, 2, v5")
    def wscale():
        r = []
        for d in range(DP):
            r.append(f"v_pk_mov_b32 {vr(BS+8*d,2)}, {vr(WE,2)}, {vr(WE,2)} op_sel:[0,1]")
            r.append(f"v_pk_mov_b32 {vr(BS+8*d+6,2)}, {vr(WE+2,2)}, {vr(WE+2,2)} op_sel:[0,1]")
        return r
    dpp = [f"row_shr:{sh} row_mask:0xf bank_mask:0xf bound_ctrl:0" for sh in (1, 2, 4, 8)] + \
          ["row_bcast:15 row_mask:0xa bank_mask:0xf", "row_bcast:31 row_mask:0xc bank_mask:0xf"]
    def scan(first):
        a(f"ds_read_b32 v{VC}, v5 offset:{L_CNT}")
        if first: a(f"ds_read_b32 v3, v7 offset:{L_FLAG-4}")
        a("s_waitcnt lgkmcnt(0)")
        a(f"v_mov_b32 v{VEND}, v{VC}")
        if first: a(f"v_readfirstlane_b32 s{sSLOW}, v3")
        else: a("s_nop 0")
        a(f"v_cmp_ne_u32 s[{sNE}:{sNE+1}], 0, v{VC}")
        for i, d in enumerate(dpp):
            if i: a("s_nop 1")
            a(f"v_add_u32_dpp v{VEND}, v{VEND}, v{VEND} {d}")
        a(f"v_sub_u32 v{VSTA}, v{VEND}, v{VC}")
        a(f"v_readlane_b32 s{sT}, v{VEND}, 63")
    def ranges():
        a(f"s_lshr_b32 s{sT}, s{sT}, 2")
        if DEBUG: a(f"s_mov_b32 s92, s{sT}")
        a(f"s_lshl_b32 s{sT2}, s{sW}, 1")
        a(f"s_mul_i32 s{sPOS[0]}, s{sT}, s{sT2}")
        a(f"s_add_u32 s{sPOS[1]}, s{sPOS[0]}, s{sT}")
        a(f"s_add_u32 s{sEND[1]}, s{sPOS[1]}, s{sT}")
        for r in (sPOS[0], sPOS[1], sEND[1]):
            a(f"s_lshr_b32 s{r}, s{r}, 5")
            a(f"s_lshl_b32 s{r}, s{r}, 2")
        a(f"s_mov_b32 s{sEND[0]}, s{sPOS[1]}")
        a(f"s_sub_u32 s{sT2}, s{sPOS[1]}, s{sPOS[0]}")
        a(f"v_mul_u32_u24 v{VIA}, s{sT2}, v{VH}")
        a(f"v_add_u32 v{VIA}, s{sPOS[0]}, v{VIA}")
        a(f"v_mad_u32_u24 v{VEA}, v{VIA}, v{VES}, v{VEO}")
        a(f"v_add_u32 v{VIA}, {L_IDX}, v{VIA}")
    def seg_next(x, lbl):
        a(f"s_lshl2_add_u32 s{sT2}, s{sSEGL[x]}, s{sPOS[x]}")
        a(f"s_mov_b32 s{sROW[x]}, -1")
        a(f"s_cmp_ge_u32 s{sT2}, s{sEND[x]}")
        a(f"s_cselect_b32 s{sSEGL[x]}, {hex(INF)}, s{sSEGL[x]}")
        a(f"s_cbranch_scc1 {lbl}")
        a(f"s_ff1_i32_b64 s{sT2}, s[{sMASK[x]}:{sMASK[x]+1}]")
        a(f"s_and_b32 s{sT2}, s{sT2}, 63")
        a(f"s_bitset0_b64 s[{sMASK[x]}:{sMASK[x]+1}], s{sT2}")
        a(f"v_readlane_b32 s{sT}, v{VEND}, s{sT2}")
        a(f"s_mul_i32 s{sROW[x]}, s{sT2}, {ROWP}")
        a(f"s_add_u32 s{sSEGL[x]}, s{sSEGL[x]}, 1")
        a(f"s_min_u32 s{sT}, s{sT}, s{sEND[x]}")
        a(f"s_sub_u32 s{sT}, s{sT}, s{sPOS[x]}")
        a(f"s_ashr_i32 s{sT}, s{sT}, 2")
        a(f"s_max_i32 s{sSEGL[x]}, s{sSEGL[x]}, s{sT}")
        a.lab(lbl)
    def stream_setup():
        a(f"v_cmp_lt_u32 s[{sMASK[0]}:{sMASK[0]+1}], s{sPOS[0]}, v{VEND}")
        a(f"v_cmp_lt_u32 s[{sMASK[1]}:{sMASK[1]+1}], s{sPOS[1]}, v{VEND}")
        for x in range(2):
            lj = L("INJ")
            a(f"s_and_b64 s[{sMASK[x]}:{sMASK[x]+1}], s[{sMASK[x]}:{sMASK[x]+1}], s[{sNE}:{sNE+1}]")
            a(f"s_mov_b32 s{sSEGL[x]}, 0")
            a(f"s_mov_b32 s{sHEAD[x]}, 0")
            seg_next(x, L("INI"))
            a(f"s_max_i32 s{sCR[x]}, s{sROW[x]}, 0")
            a(f"s_sub_u32 s{sCR[x]}, s{sCR[x]}, {QS}")
            a(f"s_cmp_lt_i32 s{sROW[x]}, 0")
            a(f"s_cbranch_scc1 {lj}")
            a(f"v_readlane_b32 s{sT}, v{VSTA}, s{sT2}")
            a(f"s_add_u32 s{sT2}, s{sT2}, 1")
            a(f"v_mov_b32 v{T3}, s{sT2}")
            a(f"s_lshl_b32 s{sT2}, s{sW}, 1")
            a(f"s_add_u32 s{sT2}, s{sT2}, {x}")
            a(f"s_cmp_ge_u32 s{sT}, s{sPOS[x]}")
            a(f"s_cbranch_scc1 {lj}")
            a(f"s_mov_b32 s{sHEAD[x]}, 1")
            a(f"s_mul_i32 s{sCR[x]}, s{sT2}, {ROWP}")
            a(f"s_add_u32 s{sCR[x]}, s{sCR[x]}, {L_CR-L_Q}")
            a(f"s_lshl_b32 s{sT2}, s{sT2}, 2")
            a(f"v_mov_b32 v6, s{sT2}")
            a(f"ds_write_b32 v6, v{T3} offset:{L_HN}")
            a.lab(lj)
            a(f"s_max_i32 s{sROW[x]}, s{sROW[x]}, 0")
        a(f"v_add_u32 v{T0}, s{sROW[0]}, v{VQA}")
        a(f"v_add_u32 v{T1}, s{sCR[0]}, v{VQA}")
        exec_half(1)
        a(f"v_add_u32 v{T0}, s{sROW[1]}, v{VQA}")
        a(f"v_add_u32 v{T1}, s{sCR[1]}, v{VQA}")
        a("s_mov_b64 exec, -1")
        a(f"v_lshlrev_b32 v3, {2 + (DP.bit_length()-1)}, v{VES}")
        a(f"s_min_u32 s{sTEV}, s{sSEGL[0]}, s{sSEGL[1]}")
        a(f"s_sub_u32 s{sREM}, s{sTEV}, 1")
        a(f"s_sub_u32 s{sLEFT}, s{sEND[1]}, s{sPOS[1]}")
        a(f"s_lshr_b32 s{sLEFT}, s{sLEFT}, 2")
        a(f"s_sub_u32 s6, s{sHEAD[0]}, 1")
        a(f"s_sub_u32 s7, s{sHEAD[1]}, 1")
        a(f"s_and_b64 s[6:7], s[6:7], s[{sSM}:{sSM+1}]")
        a(f"v_mov_b32 v5, {L_ZERO}")
        a(f"v_cndmask_b32 v{T3}, v5, v{T1}, s[6:7]")
    def first_loads():
        a(f"ds_read_b32 v{IP[0]}, v{VIA}")
        a(f"ds_read_b32 v{IP[1]}, v{VIA} offset:4")
        a(f"ds_read2_b32 {vr(ES[0],2)}, v{VEA} offset0:0 offset1:1")
        a(f"ds_read2_b32 {vr(ES[1],2)}, v{VEA} offset0:4 offset1:5")
        a("s_waitcnt lgkmcnt(2)")
        a(f"buffer_load_dwordx4 {vr(BS+2,4)}, {vr(IP[0],2)}, s[44:47], 0 idxen offen")
        a(f"buffer_load_dwordx4 {vr(BS+8+2,4)}, {vr(IP[1],2)}, s[44:47], 0 idxen offen")
        a(f"ds_read_b32 v{IP[0]}, v{VIA} offset:8")
        a(f"ds_read_b32 v{IP[1]}, v{VIA} offset:12")
    def pload(slot, pair):
        if "novm" in EXP: return
        a(f"buffer_load_dwordx4 {vr(BS+8*slot+2,4)}, {vr(pair,2)}, s[44:47], 0 idxen offen")
    def groups(n, body):
        for k in range(0, n, 2):
            l = None
            if k >= 2:
                l = L("SK")
                a(f"s_cmp_eq_u64 s[{sV[k]}:{sV[k]+1}], 0")
                a(f"s_cbranch_scc1 {l}")
            for i in range(k, min(k+2, n)): body(i)
            if l: a.lab(l)
    def rank_atomics(n):
        def body(i):
            a(f"v_lshrrev_b32 v{LA+i}, 16, v{R0+2*i+1}")
            a(f"s_mov_b64 exec, s[{sV[i]}:{sV[i]+1}]")
            a(f"ds_add_rtn_u32 v{RK+i}, v{LA+i}, v7 offset:{L_CNT}")
            a("s_mov_b64 exec, -1")
        groups(n, body)
    def zero_batch(upto):
        assert 16384 < upto <= 2*16384 and upto % 16 == 0
        a(f"ds_write_b128 v4, {vr(ZT,4)} offset:{upto-16384}")
        a(f"ds_write_b128 v4, {vr(ZT,4)}")
    def xread(nt, s):
        a(f"ds_read_b128 {vr(XF+4*s,4)}, v{VXA} offset:{16*nt*XROW+64*s}")
    def gemm_pre():
        for s in range(4): xread(0, s)
        a(f"v_mov_b32 v{VSTA}, {hex(S_LOG2E)}")
    def gemm_tile(nt):
        a("s_waitcnt lgkmcnt(0)")
        for s in range(4):
            for t in range(2):
                a(f"v_mfma_f32_16x16x32_bf16 {vr(QA+4*t,4)}, {vr(WF+16*t+4*s,4)}, {vr(XF+4*s,4)}, {'0' if s == 0 else vr(QA+4*t,4)}")
            if nt < 2: xread(nt+1, s)
        a("s_nop 6")
        if nt == 2:
            a("s_mov_b32 exec_lo, 0x00ff00ff")
            a("s_mov_b32 exec_hi, 0x00ff00ff")
        for t in range(2):
            for k in range(4): a(f"v_fma_f32 v{QA+4*t+k}, v{QA+4*t+k}, v{VSTA}, v{BI+4*t+k}")
            a(f"ds_write_b128 v{VQW}, {vr(QA+4*t,4)} offset:{16*nt*ROWP+64*t}")
        if nt == 2: a("s_mov_b64 exec, -1")
    def wq_loads(lo, hi):
        for f in range(lo, hi):
            t, s = divmod(f, 4)
            a(f"buffer_load_dwordx4 {vr(WF+16*t+4*s,4)}, v{VXA}, s[40:43], s{sWQ+t} offen offset:{1024*s}")

    def signal(k):
        a("s_waitcnt lgkmcnt(0)")
        a("s_mov_b64 exec, 1")
        a(f"ds_add_u32 v7, v7 offset:{L_FLAG+4*k}")
        a("s_mov_b64 exec, -1")
    def spin(k):
        l = L("SP")
        a("s_mov_b32 s8, 0x100000")
        a.lab(l)
        a(f"ds_read_b32 v6, v7 offset:{L_FLAG+4*k}")
        a("s_sub_u32 s8, s8, 1")
        a(f"s_cbranch_scc1 {l}X")
        a("s_waitcnt lgkmcnt(0)")
        a("v_readfirstlane_b32 s9, v6")
        a("s_nop 0")
        a("s_cmp_lt_u32 s9, 32")
        a(f"s_cbranch_scc1 {l}")
        a.lab(l + "X")
    def list_build(n):
        groups(n, lambda i: a(f"ds_bpermute_b32 v{PS+i}, v{LA+i}, v{VSTA}"))
        if n > 1:
            a(f"s_cmp_gt_u32 s{sT}, {4*BATCH}")
            a("s_cbranch_scc1 K2_SLOW_S")
        a("s_waitcnt lgkmcnt(0)")
        def body(i):
            a(f"v_add_u32 v{PS+i}, v{PS+i}, v{RK+i}")
            a(f"v_lshlrev_b32 v{RK+i}, 2, v{PS+i}")
            a(f"s_mov_b64 exec, s[{sV[i]}:{sV[i]+1}]")
            a(f"ds_write_b32 v{PS+i}, v{R0+2*i} offset:{L_IDX}")
            a(f"ds_write_b16 v{RK+i}, v{R0+2*i+1} offset:{L_EP+4}")
            a(f"ds_write_b16 v{RK+i}, v{R0+2*i+1} offset:{L_EP+14}")
            a("s_mov_b64 exec, -1")
        groups(n, body)
    def deg_acc():
        l = L("ND")
        a(f"s_cmp_lg_u32 s{sW}, 0")
        a(f"s_cbranch_scc1 {l}")
        a(f"ds_add_u32 v5, v{VC} offset:{L_DEG}")
        a.lab(l)
    a("v_and_b32 v2, 0x70, v4")
    a("v_add_u32 v6, v3, v2")
    a(f"buffer_load_dwordx4 {vr(R0,4)}, v6, s[40:43], s4 offen")
    a(f"buffer_load_dword v{HD}, v3, s[40:43], s4 offen")
    a(f"buffer_load_dwordx4 {vr(R0+4,4)}, v6, s[40:43], s4 offen offset:128")
    assert L_CNT <= 3*8192
    a(f"ds_write_b128 v4, {vr(ZT,4)}")
    a(f"ds_write_b128 v4, {vr(ZT,4)} offset:8192")
    a(f"ds_write_b128 v4, {vr(ZT,4)} offset:{L_CNT-8192}")
    lane_consts()
    a("v_lshrrev_b32 v2, 3, v2")
    a("s_waitcnt vmcnt(3)")
    for ins in wscale(): a(ins)
    stamp("a")
    a("s_waitcnt vmcnt(1)")
    stamp("b")
    a(f"v_sub_u32 v2, v{HD}, v2")
    a(f"v_cmp_lt_u32 vcc, {CAP}, v{HD}")
    for i in range(4):
        a(f"v_cmp_le_i32 s[{sV[i]}:{sV[i]+1}], {16*(i>>1)+(i&1)}, v2")
    a(f"s_and_b32 s{sV[0]}, s{sV[0]}, 0xfefefefe")
    a(f"s_and_b32 s{sV[0]+1}, s{sV[0]+1}, 0xfefefefe")
    a("s_waitcnt vmcnt(0)")
    rank_atomics(4)
    a("s_mov_b64 exec, vcc")
    a(f"ds_write_b32 v7, v7 offset:{L_FLAG-4}")
    signal(0)
    spin(0)
    stamp(2)
    scan(True)
    a(f"s_cmp_lg_u32 s{sSLOW}, 0")
    a("s_cbranch_scc1 K2_SLOW_S")
    list_build(4)
    signal(1)
    deg_acc()
    ranges()
    spin(1)
    stamp(3)
    first_loads()
    stream_setup()
    spin(3)
    a("s_branch K2_JOIN")
    a.lab("K2_SCAN")
    scan(False)
    list_build(1)
    deg_acc()
    ranges()
    stream_setup()
    a("s_waitcnt lgkmcnt(0)")
    a("s_barrier")
    first_loads()
    a("s_branch K2_JOIN")

    a.lab("K2_GEMMER")
    if "noprio" not in EXP: a("s_setprio 3")
    srd(a, 36, PX, N*256)
    a("v_subrev_u32 v2, 512, v0")
    a("v_and_b32 v3, 15, v0")
    a("v_lshrrev_b32 v6, 4, v2")
    a("v_lshlrev_b32 v7, 16, v6")
    a("v_lshl_add_u32 v7, v3, 4, v7")
    a("v_add_u32 v7, s5, v7")
    a(f"buffer_load_dwordx4 {vr(XP,4)}, v7, s[36:39], 0 offen")
    a("v_add_u32 v7, 0x200000, v7")
    a(f"buffer_load_dwordx4 {vr(XP+4,4)}, v7, s[36:39], 0 offen")
    a(f"s_add_u32 s9, s{sW}, s2")
    a("s_and_b32 s9, s9, 7")
    a(f"s_lshl_b32 s{sWQ}, s9, 13")
    a(f"s_add_u32 s{sWQ}, s{sWQ}, {hex(WS_WQ)}")
    a(f"s_add_u32 s{sWQ+1}, s{sWQ}, 4096")
    a(f"v_mov_b32 v{VXA}, v5")
    a("v_and_b32 v7, 0x30, v0")
    a("s_lshl_b32 s8, s9, 7")
    a(f"v_add_u32 v{PB}, s8, v7")
    a(f"global_load_dwordx4 {vr(BI,4)}, v{PB}, s[6:7] offset:{WS_B1-WS_WE}")
    a(f"global_load_dwordx4 {vr(BI+4,4)}, v{PB}, s[6:7] offset:{WS_B1-WS_WE+64}")
    wq_loads(0, 2)
    a(f"v_mul_u32_u24 v6, {XROW}, v6")
    a(f"v_lshl_add_u32 v6, v3, 4, v6")
    a(f"v_add_u32 v1, {L_XS}, v6")
    a(f"v_mul_u32_u24 v{VQW}, {ROWP}, v3")
    a(f"s_add_u32 s8, s8, {L_Q}")
    a(f"v_add3_u32 v{VQW}, v{VQW}, v7, s8")
    a(f"v_mul_u32_u24 v2, {XROW}, v3")
    a(f"s_mov_b32 s8, {L_XS}")
    a(f"v_add3_u32 v2, v2, v7, s8")
    wq_loads(2, 4)
    lane_consts()
    wq_loads(4, 8)
    a(f"v_mov_b32 v{VXA}, v2")
    stamp("a")
    a(f"s_waitcnt vmcnt(10)")
    stamp("b")
    a(f"ds_write_b128 v1, {vr(XP,4)}")
    a(f"s_cmp_ge_u32 s{sW}, 12")
    a("s_cbranch_scc1 K2_NOXS")
    a(f"ds_write_b128 v1, {vr(XP+4,4)} offset:{32*XROW}")
    a.lab("K2_NOXS")
    signal(2)
    for ins in wscale(): a(ins)
    spin(2)
    gemm_pre()
    a("s_waitcnt vmcnt(0)")
    gemm_tile(0)
    gemm_tile(1)
    gemm_tile(2)
    signal(3)
    stamp("c")
    spin(0)
    stamp(2)
    scan(True)
    a(f"s_cmp_gt_u32 s{sT}, {4*BATCH}")
    a(f"s_cselect_b32 s{sSLOW}, 1, s{sSLOW}")
    a(f"s_cmp_lg_u32 s{sSLOW}, 0")
    a("s_cbranch_scc1 K2_SLOW_SYNC")
    ranges()
    spin(1)
    stamp(3)
    first_loads()
    stream_setup()
    spin(3)
    a.lab("K2_JOIN")
    a(f"ds_read_b128 {vr(ACC,4)}, v{T3}")
    a(f"ds_read_b128 {vr(ACC+4,4)}, v{T3} offset:16")
    a("s_waitcnt lgkmcnt(0)")
    if "noprio" not in EXP: a("s_setprio 2")
    stamp("d")
    a(f"s_cmp_eq_u32 s{sTEV}, {hex(INF)}")
    a("s_cbranch_scc1 K2_LOOP_DONE")
    a(f"ds_read_b128 {vr(Q,4)}, v{T0}")
    a(f"ds_read_b128 {vr(Q+4,4)}, v{T0} offset:16")
    a(f"buffer_load_dwordx4 {vr(BS+16+2,4)}, {vr(IP[0],2)}, s[44:47], 0 idxen offen")
    a(f"buffer_load_dwordx4 {vr(BS+24+2,4)}, {vr(IP[1],2)}, s[44:47], 0 idxen offen")
    a(f"ds_read_b32 v{IP[0]}, v{VIA} offset:{4*DP}")
    a(f"ds_read_b32 v{IP[1]}, v{VIA} offset:{4*(DP+1)}")
    def mfma(slot, es, u, which):
        if "nomfma" in EXP: return
        if which == 0:
            a(f"v_mfma_f32_16x16x32_bf16 {vr(u,4)}, {vr(es,4)}, {vr(BS+8*slot,4)}, {vr(Q,4)}")
        else:
            a(f"v_mfma_f32_16x16x32_bf16 {vr(u+4,4)}, {vr(es-2,4)}, {vr(BS+8*slot+4,4)}, {vr(Q+4,4)}")
    a(f"s_waitcnt vmcnt({DP-1}) lgkmcnt(0)")
    mfma(0, ES[0], U[0], 0); mfma(0, ES[0], U[0], 1)
    pload(0, IP[0])
    stamp(4)
    a(f"s_sub_u32 s{sREM}, s{sREM}, 1")
    a("s_nop 5")
    a("s_cbranch_scc1 K2_BND0")
    a("s_branch K2_SUB0")
    def rdE(k):
        if "nods" in EXP: return
        a(f"ds_read2_b32 {vr(ES[k&1],2)}, v{VEA} offset0:{4*(k+2)} offset1:{4*(k+2)+1}")
    def rdI(k):
        if "nods" in EXP: return
        a(f"ds_read_b32 v{IP[k&1]}, v{VIA} offset:{4*(k+2+DP)}")
    def ex(c, u): a(f"v_exp_f32 v{EX+c}, v{u+c}")
    def rc(c): a(f"v_rcp_f32 v{EX+c}, v{EX+c}")
    def pa(c): a(f"v_pk_add_f32 {vr(EX+c,2)}, {vr(EX+c,2)}, 1.0 op_sel_hi:[1,0]")
    def pf(c, u): a(f"v_pk_fma_f32 {vr(ACC+c,2)}, {vr(u+c,2)}, {vr(EX+c,2)}, {vr(ACC+c,2)}")
    def valu(u):
        for c in range(8): ex(c, u)
        for c in range(0, 8, 2): pa(c)
        for c in range(8): rc(c)
        for c in range(0, 8, 2): pf(c, u)
    def tail(u):
        rc(7)
        for c in range(0, 8, 2): pf(c, u)
    uid = [0]
    def prio():
        if "noprio" in EXP: return
        uid[0] += 1
        lbl = f"K2_PR{uid[0]}"
        a(f"s_cmp_gt_i32 s{sLEFT}, {PR1}")
        a(f"s_cbranch_scc1 {lbl}_D")
        a("s_setprio 1")
        a(f"s_cmp_gt_i32 s{sLEFT}, {PR0}")
        a(f"s_cbranch_scc1 {lbl}_D")
        a("s_setprio 0")
        a.lab(f"{lbl}_D")
    def advance():
        a(f"v_add_u32 v{VEA}, v3, v{VEA}")
        a(f"v_add_u32 v{VIA}, {4*DP}, v{VIA}")
        a(f"s_sub_u32 s{sLEFT}, s{sLEFT}, {DP}")
        prio()
    a.raw(".p2align 3")
    a.lab("K2_LOOP")
    advance()
    for k in range(DP):
        u = U[k & 1]
        a.lab(f"K2_SUB{k}")
        ex(0, u)
        a(f"s_waitcnt vmcnt({DP-1}) lgkmcnt(0)")
        ex(1, u)
        mfma((k+1) % DP, ES[(k+1) & 1], U[(k+1) & 1], 0)
        ex(2, u)
        mfma((k+1) % DP, ES[(k+1) & 1], U[(k+1) & 1], 1)
        ex(3, u)
        pload((k+1) % DP, IP[(k+1) & 1])
        ex(4, u)
        rdE(k)
        ex(5, u)
        rdI(k)
        ex(6, u); ex(7, u)
        for c in range(0, 8, 2): pa(c)
        for c in range(6): rc(c)
        a(f"s_sub_u32 s{sREM}, s{sREM}, 1")
        rc(6)
        a(f"s_cbranch_scc1 K2_BNDT{k}")
        tail(u)
    a("s_branch K2_LOOP")
    for k in range(DP):
        kp = (k - 1) % DP
        a.lab(f"K2_BNDT{kp}")
        tail(U[kp & 1])
        if k == 0: advance()
        a.lab(f"K2_BND{k}")
        a(f"s_mov_b64 s[{sX}:{sX+1}], 0")
        a("s_mov_b64 s[6:7], 0")
        for x in range(2):
            a(f"s_cmp_lg_u32 s{sSEGL[x]}, s{sTEV}")
            a(f"s_cbranch_scc1 K2_B{k}_N{x}")
            a(f"s_mov_b32 s{sX+x}, -1")
            seg_next(x, f"K2_B{k}_S{x}")
            a(f"s_cmp_lt_i32 s{sROW[x]}, 0")
            a(f"s_cbranch_scc1 K2_B{k}_N{x}")
            a(f"s_mov_b32 s{6+x}, -1")
            exec_half(x)
            a(f"v_add_u32 v{T0}, s{sROW[x]}, v{VQA}")
            a.lab(f"K2_B{k}_N{x}")
        a("s_mov_b64 exec, s[6:7]")
        a("s_waitcnt lgkmcnt(0)")
        a(f"ds_read_b128 {vr(Q,4)}, v{T0}")
        a(f"ds_read_b128 {vr(Q+4,4)}, v{T0} offset:16")
        a("s_mov_b64 exec, -1")
        valu(U[k & 1])
        a(f"s_mov_b64 exec, s[{sX}:{sX+1}]")
        a(f"ds_write_b128 v{T1}, {vr(ACC,4)}")
        a(f"ds_write_b128 v{T1}, {vr(ACC+4,4)} offset:16")
        a("s_mov_b64 exec, s[6:7]")
        a(f"v_subrev_u32 v{T1}, {QS}, v{T0}")
        a(f"v_cndmask_b32 v{T3}, v5, v{T1}, s[{sSM}:{sSM+1}]")
        a(f"ds_read_b128 {vr(ACC,4)}, v{T3}")
        a(f"ds_read_b128 {vr(ACC+4,4)}, v{T3} offset:16")
        a("s_mov_b64 exec, -1")
        a(f"s_sub_u32 s{sREM}, -1, s{sTEV}")
        a(f"s_min_u32 s{sTEV}, s{sSEGL[0]}, s{sSEGL[1]}")
        a(f"s_cmp_eq_u32 s{sTEV}, {hex(INF)}")
        a("s_cbranch_scc1 K2_LOOP_DONE")
        a(f"s_add_u32 s{sREM}, s{sREM}, s{sTEV}")
        a(f"s_waitcnt vmcnt({DP-1}) lgkmcnt(2)")
        mfma((k+1) % DP, ES[(k+1) & 1], U[(k+1) & 1], 0)
        mfma((k+1) % DP, ES[(k+1) & 1], U[(k+1) & 1], 1)
        pload((k+1) % DP, IP[(k+1) & 1])
        rdE(k); rdI(k)
        a(f"s_sub_u32 s{sREM}, s{sREM}, 1")
        a("s_nop 3")
        if k < DP-1:
            a(f"s_cbranch_scc1 K2_BND{k+1}")
            a(f"s_branch K2_SUB{k+1}")
        else:
            a(f"s_cbranch_scc0 K2_LOOP")
            advance()
            a(f"s_branch K2_BND0")
    a.lab("K2_LOOP_DONE")
    a("s_setprio 0")
    stamp(5)
    if DEBUG:
        a("s_lshl_b32 s93, s2, 4")
        a("s_add_u32 s93, s93, s3")
        a("s_lshl_b32 s93, s93, 5")
        a("s_add_u32 s93, s93, 0xA80000")
        a("v_mov_b32 v1, s93")
        for i in range(8): a(f"v_mov_b32 v{8+i}, s{84+i}")
        a("global_store_dwordx4 v1, v[8:11], s[34:35]")
        a("global_store_dwordx4 v1, v[12:15], s[34:35] offset:16")
    a("s_waitcnt vmcnt(0)")
    a(f"s_cmp_lg_u32 s{sSLOW}, 0")
    a("s_cbranch_scc1 K2_COMB")
    a.lab("K2_EPI")
    a.c("out = -ln2 * S @ w2 + deg*b2")
    AF = 56
    SF = 8
    OA = 32
    B2 = 120
    DG = 124
    a(f"s_cmp_ge_u32 s{sW}, 4")
    a("s_cbranch_scc1 K2_COMB")
    a(f"s_lshl_b32 s6, s{sW}, 14")
    a(f"s_add_u32 s6, s6, {hex(WS_W2)}")
    a("v_and_b32 v7, 63, v0")
    a("v_lshlrev_b32 v7, 4, v7")
    for q in range(4):
        if q: a("s_add_u32 s6, s6, 4096")
        for s in range(4):
            a(f"buffer_load_dwordx4 {vr(AF+16*q+4*s,4)}, v7, s[40:43], s6 offen offset:{1024*s}")
    a("v_bfe_u32 v7, v0, 4, 2")
    a(f"s_lshl_b32 s7, s{sW}, 6")
    a("v_lshlrev_b32 v5, 3, v7")
    a("v_add_u32 v5, s7, v5")
    a(f"global_load_dwordx2 {vr(B2,2)}, v5, s[{PB2}:{PB2+1}]")
    a(f"global_load_dwordx2 {vr(B2+2,2)}, v5, s[{PB2}:{PB2+1}] offset:32")
    a.lab("K2_COMB")
    a("v_and_b32 v1, 63, v0")
    a("v_lshlrev_b32 v2, 2, v1")
    a(f"v_add_u32 v2, {L_HN}, v2")
    a(f"s_mul_i32 s4, s{sW}, {ROWP}")
    a(f"s_add_u32 s4, s4, {L_S}")
    a("v_lshlrev_b32 v3, 4, v1")
    a("v_add_u32 v4, s4, v3")
    a(f"v_add_u32 v3, {L_CR}, v3")
    a(f"s_mul_i32 s4, s{sW}, {SBROW}")
    a(f"s_add_u32 s4, s4, {L_SB}")
    a("v_lshlrev_b32 v6, 3, v1")
    a("v_add_u32 v6, s4, v6")
    stamp("e")
    a("s_waitcnt lgkmcnt(0)")
    a("s_barrier")
    stamp("f")
    a("ds_read_b32 v2, v2")
    for r in range(3):
        a(f"ds_read_b128 {vr(8+4*r,4)}, v4 offset:{16*r*ROWP}")
    a(f"s_add_u32 s4, s{sW}, 1")
    a("s_waitcnt lgkmcnt(0)")
    for r in range(3):
        a(f"v_cmp_eq_u32 s[6:7], s4, v2")
        a(f"s_sub_u32 s8, s4, 1")
        a(f"s_or_b64 s[10:11], s[{sNE}:{sNE+1}], s[{sSM}:{sSM+1}]")
        a(f"s_bitcmp1_b64 s[10:11], s8")
        a(f"s_cbranch_scc1 K2_CZ{r}")
        for c in range(4): a(f"v_mov_b32 v{8+4*r+c}, 0")
        a.lab(f"K2_CZ{r}")
        a(f"s_add_u32 s4, s4, 16")
        a.lab(f"K2_CB{r}")
        a("s_cmp_eq_u64 s[6:7], 0")
        a(f"s_cbranch_scc1 K2_CB{r}D")
        a("s_ff1_i32_b64 s8, s[6:7]")
        a("s_bitset0_b64 s[6:7], s8")
        a(f"s_mul_i32 s8, s8, {ROWP}")
        a("v_add_u32 v7, s8, v3")
        a(f"ds_read_b128 v[20:23], v7")
        a("s_waitcnt lgkmcnt(0)")
        for c in range(4): a(f"v_add_f32 v{8+4*r+c}, v{8+4*r+c}, v{20+c}")
        a(f"s_branch K2_CB{r}")
        a.lab(f"K2_CB{r}D")
    a(f"s_cmp_lg_u32 s{sSLOW}, 0")
    a("s_cbranch_scc1 K2_SLOW_WB")
    for r in range(3):
        a(f"v_cvt_pk_bf16_f32 v{24+2*r}, v{8+4*r}, v{9+4*r}")
        a(f"v_cvt_pk_bf16_f32 v{25+2*r}, v{10+4*r}, v{11+4*r}")
    a(f"ds_write_b64 v6, v[24:25]")
    a(f"ds_write_b64 v6, v[26:27] offset:{16*SBROW}")
    a(f"ds_write_b64 v6, v[28:29] offset:{32*SBROW}")
    a("v_and_b32 v2, 15, v0")
    a("v_bfe_u32 v7, v0, 4, 2")
    a(f"v_mul_u32_u24 v4, {SBROW}, v2")
    a("v_lshl_add_u32 v4, v7, 4, v4")
    a(f"v_add_u32 v4, {L_SB}, v4")
    a(f"v_lshlrev_b32 v1, 2, v2")
    a(f"v_add_u32 v1, {L_DEG}, v1")
    a("v_lshl_add_u32 v5, v2, 16, v5")
    a("s_lshl_b32 s9, s2, 8")
    a("v_add_u32 v5, s9, v5")
    stamp("g")
    a("s_waitcnt lgkmcnt(0)")
    a("s_barrier")
    a(f"s_cmp_ge_u32 s{sW}, 4")
    a("s_cbranch_scc1 K2_EXIT")
    stamp(6)
    seq = [(s, nt) for s in range(8) for nt in range(3)]
    def sread(i):
        s, nt = seq[i]
        a(f"ds_read_b128 {vr(SF+4*(i%6),4)}, v4 offset:{64*s+16*nt*SBROW}")
    for nt in range(3): a(f"ds_read_b32 v{DG+nt}, v1 offset:{64*nt}")
    for i in range(6): sread(i)
    a("s_waitcnt vmcnt(0)")
    for i, (s, nt) in enumerate(seq):
        a(f"s_waitcnt lgkmcnt({min(5, len(seq)-1-i)})")
        for t in range(2):
            o = OA + 8*nt + 4*t
            c = "0" if s == 0 else vr(o, 4)
            a(f"v_mfma_f32_16x16x32_bf16 {vr(o,4)}, {vr(AF+32*t+4*s,4)}, {vr(SF+4*(i%6),4)}, {c}")
        if i + 6 < len(seq): sread(i+6)
    a(f"v_mov_b32 v{DG+3}, {hex(S_LN2)}")
    BU = 8
    for t in range(2):
        a(f"v_lshlrev_b32 v{BU+4*t}, 16, v{B2+2*t}")
        a(f"v_and_b32 v{BU+4*t+1}, 0xffff0000, v{B2+2*t}")
        a(f"v_lshlrev_b32 v{BU+4*t+2}, 16, v{B2+2*t+1}")
        a(f"v_and_b32 v{BU+4*t+3}, 0xffff0000, v{B2+2*t+1}")
    a("s_mov_b32 s4, 0x100000")
    a("s_mov_b32 s5, 0x200000")
    for nt in range(3):
        a(f"v_cvt_f32_u32 v{DG+nt}, v{DG+nt}")
        a(f"v_mul_f32 v{DG+nt}, 0.25, v{DG+nt}")
        for k in range(8):
            a(f"v_mul_f32 v{OA+8*nt+k}, v{DG+3}, v{OA+8*nt+k}")
        for k in range(8):
            a(f"v_fmac_f32 v{OA+8*nt+k}, v{DG+nt}, v{BU+k}")
        if nt: a(f"v_add_u32 v5, 0x100000, v5")
        for t in range(2):
            o = OA + 8*nt + 4*t
            a(f"v_cvt_pk_bf16_f32 v{16+4*nt+2*t}, v{o}, v{o+1}")
            a(f"v_cvt_pk_bf16_f32 v{17+4*nt+2*t}, v{o+2}, v{o+3}")
            a(f"buffer_store_dwordx2 {vr(16+4*nt+2*t,2)}, v5, s[48:51], 0 offen offset:{32*t}")
    if DEBUG:
        stamp(7)
        a("s_cmp_lg_u32 s3, 0")
        a("s_cbranch_scc1 K2_EXIT")
        a("s_memrealtime s[98:99]")
        a("s_lshl_b32 s93, s2, 6")
        a("s_add_u32 s93, s93, 0xA00000")
        a("v_mov_b32 v1, s93")
        a("s_waitcnt lgkmcnt(0)")
        for i in range(8):
            a(f"s_sub_u32 s93, s{84+i}, s84")
            a("v_mov_b32 v2, s93")
            a(f"global_store_dword v1, v2, s[34:35] offset:{4*i}")
        for off, sr_ in ((32, 96), (36, 98), (40, 92)):
            a(f"v_mov_b32 v2, s{sr_}")
            a(f"global_store_dword v1, v2, s[34:35] offset:{off}")
    a.lab("K2_EXIT")
    a("s_endpgm")
    a.lab("K2_SLOW_WB")
    a(f"ds_write_b128 v4, v[8:11]")
    a(f"ds_write_b128 v4, v[12:15] offset:{16*ROWP}")
    a(f"s_cmp_ge_u32 s{sW}, 8")
    a("s_cbranch_scc1 K2_SLOW_SYNC")
    a(f"ds_write_b128 v4, v[16:19] offset:{32*ROWP}")
    a("s_branch K2_SLOW_SYNC")
    a.lab("K2_SLOW_S")
    a.lab("K2_SLOW_SET")
    a(f"s_mov_b32 s{sSLOW}, 1")
    a.lab("K2_SLOW_SYNC")
    a("s_waitcnt lgkmcnt(0)")
    a("s_barrier")
    a.lab("K2_SLOW_NEXT")
    a("v_lshlrev_b32 v4, 4, v0")
    for k in range(4): a(f"v_mov_b32 v{ZT+k}, 0")
    zero_batch(L_BZEND)
    a(f"s_cmp_lg_u32 s{sBATCH}, 0")
    a("s_cbranch_scc1 K2_SLOW_NZ")
    a(f"s_mov_b64 s[{sSM}:{sSM+1}], -1")
    a(f"ds_write_b128 v4, {vr(ZT,4)} offset:{L_S}")
    a(f"ds_write_b128 v4, {vr(ZT,4)} offset:{L_S+16384}")
    a(f"ds_write_b128 v4, {vr(ZT,4)} offset:{L_S+40*ROWP-16384}")
    a.lab("K2_SLOW_NZ")
    a(f"s_cmp_lt_u32 s{sBATCH}, {E}")
    a("s_cbranch_scc1 K2_SLOW_GO")
    a(f"s_mov_b32 s{sSLOW}, 0")
    a("s_branch K2_EPI")
    a.lab("K2_SLOW_GO")
    a(f"v_add_u32 v5, s{sBATCH}, v0")
    a(f"v_mov_b32 v6, {E}")
    a("v_cmp_lt_u32 vcc, v5, v6")
    a(f"v_min_u32 v5, {E-1}, v5")
    a("v_lshlrev_b32 v6, 2, v5")
    a("v_lshlrev_b32 v7, 1, v5")
    SD, SE = 40, 41
    a(f"global_load_dword v{SD}, v6, s[{PDST}:{PDST+1}]")
    a(f"global_load_dword v{R0}, v6, s[{PSRC}:{PSRC+1}]")
    a(f"global_load_ushort v{SE}, v7, s[{PE}:{PE+1}]")
    a("v_mov_b32 v6, 0xfffc0000")
    a("v_and_b32 v5, 63, v0")
    a("v_lshlrev_b32 v5, 2, v5")
    a("s_waitcnt vmcnt(0) lgkmcnt(0)")
    a("s_barrier")
    a(f"v_and_b32 v7, 0xff, v{SD}")
    a(f"v_cmp_eq_u32 s[{sV[0]}:{sV[0]+1}], s2, v7")
    a(f"v_lshlrev_b32 v7, 10, v{SD}")
    a(f"v_and_or_b32 v{R0+1}, v7, v6, v{SE}")
    a(f"s_and_b64 s[{sV[0]}:{sV[0]+1}], s[{sV[0]}:{sV[0]+1}], vcc")
    for i in range(1, 4): a(f"s_mov_b64 s[{sV[i]}:{sV[i]+1}], 0")
    a("v_mov_b32 v7, 4")
    rank_atomics(1)
    a("s_mov_b64 exec, -1")
    a(f"s_add_u32 s{sBATCH}, s{sBATCH}, {BATCH}")
    a("s_waitcnt lgkmcnt(0)")
    a("s_barrier")
    a("s_branch K2_SCAN")
    return 128

HEADER = open('standalone__edge_featured_mpnn_mpnn__graph.s.ref').read().split("; Override launch")[0]

def kd(name, nv, ns):
    acc = (nv + 3) // 4 * 4
    return f""".p2align 6
.amdhsa_kernel {name}
  .amdhsa_next_free_vgpr {nv}
  .amdhsa_next_free_sgpr {ns}
  .amdhsa_accum_offset {acc}
  .amdhsa_group_segment_fixed_size 0
  .amdhsa_kernarg_size 88
  .amdhsa_user_sgpr_count 2
  .amdhsa_user_sgpr_kernarg_segment_ptr 1
  .amdhsa_system_sgpr_workgroup_id_x 1
.end_amdhsa_kernel
"""

def build(TPW=4, DP=6):
    a = Asm()
    g1 = gen_k1(a, TPW)
    nv2 = gen_k2(a, DP)
    out = HEADER
    out += f"; @launch kernel=k1_kernel grid=({g1},1,1) block=(256,1,1) lds=1024\n"
    out += f"; @launch kernel=k2_kernel grid=(256,1,1) block=(1024,1,1) lds={L_END}\n"
    out += '.amdgcn_target "amdgcn-amd-amdhsa--gfx950"\n.text\n'
    out += a.text()
    out += '.section .rodata,"a"\n'
    out += kd("k1_kernel", 224, 64)
    out += kd("k2_kernel", 128, 102)
    return out

if __name__ == "__main__":
    import argparse
    ap = argparse.ArgumentParser()
    ap.add_argument("-o", default="standalone__edge_featured_mpnn_mpnn__graph.s")
    ap.add_argument("--tpw", type=int, default=4)
    ap.add_argument("--dp", type=int, default=4)
    ap.add_argument("--debug", action="store_true")
    ap.add_argument("--srcmask", type=int, default=0)
    ap.add_argument("--exp", default="")
    ap.add_argument("--pr1", type=int, default=10)
    ap.add_argument("--pr0", type=int, default=4)
    ap.add_argument("--wqs", type=int, default=4)
    ap.add_argument("--wqs2", type=int, default=5)
    ap.add_argument("--pf", type=int, default=0)
    args = ap.parse_args()
    DEBUG = args.debug
    SRCMASK = args.srcmask
    PF = args.pf
    WQSPLIT = args.wqs
    PR1, PR0 = args.pr1, args.pr0
    WQSPLIT2 = args.wqs2
    EXP = set(args.exp.split(",")) if args.exp else set()
    open(args.o, "w").write(build(args.tpw, args.dp))
```

```python
import sys, struct

N, E, D_, H = 10000, 160000, 128, 256
NCH = 64
CH_E = E // NCH
CAP = 31
WS_P = 0
WS_CELLS = 0x500000
WS_WQ = 0x900000
WS_W2 = 0x910000
WS_WE = 0x920000
WS_B1 = 0x920400
WS_END = 0x921000

def f32bits(x): return struct.unpack('<I', struct.pack('<f', x))[0]
S_LOG2E = f32bits(-1.4426950408889634)
S_LN2 = f32bits(-0.6931471805599453)

class Asm:
    def __init__(self): self.l = []
    def __call__(self, s): self.l.append("    " + s)
    def lab(self, s): self.l.append(s + ":")
    def c(self, s): self.l.append("    ; " + s)
    def raw(self, s): self.l.append(s)
    def text(self): return "\n".join(self.l) + "\n"

def vr(a, n): return f"v[{a}:{a+n-1}]"
def sr(a, n): return f"s[{a}:{a+n-1}]"

def srd(a, d, base, nrec, stride=0, add=0):
    if add:
        a(f"s_add_u32 s{d}, s{base}, {hex(add)}")
        a(f"s_addc_u32 s{d+1}, s{base+1}, 0")
    else:
        a(f"s_mov_b32 s{d}, s{base}")
        a(f"s_mov_b32 s{d+1}, s{base+1}")
    if stride:
        a(f"s_or_b32 s{d+1}, s{d+1}, {hex(stride << 16)}")
    a(f"s_mov_b32 s{d+2}, {hex(nrec)}")
    a(f"s_mov_b32 s{d+3}, 0x20000")

PX, PE, PSRC, PDST, PW1, PB1, PW2, PB2 = 16, 18, 20, 22, 24, 26, 28, 30

DEBUG = False
SRCMASK = 0
EXP = set()
PF = 0
WQSPLIT = 2
PR1 = 10
PR0 = 4
WQSPLIT2 = 5
def gen_k1(a, TPW):
    NG = (625 + TPW - 1) // TPW
    GRID = NCH + 4 + NG
    a.raw(".globl k1_kernel"); a.raw(".p2align 8"); a.raw(".type k1_kernel,@function")
    a.lab("k1_kernel")
    a(f"s_cmp_ge_u32 s2, {GRID}")
    a("s_cbranch_scc1 K1_EXIT")
    a("s_load_dwordx16 s[16:31], s[0:1], 0")
    a("s_load_dwordx2 s[32:33], s[0:1], 80")
    if DEBUG: a("s_memrealtime s[56:57]")
    def k1end():
        if DEBUG:
            a("s_waitcnt vmcnt(0)")
            a("s_memrealtime s[58:59]")
            a("s_lshl_b32 s60, s2, 4")
            a("s_add_u32 s60, s60, 0xB00000")
            a("v_mov_b32 v1, s60")
            a("s_waitcnt lgkmcnt(0)")
            a("v_mov_b32 v2, s56")
            a("v_mov_b32 v3, s58")
            a("v_cmp_eq_u32 vcc, 0, v0")
            a("s_and_saveexec_b64 s[60:61], vcc")
            a("s_cbranch_execz K1_EXIT")
            a("global_store_dwordx2 v1, v[2:3], s[32:33]")
        a("s_endpgm")
    a(f"s_cmp_lt_u32 s2, {NCH}")
    a("s_cbranch_scc1 K1_SORT")
    a(f"s_cmp_lt_u32 s2, {NCH+4}")
    a("s_cbranch_scc1 K1_TRANS")
    a.c("GEMM role: P' = -log2e * x @ W1a")
    a("v_lshrrev_b32 v1, 6, v0")
    a("v_and_b32 v2, 15, v0")
    a("v_bfe_u32 v3, v0, 4, 2")
    a("v_lshlrev_b32 v4, 7, v1")
    a("v_lshl_add_u32 v4, v2, 3, v4")
    a("v_lshl_add_u32 v5, v3, 12, v4")
    a("v_lshl_add_u32 v6, v3, 11, v4")
    a("v_lshlrev_b32 v7, 8, v2")
    a("v_lshl_add_u32 v7, v3, 4, v7")
    a(f"s_sub_u32 s3, s2, {NCH+4}")
    a(f"s_mul_i32 s3, s3, {TPW}")
    a("s_lshl_b32 s4, s3, 12")
    a("s_lshl_b32 s5, s3, 13")
    a("s_mov_b32 s6, 0x4000"); a("s_mov_b32 s7, 0x8000"); a("s_mov_b32 s8, 0xc000")
    a("s_mov_b32 s9, 0x05040100"); a("s_mov_b32 s10, 0x07060302")
    a(f"v_mov_b32 v8, {hex(S_LOG2E)}")
    a("s_waitcnt lgkmcnt(0)")
    srd(a, 36, PX, N*256)
    srd(a, 40, PW1, 257*512)
    srd(a, 44, 32, N*512, add=WS_P)
    RAW = 64; FR = 128; XF = 16; ACC = 192
    def xload(t):
        if t:
            a(f"s_add_u32 s11, s4, {t*4096}")
        else:
            a("s_mov_b32 s11, s4")
        for s in range(4):
            a(f"buffer_load_dwordx4 {vr(XF+16*(t%3)+4*s,4)}, v7, s[36:39], s11 offen offset:{64*s}")
    so = ["0", "s6", "s7", "s8"]
    for s in range(4):
        for m in range(8):
            a(f"buffer_load_dwordx2 {vr(RAW+16*s+2*m,2)}, v5, s[40:43], {so[s]} offen offset:{512*m}")
    npre = min(TPW, 3)
    for t in range(npre): xload(t)
    for s in range(4):
        a(f"s_waitcnt vmcnt({4*npre + 8*(3-s)})")
        for t in range(4):
            for p in range(4):
                a(f"v_perm_b32 v{FR+16*s+4*t+p}, v{RAW+16*s+2*(2*p+1)+(t>>1)}, v{RAW+16*s+2*(2*p)+(t>>1)}, s{9+(t&1)}")
    outstanding = []
    for t in range(npre): outstanding += [("x", t)]*4
    def wait_for(tag):
        idx = max(i for i, x in enumerate(outstanding) if x == tag)
        n = len(outstanding) - 1 - idx
        a(f"s_waitcnt vmcnt({n})")
        del outstanding[:idx+1]
    for t in range(TPW):
        wait_for(("x", t))
        acc = ACC + 16*(t & 1)
        for s in range(4):
            for tt in range(4):
                c = "0" if s == 0 else vr(acc+4*tt, 4)
                a(f"v_mfma_f32_16x16x32_bf16 {vr(acc+4*tt,4)}, {vr(XF+16*(t%3)+4*s,4)}, {vr(FR+16*s+4*tt,4)}, {c}")
        if t + 3 < TPW:
            xload(t+3); outstanding.extend([("x", t+3)]*4)
        a(f"s_add_u32 s12, s5, {t*8192}")
        a("s_nop 7")
        for tt in range(4):
            for r in range(4):
                a(f"v_mul_f32 v{acc+4*tt+r}, v8, v{acc+4*tt+r}")
        ob = RAW + 8*(t & 3)
        for r in range(4):
            a(f"v_cvt_pk_bf16_f32 v{ob+2*r}, v{acc+0+r}, v{acc+4+r}")
            a(f"v_cvt_pk_bf16_f32 v{ob+2*r+1}, v{acc+8+r}, v{acc+12+r}")
        for r in range(4):
            fl = " sc1" if "psc1" in EXP else " nt" if "pnt" in EXP else " sc0 sc1" if "psc01" in EXP else ""
            if "nop" not in EXP: a(f"buffer_store_dwordx2 {vr(ob+2*r,2)}, v6, s[44:47], s12 offen offset:{512*r}{fl}")
            else: a(f"buffer_store_dwordx2 {vr(ob+2*r,2)}, v6, s[44:47], 0 offen offset:{512*r}")
            outstanding.append(("st", t))
    k1end()
    a.lab("K1_TRANS")
    a.c("fragment transposer for W1b (WQ) and w2 (W2F)")
    a(f"s_sub_u32 s3, s2, {NCH}")
    a("s_and_b32 s4, s3, 1")
    a("s_lshl_b32 s4, s4, 8")
    a("v_add_u32 v1, s4, v0")
    a("s_mov_b32 s9, 0x05040100"); a("s_mov_b32 s10, 0x07060302")
    a("s_waitcnt lgkmcnt(0)")
    a("s_cmp_ge_u32 s3, 2")
    a("s_cbranch_scc1 K1_TR_W2")
    a("v_and_b32 v2, 31, v1")
    a("v_lshrrev_b32 v3, 5, v1")
    a("v_lshlrev_b32 v4, 4, v2")
    a("v_lshl_add_u32 v4, v3, 12, v4")
    a("v_add_u32 v4, 0x10000, v4")
    a("v_lshrrev_b32 v5, 1, v2")
    a("v_lshlrev_b32 v5, 12, v5")
    a("v_lshl_add_u32 v5, v3, 8, v5")
    a("v_and_b32 v6, 1, v2")
    a("v_lshl_add_u32 v5, v6, 7, v5")
    srd(a, 36, PW1, 257*512)
    srd(a, 40, 32, 0x10000, add=WS_WQ)
    a("s_mov_b32 s5, 512")
    a("s_branch K1_TR_GO")
    a.lab("K1_TR_W2")
    a("v_and_b32 v2, 15, v1")
    a("v_bfe_u32 v3, v1, 4, 3")
    a("v_lshrrev_b32 v7, 7, v1")
    a("v_lshlrev_b32 v4, 4, v2")
    a("v_lshl_add_u32 v4, v3, 13, v4")
    a("v_lshl_add_u32 v4, v7, 11, v4")
    a("v_lshrrev_b32 v5, 1, v2")
    a("v_lshlrev_b32 v5, 13, v5")
    a("v_lshl_add_u32 v5, v3, 10, v5")
    a("v_lshl_add_u32 v5, v7, 8, v5")
    a("v_and_b32 v6, 1, v2")
    a("v_lshl_add_u32 v5, v6, 7, v5")
    srd(a, 36, PW2, 256*256)
    srd(a, 40, 32, 0x10000, add=WS_W2)
    a("s_mov_b32 s5, 256")
    a.lab("K1_TR_GO")
    a("s_mov_b32 s6, 0")
    for m in range(8):
        a(f"buffer_load_dwordx4 {vr(16+4*m,4)}, v4, s[36:39], s6 offen")
        if m < 7: a("s_add_u32 s6, s6, s5")
    a("s_waitcnt vmcnt(0)")
    for cc in range(8):
        for p in range(4):
            a(f"v_perm_b32 v{48+4*cc+p}, v{16+4*(2*p+1)+(cc>>1)}, v{16+4*(2*p)+(cc>>1)}, s{9+(cc&1)}")
        a(f"buffer_store_dwordx4 {vr(48+4*cc,4)}, v5, s[40:43], 0 offen offset:{16*cc}")
    a("s_cmp_lg_u32 s3, 0")
    a("s_cbranch_scc1 K1_TR_END")
    a("v_lshlrev_b32 v4, 1, v0")
    a(f"s_add_u32 s6, s{PW1}, 0x20000")
    a(f"s_addc_u32 s7, s{PW1+1}, 0")
    a("global_load_ushort v8, v4, s[6:7]")
    a(f"global_load_ushort v9, v4, s[{PB1}:{PB1+1}]")
    a(f"s_add_u32 s6, s32, {hex(WS_WE)}")
    a("s_addc_u32 s7, s33, 0")
    a(f"v_mov_b32 v10, {hex(S_LOG2E)}")
    a("v_lshlrev_b32 v5, 2, v0")
    a("s_waitcnt vmcnt(0)")
    a("v_lshlrev_b32 v8, 16, v8")
    a("v_lshlrev_b32 v9, 16, v9")
    a("v_mul_f32 v8, v10, v8")
    a("v_mul_f32 v9, v10, v9")
    a("v_cvt_pk_bf16_f32 v8, v8, v8")
    a("global_store_short v4, v8, s[6:7]")
    a(f"global_store_dword v5, v9, s[6:7] offset:{WS_B1-WS_WE}")
    a.lab("K1_TR_END")
    k1end()
    a.lab("K1_SORT")
    a.c("bucket the edges of chunk s2 by dst&255")
    a("v_lshlrev_b32 v1, 2, v0")
    a("v_mov_b32 v2, 0")
    a("ds_write_b32 v1, v2")
    a("v_lshlrev_b32 v3, 4, v0")
    a("v_lshlrev_b32 v4, 3, v0")
    a("v_mov_b32 v5, 1")
    a("v_mov_b32 v6, 0x80000000")
    a("v_mov_b32 v7, 0xfffc0000")
    a(f"s_mul_i32 s3, s2, {CH_E*4}")
    a(f"s_mul_i32 s4, s2, {CH_E*2}")
    a("s_lshl_b32 s5, s2, 8")
    a("s_add_u32 s6, s3, 4096"); a("s_add_u32 s7, s3, 8192")
    a("s_waitcnt lgkmcnt(0)")
    srd(a, 36, PDST, E*4)
    srd(a, 40, PSRC, E*4)
    srd(a, 44, PE, E*2)
    srd(a, 48, 32, 256*NCH*256, add=WS_CELLS)
    DST, SRC, EA = 16, 28, 40
    RK, OFF, REC = 48, 60, 72
    so = ["s3", "s6", "s7"]
    nlast = CH_E//4 - 512
    for r in range(2):
        a(f"buffer_load_dwordx4 {vr(DST+4*r,4)}, v3, s[36:39], {so[r]} offen")
    for r in range(2):
        a(f"buffer_load_dwordx4 {vr(SRC+4*r,4)}, v3, s[40:43], {so[r]} offen")
        a(f"buffer_load_dwordx2 {vr(EA+2*r,2)}, v4, s[44:47], s4 offen offset:{2048*r}")
    a(f"buffer_load_dwordx4 {vr(DST+8,4)}, v3, s[36:39], s7 offen")
    a(f"buffer_load_dwordx4 {vr(SRC+8,4)}, v3, s[40:43], s7 offen")
    a("s_add_u32 s8, s4, 4096")
    a(f"buffer_load_dwordx2 {vr(EA+4,2)}, v4, s[44:47], s8 offen")
    a(f"v_cmp_gt_u32 vcc, {nlast}, v0")
    a("s_nop 1")
    a("s_mov_b64 s[10:11], vcc")
    a("s_barrier")
    def atomics(r):
        for i in range(4):
            k = 4*r+i
            a(f"v_and_b32 v{OFF+k}, 0xff, v{DST+k}")
            a(f"v_lshlrev_b32 v8, 2, v{OFF+k}")
            a(f"ds_add_rtn_u32 v{RK+k}, v8, v5")
    def emit(r):
        for i in range(4):
            k = 4*r+i
            a(f"v_lshlrev_b32 v{OFF+k}, 14, v{OFF+k}")
            a(f"v_lshl_add_u32 v{OFF+k}, v{RK+k}, 3, v{OFF+k}")
            a(f"v_sub_u32 v8, {CAP-1}, v{RK+k}")
            a(f"v_and_or_b32 v{OFF+k}, v8, v6, v{OFF+k}")
            if SRCMASK: a(f"v_and_b32 v{REC+2*k}, {SRCMASK}, v{SRC+k}")
            else: a(f"v_mov_b32 v{REC+2*k}, v{SRC+k}")
            a(f"v_lshlrev_b32 v9, 10, v{DST+k}")
            e = EA + 2*r + (i >> 1)
            if i & 1: a(f"v_lshrrev_b32 v10, 16, v{e}")
            else: a(f"v_and_b32 v10, 0xffff, v{e}")
            a(f"v_and_or_b32 v{REC+2*k+1}, v9, v7, v10")
            fl = " sc1" if "csc1" in EXP else " nt" if "cnt" in EXP else ""
            if "ccomp" in EXP:
                a("s_lshl_b32 s14, s2, 15")
                a(f"s_add_u32 s14, s14, {k*2048}")
                a(f"buffer_store_dwordx2 {vr(REC+2*k,2)}, v4, s[48:51], s14 offen")
            elif "nocell" not in EXP: a(f"buffer_store_dwordx2 {vr(REC+2*k,2)}, v{OFF+k}, s[48:51], s5 offen offset:8{fl}")
    a("s_waitcnt vmcnt(7)")
    atomics(0); atomics(1)
    a("s_waitcnt vmcnt(0) lgkmcnt(0)")
    emit(0); emit(1)
    a("s_and_saveexec_b64 s[12:13], s[10:11]")
    a("s_cbranch_execz K1_S_SKIP")
    atomics(2)
    a("s_waitcnt lgkmcnt(0)")
    emit(2)
    a.lab("K1_S_SKIP")
    a("s_mov_b64 exec, s[12:13]")
    a("s_waitcnt lgkmcnt(0)")
    a("s_barrier")
    a("ds_read_b32 v2, v1")
    a("v_lshlrev_b32 v3, 14, v0")
    a("s_waitcnt lgkmcnt(0)")
    if "nohdr" not in EXP: a("buffer_store_dword v2, v3, s[48:51], s5 offen")
    k1end()
    a.lab("K1_EXIT")
    a("s_endpgm")
    return GRID

ROWP = 1040
SBROW = 528
BATCH = 1024
NSLOT = BATCH + 16
L_EP = 0
L_IDX = L_EP + NSLOT*16
L_CNT = L_IDX + NSLOT*4
L_HN = L_CNT + 256
L_ZERO = L_HN + 128
L_BZEND = L_ZERO + 256
L_DEG = L_BZEND
L_FLAG = L_DEG + 256
L_ZEND = L_FLAG + 32
L_S = L_ZEND
L_Q = L_S + 40*ROWP
L_SB = L_Q
XROW = 272
L_CR = L_Q + 40*ROWP
L_XS = L_CR
L_END = L_CR + 32*ROWP
QS = L_Q - L_S

def gen_k2(a, DP):
    assert DP % 2 == 0
    INF = 0x7fffffff
    SMAP = {0:0, 1:1, 2:2, 3:3, 4:4, 5:5, 6:6, 7:7}
    if "fine" in EXP: SMAP = {0:0, 1:1, "a":2, "b":3, 2:4, 3:5, "c":6, "d":7}
    if "fine2" in EXP: SMAP = {0:0, 4:1, 5:2, "e":3, "f":4, "g":5, 6:6, 7:7}
    def stamp(i):
        if not DEBUG or i not in SMAP: return
        a("s_memtime s[94:95]")
        a("s_waitcnt lgkmcnt(0)")
        a(f"s_mov_b32 s{84+SMAP[i]}, s94")
    a.raw(".globl k2_kernel"); a.raw(".p2align 8"); a.raw(".type k2_kernel,@function")
    a.lab("k2_kernel")
    a("s_cmp_ge_u32 s2, 256")
    a("s_cbranch_scc1 K2_EXIT")
    a("s_load_dwordx16 s[16:31], s[0:1], 0")
    a("s_load_dwordx2 s[32:33], s[0:1], 64")
    a("s_load_dwordx2 s[34:35], s[0:1], 80")
    if DEBUG: a("s_memrealtime s[96:97]")
    stamp(0)
    assert DP == 4
    U = [8, 16]; EX, ACC, Q = 24, 32, 40
    IP = [56, 58]
    AB = 60
    ES = [62, 66]
    BS = 70
    M = 118
    VEA, VIA, VES, VEND, VQA, VSTA, VEO, VH, VXA, VQW = range(M, M+10)
    T0, T1, T3 = 1, 2, 4
    WF = 8
    R0 = 8
    HD = 16
    RK = 17
    LA = 21
    PS = 25
    XP = 40
    VC = 53
    PB = 54
    XF = 40
    QA = 102
    ZT = 102
    B1 = 106
    BI = 110
    WE = 48
    sW, sNE = 3, 56
    sV = [52, 54, 10, 12]
    sT, sT2, sREM, sTEV, sSLOW, sBATCH, sLEFT, sX = 58, 59, 60, 61, 62, 63, 66, 68
    sMASK = [70, 72]; sPOS = [74, 75]; sEND = [76, 77]; sSEGL = [78, 79]; sHEAD = [80, 81]; sCR = [82, 83]
    sROW = [4, 5]
    sSM = 100
    sWQ = 64
    uid0 = [0]
    def L(p):
        uid0[0] += 1
        return f"K2_{p}{uid0[0]}"
    def exec_half(x):
        a(f"s_mov_b32 exec_lo, {-1 if x == 0 else 0}")
        a(f"s_mov_b32 exec_hi, {0 if x == 0 else -1}")
    wpos = [0, 1, 6, 7]
    a("v_lshlrev_b32 v4, 4, v0")
    for k in range(4): a(f"v_mov_b32 v{ZT+k}, 0")
    a("v_lshrrev_b32 v1, 6, v0")
    a("v_and_b32 v5, 0x3f0, v4")
    a(f"ds_write_b128 v5, {vr(ZT,4)} offset:{L_ZEND-1024}")
    a("v_readfirstlane_b32 s3, v1")
    a(f"v_and_b32 v{IP[0]+1}, 0x1f0, v4")
    a("v_lshlrev_b32 v2, 5, v0")
    a("v_and_b32 v3, 0xffffff00, v2")
    a("s_lshl_b32 s4, s2, 14")
    a(f"s_add_u32 s4, s4, {hex(WS_CELLS)}")
    a("s_lshl_b32 s5, s2, 8")
    a("s_waitcnt lgkmcnt(0)")
    a("s_barrier")
    stamp(1)
    srd(a, 40, 34, WS_END)
    a(f"s_add_u32 s6, s34, {hex(WS_WE)}")
    a(f"s_addc_u32 s7, s35, 0")
    a(f"global_load_dwordx4 {vr(WE,4)}, v{IP[0]+1}, s[6:7]")
    a(f"s_cmp_ge_u32 s{sW}, 8")
    a("s_cbranch_scc1 K2_GEMMER")

    def lane_consts():
        srd(a, 44, 34, N, stride=512, add=WS_P)
        srd(a, 48, 32, N*256)
        a(f"s_mov_b32 s{sSLOW}, 0")
        a(f"s_mov_b32 s{sBATCH}, 0")
        a(f"s_mov_b64 s[{sSM}:{sSM+1}], 0")
        a(f"v_mov_b32 v{IP[1]+1}, v{IP[0]+1}")
        a(f"v_mov_b32 v{IP[0]}, 0")
        a(f"v_mov_b32 v{IP[1]}, 0")
        a(f"v_lshlrev_b32 v{VQA}, 1, v{IP[0]+1}")
        a(f"v_add_u32 v{VQA}, {L_Q}, v{VQA}")
        a("s_mov_b32 s10, 0x00f0000f")
        a("s_mov_b32 s11, 0xf0000f00")
        a("s_mov_b32 s12, 0x00300003")
        a("s_mov_b32 s13, 0x30000300")
        a("s_mov_b32 s14, 0x00c0000c")
        a("s_mov_b32 s15, 0xc0000c00")
        a(f"v_and_b32 v6, 16, v4")
        a(f"v_mov_b32 v{PB}, 0x3f80")
        a(f"v_lshlrev_b32 v{PB}, v6, v{PB}")
        for k in (0, 4, 8):
            a(f"v_cndmask_b32 v{AB+k}, 0, v{PB}, s[12:13]")
            a(f"v_cndmask_b32 v{AB+k+1}, 0, v{PB}, s[14:15]")
        a(f"v_lshrrev_b32 v6, 1, v6")
        a(f"v_mov_b32 v{VEO}, {L_ZERO}")
        a(f"v_or_b32 v{PB}, 4, v6")
        a(f"v_cndmask_b32 v{VEO}, v{VEO}, v{PB}, s[12:13]")
        a(f"v_cndmask_b32 v{VEO}, v{VEO}, v6, s[14:15]")
        a(f"v_cndmask_b32 v{VES}, 0, 4, s[10:11]")
        a(f"v_bfe_u32 v{VH}, v0, 5, 1")
        a(f"v_mov_b32 v7, 4")
        a(f"v_lshrrev_b32 v5, 2, v5")
    def wscale():
        r = []
        for d in range(DP):
            r.append(f"v_pk_mov_b32 {vr(BS+8*d,2)}, {vr(WE,2)}, {vr(WE,2)} op_sel:[0,1]")
            r.append(f"v_pk_mov_b32 {vr(BS+8*d+6,2)}, {vr(WE+2,2)}, {vr(WE+2,2)} op_sel:[0,1]")
        return r
    dpp = [f"row_shr:{sh} row_mask:0xf bank_mask:0xf bound_ctrl:0" for sh in (1, 2, 4, 8)] + \
          ["row_bcast:15 row_mask:0xa bank_mask:0xf", "row_bcast:31 row_mask:0xc bank_mask:0xf"]
    def scan(first):
        a(f"ds_read_b32 v{VC}, v5 offset:{L_CNT}")
        if first: a(f"ds_read_b32 v3, v7 offset:{L_FLAG-4}")
        a("s_waitcnt lgkmcnt(0)")
        a(f"v_mov_b32 v{VEND}, v{VC}")
        if first: a(f"v_readfirstlane_b32 s{sSLOW}, v3")
        else: a("s_nop 0")
        a(f"v_cmp_ne_u32 s[{sNE}:{sNE+1}], 0, v{VC}")
        for i, d in enumerate(dpp):
            if i: a("s_nop 1")
            a(f"v_add_u32_dpp v{VEND}, v{VEND}, v{VEND} {d}")
        a(f"v_sub_u32 v{VSTA}, v{VEND}, v{VC}")
        a(f"v_readlane_b32 s{sT}, v{VEND}, 63")
    def ranges():
        a(f"s_lshr_b32 s{sT}, s{sT}, 2")
        if DEBUG: a(f"s_mov_b32 s92, s{sT}")
        a(f"s_lshl_b32 s{sT2}, s{sW}, 1")
        a(f"s_mul_i32 s{sPOS[0]}, s{sT}, s{sT2}")
        a(f"s_add_u32 s{sPOS[1]}, s{sPOS[0]}, s{sT}")
        a(f"s_add_u32 s{sEND[1]}, s{sPOS[1]}, s{sT}")
        for r in (sPOS[0], sPOS[1], sEND[1]):
            a(f"s_lshr_b32 s{r}, s{r}, 5")
            a(f"s_lshl_b32 s{r}, s{r}, 2")
        a(f"s_mov_b32 s{sEND[0]}, s{sPOS[1]}")
        a(f"s_sub_u32 s{sT2}, s{sPOS[1]}, s{sPOS[0]}")
        a(f"v_mul_u32_u24 v{VIA}, s{sT2}, v{VH}")
        a(f"v_add_u32 v{VIA}, s{sPOS[0]}, v{VIA}")
        a(f"v_mad_u32_u24 v{VEA}, v{VIA}, v{VES}, v{VEO}")
        a(f"v_add_u32 v{VIA}, {L_IDX}, v{VIA}")
    def seg_next(x, lbl):
        a(f"s_lshl2_add_u32 s{sT2}, s{sSEGL[x]}, s{sPOS[x]}")
        a(f"s_mov_b32 s{sROW[x]}, -1")
        a(f"s_cmp_ge_u32 s{sT2}, s{sEND[x]}")
        a(f"s_cselect_b32 s{sSEGL[x]}, {hex(INF)}, s{sSEGL[x]}")
        a(f"s_cbranch_scc1 {lbl}")
        a(f"s_ff1_i32_b64 s{sT2}, s[{sMASK[x]}:{sMASK[x]+1}]")
        a(f"s_and_b32 s{sT2}, s{sT2}, 63")
        a(f"s_bitset0_b64 s[{sMASK[x]}:{sMASK[x]+1}], s{sT2}")
        a(f"v_readlane_b32 s{sT}, v{VEND}, s{sT2}")
        a(f"s_mul_i32 s{sROW[x]}, s{sT2}, {ROWP}")
        a(f"s_add_u32 s{sSEGL[x]}, s{sSEGL[x]}, 1")
        a(f"s_min_u32 s{sT}, s{sT}, s{sEND[x]}")
        a(f"s_sub_u32 s{sT}, s{sT}, s{sPOS[x]}")
        a(f"s_ashr_i32 s{sT}, s{sT}, 2")
        a(f"s_max_i32 s{sSEGL[x]}, s{sSEGL[x]}, s{sT}")
        a.lab(lbl)
    def stream_setup():
        a(f"v_cmp_lt_u32 s[{sMASK[0]}:{sMASK[0]+1}], s{sPOS[0]}, v{VEND}")
        a(f"v_cmp_lt_u32 s[{sMASK[1]}:{sMASK[1]+1}], s{sPOS[1]}, v{VEND}")
        for x in range(2):
            lj = L("INJ")
            a(f"s_and_b64 s[{sMASK[x]}:{sMASK[x]+1}], s[{sMASK[x]}:{sMASK[x]+1}], s[{sNE}:{sNE+1}]")
            a(f"s_mov_b32 s{sSEGL[x]}, 0")
            a(f"s_mov_b32 s{sHEAD[x]}, 0")
            seg_next(x, L("INI"))
            a(f"s_max_i32 s{sCR[x]}, s{sROW[x]}, 0")
            a(f"s_sub_u32 s{sCR[x]}, s{sCR[x]}, {QS}")
            a(f"s_cmp_lt_i32 s{sROW[x]}, 0")
            a(f"s_cbranch_scc1 {lj}")
            a(f"v_readlane_b32 s{sT}, v{VSTA}, s{sT2}")
            a(f"s_add_u32 s{sT2}, s{sT2}, 1")
            a(f"v_mov_b32 v{T3}, s{sT2}")
            a(f"s_lshl_b32 s{sT2}, s{sW}, 1")
            a(f"s_add_u32 s{sT2}, s{sT2}, {x}")
            a(f"s_cmp_ge_u32 s{sT}, s{sPOS[x]}")
            a(f"s_cbranch_scc1 {lj}")
            a(f"s_mov_b32 s{sHEAD[x]}, 1")
            a(f"s_mul_i32 s{sCR[x]}, s{sT2}, {ROWP}")
            a(f"s_add_u32 s{sCR[x]}, s{sCR[x]}, {L_CR-L_Q}")
            a(f"s_lshl_b32 s{sT2}, s{sT2}, 2")
            a(f"v_mov_b32 v6, s{sT2}")
            a(f"ds_write_b32 v6, v{T3} offset:{L_HN}")
            a.lab(lj)
            a(f"s_max_i32 s{sROW[x]}, s{sROW[x]}, 0")
        a(f"v_add_u32 v{T0}, s{sROW[0]}, v{VQA}")
        a(f"v_add_u32 v{T1}, s{sCR[0]}, v{VQA}")
        exec_half(1)
        a(f"v_add_u32 v{T0}, s{sROW[1]}, v{VQA}")
        a(f"v_add_u32 v{T1}, s{sCR[1]}, v{VQA}")
        a("s_mov_b64 exec, -1")
        a(f"v_lshlrev_b32 v3, {2 + (DP.bit_length()-1)}, v{VES}")
        a(f"s_min_u32 s{sTEV}, s{sSEGL[0]}, s{sSEGL[1]}")
        a(f"s_sub_u32 s{sREM}, s{sTEV}, 1")
        a(f"s_sub_u32 s{sLEFT}, s{sEND[1]}, s{sPOS[1]}")
        a(f"s_lshr_b32 s{sLEFT}, s{sLEFT}, 2")
        a(f"s_sub_u32 s6, s{sHEAD[0]}, 1")
        a(f"s_sub_u32 s7, s{sHEAD[1]}, 1")
        a(f"s_and_b64 s[6:7], s[6:7], s[{sSM}:{sSM+1}]")
        a(f"v_mov_b32 v5, {L_ZERO}")
        a(f"v_cndmask_b32 v{T3}, v5, v{T1}, s[6:7]")
    def first_loads():
        a(f"ds_read_b32 v{IP[0]}, v{VIA}")
        a(f"ds_read_b32 v{IP[1]}, v{VIA} offset:4")
        a(f"ds_read2_b32 {vr(ES[0],2)}, v{VEA} offset0:0 offset1:1")
        a(f"ds_read2_b32 {vr(ES[1],2)}, v{VEA} offset0:4 offset1:5")
        a("s_waitcnt lgkmcnt(2)")
        a(f"buffer_load_dwordx4 {vr(BS+2,4)}, {vr(IP[0],2)}, s[44:47], 0 idxen offen")
        a(f"buffer_load_dwordx4 {vr(BS+8+2,4)}, {vr(IP[1],2)}, s[44:47], 0 idxen offen")
        a(f"ds_read_b32 v{IP[0]}, v{VIA} offset:8")
        a(f"ds_read_b32 v{IP[1]}, v{VIA} offset:12")
    def pload(slot, pair):
        if "novm" in EXP: return
        a(f"buffer_load_dwordx4 {vr(BS+8*slot+2,4)}, {vr(pair,2)}, s[44:47], 0 idxen offen")
    def groups(n, body):
        for k in range(0, n, 2):
            l = None
            if k >= 2:
                l = L("SK")
                a(f"s_cmp_eq_u64 s[{sV[k]}:{sV[k]+1}], 0")
                a(f"s_cbranch_scc1 {l}")
            for i in range(k, min(k+2, n)): body(i)
            if l: a.lab(l)
    def rank_atomics(n):
        def body(i):
            a(f"v_lshrrev_b32 v{LA+i}, 16, v{R0+2*i+1}")
            a(f"s_mov_b64 exec, s[{sV[i]}:{sV[i]+1}]")
            a(f"ds_add_rtn_u32 v{RK+i}, v{LA+i}, v7 offset:{L_CNT}")
            a("s_mov_b64 exec, -1")
        groups(n, body)
    def zero_batch(upto):
        assert 16384 < upto <= 2*16384 and upto % 16 == 0
        a(f"ds_write_b128 v4, {vr(ZT,4)} offset:{upto-16384}")
        a(f"ds_write_b128 v4, {vr(ZT,4)}")
    def xread(nt, s):
        a(f"ds_read_b128 {vr(XF+4*s,4)}, v{VXA} offset:{16*nt*XROW+64*s}")
    def gemm_pre():
        for s in range(4): xread(0, s)
        a(f"v_mov_b32 v{VSTA}, {hex(S_LOG2E)}")
    def gemm_tile(nt):
        a("s_waitcnt lgkmcnt(0)")
        for s in range(4):
            for t in range(2):
                a(f"v_mfma_f32_16x16x32_bf16 {vr(QA+4*t,4)}, {vr(WF+16*t+4*s,4)}, {vr(XF+4*s,4)}, {'0' if s == 0 else vr(QA+4*t,4)}")
            if nt < 2: xread(nt+1, s)
        a("s_nop 6")
        if nt == 2:
            a("s_mov_b32 exec_lo, 0x00ff00ff")
            a("s_mov_b32 exec_hi, 0x00ff00ff")
        for t in range(2):
            for k in range(4): a(f"v_fma_f32 v{QA+4*t+k}, v{QA+4*t+k}, v{VSTA}, v{BI+4*t+k}")
            a(f"ds_write_b128 v{VQW}, {vr(QA+4*t,4)} offset:{16*nt*ROWP+64*t}")
        if nt == 2: a("s_mov_b64 exec, -1")
    def wq_loads(lo, hi):
        for f in range(lo, hi):
            t, s = divmod(f, 4)
            a(f"buffer_load_dwordx4 {vr(WF+16*t+4*s,4)}, v{VXA}, s[40:43], s{sWQ+t} offen offset:{1024*s}")

    def signal(k):
        a("s_waitcnt lgkmcnt(0)")
        a("s_mov_b64 exec, 1")
        a(f"ds_add_u32 v7, v7 offset:{L_FLAG+4*k}")
        a("s_mov_b64 exec, -1")
    def spin(k):
        l = L("SP")
        a("s_mov_b32 s8, 0x100000")
        a.lab(l)
        a(f"ds_read_b32 v6, v7 offset:{L_FLAG+4*k}")
        a("s_sub_u32 s8, s8, 1")
        a(f"s_cbranch_scc1 {l}X")
        a("s_waitcnt lgkmcnt(0)")
        a("v_readfirstlane_b32 s9, v6")
        a("s_nop 0")
        a("s_cmp_lt_u32 s9, 32")
        a(f"s_cbranch_scc1 {l}")
        a.lab(l + "X")
    def list_build(n):
        groups(n, lambda i: a(f"ds_bpermute_b32 v{PS+i}, v{LA+i}, v{VSTA}"))
        if n > 1:
            a(f"s_cmp_gt_u32 s{sT}, {4*BATCH}")
            a("s_cbranch_scc1 K2_SLOW_S")
        a("s_waitcnt lgkmcnt(0)")
        def body(i):
            a(f"v_add_u32 v{PS+i}, v{PS+i}, v{RK+i}")
            a(f"v_lshlrev_b32 v{RK+i}, 2, v{PS+i}")
            a(f"s_mov_b64 exec, s[{sV[i]}:{sV[i]+1}]")
            a(f"ds_write_b32 v{PS+i}, v{R0+2*i} offset:{L_IDX}")
            a(f"ds_write_b16 v{RK+i}, v{R0+2*i+1} offset:{L_EP+4}")
            a(f"ds_write_b16 v{RK+i}, v{R0+2*i+1} offset:{L_EP+14}")
            a("s_mov_b64 exec, -1")
        groups(n, body)
    def deg_acc():
        l = L("ND")
        a(f"s_cmp_lg_u32 s{sW}, 0")
        a(f"s_cbranch_scc1 {l}")
        a(f"ds_add_u32 v5, v{VC} offset:{L_DEG}")
        a.lab(l)
    a("v_and_b32 v2, 0x70, v4")
    a("v_add_u32 v6, v3, v2")
    a(f"buffer_load_dwordx4 {vr(R0,4)}, v6, s[40:43], s4 offen")
    a(f"buffer_load_dword v{HD}, v3, s[40:43], s4 offen")
    a(f"buffer_load_dwordx4 {vr(R0+4,4)}, v6, s[40:43], s4 offen offset:128")
    assert L_CNT <= 3*8192
    a(f"ds_write_b128 v4, {vr(ZT,4)}")
    a(f"ds_write_b128 v4, {vr(ZT,4)} offset:8192")
    a(f"ds_write_b128 v4, {vr(ZT,4)} offset:{L_CNT-8192}")
    lane_consts()
    a("v_lshrrev_b32 v2, 3, v2")
    a("s_waitcnt vmcnt(3)")
    for ins in wscale(): a(ins)
    stamp("a")
    a("s_waitcnt vmcnt(1)")
    stamp("b")
    a(f"v_sub_u32 v2, v{HD}, v2")
    a(f"v_cmp_lt_u32 vcc, {CAP}, v{HD}")
    for i in range(4):
        a(f"v_cmp_le_i32 s[{sV[i]}:{sV[i]+1}], {16*(i>>1)+(i&1)}, v2")
    a(f"s_and_b32 s{sV[0]}, s{sV[0]}, 0xfefefefe")
    a(f"s_and_b32 s{sV[0]+1}, s{sV[0]+1}, 0xfefefefe")
    a("s_waitcnt vmcnt(0)")
    rank_atomics(4)
    a("s_mov_b64 exec, vcc")
    a(f"ds_write_b32 v7, v7 offset:{L_FLAG-4}")
    signal(0)
    spin(0)
    stamp(2)
    scan(True)
    a(f"s_cmp_lg_u32 s{sSLOW}, 0")
    a("s_cbranch_scc1 K2_SLOW_S")
    list_build(4)
    signal(1)
    deg_acc()
    ranges()
    spin(1)
    stamp(3)
    first_loads()
    stream_setup()
    spin(3)
    a("s_branch K2_JOIN")
    a.lab("K2_SCAN")
    scan(False)
    list_build(1)
    deg_acc()
    ranges()
    stream_setup()
    a("s_waitcnt lgkmcnt(0)")
    a("s_barrier")
    first_loads()
    a("s_branch K2_JOIN")

    a.lab("K2_GEMMER")
    if "noprio" not in EXP: a("s_setprio 3")
    srd(a, 36, PX, N*256)
    a("v_subrev_u32 v2, 512, v0")
    a("v_and_b32 v3, 15, v0")
    a("v_lshrrev_b32 v6, 4, v2")
    a("v_lshlrev_b32 v7, 16, v6")
    a("v_lshl_add_u32 v7, v3, 4, v7")
    a("v_add_u32 v7, s5, v7")
    a(f"buffer_load_dwordx4 {vr(XP,4)}, v7, s[36:39], 0 offen")
    a("v_add_u32 v7, 0x200000, v7")
    a(f"buffer_load_dwordx4 {vr(XP+4,4)}, v7, s[36:39], 0 offen")
    a(f"s_add_u32 s9, s{sW}, s2")
    a("s_and_b32 s9, s9, 7")
    a(f"s_lshl_b32 s{sWQ}, s9, 13")
    a(f"s_add_u32 s{sWQ}, s{sWQ}, {hex(WS_WQ)}")
    a(f"s_add_u32 s{sWQ+1}, s{sWQ}, 4096")
    a(f"v_mov_b32 v{VXA}, v5")
    a("v_and_b32 v7, 0x30, v0")
    a("s_lshl_b32 s8, s9, 7")
    a(f"v_add_u32 v{PB}, s8, v7")
    a(f"global_load_dwordx4 {vr(BI,4)}, v{PB}, s[6:7] offset:{WS_B1-WS_WE}")
    a(f"global_load_dwordx4 {vr(BI+4,4)}, v{PB}, s[6:7] offset:{WS_B1-WS_WE+64}")
    wq_loads(0, 2)
    a(f"v_mul_u32_u24 v6, {XROW}, v6")
    a(f"v_lshl_add_u32 v6, v3, 4, v6")
    a(f"v_add_u32 v1, {L_XS}, v6")
    a(f"v_mul_u32_u24 v{VQW}, {ROWP}, v3")
    a(f"s_add_u32 s8, s8, {L_Q}")
    a(f"v_add3_u32 v{VQW}, v{VQW}, v7, s8")
    a(f"v_mul_u32_u24 v2, {XROW}, v3")
    a(f"s_mov_b32 s8, {L_XS}")
    a(f"v_add3_u32 v2, v2, v7, s8")
    wq_loads(2, 4)
    lane_consts()
    wq_loads(4, 8)
    a(f"v_mov_b32 v{VXA}, v2")
    stamp("a")
    a(f"s_waitcnt vmcnt(10)")
    stamp("b")
    a(f"ds_write_b128 v1, {vr(XP,4)}")
    a(f"s_cmp_ge_u32 s{sW}, 12")
    a("s_cbranch_scc1 K2_NOXS")
    a(f"ds_write_b128 v1, {vr(XP+4,4)} offset:{32*XROW}")
    a.lab("K2_NOXS")
    signal(2)
    for ins in wscale(): a(ins)
    spin(2)
    gemm_pre()
    a("s_waitcnt vmcnt(0)")
    gemm_tile(0)
    gemm_tile(1)
    gemm_tile(2)
    signal(3)
    stamp("c")
    if "touch" in EXP:
        a(f"s_cmp_lg_u32 s{sW}, 15")
        a("s_cbranch_scc1 K2_NOTOUCH")
        a("v_and_b32 v6, 63, v0")
        a("v_lshlrev_b32 v6, 16, v6")
        a("v_add_u32 v6, s5, v6")
        a(f"buffer_load_dword v{QA}, v6, s[48:51], 0 offen")
        a(f"global_load_dword v{QA+1}, v7, s[{PB2}:{PB2+1}]")
        a.lab("K2_NOTOUCH")
    spin(0)
    stamp(2)
    scan(True)
    a(f"s_cmp_gt_u32 s{sT}, {4*BATCH}")
    a(f"s_cselect_b32 s{sSLOW}, 1, s{sSLOW}")
    a(f"s_cmp_lg_u32 s{sSLOW}, 0")
    a("s_cbranch_scc1 K2_SLOW_SYNC")
    ranges()
    spin(1)
    stamp(3)
    first_loads()
    stream_setup()
    spin(3)
    a.lab("K2_JOIN")
    a(f"ds_read_b128 {vr(ACC,4)}, v{T3}")
    a(f"ds_read_b128 {vr(ACC+4,4)}, v{T3} offset:16")
    a("s_waitcnt lgkmcnt(0)")
    if "noprio" not in EXP: a("s_setprio 2")
    stamp("d")
    a(f"s_cmp_eq_u32 s{sTEV}, {hex(INF)}")
    a("s_cbranch_scc1 K2_LOOP_DONE")
    a(f"ds_read_b128 {vr(Q,4)}, v{T0}")
    a(f"ds_read_b128 {vr(Q+4,4)}, v{T0} offset:16")
    a(f"buffer_load_dwordx4 {vr(BS+16+2,4)}, {vr(IP[0],2)}, s[44:47], 0 idxen offen")
    a(f"buffer_load_dwordx4 {vr(BS+24+2,4)}, {vr(IP[1],2)}, s[44:47], 0 idxen offen")
    a(f"ds_read_b32 v{IP[0]}, v{VIA} offset:{4*DP}")
    a(f"ds_read_b32 v{IP[1]}, v{VIA} offset:{4*(DP+1)}")
    def mfma(slot, es, u, which):
        if "nomfma" in EXP: return
        if which == 0:
            a(f"v_mfma_f32_16x16x32_bf16 {vr(u,4)}, {vr(es,4)}, {vr(BS+8*slot,4)}, {vr(Q,4)}")
        else:
            a(f"v_mfma_f32_16x16x32_bf16 {vr(u+4,4)}, {vr(es-2,4)}, {vr(BS+8*slot+4,4)}, {vr(Q+4,4)}")
    a(f"s_waitcnt vmcnt({DP-1}) lgkmcnt(0)")
    mfma(0, ES[0], U[0], 0); mfma(0, ES[0], U[0], 1)
    pload(0, IP[0])
    stamp(4)
    a(f"s_sub_u32 s{sREM}, s{sREM}, 1")
    a("s_nop 5")
    a("s_cbranch_scc1 K2_BND0")
    a("s_branch K2_SUB0")
    def rdE(k):
        if "nods" in EXP: return
        a(f"ds_read2_b32 {vr(ES[k&1],2)}, v{VEA} offset0:{4*(k+2)} offset1:{4*(k+2)+1}")
    def rdI(k):
        if "nods" in EXP: return
        a(f"ds_read_b32 v{IP[k&1]}, v{VIA} offset:{4*(k+2+DP)}")
    def ex(c, u): a(f"v_exp_f32 v{EX+c}, v{u+c}")
    def rc(c): a(f"v_rcp_f32 v{EX+c}, v{EX+c}")
    def pa(c): a(f"v_pk_add_f32 {vr(EX+c,2)}, {vr(EX+c,2)}, 1.0 op_sel_hi:[1,0]")
    def pf(c, u): a(f"v_pk_fma_f32 {vr(ACC+c,2)}, {vr(u+c,2)}, {vr(EX+c,2)}, {vr(ACC+c,2)}")
    def valu(u):
        for c in range(8): ex(c, u)
        for c in range(0, 8, 2): pa(c)
        for c in range(8): rc(c)
        for c in range(0, 8, 2): pf(c, u)
    def tail(u):
        rc(7)
        for c in range(0, 8, 2): pf(c, u)
    uid = [0]
    def prio():
        if "noprio" in EXP: return
        uid[0] += 1
        lbl = f"K2_PR{uid[0]}"
        a(f"s_cmp_gt_i32 s{sLEFT}, {PR1}")
        a(f"s_cbranch_scc1 {lbl}_D")
        a("s_setprio 1")
        a(f"s_cmp_gt_i32 s{sLEFT}, {PR0}")
        a(f"s_cbranch_scc1 {lbl}_D")
        a("s_setprio 0")
        a.lab(f"{lbl}_D")
    def advance():
        a(f"v_add_u32 v{VEA}, v3, v{VEA}")
        a(f"v_add_u32 v{VIA}, {4*DP}, v{VIA}")
        a(f"s_sub_u32 s{sLEFT}, s{sLEFT}, {DP}")
        prio()
    a.raw(".p2align 3")
    a.lab("K2_LOOP")
    advance()
    for k in range(DP):
        u = U[k & 1]
        a.lab(f"K2_SUB{k}")
        ex(0, u)
        a(f"s_waitcnt vmcnt({DP-1}) lgkmcnt(0)")
        ex(1, u)
        mfma((k+1) % DP, ES[(k+1) & 1], U[(k+1) & 1], 0)
        ex(2, u)
        mfma((k+1) % DP, ES[(k+1) & 1], U[(k+1) & 1], 1)
        ex(3, u)
        pload((k+1) % DP, IP[(k+1) & 1])
        ex(4, u)
        rdE(k)
        ex(5, u)
        rdI(k)
        ex(6, u); ex(7, u)
        for c in range(0, 8, 2): pa(c)
        for c in range(6): rc(c)
        a(f"s_sub_u32 s{sREM}, s{sREM}, 1")
        rc(6)
        a(f"s_cbranch_scc1 K2_BNDT{k}")
        tail(u)
    a("s_branch K2_LOOP")
    for k in range(DP):
        kp = (k - 1) % DP
        a.lab(f"K2_BNDT{kp}")
        tail(U[kp & 1])
        if k == 0: advance()
        a.lab(f"K2_BND{k}")
        a(f"s_mov_b64 s[{sX}:{sX+1}], 0")
        a("s_mov_b64 s[6:7], 0")
        for x in range(2):
            a(f"s_cmp_lg_u32 s{sSEGL[x]}, s{sTEV}")
            a(f"s_cbranch_scc1 K2_B{k}_N{x}")
            a(f"s_mov_b32 s{sX+x}, -1")
            seg_next(x, f"K2_B{k}_S{x}")
            a(f"s_cmp_lt_i32 s{sROW[x]}, 0")
            a(f"s_cbranch_scc1 K2_B{k}_N{x}")
            a(f"s_mov_b32 s{6+x}, -1")
            exec_half(x)
            a(f"v_add_u32 v{T0}, s{sROW[x]}, v{VQA}")
            a.lab(f"K2_B{k}_N{x}")
        a("s_mov_b64 exec, s[6:7]")
        a("s_waitcnt lgkmcnt(0)")
        a(f"ds_read_b128 {vr(Q,4)}, v{T0}")
        a(f"ds_read_b128 {vr(Q+4,4)}, v{T0} offset:16")
        a("s_mov_b64 exec, -1")
        valu(U[k & 1])
        a(f"s_mov_b64 exec, s[{sX}:{sX+1}]")
        a(f"ds_write_b128 v{T1}, {vr(ACC,4)}")
        a(f"ds_write_b128 v{T1}, {vr(ACC+4,4)} offset:16")
        a("s_mov_b64 exec, s[6:7]")
        a(f"v_subrev_u32 v{T1}, {QS}, v{T0}")
        a(f"v_cndmask_b32 v{T3}, v5, v{T1}, s[{sSM}:{sSM+1}]")
        a(f"ds_read_b128 {vr(ACC,4)}, v{T3}")
        a(f"ds_read_b128 {vr(ACC+4,4)}, v{T3} offset:16")
        a("s_mov_b64 exec, -1")
        a(f"s_sub_u32 s{sREM}, -1, s{sTEV}")
        a(f"s_min_u32 s{sTEV}, s{sSEGL[0]}, s{sSEGL[1]}")
        a(f"s_cmp_eq_u32 s{sTEV}, {hex(INF)}")
        a("s_cbranch_scc1 K2_LOOP_DONE")
        a(f"s_add_u32 s{sREM}, s{sREM}, s{sTEV}")
        a(f"s_waitcnt vmcnt({DP-1}) lgkmcnt(2)")
        mfma((k+1) % DP, ES[(k+1) & 1], U[(k+1) & 1], 0)
        mfma((k+1) % DP, ES[(k+1) & 1], U[(k+1) & 1], 1)
        pload((k+1) % DP, IP[(k+1) & 1])
        rdE(k); rdI(k)
        a(f"s_sub_u32 s{sREM}, s{sREM}, 1")
        a("s_nop 3")
        if k < DP-1:
            a(f"s_cbranch_scc1 K2_BND{k+1}")
            a(f"s_branch K2_SUB{k+1}")
        else:
            a(f"s_cbranch_scc0 K2_LOOP")
            advance()
            a(f"s_branch K2_BND0")
    a.lab("K2_LOOP_DONE")
    a("s_setprio 0")
    stamp(5)
    if DEBUG:
        a("s_lshl_b32 s93, s2, 4")
        a("s_add_u32 s93, s93, s3")
        a("s_lshl_b32 s93, s93, 5")
        a("s_add_u32 s93, s93, 0xA80000")
        a("v_mov_b32 v1, s93")
        for i in range(8): a(f"v_mov_b32 v{8+i}, s{84+i}")
        a("global_store_dwordx4 v1, v[8:11], s[34:35]")
        a("global_store_dwordx4 v1, v[12:15], s[34:35] offset:16")
    a("s_waitcnt vmcnt(0)")
    a(f"s_cmp_lg_u32 s{sSLOW}, 0")
    a("s_cbranch_scc1 K2_COMB")
    a.lab("K2_EPI")
    a.c("out = -ln2 * S @ w2 + deg*b2")
    AF = 56
    SF = 8
    OA = 32
    B2 = 120
    DG = 124
    a(f"s_cmp_ge_u32 s{sW}, 4")
    a("s_cbranch_scc1 K2_COMB")
    a(f"s_lshl_b32 s6, s{sW}, 14")
    a(f"s_add_u32 s6, s6, {hex(WS_W2)}")
    a("v_and_b32 v7, 63, v0")
    a("v_lshlrev_b32 v7, 4, v7")
    for q in range(4):
        if q: a("s_add_u32 s6, s6, 4096")
        for s in range(4):
            a(f"buffer_load_dwordx4 {vr(AF+16*q+4*s,4)}, v7, s[40:43], s6 offen offset:{1024*s}")
    a("v_bfe_u32 v7, v0, 4, 2")
    a(f"s_lshl_b32 s7, s{sW}, 6")
    a("v_lshlrev_b32 v5, 3, v7")
    a("v_add_u32 v5, s7, v5")
    a(f"global_load_dwordx2 {vr(B2,2)}, v5, s[{PB2}:{PB2+1}]")
    a(f"global_load_dwordx2 {vr(B2+2,2)}, v5, s[{PB2}:{PB2+1}] offset:32")
    a.lab("K2_COMB")
    a("v_and_b32 v1, 63, v0")
    a("v_lshlrev_b32 v2, 2, v1")
    a(f"v_add_u32 v2, {L_HN}, v2")
    a(f"s_mul_i32 s4, s{sW}, {ROWP}")
    a(f"s_add_u32 s4, s4, {L_S}")
    a("v_lshlrev_b32 v3, 4, v1")
    a("v_add_u32 v4, s4, v3")
    a(f"v_add_u32 v3, {L_CR}, v3")
    a(f"s_mul_i32 s4, s{sW}, {SBROW}")
    a(f"s_add_u32 s4, s4, {L_SB}")
    a("v_lshlrev_b32 v6, 3, v1")
    a("v_add_u32 v6, s4, v6")
    stamp("e")
    a("s_waitcnt lgkmcnt(0)")
    a("s_barrier")
    stamp("f")
    a("ds_read_b32 v2, v2")
    for r in range(3):
        a(f"ds_read_b128 {vr(8+4*r,4)}, v4 offset:{16*r*ROWP}")
    a(f"s_add_u32 s4, s{sW}, 1")
    a("s_waitcnt lgkmcnt(0)")
    for r in range(3):
        a(f"v_cmp_eq_u32 s[6:7], s4, v2")
        a(f"s_sub_u32 s8, s4, 1")
        a(f"s_or_b64 s[10:11], s[{sNE}:{sNE+1}], s[{sSM}:{sSM+1}]")
        a(f"s_bitcmp1_b64 s[10:11], s8")
        a(f"s_cbranch_scc1 K2_CZ{r}")
        for c in range(4): a(f"v_mov_b32 v{8+4*r+c}, 0")
        a.lab(f"K2_CZ{r}")
        a(f"s_add_u32 s4, s4, 16")
        a.lab(f"K2_CB{r}")
        a("s_cmp_eq_u64 s[6:7], 0")
        a(f"s_cbranch_scc1 K2_CB{r}D")
        a("s_ff1_i32_b64 s8, s[6:7]")
        a("s_bitset0_b64 s[6:7], s8")
        a(f"s_mul_i32 s8, s8, {ROWP}")
        a("v_add_u32 v7, s8, v3")
        a(f"ds_read_b128 v[20:23], v7")
        a("s_waitcnt lgkmcnt(0)")
        for c in range(4): a(f"v_add_f32 v{8+4*r+c}, v{8+4*r+c}, v{20+c}")
        a(f"s_branch K2_CB{r}")
        a.lab(f"K2_CB{r}D")
    a(f"s_cmp_lg_u32 s{sSLOW}, 0")
    a("s_cbranch_scc1 K2_SLOW_WB")
    for r in range(3):
        a(f"v_cvt_pk_bf16_f32 v{24+2*r}, v{8+4*r}, v{9+4*r}")
        a(f"v_cvt_pk_bf16_f32 v{25+2*r}, v{10+4*r}, v{11+4*r}")
    a(f"ds_write_b64 v6, v[24:25]")
    a(f"ds_write_b64 v6, v[26:27] offset:{16*SBROW}")
    a(f"ds_write_b64 v6, v[28:29] offset:{32*SBROW}")
    a("v_and_b32 v2, 15, v0")
    a("v_bfe_u32 v7, v0, 4, 2")
    a(f"v_mul_u32_u24 v4, {SBROW}, v2")
    a("v_lshl_add_u32 v4, v7, 4, v4")
    a(f"v_add_u32 v4, {L_SB}, v4")
    a(f"v_lshlrev_b32 v1, 2, v2")
    a(f"v_add_u32 v1, {L_DEG}, v1")
    a("v_lshl_add_u32 v5, v2, 16, v5")
    a("s_lshl_b32 s9, s2, 8")
    a("v_add_u32 v5, s9, v5")
    stamp("g")
    a("s_waitcnt lgkmcnt(0)")
    a("s_barrier")
    a(f"s_cmp_ge_u32 s{sW}, 4")
    a("s_cbranch_scc1 K2_EXIT")
    stamp(6)
    seq = [(s, nt) for s in range(8) for nt in range(3)]
    def sread(i):
        s, nt = seq[i]
        a(f"ds_read_b128 {vr(SF+4*(i%6),4)}, v4 offset:{64*s+16*nt*SBROW}")
    for nt in range(3): a(f"ds_read_b32 v{DG+nt}, v1 offset:{64*nt}")
    for i in range(6): sread(i)
    a("s_waitcnt vmcnt(0)")
    for i, (s, nt) in enumerate(seq):
        a(f"s_waitcnt lgkmcnt({min(5, len(seq)-1-i)})")
        for t in range(2):
            o = OA + 8*nt + 4*t
            c = "0" if s == 0 else vr(o, 4)
            a(f"v_mfma_f32_16x16x32_bf16 {vr(o,4)}, {vr(AF+32*t+4*s,4)}, {vr(SF+4*(i%6),4)}, {c}")
        if i + 6 < len(seq): sread(i+6)
    a(f"v_mov_b32 v{DG+3}, {hex(S_LN2)}")
    BU = 8
    for t in range(2):
        a(f"v_lshlrev_b32 v{BU+4*t}, 16, v{B2+2*t}")
        a(f"v_and_b32 v{BU+4*t+1}, 0xffff0000, v{B2+2*t}")
        a(f"v_lshlrev_b32 v{BU+4*t+2}, 16, v{B2+2*t+1}")
        a(f"v_and_b32 v{BU+4*t+3}, 0xffff0000, v{B2+2*t+1}")
    a("s_mov_b32 s4, 0x100000")
    a("s_mov_b32 s5, 0x200000")
    for nt in range(3):
        a(f"v_cvt_f32_u32 v{DG+nt}, v{DG+nt}")
        a(f"v_mul_f32 v{DG+nt}, 0.25, v{DG+nt}")
        for k in range(8):
            a(f"v_mul_f32 v{OA+8*nt+k}, v{DG+3}, v{OA+8*nt+k}")
        for k in range(8):
            a(f"v_fmac_f32 v{OA+8*nt+k}, v{DG+nt}, v{BU+k}")
        if nt: a(f"v_add_u32 v5, 0x100000, v5")
        for t in range(2):
            o = OA + 8*nt + 4*t
            a(f"v_cvt_pk_bf16_f32 v{16+4*nt+2*t}, v{o}, v{o+1}")
            a(f"v_cvt_pk_bf16_f32 v{17+4*nt+2*t}, v{o+2}, v{o+3}")
            a(f"buffer_store_dwordx2 {vr(16+4*nt+2*t,2)}, v5, s[48:51], 0 offen offset:{32*t}")
    if DEBUG:
        stamp(7)
        a("s_cmp_lg_u32 s3, 0")
        a("s_cbranch_scc1 K2_EXIT")
        a("s_memrealtime s[98:99]")
        a("s_lshl_b32 s93, s2, 6")
        a("s_add_u32 s93, s93, 0xA00000")
        a("v_mov_b32 v1, s93")
        a("s_waitcnt lgkmcnt(0)")
        for i in range(8):
            a(f"s_sub_u32 s93, s{84+i}, s84")
            a("v_mov_b32 v2, s93")
            a(f"global_store_dword v1, v2, s[34:35] offset:{4*i}")
        for off, sr_ in ((32, 96), (36, 98), (40, 92)):
            a(f"v_mov_b32 v2, s{sr_}")
            a(f"global_store_dword v1, v2, s[34:35] offset:{off}")
    a.lab("K2_EXIT")
    a("s_endpgm")
    a.lab("K2_SLOW_WB")
    a(f"ds_write_b128 v4, v[8:11]")
    a(f"ds_write_b128 v4, v[12:15] offset:{16*ROWP}")
    a(f"s_cmp_ge_u32 s{sW}, 8")
    a("s_cbranch_scc1 K2_SLOW_SYNC")
    a(f"ds_write_b128 v4, v[16:19] offset:{32*ROWP}")
    a("s_branch K2_SLOW_SYNC")
    a.lab("K2_SLOW_S")
    a.lab("K2_SLOW_SET")
    a(f"s_mov_b32 s{sSLOW}, 1")
    a.lab("K2_SLOW_SYNC")
    a("s_waitcnt lgkmcnt(0)")
    a("s_barrier")
    a.lab("K2_SLOW_NEXT")
    a("v_lshlrev_b32 v4, 4, v0")
    for k in range(4): a(f"v_mov_b32 v{ZT+k}, 0")
    zero_batch(L_BZEND)
    a(f"s_cmp_lg_u32 s{sBATCH}, 0")
    a("s_cbranch_scc1 K2_SLOW_NZ")
    a(f"s_mov_b64 s[{sSM}:{sSM+1}], -1")
    a(f"ds_write_b128 v4, {vr(ZT,4)} offset:{L_S}")
    a(f"ds_write_b128 v4, {vr(ZT,4)} offset:{L_S+16384}")
    a(f"ds_write_b128 v4, {vr(ZT,4)} offset:{L_S+40*ROWP-16384}")
    a.lab("K2_SLOW_NZ")
    a(f"s_cmp_lt_u32 s{sBATCH}, {E}")
    a("s_cbranch_scc1 K2_SLOW_GO")
    a(f"s_mov_b32 s{sSLOW}, 0")
    a("s_branch K2_EPI")
    a.lab("K2_SLOW_GO")
    a(f"v_add_u32 v5, s{sBATCH}, v0")
    a(f"v_mov_b32 v6, {E}")
    a("v_cmp_lt_u32 vcc, v5, v6")
    a(f"v_min_u32 v5, {E-1}, v5")
    a("v_lshlrev_b32 v6, 2, v5")
    a("v_lshlrev_b32 v7, 1, v5")
    SD, SE = 40, 41
    a(f"global_load_dword v{SD}, v6, s[{PDST}:{PDST+1}]")
    a(f"global_load_dword v{R0}, v6, s[{PSRC}:{PSRC+1}]")
    a(f"global_load_ushort v{SE}, v7, s[{PE}:{PE+1}]")
    a("v_mov_b32 v6, 0xfffc0000")
    a("v_and_b32 v5, 63, v0")
    a("v_lshlrev_b32 v5, 2, v5")
    a("s_waitcnt vmcnt(0) lgkmcnt(0)")
    a("s_barrier")
    a(f"v_and_b32 v7, 0xff, v{SD}")
    a(f"v_cmp_eq_u32 s[{sV[0]}:{sV[0]+1}], s2, v7")
    a(f"v_lshlrev_b32 v7, 10, v{SD}")
    a(f"v_and_or_b32 v{R0+1}, v7, v6, v{SE}")
    a(f"s_and_b64 s[{sV[0]}:{sV[0]+1}], s[{sV[0]}:{sV[0]+1}], vcc")
    for i in range(1, 4): a(f"s_mov_b64 s[{sV[i]}:{sV[i]+1}], 0")
    a("v_mov_b32 v7, 4")
    rank_atomics(1)
    a("s_mov_b64 exec, -1")
    a(f"s_add_u32 s{sBATCH}, s{sBATCH}, {BATCH}")
    a("s_waitcnt lgkmcnt(0)")
    a("s_barrier")
    a("s_branch K2_SCAN")
    return 128

HEADER = open('standalone__edge_featured_mpnn_mpnn__graph.s.ref').read().split("; Override launch")[0]

def kd(name, nv, ns):
    acc = (nv + 3) // 4 * 4
    return f""".p2align 6
.amdhsa_kernel {name}
  .amdhsa_next_free_vgpr {nv}
  .amdhsa_next_free_sgpr {ns}
  .amdhsa_accum_offset {acc}
  .amdhsa_group_segment_fixed_size 0
  .amdhsa_kernarg_size 88
  .amdhsa_user_sgpr_count 2
  .amdhsa_user_sgpr_kernarg_segment_ptr 1
  .amdhsa_system_sgpr_workgroup_id_x 1
.end_amdhsa_kernel
"""

def build(TPW=4, DP=6):
    a = Asm()
    g1 = gen_k1(a, TPW)
    nv2 = gen_k2(a, DP)
    out = HEADER
    out += f"; @launch kernel=k1_kernel grid=({g1},1,1) block=(256,1,1) lds=1024\n"
    out += f"; @launch kernel=k2_kernel grid=(256,1,1) block=(1024,1,1) lds={L_END}\n"
    out += '.amdgcn_target "amdgcn-amd-amdhsa--gfx950"\n.text\n'
    out += a.text()
    out += '.section .rodata,"a"\n'
    out += kd("k1_kernel", 224, 64)
    out += kd("k2_kernel", 128, 102)
    return out

if __name__ == "__main__":
    import argparse
    ap = argparse.ArgumentParser()
    ap.add_argument("-o", default="standalone__edge_featured_mpnn_mpnn__graph.s")
    ap.add_argument("--tpw", type=int, default=4)
    ap.add_argument("--dp", type=int, default=4)
    ap.add_argument("--debug", action="store_true")
    ap.add_argument("--srcmask", type=int, default=0)
    ap.add_argument("--exp", default="")
    ap.add_argument("--pr1", type=int, default=8)
    ap.add_argument("--pr0", type=int, default=4)
    ap.add_argument("--wqs", type=int, default=4)
    ap.add_argument("--wqs2", type=int, default=5)
    ap.add_argument("--pf", type=int, default=0)
    args = ap.parse_args()
    DEBUG = args.debug
    SRCMASK = args.srcmask
    PF = args.pf
    WQSPLIT = args.wqs
    PR1, PR0 = args.pr1, args.pr0
    WQSPLIT2 = args.wqs2
    EXP = set(args.exp.split(",")) if args.exp else set()
    open(args.o, "w").write(build(args.tpw, args.dp))
```

```python
import sys, struct

N, E, D_, H = 10000, 160000, 128, 256
NCH = 64
CH_E = E // NCH
CAP = 31
WS_P = 0
WS_CELLS = 0x500000
WS_WQ = 0x900000
WS_W2 = 0x910000
WS_WE = 0x920000
WS_B1 = 0x920400
WS_END = 0x921000

def f32bits(x): return struct.unpack('<I', struct.pack('<f', x))[0]
S_LOG2E = f32bits(-1.4426950408889634)
S_LN2 = f32bits(-0.6931471805599453)

class Asm:
    def __init__(self): self.l = []
    def __call__(self, s): self.l.append("    " + s)
    def lab(self, s): self.l.append(s + ":")
    def c(self, s): self.l.append("    ; " + s)
    def raw(self, s): self.l.append(s)
    def text(self): return "\n".join(self.l) + "\n"

def vr(a, n): return f"v[{a}:{a+n-1}]"
def sr(a, n): return f"s[{a}:{a+n-1}]"

def srd(a, d, base, nrec, stride=0, add=0):
    if add:
        a(f"s_add_u32 s{d}, s{base}, {hex(add)}")
        a(f"s_addc_u32 s{d+1}, s{base+1}, 0")
    else:
        a(f"s_mov_b32 s{d}, s{base}")
        a(f"s_mov_b32 s{d+1}, s{base+1}")
    if stride:
        a(f"s_or_b32 s{d+1}, s{d+1}, {hex(stride << 16)}")
    a(f"s_mov_b32 s{d+2}, {hex(nrec)}")
    a(f"s_mov_b32 s{d+3}, 0x20000")

PX, PE, PSRC, PDST, PW1, PB1, PW2, PB2 = 16, 18, 20, 22, 24, 26, 28, 30

DEBUG = False
SRCMASK = 0
EXP = set()
PF = 0
WQSPLIT = 2
PR1 = 10
PR0 = 4
WQSPLIT2 = 5
def gen_k1(a, TPW):
    NG = (625 + TPW - 1) // TPW
    GRID = NCH + 4 + NG
    a.raw(".globl k1_kernel"); a.raw(".p2align 8"); a.raw(".type k1_kernel,@function")
    a.lab("k1_kernel")
    a(f"s_cmp_ge_u32 s2, {GRID}")
    a("s_cbranch_scc1 K1_EXIT")
    a("s_load_dwordx16 s[16:31], s[0:1], 0")
    a("s_load_dwordx2 s[32:33], s[0:1], 80")
    if DEBUG: a("s_memrealtime s[56:57]")
    def k1end():
        if DEBUG:
            a("s_waitcnt vmcnt(0)")
            a("s_memrealtime s[58:59]")
            a("s_lshl_b32 s60, s2, 4")
            a("s_add_u32 s60, s60, 0xB00000")
            a("v_mov_b32 v1, s60")
            a("s_waitcnt lgkmcnt(0)")
            a("v_mov_b32 v2, s56")
            a("v_mov_b32 v3, s58")
            a("v_cmp_eq_u32 vcc, 0, v0")
            a("s_and_saveexec_b64 s[60:61], vcc")
            a("s_cbranch_execz K1_EXIT")
            a("global_store_dwordx2 v1, v[2:3], s[32:33]")
        a("s_endpgm")
    a(f"s_cmp_lt_u32 s2, {NCH}")
    a("s_cbranch_scc1 K1_SORT")
    a(f"s_cmp_lt_u32 s2, {NCH+4}")
    a("s_cbranch_scc1 K1_TRANS")
    a.c("GEMM role: P' = -log2e * x @ W1a")
    a("v_lshrrev_b32 v1, 6, v0")
    a("v_and_b32 v2, 15, v0")
    a("v_bfe_u32 v3, v0, 4, 2")
    a("v_lshlrev_b32 v4, 7, v1")
    a("v_lshl_add_u32 v4, v2, 3, v4")
    a("v_lshl_add_u32 v5, v3, 12, v4")
    a("v_lshl_add_u32 v6, v3, 11, v4")
    a("v_lshlrev_b32 v7, 8, v2")
    a("v_lshl_add_u32 v7, v3, 4, v7")
    a(f"s_sub_u32 s3, s2, {NCH+4}")
    a(f"s_mul_i32 s3, s3, {TPW}")
    a("s_lshl_b32 s4, s3, 12")
    a("s_lshl_b32 s5, s3, 13")
    a("s_mov_b32 s6, 0x4000"); a("s_mov_b32 s7, 0x8000"); a("s_mov_b32 s8, 0xc000")
    a("s_mov_b32 s9, 0x05040100"); a("s_mov_b32 s10, 0x07060302")
    a(f"v_mov_b32 v8, {hex(S_LOG2E)}")
    a("s_waitcnt lgkmcnt(0)")
    srd(a, 36, PX, N*256)
    srd(a, 40, PW1, 257*512)
    srd(a, 44, 32, N*512, add=WS_P)
    RAW = 64; FR = 128; ACC = 192
    XFB = [16, 32, 48, 224, 240]
    NPRE = min(TPW, 5 if "xall" in EXP else 3)
    def xload(t):
        if t:
            a(f"s_add_u32 s11, s4, {t*4096}")
        else:
            a("s_mov_b32 s11, s4")
        for s in range(4):
            a(f"buffer_load_dwordx4 {vr(XFB[t%NPRE]+4*s,4)}, v7, s[36:39], s11 offen offset:{64*s}")
    so = ["0", "s6", "s7", "s8"]
    if "xfirst" in EXP:
        for t in range(NPRE): xload(t)
    for s in range(4):
        for m in range(8):
            a(f"buffer_load_dwordx2 {vr(RAW+16*s+2*m,2)}, v5, s[40:43], {so[s]} offen offset:{512*m}")
    npre = NPRE
    if "xfirst" not in EXP:
        for t in range(npre): xload(t)
    for s in range(4):
        a(f"s_waitcnt vmcnt({(0 if 'xfirst' in EXP else 4*npre) + 8*(3-s)})")
        for t in range(4):
            for p in range(4):
                a(f"v_perm_b32 v{FR+16*s+4*t+p}, v{RAW+16*s+2*(2*p+1)+(t>>1)}, v{RAW+16*s+2*(2*p)+(t>>1)}, s{9+(t&1)}")
    outstanding = []
    for t in range(npre): outstanding += [("x", t)]*4
    def wait_for(tag):
        idx = max(i for i, x in enumerate(outstanding) if x == tag)
        n = len(outstanding) - 1 - idx
        a(f"s_waitcnt vmcnt({n})")
        del outstanding[:idx+1]
    for t in range(TPW):
        wait_for(("x", t))
        acc = ACC + 16*(t & 1)
        for s in range(4):
            for tt in range(4):
                c = "0" if s == 0 else vr(acc+4*tt, 4)
                a(f"v_mfma_f32_16x16x32_bf16 {vr(acc+4*tt,4)}, {vr(XFB[t%NPRE]+4*s,4)}, {vr(FR+16*s+4*tt,4)}, {c}")
        if t + NPRE < TPW:
            xload(t+NPRE); outstanding.extend([("x", t+NPRE)]*4)
        a(f"s_add_u32 s12, s5, {t*8192}")
        a("s_nop 7")
        for tt in range(4):
            for r in range(4):
                a(f"v_mul_f32 v{acc+4*tt+r}, v8, v{acc+4*tt+r}")
        ob = RAW + 8*(t & 3)
        for r in range(4):
            a(f"v_cvt_pk_bf16_f32 v{ob+2*r}, v{acc+0+r}, v{acc+4+r}")
            a(f"v_cvt_pk_bf16_f32 v{ob+2*r+1}, v{acc+8+r}, v{acc+12+r}")
        for r in range(4):
            fl = " sc1" if "psc1" in EXP else " nt" if "pnt" in EXP else ""
            a(f"buffer_store_dwordx2 {vr(ob+2*r,2)}, v6, s[44:47], s12 offen offset:{512*r}{fl}")
            outstanding.append(("st", t))
    k1end()
    a.lab("K1_TRANS")
    a.c("fragment transposer for W1b (WQ) and w2 (W2F)")
    a(f"s_sub_u32 s3, s2, {NCH}")
    a("s_and_b32 s4, s3, 1")
    a("s_lshl_b32 s4, s4, 8")
    a("v_add_u32 v1, s4, v0")
    a("s_mov_b32 s9, 0x05040100"); a("s_mov_b32 s10, 0x07060302")
    a("s_waitcnt lgkmcnt(0)")
    a("s_cmp_ge_u32 s3, 2")
    a("s_cbranch_scc1 K1_TR_W2")
    a("v_and_b32 v2, 31, v1")
    a("v_lshrrev_b32 v3, 5, v1")
    a("v_lshlrev_b32 v4, 4, v2")
    a("v_lshl_add_u32 v4, v3, 12, v4")
    a("v_add_u32 v4, 0x10000, v4")
    a("v_lshrrev_b32 v5, 1, v2")
    a("v_lshlrev_b32 v5, 12, v5")
    a("v_lshl_add_u32 v5, v3, 8, v5")
    a("v_and_b32 v6, 1, v2")
    a("v_lshl_add_u32 v5, v6, 7, v5")
    srd(a, 36, PW1, 257*512)
    srd(a, 40, 32, 0x10000, add=WS_WQ)
    a("s_mov_b32 s5, 512")
    a("s_branch K1_TR_GO")
    a.lab("K1_TR_W2")
    a("v_and_b32 v2, 15, v1")
    a("v_bfe_u32 v3, v1, 4, 3")
    a("v_lshrrev_b32 v7, 7, v1")
    a("v_lshlrev_b32 v4, 4, v2")
    a("v_lshl_add_u32 v4, v3, 13, v4")
    a("v_lshl_add_u32 v4, v7, 11, v4")
    a("v_lshrrev_b32 v5, 1, v2")
    a("v_lshlrev_b32 v5, 13, v5")
    a("v_lshl_add_u32 v5, v3, 10, v5")
    a("v_lshl_add_u32 v5, v7, 8, v5")
    a("v_and_b32 v6, 1, v2")
    a("v_lshl_add_u32 v5, v6, 7, v5")
    srd(a, 36, PW2, 256*256)
    srd(a, 40, 32, 0x10000, add=WS_W2)
    a("s_mov_b32 s5, 256")
    a.lab("K1_TR_GO")
    a("s_mov_b32 s6, 0")
    for m in range(8):
        a(f"buffer_load_dwordx4 {vr(16+4*m,4)}, v4, s[36:39], s6 offen")
        if m < 7: a("s_add_u32 s6, s6, s5")
    a("s_waitcnt vmcnt(0)")
    for cc in range(8):
        for p in range(4):
            a(f"v_perm_b32 v{48+4*cc+p}, v{16+4*(2*p+1)+(cc>>1)}, v{16+4*(2*p)+(cc>>1)}, s{9+(cc&1)}")
        a(f"buffer_store_dwordx4 {vr(48+4*cc,4)}, v5, s[40:43], 0 offen offset:{16*cc}")
    a("s_cmp_lg_u32 s3, 0")
    a("s_cbranch_scc1 K1_TR_END")
    a("v_lshlrev_b32 v4, 1, v0")
    a(f"s_add_u32 s6, s{PW1}, 0x20000")
    a(f"s_addc_u32 s7, s{PW1+1}, 0")
    a("global_load_ushort v8, v4, s[6:7]")
    a(f"global_load_ushort v9, v4, s[{PB1}:{PB1+1}]")
    a(f"s_add_u32 s6, s32, {hex(WS_WE)}")
    a("s_addc_u32 s7, s33, 0")
    a(f"v_mov_b32 v10, {hex(S_LOG2E)}")
    a("v_lshlrev_b32 v5, 2, v0")
    a("s_waitcnt vmcnt(0)")
    a("v_lshlrev_b32 v8, 16, v8")
    a("v_lshlrev_b32 v9, 16, v9")
    a("v_mul_f32 v8, v10, v8")
    a("v_mul_f32 v9, v10, v9")
    a("v_cvt_pk_bf16_f32 v8, v8, v8")
    a("global_store_short v4, v8, s[6:7]")
    a(f"global_store_dword v5, v9, s[6:7] offset:{WS_B1-WS_WE}")
    a.lab("K1_TR_END")
    k1end()
    a.lab("K1_SORT")
    a.c("bucket the edges of chunk s2 by dst&255")
    a("v_lshlrev_b32 v1, 2, v0")
    a("v_mov_b32 v2, 0")
    a("ds_write_b32 v1, v2")
    a("v_lshlrev_b32 v3, 4, v0")
    a("v_lshlrev_b32 v4, 3, v0")
    a("v_mov_b32 v5, 1")
    a("v_mov_b32 v6, 0x80000000")
    a("v_mov_b32 v7, 0xfffc0000")
    a(f"s_mul_i32 s3, s2, {CH_E*4}")
    a(f"s_mul_i32 s4, s2, {CH_E*2}")
    a("s_lshl_b32 s5, s2, 8")
    a("s_add_u32 s6, s3, 4096"); a("s_add_u32 s7, s3, 8192")
    a("s_waitcnt lgkmcnt(0)")
    srd(a, 36, PDST, E*4)
    srd(a, 40, PSRC, E*4)
    srd(a, 44, PE, E*2)
    srd(a, 48, 32, 256*NCH*256, add=WS_CELLS)
    DST, SRC, EA = 16, 28, 40
    RK, OFF, REC = 48, 60, 72
    so = ["s3", "s6", "s7"]
    nlast = CH_E//4 - 512
    for r in range(2):
        a(f"buffer_load_dwordx4 {vr(DST+4*r,4)}, v3, s[36:39], {so[r]} offen")
    for r in range(2):
        a(f"buffer_load_dwordx4 {vr(SRC+4*r,4)}, v3, s[40:43], {so[r]} offen")
        a(f"buffer_load_dwordx2 {vr(EA+2*r,2)}, v4, s[44:47], s4 offen offset:{2048*r}")
    a(f"buffer_load_dwordx4 {vr(DST+8,4)}, v3, s[36:39], s7 offen")
    a(f"buffer_load_dwordx4 {vr(SRC+8,4)}, v3, s[40:43], s7 offen")
    a("s_add_u32 s8, s4, 4096")
    a(f"buffer_load_dwordx2 {vr(EA+4,2)}, v4, s[44:47], s8 offen")
    a(f"v_cmp_gt_u32 vcc, {nlast}, v0")
    a("s_nop 1")
    a("s_mov_b64 s[10:11], vcc")
    a("s_barrier")
    def atomics(r):
        for i in range(4):
            k = 4*r+i
            a(f"v_and_b32 v{OFF+k}, 0xff, v{DST+k}")
            a(f"v_lshlrev_b32 v8, 2, v{OFF+k}")
            a(f"ds_add_rtn_u32 v{RK+k}, v8, v5")
    def emit(r):
        for i in range(4):
            k = 4*r+i
            a(f"v_lshlrev_b32 v{OFF+k}, 14, v{OFF+k}")
            a(f"v_lshl_add_u32 v{OFF+k}, v{RK+k}, 3, v{OFF+k}")
            a(f"v_sub_u32 v8, {CAP-1}, v{RK+k}")
            a(f"v_and_or_b32 v{OFF+k}, v8, v6, v{OFF+k}")
            if SRCMASK: a(f"v_and_b32 v{REC+2*k}, {SRCMASK}, v{SRC+k}")
            else: a(f"v_mov_b32 v{REC+2*k}, v{SRC+k}")
            a(f"v_lshlrev_b32 v9, 10, v{DST+k}")
            e = EA + 2*r + (i >> 1)
            if i & 1: a(f"v_lshrrev_b32 v10, 16, v{e}")
            else: a(f"v_and_b32 v10, 0xffff, v{e}")
            a(f"v_and_or_b32 v{REC+2*k+1}, v9, v7, v10")
            fl = " sc1" if "csc1" in EXP else " nt" if "cnt" in EXP else ""
            if "ccomp" in EXP:
                a("s_lshl_b32 s14, s2, 15")
                a(f"s_add_u32 s14, s14, {k*2048}")
                a(f"buffer_store_dwordx2 {vr(REC+2*k,2)}, v4, s[48:51], s14 offen")
            elif "nocell" not in EXP: a(f"buffer_store_dwordx2 {vr(REC+2*k,2)}, v{OFF+k}, s[48:51], s5 offen offset:8{fl}")
    a("s_waitcnt vmcnt(7)")
    atomics(0); atomics(1)
    a("s_waitcnt vmcnt(0) lgkmcnt(0)")
    emit(0); emit(1)
    a("s_and_saveexec_b64 s[12:13], s[10:11]")
    a("s_cbranch_execz K1_S_SKIP")
    atomics(2)
    a("s_waitcnt lgkmcnt(0)")
    emit(2)
    a.lab("K1_S_SKIP")
    a("s_mov_b64 exec, s[12:13]")
    a("s_waitcnt lgkmcnt(0)")
    a("s_barrier")
    a("ds_read_b32 v2, v1")
    a("v_lshlrev_b32 v3, 14, v0")
    a("s_waitcnt lgkmcnt(0)")
    if "nohdr" not in EXP: a("buffer_store_dword v2, v3, s[48:51], s5 offen")
    k1end()
    a.lab("K1_EXIT")
    a("s_endpgm")
    return GRID

ROWP = 1040
SBROW = 528
BATCH = 1024
NSLOT = BATCH + 16
L_EP = 0
L_IDX = L_EP + NSLOT*16
L_CNT = L_IDX + NSLOT*4
L_HN = L_CNT + 256
L_ZERO = L_HN + 128
L_BZEND = L_ZERO + 256
L_DEG = L_BZEND
L_FLAG = L_DEG + 256
L_ZEND = L_FLAG + 32
L_S = L_ZEND
L_Q = L_S + 40*ROWP
L_SB = L_Q
XROW = 272
L_CR = L_Q + 40*ROWP
L_XS = L_CR
L_END = L_CR + 32*ROWP
QS = L_Q - L_S

def gen_k2(a, DP):
    assert DP % 2 == 0
    INF = 0x7fffffff
    SMAP = {0:0, 1:1, 2:2, 3:3, 4:4, 5:5, 6:6, 7:7}
    if "fine" in EXP: SMAP = {0:0, 1:1, "a":2, "b":3, 2:4, 3:5, "c":6, "d":7}
    if "fine2" in EXP: SMAP = {0:0, 4:1, 5:2, "e":3, "f":4, "g":5, 6:6, 7:7}
    def stamp(i):
        if not DEBUG or i not in SMAP: return
        a("s_memtime s[94:95]")
        a("s_waitcnt lgkmcnt(0)")
        a(f"s_mov_b32 s{84+SMAP[i]}, s94")
    a.raw(".globl k2_kernel"); a.raw(".p2align 8"); a.raw(".type k2_kernel,@function")
    a.lab("k2_kernel")
    a("s_cmp_ge_u32 s2, 256")
    a("s_cbranch_scc1 K2_EXIT")
    a("s_load_dwordx16 s[16:31], s[0:1], 0")
    a("s_load_dwordx2 s[32:33], s[0:1], 64")
    a("s_load_dwordx2 s[34:35], s[0:1], 80")
    if DEBUG: a("s_memrealtime s[96:97]")
    stamp(0)
    assert DP == 4
    U = [8, 16]; EX, ACC, Q = 24, 32, 40
    IP = [56, 58]
    AB = 60
    ES = [62, 66]
    BS = 70
    M = 118
    VEA, VIA, VES, VEND, VQA, VSTA, VEO, VH, VXA, VQW = range(M, M+10)
    T0, T1, T3 = 1, 2, 4
    WF = 8
    R0 = 8
    HD = 16
    RK = 17
    LA = 21
    PS = 25
    XP = 40
    VC = 53
    PB = 54
    XF = 40
    QA = 102
    ZT = 102
    B1 = 106
    BI = 110
    WE = 48
    sW, sNE = 3, 56
    sV = [52, 54, 10, 12]
    sT, sT2, sREM, sTEV, sSLOW, sBATCH, sLEFT, sX = 58, 59, 60, 61, 62, 63, 66, 68
    sMASK = [70, 72]; sPOS = [74, 75]; sEND = [76, 77]; sSEGL = [78, 79]; sHEAD = [80, 81]; sCR = [82, 83]
    sROW = [4, 5]
    sSM = 100
    sWQ = 64
    uid0 = [0]
    def L(p):
        uid0[0] += 1
        return f"K2_{p}{uid0[0]}"
    def exec_half(x):
        a(f"s_mov_b32 exec_lo, {-1 if x == 0 else 0}")
        a(f"s_mov_b32 exec_hi, {0 if x == 0 else -1}")
    wpos = [0, 1, 6, 7]
    a("v_lshlrev_b32 v4, 4, v0")
    for k in range(4): a(f"v_mov_b32 v{ZT+k}, 0")
    a("v_lshrrev_b32 v1, 6, v0")
    a("v_and_b32 v5, 0x3f0, v4")
    a(f"ds_write_b128 v5, {vr(ZT,4)} offset:{L_ZEND-1024}")
    a("v_readfirstlane_b32 s3, v1")
    a(f"v_and_b32 v{IP[0]+1}, 0x1f0, v4")
    a("v_lshlrev_b32 v2, 5, v0")
    a("v_and_b32 v3, 0xffffff00, v2")
    a("s_lshl_b32 s4, s2, 14")
    a(f"s_add_u32 s4, s4, {hex(WS_CELLS)}")
    a("s_lshl_b32 s5, s2, 8")
    a("s_waitcnt lgkmcnt(0)")
    a("s_barrier")
    stamp(1)
    srd(a, 40, 34, WS_END)
    a(f"s_add_u32 s6, s34, {hex(WS_WE)}")
    a(f"s_addc_u32 s7, s35, 0")
    a(f"global_load_dwordx4 {vr(WE,4)}, v{IP[0]+1}, s[6:7]")
    a(f"s_cmp_ge_u32 s{sW}, 8")
    a("s_cbranch_scc1 K2_GEMMER")

    def lane_consts():
        srd(a, 44, 34, N, stride=512, add=WS_P)
        srd(a, 48, 32, N*256)
        a(f"s_mov_b32 s{sSLOW}, 0")
        a(f"s_mov_b32 s{sBATCH}, 0")
        a(f"s_mov_b64 s[{sSM}:{sSM+1}], 0")
        a(f"v_mov_b32 v{IP[1]+1}, v{IP[0]+1}")
        a(f"v_mov_b32 v{IP[0]}, 0")
        a(f"v_mov_b32 v{IP[1]}, 0")
        a(f"v_lshlrev_b32 v{VQA}, 1, v{IP[0]+1}")
        a(f"v_add_u32 v{VQA}, {L_Q}, v{VQA}")
        a("s_mov_b32 s10, 0x00f0000f")
        a("s_mov_b32 s11, 0xf0000f00")
        a("s_mov_b32 s12, 0x00300003")
        a("s_mov_b32 s13, 0x30000300")
        a("s_mov_b32 s14, 0x00c0000c")
        a("s_mov_b32 s15, 0xc0000c00")
        a(f"v_and_b32 v6, 16, v4")
        a(f"v_mov_b32 v{PB}, 0x3f80")
        a(f"v_lshlrev_b32 v{PB}, v6, v{PB}")
        for k in (0, 4, 8):
            a(f"v_cndmask_b32 v{AB+k}, 0, v{PB}, s[12:13]")
            a(f"v_cndmask_b32 v{AB+k+1}, 0, v{PB}, s[14:15]")
        a(f"v_lshrrev_b32 v6, 1, v6")
        a(f"v_mov_b32 v{VEO}, {L_ZERO}")
        a(f"v_or_b32 v{PB}, 4, v6")
        a(f"v_cndmask_b32 v{VEO}, v{VEO}, v{PB}, s[12:13]")
        a(f"v_cndmask_b32 v{VEO}, v{VEO}, v6, s[14:15]")
        a(f"v_cndmask_b32 v{VES}, 0, 4, s[10:11]")
        a(f"v_bfe_u32 v{VH}, v0, 5, 1")
        a(f"v_mov_b32 v7, 4")
        a(f"v_lshrrev_b32 v5, 2, v5")
    def wscale():
        r = []
        for d in range(DP):
            r.append(f"v_pk_mov_b32 {vr(BS+8*d,2)}, {vr(WE,2)}, {vr(WE,2)} op_sel:[0,1]")
            r.append(f"v_pk_mov_b32 {vr(BS+8*d+6,2)}, {vr(WE+2,2)}, {vr(WE+2,2)} op_sel:[0,1]")
        return r
    dpp = [f"row_shr:{sh} row_mask:0xf bank_mask:0xf bound_ctrl:0" for sh in (1, 2, 4, 8)] + \
          ["row_bcast:15 row_mask:0xa bank_mask:0xf", "row_bcast:31 row_mask:0xc bank_mask:0xf"]
    def scan(first):
        a(f"ds_read_b32 v{VC}, v5 offset:{L_CNT}")
        if first: a(f"ds_read_b32 v3, v7 offset:{L_FLAG-4}")
        a("s_waitcnt lgkmcnt(0)")
        a(f"v_mov_b32 v{VEND}, v{VC}")
        if first: a(f"v_readfirstlane_b32 s{sSLOW}, v3")
        else: a("s_nop 0")
        a(f"v_cmp_ne_u32 s[{sNE}:{sNE+1}], 0, v{VC}")
        for i, d in enumerate(dpp):
            if i: a("s_nop 1")
            a(f"v_add_u32_dpp v{VEND}, v{VEND}, v{VEND} {d}")
        a(f"v_sub_u32 v{VSTA}, v{VEND}, v{VC}")
        a(f"v_readlane_b32 s{sT}, v{VEND}, 63")
    def ranges():
        a(f"s_lshr_b32 s{sT}, s{sT}, 2")
        if DEBUG: a(f"s_mov_b32 s92, s{sT}")
        a(f"s_lshl_b32 s{sT2}, s{sW}, 1")
        a(f"s_mul_i32 s{sPOS[0]}, s{sT}, s{sT2}")
        a(f"s_add_u32 s{sPOS[1]}, s{sPOS[0]}, s{sT}")
        a(f"s_add_u32 s{sEND[1]}, s{sPOS[1]}, s{sT}")
        for r in (sPOS[0], sPOS[1], sEND[1]):
            a(f"s_lshr_b32 s{r}, s{r}, 5")
            a(f"s_lshl_b32 s{r}, s{r}, 2")
        a(f"s_mov_b32 s{sEND[0]}, s{sPOS[1]}")
        a(f"s_sub_u32 s{sT2}, s{sPOS[1]}, s{sPOS[0]}")
        a(f"v_mul_u32_u24 v{VIA}, s{sT2}, v{VH}")
        a(f"v_add_u32 v{VIA}, s{sPOS[0]}, v{VIA}")
        a(f"v_mad_u32_u24 v{VEA}, v{VIA}, v{VES}, v{VEO}")
        a(f"v_add_u32 v{VIA}, {L_IDX}, v{VIA}")
    def seg_next(x, lbl):
        a(f"s_lshl2_add_u32 s{sT2}, s{sSEGL[x]}, s{sPOS[x]}")
        a(f"s_mov_b32 s{sROW[x]}, -1")
        a(f"s_cmp_ge_u32 s{sT2}, s{sEND[x]}")
        a(f"s_cselect_b32 s{sSEGL[x]}, {hex(INF)}, s{sSEGL[x]}")
        a(f"s_cbranch_scc1 {lbl}")
        a(f"s_ff1_i32_b64 s{sT2}, s[{sMASK[x]}:{sMASK[x]+1}]")
        a(f"s_and_b32 s{sT2}, s{sT2}, 63")
        a(f"s_bitset0_b64 s[{sMASK[x]}:{sMASK[x]+1}], s{sT2}")
        a(f"v_readlane_b32 s{sT}, v{VEND}, s{sT2}")
        a(f"s_mul_i32 s{sROW[x]}, s{sT2}, {ROWP}")
        a(f"s_add_u32 s{sSEGL[x]}, s{sSEGL[x]}, 1")
        a(f"s_min_u32 s{sT}, s{sT}, s{sEND[x]}")
        a(f"s_sub_u32 s{sT}, s{sT}, s{sPOS[x]}")
        a(f"s_ashr_i32 s{sT}, s{sT}, 2")
        a(f"s_max_i32 s{sSEGL[x]}, s{sSEGL[x]}, s{sT}")
        a.lab(lbl)
    def stream_setup():
        a(f"v_cmp_lt_u32 s[{sMASK[0]}:{sMASK[0]+1}], s{sPOS[0]}, v{VEND}")
        a(f"v_cmp_lt_u32 s[{sMASK[1]}:{sMASK[1]+1}], s{sPOS[1]}, v{VEND}")
        for x in range(2):
            lj = L("INJ")
            a(f"s_and_b64 s[{sMASK[x]}:{sMASK[x]+1}], s[{sMASK[x]}:{sMASK[x]+1}], s[{sNE}:{sNE+1}]")
            a(f"s_mov_b32 s{sSEGL[x]}, 0")
            a(f"s_mov_b32 s{sHEAD[x]}, 0")
            seg_next(x, L("INI"))
            a(f"s_max_i32 s{sCR[x]}, s{sROW[x]}, 0")
            a(f"s_sub_u32 s{sCR[x]}, s{sCR[x]}, {QS}")
            a(f"s_cmp_lt_i32 s{sROW[x]}, 0")
            a(f"s_cbranch_scc1 {lj}")
            a(f"v_readlane_b32 s{sT}, v{VSTA}, s{sT2}")
            a(f"s_add_u32 s{sT2}, s{sT2}, 1")
            a(f"v_mov_b32 v{T3}, s{sT2}")
            a(f"s_lshl_b32 s{sT2}, s{sW}, 1")
            a(f"s_add_u32 s{sT2}, s{sT2}, {x}")
            a(f"s_cmp_ge_u32 s{sT}, s{sPOS[x]}")
            a(f"s_cbranch_scc1 {lj}")
            a(f"s_mov_b32 s{sHEAD[x]}, 1")
            a(f"s_mul_i32 s{sCR[x]}, s{sT2}, {ROWP}")
            a(f"s_add_u32 s{sCR[x]}, s{sCR[x]}, {L_CR-L_Q}")
            a(f"s_lshl_b32 s{sT2}, s{sT2}, 2")
            a(f"v_mov_b32 v6, s{sT2}")
            a(f"ds_write_b32 v6, v{T3} offset:{L_HN}")
            a.lab(lj)
            a(f"s_max_i32 s{sROW[x]}, s{sROW[x]}, 0")
        a(f"v_add_u32 v{T0}, s{sROW[0]}, v{VQA}")
        a(f"v_add_u32 v{T1}, s{sCR[0]}, v{VQA}")
        exec_half(1)
        a(f"v_add_u32 v{T0}, s{sROW[1]}, v{VQA}")
        a(f"v_add_u32 v{T1}, s{sCR[1]}, v{VQA}")
        a("s_mov_b64 exec, -1")
        a(f"v_lshlrev_b32 v3, {2 + (DP.bit_length()-1)}, v{VES}")
        a(f"s_min_u32 s{sTEV}, s{sSEGL[0]}, s{sSEGL[1]}")
        a(f"s_sub_u32 s{sREM}, s{sTEV}, 1")
        a(f"s_sub_u32 s{sLEFT}, s{sEND[1]}, s{sPOS[1]}")
        a(f"s_lshr_b32 s{sLEFT}, s{sLEFT}, 2")
        a(f"s_sub_u32 s6, s{sHEAD[0]}, 1")
        a(f"s_sub_u32 s7, s{sHEAD[1]}, 1")
        a(f"s_and_b64 s[6:7], s[6:7], s[{sSM}:{sSM+1}]")
        a(f"v_mov_b32 v5, {L_ZERO}")
        a(f"v_cndmask_b32 v{T3}, v5, v{T1}, s[6:7]")
    def first_loads():
        a(f"ds_read_b32 v{IP[0]}, v{VIA}")
        a(f"ds_read_b32 v{IP[1]}, v{VIA} offset:4")
        a(f"ds_read2_b32 {vr(ES[0],2)}, v{VEA} offset0:0 offset1:1")
        a(f"ds_read2_b32 {vr(ES[1],2)}, v{VEA} offset0:4 offset1:5")
        a("s_waitcnt lgkmcnt(2)")
        a(f"buffer_load_dwordx4 {vr(BS+2,4)}, {vr(IP[0],2)}, s[44:47], 0 idxen offen")
        a(f"buffer_load_dwordx4 {vr(BS+8+2,4)}, {vr(IP[1],2)}, s[44:47], 0 idxen offen")
        a(f"ds_read_b32 v{IP[0]}, v{VIA} offset:8")
        a(f"ds_read_b32 v{IP[1]}, v{VIA} offset:12")
    def pload(slot, pair):
        if "novm" in EXP: return
        a(f"buffer_load_dwordx4 {vr(BS+8*slot+2,4)}, {vr(pair,2)}, s[44:47], 0 idxen offen")
    def groups(n, body):
        for k in range(0, n, 2):
            l = None
            if k >= 2:
                l = L("SK")
                a(f"s_cmp_eq_u64 s[{sV[k]}:{sV[k]+1}], 0")
                a(f"s_cbranch_scc1 {l}")
            for i in range(k, min(k+2, n)): body(i)
            if l: a.lab(l)
    def rank_atomics(n):
        def body(i):
            a(f"v_lshrrev_b32 v{LA+i}, 16, v{R0+2*i+1}")
            a(f"s_mov_b64 exec, s[{sV[i]}:{sV[i]+1}]")
            a(f"ds_add_rtn_u32 v{RK+i}, v{LA+i}, v7 offset:{L_CNT}")
            a("s_mov_b64 exec, -1")
        groups(n, body)
    def zero_batch(upto):
        assert 16384 < upto <= 2*16384 and upto % 16 == 0
        a(f"ds_write_b128 v4, {vr(ZT,4)} offset:{upto-16384}")
        a(f"ds_write_b128 v4, {vr(ZT,4)}")
    def xread(nt, s):
        a(f"ds_read_b128 {vr(XF+4*s,4)}, v{VXA} offset:{16*nt*XROW+64*s}")
    def gemm_pre():
        for s in range(4): xread(0, s)
        a(f"v_mov_b32 v{VSTA}, {hex(S_LOG2E)}")
    def gemm_tile(nt):
        a("s_waitcnt lgkmcnt(0)")
        for s in range(4):
            for t in range(2):
                a(f"v_mfma_f32_16x16x32_bf16 {vr(QA+4*t,4)}, {vr(WF+16*t+4*s,4)}, {vr(XF+4*s,4)}, {'0' if s == 0 else vr(QA+4*t,4)}")
            if nt < 2: xread(nt+1, s)
        a("s_nop 6")
        if nt == 2:
            a("s_mov_b32 exec_lo, 0x00ff00ff")
            a("s_mov_b32 exec_hi, 0x00ff00ff")
        for t in range(2):
            for k in range(4): a(f"v_fma_f32 v{QA+4*t+k}, v{QA+4*t+k}, v{VSTA}, v{BI+4*t+k}")
            a(f"ds_write_b128 v{VQW}, {vr(QA+4*t,4)} offset:{16*nt*ROWP+64*t}")
        if nt == 2: a("s_mov_b64 exec, -1")
    def wq_loads(lo, hi):
        for f in range(lo, hi):
            t, s = divmod(f, 4)
            a(f"buffer_load_dwordx4 {vr(WF+16*t+4*s,4)}, v{VXA}, s[40:43], s{sWQ+t} offen offset:{1024*s}")

    def signal(k):
        a("s_waitcnt lgkmcnt(0)")
        a("s_mov_b64 exec, 1")
        a(f"ds_add_u32 v7, v7 offset:{L_FLAG+4*k}")
        a("s_mov_b64 exec, -1")
    def spin(k):
        l = L("SP")
        a("s_mov_b32 s8, 0x100000")
        a.lab(l)
        a(f"ds_read_b32 v6, v7 offset:{L_FLAG+4*k}")
        a("s_sub_u32 s8, s8, 1")
        a(f"s_cbranch_scc1 {l}X")
        a("s_waitcnt lgkmcnt(0)")
        a("v_readfirstlane_b32 s9, v6")
        a("s_nop 0")
        a("s_cmp_lt_u32 s9, 32")
        a(f"s_cbranch_scc1 {l}")
        a.lab(l + "X")
    def list_build(n):
        groups(n, lambda i: a(f"ds_bpermute_b32 v{PS+i}, v{LA+i}, v{VSTA}"))
        if n > 1:
            a(f"s_cmp_gt_u32 s{sT}, {4*BATCH}")
            a("s_cbranch_scc1 K2_SLOW_S")
        a("s_waitcnt lgkmcnt(0)")
        def body(i):
            a(f"v_add_u32 v{PS+i}, v{PS+i}, v{RK+i}")
            a(f"v_lshlrev_b32 v{RK+i}, 2, v{PS+i}")
            a(f"s_mov_b64 exec, s[{sV[i]}:{sV[i]+1}]")
            a(f"ds_write_b32 v{PS+i}, v{R0+2*i} offset:{L_IDX}")
            a(f"ds_write_b16 v{RK+i}, v{R0+2*i+1} offset:{L_EP+4}")
            a(f"ds_write_b16 v{RK+i}, v{R0+2*i+1} offset:{L_EP+14}")
            a("s_mov_b64 exec, -1")
        groups(n, body)
    def deg_acc():
        l = L("ND")
        a(f"s_cmp_lg_u32 s{sW}, 0")
        a(f"s_cbranch_scc1 {l}")
        a(f"ds_add_u32 v5, v{VC} offset:{L_DEG}")
        a.lab(l)
    a("v_and_b32 v2, 0x70, v4")
    a("v_add_u32 v6, v3, v2")
    a(f"buffer_load_dwordx4 {vr(R0,4)}, v6, s[40:43], s4 offen")
    a(f"buffer_load_dword v{HD}, v3, s[40:43], s4 offen")
    a(f"buffer_load_dwordx4 {vr(R0+4,4)}, v6, s[40:43], s4 offen offset:128")
    assert L_CNT <= 3*8192
    a(f"ds_write_b128 v4, {vr(ZT,4)}")
    a(f"ds_write_b128 v4, {vr(ZT,4)} offset:8192")
    a(f"ds_write_b128 v4, {vr(ZT,4)} offset:{L_CNT-8192}")
    lane_consts()
    a("v_lshrrev_b32 v2, 3, v2")
    a("s_waitcnt vmcnt(3)")
    for ins in wscale(): a(ins)
    stamp("a")
    a("s_waitcnt vmcnt(1)")
    stamp("b")
    a(f"v_sub_u32 v2, v{HD}, v2")
    a(f"v_cmp_lt_u32 vcc, {CAP}, v{HD}")
    for i in range(4):
        a(f"v_cmp_le_i32 s[{sV[i]}:{sV[i]+1}], {16*(i>>1)+(i&1)}, v2")
    a(f"s_and_b32 s{sV[0]}, s{sV[0]}, 0xfefefefe")
    a(f"s_and_b32 s{sV[0]+1}, s{sV[0]+1}, 0xfefefefe")
    a("s_waitcnt vmcnt(0)")
    rank_atomics(4)
    a("s_mov_b64 exec, vcc")
    a(f"ds_write_b32 v7, v7 offset:{L_FLAG-4}")
    signal(0)
    spin(0)
    stamp(2)
    scan(True)
    a(f"s_cmp_lg_u32 s{sSLOW}, 0")
    a("s_cbranch_scc1 K2_SLOW_S")
    list_build(4)
    signal(1)
    deg_acc()
    ranges()
    spin(1)
    stamp(3)
    first_loads()
    stream_setup()
    spin(3)
    a("s_branch K2_JOIN")
    a.lab("K2_SCAN")
    scan(False)
    list_build(1)
    deg_acc()
    ranges()
    stream_setup()
    a("s_waitcnt lgkmcnt(0)")
    a("s_barrier")
    first_loads()
    a("s_branch K2_JOIN")

    a.lab("K2_GEMMER")
    if "noprio" not in EXP: a("s_setprio 3")
    srd(a, 36, PX, N*256)
    a("v_subrev_u32 v2, 512, v0")
    a("v_and_b32 v3, 15, v0")
    a("v_lshrrev_b32 v6, 4, v2")
    a("v_lshlrev_b32 v7, 16, v6")
    a("v_lshl_add_u32 v7, v3, 4, v7")
    a("v_add_u32 v7, s5, v7")
    a(f"buffer_load_dwordx4 {vr(XP,4)}, v7, s[36:39], 0 offen")
    a("v_add_u32 v7, 0x200000, v7")
    a(f"buffer_load_dwordx4 {vr(XP+4,4)}, v7, s[36:39], 0 offen")
    a(f"s_add_u32 s9, s{sW}, s2")
    a("s_and_b32 s9, s9, 7")
    a(f"s_lshl_b32 s{sWQ}, s9, 13")
    a(f"s_add_u32 s{sWQ}, s{sWQ}, {hex(WS_WQ)}")
    a(f"s_add_u32 s{sWQ+1}, s{sWQ}, 4096")
    a(f"v_mov_b32 v{VXA}, v5")
    a("v_and_b32 v7, 0x30, v0")
    a("s_lshl_b32 s8, s9, 7")
    a(f"v_add_u32 v{PB}, s8, v7")
    a(f"global_load_dwordx4 {vr(BI,4)}, v{PB}, s[6:7] offset:{WS_B1-WS_WE}")
    a(f"global_load_dwordx4 {vr(BI+4,4)}, v{PB}, s[6:7] offset:{WS_B1-WS_WE+64}")
    wq_loads(0, 2)
    a(f"v_mul_u32_u24 v6, {XROW}, v6")
    a(f"v_lshl_add_u32 v6, v3, 4, v6")
    a(f"v_add_u32 v1, {L_XS}, v6")
    a(f"v_mul_u32_u24 v{VQW}, {ROWP}, v3")
    a(f"s_add_u32 s8, s8, {L_Q}")
    a(f"v_add3_u32 v{VQW}, v{VQW}, v7, s8")
    a(f"v_mul_u32_u24 v2, {XROW}, v3")
    a(f"s_mov_b32 s8, {L_XS}")
    a(f"v_add3_u32 v2, v2, v7, s8")
    wq_loads(2, 4)
    lane_consts()
    wq_loads(4, 8)
    a(f"v_mov_b32 v{VXA}, v2")
    stamp("a")
    a(f"s_waitcnt vmcnt(10)")
    stamp("b")
    a(f"ds_write_b128 v1, {vr(XP,4)}")
    a(f"s_cmp_ge_u32 s{sW}, 12")
    a("s_cbranch_scc1 K2_NOXS")
    a(f"ds_write_b128 v1, {vr(XP+4,4)} offset:{32*XROW}")
    a.lab("K2_NOXS")
    signal(2)
    for ins in wscale(): a(ins)
    spin(2)
    gemm_pre()
    a("s_waitcnt vmcnt(0)")
    gemm_tile(0)
    gemm_tile(1)
    gemm_tile(2)
    signal(3)
    stamp("c")
    if "touch" in EXP:
        a(f"s_cmp_lg_u32 s{sW}, 15")
        a("s_cbranch_scc1 K2_NOTOUCH")
        a("v_and_b32 v6, 63, v0")
        a("v_lshlrev_b32 v6, 16, v6")
        a("v_add_u32 v6, s5, v6")
        a(f"buffer_load_dword v{QA}, v6, s[48:51], 0 offen")
        a(f"global_load_dword v{QA+1}, v7, s[{PB2}:{PB2+1}]")
        a.lab("K2_NOTOUCH")
    spin(0)
    stamp(2)
    scan(True)
    a(f"s_cmp_gt_u32 s{sT}, {4*BATCH}")
    a(f"s_cselect_b32 s{sSLOW}, 1, s{sSLOW}")
    a(f"s_cmp_lg_u32 s{sSLOW}, 0")
    a("s_cbranch_scc1 K2_SLOW_SYNC")
    ranges()
    spin(1)
    stamp(3)
    first_loads()
    stream_setup()
    spin(3)
    a.lab("K2_JOIN")
    a(f"ds_read_b128 {vr(ACC,4)}, v{T3}")
    a(f"ds_read_b128 {vr(ACC+4,4)}, v{T3} offset:16")
    a("s_waitcnt lgkmcnt(0)")
    if "noprio" not in EXP: a("s_setprio 2")
    stamp("d")
    a(f"s_cmp_eq_u32 s{sTEV}, {hex(INF)}")
    a("s_cbranch_scc1 K2_LOOP_DONE")
    a(f"ds_read_b128 {vr(Q,4)}, v{T0}")
    a(f"ds_read_b128 {vr(Q+4,4)}, v{T0} offset:16")
    a(f"buffer_load_dwordx4 {vr(BS+16+2,4)}, {vr(IP[0],2)}, s[44:47], 0 idxen offen")
    a(f"buffer_load_dwordx4 {vr(BS+24+2,4)}, {vr(IP[1],2)}, s[44:47], 0 idxen offen")
    a(f"ds_read_b32 v{IP[0]}, v{VIA} offset:{4*DP}")
    a(f"ds_read_b32 v{IP[1]}, v{VIA} offset:{4*(DP+1)}")
    def mfma(slot, es, u, which):
        if "nomfma" in EXP: return
        if which == 0:
            a(f"v_mfma_f32_16x16x32_bf16 {vr(u,4)}, {vr(es,4)}, {vr(BS+8*slot,4)}, {vr(Q,4)}")
        else:
            a(f"v_mfma_f32_16x16x32_bf16 {vr(u+4,4)}, {vr(es-2,4)}, {vr(BS+8*slot+4,4)}, {vr(Q+4,4)}")
    a(f"s_waitcnt vmcnt({DP-1}) lgkmcnt(0)")
    mfma(0, ES[0], U[0], 0); mfma(0, ES[0], U[0], 1)
    pload(0, IP[0])
    stamp(4)
    a(f"s_sub_u32 s{sREM}, s{sREM}, 1")
    a("s_nop 5")
    a("s_cbranch_scc1 K2_BND0")
    a("s_branch K2_SUB0")
    def rdE(k):
        if "nods" in EXP: return
        a(f"ds_read2_b32 {vr(ES[k&1],2)}, v{VEA} offset0:{4*(k+2)} offset1:{4*(k+2)+1}")
    def rdI(k):
        if "nods" in EXP: return
        a(f"ds_read_b32 v{IP[k&1]}, v{VIA} offset:{4*(k+2+DP)}")
    def ex(c, u): a(f"v_exp_f32 v{EX+c}, v{u+c}")
    def rc(c): a(f"v_rcp_f32 v{EX+c}, v{EX+c}")
    def pa(c): a(f"v_pk_add_f32 {vr(EX+c,2)}, {vr(EX+c,2)}, 1.0 op_sel_hi:[1,0]")
    def pf(c, u): a(f"v_pk_fma_f32 {vr(ACC+c,2)}, {vr(u+c,2)}, {vr(EX+c,2)}, {vr(ACC+c,2)}")
    def valu(u):
        for c in range(8): ex(c, u)
        for c in range(0, 8, 2): pa(c)
        for c in range(8): rc(c)
        for c in range(0, 8, 2): pf(c, u)
    def tail(u):
        rc(7)
        for c in range(0, 8, 2): pf(c, u)
    uid = [0]
    def prio():
        if "noprio" in EXP: return
        uid[0] += 1
        lbl = f"K2_PR{uid[0]}"
        a(f"s_cmp_gt_i32 s{sLEFT}, {PR1}")
        a(f"s_cbranch_scc1 {lbl}_D")
        a("s_setprio 1")
        a(f"s_cmp_gt_i32 s{sLEFT}, {PR0}")
        a(f"s_cbranch_scc1 {lbl}_D")
        a("s_setprio 0")
        a.lab(f"{lbl}_D")
    def advance():
        a(f"v_add_u32 v{VEA}, v3, v{VEA}")
        a(f"v_add_u32 v{VIA}, {4*DP}, v{VIA}")
        a(f"s_sub_u32 s{sLEFT}, s{sLEFT}, {DP}")
        prio()
    a.raw(".p2align 3")
    a.lab("K2_LOOP")
    advance()
    for k in range(DP):
        u = U[k & 1]
        a.lab(f"K2_SUB{k}")
        ex(0, u)
        a(f"s_waitcnt vmcnt({DP-1}) lgkmcnt(0)")
        ex(1, u)
        mfma((k+1) % DP, ES[(k+1) & 1], U[(k+1) & 1], 0)
        ex(2, u)
        mfma((k+1) % DP, ES[(k+1) & 1], U[(k+1) & 1], 1)
        ex(3, u)
        pload((k+1) % DP, IP[(k+1) & 1])
        ex(4, u)
        rdE(k)
        ex(5, u)
        rdI(k)
        ex(6, u); ex(7, u)
        for c in range(0, 8, 2): pa(c)
        for c in range(6): rc(c)
        a(f"s_sub_u32 s{sREM}, s{sREM}, 1")
        rc(6)
        a(f"s_cbranch_scc1 K2_BNDT{k}")
        tail(u)
    a("s_branch K2_LOOP")
    for k in range(DP):
        kp = (k - 1) % DP
        a.lab(f"K2_BNDT{kp}")
        tail(U[kp & 1])
        if k == 0: advance()
        a.lab(f"K2_BND{k}")
        a(f"s_mov_b64 s[{sX}:{sX+1}], 0")
        a("s_mov_b64 s[6:7], 0")
        for x in range(2):
            a(f"s_cmp_lg_u32 s{sSEGL[x]}, s{sTEV}")
            a(f"s_cbranch_scc1 K2_B{k}_N{x}")
            a(f"s_mov_b32 s{sX+x}, -1")
            seg_next(x, f"K2_B{k}_S{x}")
            a(f"s_cmp_lt_i32 s{sROW[x]}, 0")
            a(f"s_cbranch_scc1 K2_B{k}_N{x}")
            a(f"s_mov_b32 s{6+x}, -1")
            exec_half(x)
            a(f"v_add_u32 v{T0}, s{sROW[x]}, v{VQA}")
            a.lab(f"K2_B{k}_N{x}")
        a("s_mov_b64 exec, s[6:7]")
        a("s_waitcnt lgkmcnt(0)")
        a(f"ds_read_b128 {vr(Q,4)}, v{T0}")
        a(f"ds_read_b128 {vr(Q+4,4)}, v{T0} offset:16")
        a("s_mov_b64 exec, -1")
        valu(U[k & 1])
        a(f"s_mov_b64 exec, s[{sX}:{sX+1}]")
        a(f"ds_write_b128 v{T1}, {vr(ACC,4)}")
        a(f"ds_write_b128 v{T1}, {vr(ACC+4,4)} offset:16")
        a("s_mov_b64 exec, s[6:7]")
        a(f"v_subrev_u32 v{T1}, {QS}, v{T0}")
        a(f"v_cndmask_b32 v{T3}, v5, v{T1}, s[{sSM}:{sSM+1}]")
        a(f"ds_read_b128 {vr(ACC,4)}, v{T3}")
        a(f"ds_read_b128 {vr(ACC+4,4)}, v{T3} offset:16")
        a("s_mov_b64 exec, -1")
        a(f"s_sub_u32 s{sREM}, -1, s{sTEV}")
        a(f"s_min_u32 s{sTEV}, s{sSEGL[0]}, s{sSEGL[1]}")
        a(f"s_cmp_eq_u32 s{sTEV}, {hex(INF)}")
        a("s_cbranch_scc1 K2_LOOP_DONE")
        a(f"s_add_u32 s{sREM}, s{sREM}, s{sTEV}")
        a(f"s_waitcnt vmcnt({DP-1}) lgkmcnt(2)")
        mfma((k+1) % DP, ES[(k+1) & 1], U[(k+1) & 1], 0)
        mfma((k+1) % DP, ES[(k+1) & 1], U[(k+1) & 1], 1)
        pload((k+1) % DP, IP[(k+1) & 1])
        rdE(k); rdI(k)
        a(f"s_sub_u32 s{sREM}, s{sREM}, 1")
        a("s_nop 3")
        if k < DP-1:
            a(f"s_cbranch_scc1 K2_BND{k+1}")
            a(f"s_branch K2_SUB{k+1}")
        else:
            a(f"s_cbranch_scc0 K2_LOOP")
            advance()
            a(f"s_branch K2_BND0")
    a.lab("K2_LOOP_DONE")
    a("s_setprio 0")
    stamp(5)
    if DEBUG:
        a("s_lshl_b32 s93, s2, 4")
        a("s_add_u32 s93, s93, s3")
        a("s_lshl_b32 s93, s93, 5")
        a("s_add_u32 s93, s93, 0xA80000")
        a("v_mov_b32 v1, s93")
        for i in range(8): a(f"v_mov_b32 v{8+i}, s{84+i}")
        a("global_store_dwordx4 v1, v[8:11], s[34:35]")
        a("global_store_dwordx4 v1, v[12:15], s[34:35] offset:16")
    a("s_waitcnt vmcnt(0)")
    a(f"s_cmp_lg_u32 s{sSLOW}, 0")
    a("s_cbranch_scc1 K2_COMB")
    a.lab("K2_EPI")
    a.c("out = -ln2 * S @ w2 + deg*b2")
    AF = 56
    SF = 8
    OA = 32
    B2 = 120
    DG = 124
    a(f"s_cmp_ge_u32 s{sW}, 4")
    a("s_cbranch_scc1 K2_COMB")
    a(f"s_lshl_b32 s6, s{sW}, 14")
    a(f"s_add_u32 s6, s6, {hex(WS_W2)}")
    a("v_and_b32 v7, 63, v0")
    a("v_lshlrev_b32 v7, 4, v7")
    for q in range(4):
        if q: a("s_add_u32 s6, s6, 4096")
        for s in range(4):
            a(f"buffer_load_dwordx4 {vr(AF+16*q+4*s,4)}, v7, s[40:43], s6 offen offset:{1024*s}")
    a("v_bfe_u32 v7, v0, 4, 2")
    a(f"s_lshl_b32 s7, s{sW}, 6")
    a("v_lshlrev_b32 v5, 3, v7")
    a("v_add_u32 v5, s7, v5")
    a(f"global_load_dwordx2 {vr(B2,2)}, v5, s[{PB2}:{PB2+1}]")
    a(f"global_load_dwordx2 {vr(B2+2,2)}, v5, s[{PB2}:{PB2+1}] offset:32")
    a.lab("K2_COMB")
    a("v_and_b32 v1, 63, v0")
    a("v_lshlrev_b32 v2, 2, v1")
    a(f"v_add_u32 v2, {L_HN}, v2")
    a(f"s_mul_i32 s4, s{sW}, {ROWP}")
    a(f"s_add_u32 s4, s4, {L_S}")
    a("v_lshlrev_b32 v3, 4, v1")
    a("v_add_u32 v4, s4, v3")
    a(f"v_add_u32 v3, {L_CR}, v3")
    a(f"s_mul_i32 s4, s{sW}, {SBROW}")
    a(f"s_add_u32 s4, s4, {L_SB}")
    a("v_lshlrev_b32 v6, 3, v1")
    a("v_add_u32 v6, s4, v6")
    stamp("e")
    a("s_waitcnt lgkmcnt(0)")
    a("s_barrier")
    stamp("f")
    a("ds_read_b32 v2, v2")
    for r in range(3):
        a(f"ds_read_b128 {vr(8+4*r,4)}, v4 offset:{16*r*ROWP}")
    a(f"s_add_u32 s4, s{sW}, 1")
    a("s_waitcnt lgkmcnt(0)")
    for r in range(3):
        a(f"v_cmp_eq_u32 s[6:7], s4, v2")
        a(f"s_sub_u32 s8, s4, 1")
        a(f"s_or_b64 s[10:11], s[{sNE}:{sNE+1}], s[{sSM}:{sSM+1}]")
        a(f"s_bitcmp1_b64 s[10:11], s8")
        a(f"s_cbranch_scc1 K2_CZ{r}")
        for c in range(4): a(f"v_mov_b32 v{8+4*r+c}, 0")
        a.lab(f"K2_CZ{r}")
        a(f"s_add_u32 s4, s4, 16")
        a.lab(f"K2_CB{r}")
        a("s_cmp_eq_u64 s[6:7], 0")
        a(f"s_cbranch_scc1 K2_CB{r}D")
        a("s_ff1_i32_b64 s8, s[6:7]")
        a("s_bitset0_b64 s[6:7], s8")
        a(f"s_mul_i32 s8, s8, {ROWP}")
        a("v_add_u32 v7, s8, v3")
        a(f"ds_read_b128 v[20:23], v7")
        a("s_waitcnt lgkmcnt(0)")
        for c in range(4): a(f"v_add_f32 v{8+4*r+c}, v{8+4*r+c}, v{20+c}")
        a(f"s_branch K2_CB{r}")
        a.lab(f"K2_CB{r}D")
    a(f"s_cmp_lg_u32 s{sSLOW}, 0")
    a("s_cbranch_scc1 K2_SLOW_WB")
    for r in range(3):
        a(f"v_cvt_pk_bf16_f32 v{24+2*r}, v{8+4*r}, v{9+4*r}")
        a(f"v_cvt_pk_bf16_f32 v{25+2*r}, v{10+4*r}, v{11+4*r}")
    a(f"ds_write_b64 v6, v[24:25]")
    a(f"ds_write_b64 v6, v[26:27] offset:{16*SBROW}")
    a(f"ds_write_b64 v6, v[28:29] offset:{32*SBROW}")
    a("v_and_b32 v2, 15, v0")
    a("v_bfe_u32 v7, v0, 4, 2")
    a(f"v_mul_u32_u24 v4, {SBROW}, v2")
    a("v_lshl_add_u32 v4, v7, 4, v4")
    a(f"v_add_u32 v4, {L_SB}, v4")
    a(f"v_lshlrev_b32 v1, 2, v2")
    a(f"v_add_u32 v1, {L_DEG}, v1")
    a("v_lshl_add_u32 v5, v2, 16, v5")
    a("s_lshl_b32 s9, s2, 8")
    a("v_add_u32 v5, s9, v5")
    stamp("g")
    a("s_waitcnt lgkmcnt(0)")
    a("s_barrier")
    a(f"s_cmp_ge_u32 s{sW}, 4")
    a("s_cbranch_scc1 K2_EXIT")
    stamp(6)
    seq = [(s, nt) for s in range(8) for nt in range(3)]
    def sread(i):
        s, nt = seq[i]
        a(f"ds_read_b128 {vr(SF+4*(i%6),4)}, v4 offset:{64*s+16*nt*SBROW}")
    for nt in range(3): a(f"ds_read_b32 v{DG+nt}, v1 offset:{64*nt}")
    for i in range(6): sread(i)
    a("s_waitcnt vmcnt(0)")
    for i, (s, nt) in enumerate(seq):
        a(f"s_waitcnt lgkmcnt({min(5, len(seq)-1-i)})")
        for t in range(2):
            o = OA + 8*nt + 4*t
            c = "0" if s == 0 else vr(o, 4)
            a(f"v_mfma_f32_16x16x32_bf16 {vr(o,4)}, {vr(AF+32*t+4*s,4)}, {vr(SF+4*(i%6),4)}, {c}")
        if i + 6 < len(seq): sread(i+6)
    a(f"v_mov_b32 v{DG+3}, {hex(S_LN2)}")
    BU = 8
    for t in range(2):
        a(f"v_lshlrev_b32 v{BU+4*t}, 16, v{B2+2*t}")
        a(f"v_and_b32 v{BU+4*t+1}, 0xffff0000, v{B2+2*t}")
        a(f"v_lshlrev_b32 v{BU+4*t+2}, 16, v{B2+2*t+1}")
        a(f"v_and_b32 v{BU+4*t+3}, 0xffff0000, v{B2+2*t+1}")
    a("s_mov_b32 s4, 0x100000")
    a("s_mov_b32 s5, 0x200000")
    for nt in range(3):
        a(f"v_cvt_f32_u32 v{DG+nt}, v{DG+nt}")
        a(f"v_mul_f32 v{DG+nt}, 0.25, v{DG+nt}")
        for k in range(8):
            a(f"v_mul_f32 v{OA+8*nt+k}, v{DG+3}, v{OA+8*nt+k}")
        for k in range(8):
            a(f"v_fmac_f32 v{OA+8*nt+k}, v{DG+nt}, v{BU+k}")
        if nt: a(f"v_add_u32 v5, 0x100000, v5")
        for t in range(2):
            o = OA + 8*nt + 4*t
            a(f"v_cvt_pk_bf16_f32 v{16+4*nt+2*t}, v{o}, v{o+1}")
            a(f"v_cvt_pk_bf16_f32 v{17+4*nt+2*t}, v{o+2}, v{o+3}")
            a(f"buffer_store_dwordx2 {vr(16+4*nt+2*t,2)}, v5, s[48:51], 0 offen offset:{32*t}")
    if DEBUG:
        stamp(7)
        a("s_cmp_lg_u32 s3, 0")
        a("s_cbranch_scc1 K2_EXIT")
        a("s_memrealtime s[98:99]")
        a("s_lshl_b32 s93, s2, 6")
        a("s_add_u32 s93, s93, 0xA00000")
        a("v_mov_b32 v1, s93")
        a("s_waitcnt lgkmcnt(0)")
        for i in range(8):
            a(f"s_sub_u32 s93, s{84+i}, s84")
            a("v_mov_b32 v2, s93")
            a(f"global_store_dword v1, v2, s[34:35] offset:{4*i}")
        for off, sr_ in ((32, 96), (36, 98), (40, 92)):
            a(f"v_mov_b32 v2, s{sr_}")
            a(f"global_store_dword v1, v2, s[34:35] offset:{off}")
    a.lab("K2_EXIT")
    a("s_endpgm")
    a.lab("K2_SLOW_WB")
    a(f"ds_write_b128 v4, v[8:11]")
    a(f"ds_write_b128 v4, v[12:15] offset:{16*ROWP}")
    a(f"s_cmp_ge_u32 s{sW}, 8")
    a("s_cbranch_scc1 K2_SLOW_SYNC")
    a(f"ds_write_b128 v4, v[16:19] offset:{32*ROWP}")
    a("s_branch K2_SLOW_SYNC")
    a.lab("K2_SLOW_S")
    a.lab("K2_SLOW_SET")
    a(f"s_mov_b32 s{sSLOW}, 1")
    a.lab("K2_SLOW_SYNC")
    a("s_waitcnt lgkmcnt(0)")
    a("s_barrier")
    a.lab("K2_SLOW_NEXT")
    a("v_lshlrev_b32 v4, 4, v0")
    for k in range(4): a(f"v_mov_b32 v{ZT+k}, 0")
    zero_batch(L_BZEND)
    a(f"s_cmp_lg_u32 s{sBATCH}, 0")
    a("s_cbranch_scc1 K2_SLOW_NZ")
    a(f"s_mov_b64 s[{sSM}:{sSM+1}], -1")
    a(f"ds_write_b128 v4, {vr(ZT,4)} offset:{L_S}")
    a(f"ds_write_b128 v4, {vr(ZT,4)} offset:{L_S+16384}")
    a(f"ds_write_b128 v4, {vr(ZT,4)} offset:{L_S+40*ROWP-16384}")
    a.lab("K2_SLOW_NZ")
    a(f"s_cmp_lt_u32 s{sBATCH}, {E}")
    a("s_cbranch_scc1 K2_SLOW_GO")
    a(f"s_mov_b32 s{sSLOW}, 0")
    a("s_branch K2_EPI")
    a.lab("K2_SLOW_GO")
    a(f"v_add_u32 v5, s{sBATCH}, v0")
    a(f"v_mov_b32 v6, {E}")
    a("v_cmp_lt_u32 vcc, v5, v6")
    a(f"v_min_u32 v5, {E-1}, v5")
    a("v_lshlrev_b32 v6, 2, v5")
    a("v_lshlrev_b32 v7, 1, v5")
    SD, SE = 40, 41
    a(f"global_load_dword v{SD}, v6, s[{PDST}:{PDST+1}]")
    a(f"global_load_dword v{R0}, v6, s[{PSRC}:{PSRC+1}]")
    a(f"global_load_ushort v{SE}, v7, s[{PE}:{PE+1}]")
    a("v_mov_b32 v6, 0xfffc0000")
    a("v_and_b32 v5, 63, v0")
    a("v_lshlrev_b32 v5, 2, v5")
    a("s_waitcnt vmcnt(0) lgkmcnt(0)")
    a("s_barrier")
    a(f"v_and_b32 v7, 0xff, v{SD}")
    a(f"v_cmp_eq_u32 s[{sV[0]}:{sV[0]+1}], s2, v7")
    a(f"v_lshlrev_b32 v7, 10, v{SD}")
    a(f"v_and_or_b32 v{R0+1}, v7, v6, v{SE}")
    a(f"s_and_b64 s[{sV[0]}:{sV[0]+1}], s[{sV[0]}:{sV[0]+1}], vcc")
    for i in range(1, 4): a(f"s_mov_b64 s[{sV[i]}:{sV[i]+1}], 0")
    a("v_mov_b32 v7, 4")
    rank_atomics(1)
    a("s_mov_b64 exec, -1")
    a(f"s_add_u32 s{sBATCH}, s{sBATCH}, {BATCH}")
    a("s_waitcnt lgkmcnt(0)")
    a("s_barrier")
    a("s_branch K2_SCAN")
    return 128

HEADER = open('standalone__edge_featured_mpnn_mpnn__graph.s.ref').read().split("; Override launch")[0]

def kd(name, nv, ns):
    acc = (nv + 3) // 4 * 4
    return f""".p2align 6
.amdhsa_kernel {name}
  .amdhsa_next_free_vgpr {nv}
  .amdhsa_next_free_sgpr {ns}
  .amdhsa_accum_offset {acc}
  .amdhsa_group_segment_fixed_size 0
  .amdhsa_kernarg_size 88
  .amdhsa_user_sgpr_count 2
  .amdhsa_user_sgpr_kernarg_segment_ptr 1
  .amdhsa_system_sgpr_workgroup_id_x 1
.end_amdhsa_kernel
"""

def build(TPW=4, DP=6):
    a = Asm()
    g1 = gen_k1(a, TPW)
    nv2 = gen_k2(a, DP)
    out = HEADER
    out += f"; @launch kernel=k1_kernel grid=({g1},1,1) block=(256,1,1) lds=1024\n"
    out += f"; @launch kernel=k2_kernel grid=(256,1,1) block=(1024,1,1) lds={L_END}\n"
    out += '.amdgcn_target "amdgcn-amd-amdhsa--gfx950"\n.text\n'
    out += a.text()
    out += '.section .rodata,"a"\n'
    out += kd("k1_kernel", 256, 64)
    out += kd("k2_kernel", 128, 102)
    return out

if __name__ == "__main__":
    import argparse
    ap = argparse.ArgumentParser()
    ap.add_argument("-o", default="standalone__edge_featured_mpnn_mpnn__graph.s")
    ap.add_argument("--tpw", type=int, default=4)
    ap.add_argument("--dp", type=int, default=4)
    ap.add_argument("--debug", action="store_true")
    ap.add_argument("--srcmask", type=int, default=0)
    ap.add_argument("--exp", default="")
    ap.add_argument("--pr1", type=int, default=8)
    ap.add_argument("--pr0", type=int, default=4)
    ap.add_argument("--wqs", type=int, default=4)
    ap.add_argument("--wqs2", type=int, default=5)
    ap.add_argument("--pf", type=int, default=0)
    args = ap.parse_args()
    DEBUG = args.debug
    SRCMASK = args.srcmask
    PF = args.pf
    WQSPLIT = args.wqs
    PR1, PR0 = args.pr1, args.pr0
    WQSPLIT2 = args.wqs2
    EXP = set(args.exp.split(",")) if args.exp else set()
    open(args.o, "w").write(build(args.tpw, args.dp))
```

```python
import sys, struct

N, E, D_, H = 10000, 160000, 128, 256
NCH = 64
CH_E = E // NCH
CAP = 31
WS_P = 0
WS_CELLS = 0x500000
WS_WQ = 0x900000
WS_W2 = 0x910000
WS_WE = 0x920000
WS_B1 = 0x920400
WS_END = 0x921000

def f32bits(x): return struct.unpack('<I', struct.pack('<f', x))[0]
S_LOG2E = f32bits(-1.4426950408889634)
S_LN2 = f32bits(-0.6931471805599453)

class Asm:
    def __init__(self): self.l = []
    def __call__(self, s): self.l.append("    " + s)
    def lab(self, s): self.l.append(s + ":")
    def c(self, s): self.l.append("    ; " + s)
    def raw(self, s): self.l.append(s)
    def text(self): return "\n".join(self.l) + "\n"

def vr(a, n): return f"v[{a}:{a+n-1}]"
def sr(a, n): return f"s[{a}:{a+n-1}]"

def srd(a, d, base, nrec, stride=0, add=0):
    if add:
        a(f"s_add_u32 s{d}, s{base}, {hex(add)}")
        a(f"s_addc_u32 s{d+1}, s{base+1}, 0")
    else:
        a(f"s_mov_b32 s{d}, s{base}")
        a(f"s_mov_b32 s{d+1}, s{base+1}")
    if stride:
        a(f"s_or_b32 s{d+1}, s{d+1}, {hex(stride << 16)}")
    a(f"s_mov_b32 s{d+2}, {hex(nrec)}")
    a(f"s_mov_b32 s{d+3}, 0x20000")

PX, PE, PSRC, PDST, PW1, PB1, PW2, PB2 = 16, 18, 20, 22, 24, 26, 28, 30

DEBUG = False
SRCMASK = 0
EXP = set()
PF = 0
WQSPLIT = 2
PR1 = 10
PR0 = 4
WQSPLIT2 = 5
def gen_k1(a, TPW):
    NG = (625 + TPW - 1) // TPW
    GRID = NCH + 4 + NG
    a.raw(".globl k1_kernel"); a.raw(".p2align 8"); a.raw(".type k1_kernel,@function")
    a.lab("k1_kernel")
    a(f"s_cmp_ge_u32 s2, {GRID}")
    a("s_cbranch_scc1 K1_EXIT")
    a("s_load_dwordx16 s[16:31], s[0:1], 0")
    a("s_load_dwordx2 s[32:33], s[0:1], 80")
    if DEBUG: a("s_memrealtime s[56:57]")
    def k1end():
        if DEBUG:
            a("s_waitcnt vmcnt(0)")
            a("s_memrealtime s[58:59]")
            a("s_lshl_b32 s60, s2, 4")
            a("s_add_u32 s60, s60, 0xB00000")
            a("v_mov_b32 v1, s60")
            a("s_waitcnt lgkmcnt(0)")
            a("v_mov_b32 v2, s56")
            a("v_mov_b32 v3, s58")
            a("v_cmp_eq_u32 vcc, 0, v0")
            a("s_and_saveexec_b64 s[60:61], vcc")
            a("s_cbranch_execz K1_EXIT")
            a("global_store_dwordx2 v1, v[2:3], s[32:33]")
        a("s_endpgm")
    a(f"s_cmp_lt_u32 s2, {NCH}")
    a("s_cbranch_scc1 K1_SORT")
    a(f"s_cmp_lt_u32 s2, {NCH+4}")
    a("s_cbranch_scc1 K1_TRANS")
    a.c("GEMM role: P' = -log2e * x @ W1a")
    a("v_lshrrev_b32 v1, 6, v0")
    a("v_and_b32 v2, 15, v0")
    a("v_bfe_u32 v3, v0, 4, 2")
    a("v_lshlrev_b32 v4, 7, v1")
    a("v_lshl_add_u32 v4, v2, 3, v4")
    a("v_lshl_add_u32 v5, v3, 12, v4")
    a("v_lshl_add_u32 v6, v3, 11, v4")
    a("v_lshlrev_b32 v7, 8, v2")
    a("v_lshl_add_u32 v7, v3, 4, v7")
    a(f"s_sub_u32 s3, s2, {NCH+4}")
    a(f"s_mul_i32 s3, s3, {TPW}")
    a("s_lshl_b32 s4, s3, 12")
    a("s_lshl_b32 s5, s3, 13")
    a("s_mov_b32 s6, 0x4000"); a("s_mov_b32 s7, 0x8000"); a("s_mov_b32 s8, 0xc000")
    a("s_mov_b32 s9, 0x05040100"); a("s_mov_b32 s10, 0x07060302")
    a(f"v_mov_b32 v8, {hex(S_LOG2E)}")
    a("s_waitcnt lgkmcnt(0)")
    srd(a, 36, PX, N*256)
    srd(a, 40, PW1, 257*512)
    srd(a, 44, 32, N*512, add=WS_P)
    RAW = 64; FR = 128; ACC = 192
    XFB = [16, 32, 48, 224, 240]
    NPRE = min(TPW, 5 if "xall" in EXP else 3)
    def xload(t):
        if t:
            a(f"s_add_u32 s11, s4, {t*4096}")
        else:
            a("s_mov_b32 s11, s4")
        for s in range(4):
            a(f"buffer_load_dwordx4 {vr(XFB[t%NPRE]+4*s,4)}, v7, s[36:39], s11 offen offset:{64*s}")
    so = ["0", "s6", "s7", "s8"]
    if "xfirst" in EXP:
        for t in range(NPRE): xload(t)
    for s in range(4):
        for m in range(8):
            a(f"buffer_load_dwordx2 {vr(RAW+16*s+2*m,2)}, v5, s[40:43], {so[s]} offen offset:{512*m}")
    npre = NPRE
    if "xfirst" not in EXP:
        for t in range(npre): xload(t)
    for s in range(4):
        a(f"s_waitcnt vmcnt({(0 if 'xfirst' in EXP else 4*npre) + 8*(3-s)})")
        for t in range(4):
            for p in range(4):
                a(f"v_perm_b32 v{FR+16*s+4*t+p}, v{RAW+16*s+2*(2*p+1)+(t>>1)}, v{RAW+16*s+2*(2*p)+(t>>1)}, s{9+(t&1)}")
    if "nopline" in EXP:
        for _ in range(512): a("s_nop 0")
    if "noploop" in EXP:
        a("s_mov_b32 s13, 32")
        a.lab("K1_NL")
        for _ in range(13): a("s_nop 0")
        a("s_sub_u32 s13, s13, 1")
        a("s_cmp_lg_u32 s13, 0")
        a("s_cbranch_scc1 K1_NL")
    outstanding = []
    for t in range(npre): outstanding += [("x", t)]*4
    def wait_for(tag):
        idx = max(i for i, x in enumerate(outstanding) if x == tag)
        n = len(outstanding) - 1 - idx
        a(f"s_waitcnt vmcnt({n})")
        del outstanding[:idx+1]
    for t in range(TPW):
        wait_for(("x", t))
        acc = ACC + 16*(t & 1)
        for s in range(4):
            for tt in range(4):
                c = "0" if s == 0 else vr(acc+4*tt, 4)
                a(f"v_mfma_f32_16x16x32_bf16 {vr(acc+4*tt,4)}, {vr(XFB[t%NPRE]+4*s,4)}, {vr(FR+16*s+4*tt,4)}, {c}")
        if t + NPRE < TPW:
            xload(t+NPRE); outstanding.extend([("x", t+NPRE)]*4)
        a(f"s_add_u32 s12, s5, {t*8192}")
        a("s_nop 7")
        for tt in range(4):
            for r in range(4):
                a(f"v_mul_f32 v{acc+4*tt+r}, v8, v{acc+4*tt+r}")
        ob = RAW + 8*(t & 3)
        for r in range(4):
            a(f"v_cvt_pk_bf16_f32 v{ob+2*r}, v{acc+0+r}, v{acc+4+r}")
            a(f"v_cvt_pk_bf16_f32 v{ob+2*r+1}, v{acc+8+r}, v{acc+12+r}")
        for r in range(4):
            fl = " sc1" if "psc1" in EXP else " nt" if "pnt" in EXP else ""
            a(f"buffer_store_dwordx2 {vr(ob+2*r,2)}, v6, s[44:47], s12 offen offset:{512*r}{fl}")
            outstanding.append(("st", t))
    k1end()
    a.lab("K1_TRANS")
    a.c("fragment transposer for W1b (WQ) and w2 (W2F)")
    a(f"s_sub_u32 s3, s2, {NCH}")
    a("s_and_b32 s4, s3, 1")
    a("s_lshl_b32 s4, s4, 8")
    a("v_add_u32 v1, s4, v0")
    a("s_mov_b32 s9, 0x05040100"); a("s_mov_b32 s10, 0x07060302")
    a("s_waitcnt lgkmcnt(0)")
    a("s_cmp_ge_u32 s3, 2")
    a("s_cbranch_scc1 K1_TR_W2")
    a("v_and_b32 v2, 31, v1")
    a("v_lshrrev_b32 v3, 5, v1")
    a("v_lshlrev_b32 v4, 4, v2")
    a("v_lshl_add_u32 v4, v3, 12, v4")
    a("v_add_u32 v4, 0x10000, v4")
    a("v_lshrrev_b32 v5, 1, v2")
    a("v_lshlrev_b32 v5, 12, v5")
    a("v_lshl_add_u32 v5, v3, 8, v5")
    a("v_and_b32 v6, 1, v2")
    a("v_lshl_add_u32 v5, v6, 7, v5")
    srd(a, 36, PW1, 257*512)
    srd(a, 40, 32, 0x10000, add=WS_WQ)
    a("s_mov_b32 s5, 512")
    a("s_branch K1_TR_GO")
    a.lab("K1_TR_W2")
    a("v_and_b32 v2, 15, v1")
    a("v_bfe_u32 v3, v1, 4, 3")
    a("v_lshrrev_b32 v7, 7, v1")
    a("v_lshlrev_b32 v4, 4, v2")
    a("v_lshl_add_u32 v4, v3, 13, v4")
    a("v_lshl_add_u32 v4, v7, 11, v4")
    a("v_lshrrev_b32 v5, 1, v2")
    a("v_lshlrev_b32 v5, 13, v5")
    a("v_lshl_add_u32 v5, v3, 10, v5")
    a("v_lshl_add_u32 v5, v7, 8, v5")
    a("v_and_b32 v6, 1, v2")
    a("v_lshl_add_u32 v5, v6, 7, v5")
    srd(a, 36, PW2, 256*256)
    srd(a, 40, 32, 0x10000, add=WS_W2)
    a("s_mov_b32 s5, 256")
    a.lab("K1_TR_GO")
    a("s_mov_b32 s6, 0")
    for m in range(8):
        a(f"buffer_load_dwordx4 {vr(16+4*m,4)}, v4, s[36:39], s6 offen")
        if m < 7: a("s_add_u32 s6, s6, s5")
    a("s_waitcnt vmcnt(0)")
    for cc in range(8):
        for p in range(4):
            a(f"v_perm_b32 v{48+4*cc+p}, v{16+4*(2*p+1)+(cc>>1)}, v{16+4*(2*p)+(cc>>1)}, s{9+(cc&1)}")
        a(f"buffer_store_dwordx4 {vr(48+4*cc,4)}, v5, s[40:43], 0 offen offset:{16*cc}")
    a("s_cmp_lg_u32 s3, 0")
    a("s_cbranch_scc1 K1_TR_END")
    a("v_lshlrev_b32 v4, 1, v0")
    a(f"s_add_u32 s6, s{PW1}, 0x20000")
    a(f"s_addc_u32 s7, s{PW1+1}, 0")
    a("global_load_ushort v8, v4, s[6:7]")
    a(f"global_load_ushort v9, v4, s[{PB1}:{PB1+1}]")
    a(f"s_add_u32 s6, s32, {hex(WS_WE)}")
    a("s_addc_u32 s7, s33, 0")
    a(f"v_mov_b32 v10, {hex(S_LOG2E)}")
    a("v_lshlrev_b32 v5, 2, v0")
    a("s_waitcnt vmcnt(0)")
    a("v_lshlrev_b32 v8, 16, v8")
    a("v_lshlrev_b32 v9, 16, v9")
    a("v_mul_f32 v8, v10, v8")
    a("v_mul_f32 v9, v10, v9")
    a("v_cvt_pk_bf16_f32 v8, v8, v8")
    a("global_store_short v4, v8, s[6:7]")
    a(f"global_store_dword v5, v9, s[6:7] offset:{WS_B1-WS_WE}")
    a.lab("K1_TR_END")
    k1end()
    a.lab("K1_SORT")
    a.c("bucket the edges of chunk s2 by dst&255")
    a("v_lshlrev_b32 v1, 2, v0")
    a("v_mov_b32 v2, 0")
    a("ds_write_b32 v1, v2")
    a("v_lshlrev_b32 v3, 4, v0")
    a("v_lshlrev_b32 v4, 3, v0")
    a("v_mov_b32 v5, 1")
    a("v_mov_b32 v6, 0x80000000")
    a("v_mov_b32 v7, 0xfffc0000")
    a(f"s_mul_i32 s3, s2, {CH_E*4}")
    a(f"s_mul_i32 s4, s2, {CH_E*2}")
    a("s_lshl_b32 s5, s2, 8")
    a("s_add_u32 s6, s3, 4096"); a("s_add_u32 s7, s3, 8192")
    a("s_waitcnt lgkmcnt(0)")
    srd(a, 36, PDST, E*4)
    srd(a, 40, PSRC, E*4)
    srd(a, 44, PE, E*2)
    srd(a, 48, 32, 256*NCH*256, add=WS_CELLS)
    DST, SRC, EA = 16, 28, 40
    RK, OFF, REC = 48, 60, 72
    so = ["s3", "s6", "s7"]
    nlast = CH_E//4 - 512
    for r in range(2):
        a(f"buffer_load_dwordx4 {vr(DST+4*r,4)}, v3, s[36:39], {so[r]} offen")
    for r in range(2):
        a(f"buffer_load_dwordx4 {vr(SRC+4*r,4)}, v3, s[40:43], {so[r]} offen")
        a(f"buffer_load_dwordx2 {vr(EA+2*r,2)}, v4, s[44:47], s4 offen offset:{2048*r}")
    a(f"buffer_load_dwordx4 {vr(DST+8,4)}, v3, s[36:39], s7 offen")
    a(f"buffer_load_dwordx4 {vr(SRC+8,4)}, v3, s[40:43], s7 offen")
    a("s_add_u32 s8, s4, 4096")
    a(f"buffer_load_dwordx2 {vr(EA+4,2)}, v4, s[44:47], s8 offen")
    a(f"v_cmp_gt_u32 vcc, {nlast}, v0")
    a("s_nop 1")
    a("s_mov_b64 s[10:11], vcc")
    a("s_barrier")
    def atomics(r):
        for i in range(4):
            k = 4*r+i
            a(f"v_and_b32 v{OFF+k}, 0xff, v{DST+k}")
            a(f"v_lshlrev_b32 v8, 2, v{OFF+k}")
            a(f"ds_add_rtn_u32 v{RK+k}, v8, v5")
    def emit(r):
        for i in range(4):
            k = 4*r+i
            a(f"v_lshlrev_b32 v{OFF+k}, 14, v{OFF+k}")
            a(f"v_lshl_add_u32 v{OFF+k}, v{RK+k}, 3, v{OFF+k}")
            a(f"v_sub_u32 v8, {CAP-1}, v{RK+k}")
            a(f"v_and_or_b32 v{OFF+k}, v8, v6, v{OFF+k}")
            if SRCMASK: a(f"v_and_b32 v{REC+2*k}, {SRCMASK}, v{SRC+k}")
            else: a(f"v_mov_b32 v{REC+2*k}, v{SRC+k}")
            a(f"v_lshlrev_b32 v9, 10, v{DST+k}")
            e = EA + 2*r + (i >> 1)
            if i & 1: a(f"v_lshrrev_b32 v10, 16, v{e}")
            else: a(f"v_and_b32 v10, 0xffff, v{e}")
            a(f"v_and_or_b32 v{REC+2*k+1}, v9, v7, v10")
            fl = " sc1" if "csc1" in EXP else " nt" if "cnt" in EXP else ""
            if "ccomp" in EXP:
                a("s_lshl_b32 s14, s2, 15")
                a(f"s_add_u32 s14, s14, {k*2048}")
                a(f"buffer_store_dwordx2 {vr(REC+2*k,2)}, v4, s[48:51], s14 offen")
            elif "nocell" not in EXP: a(f"buffer_store_dwordx2 {vr(REC+2*k,2)}, v{OFF+k}, s[48:51], s5 offen offset:8{fl}")
    a("s_waitcnt vmcnt(7)")
    atomics(0); atomics(1)
    a("s_waitcnt vmcnt(0) lgkmcnt(0)")
    emit(0); emit(1)
    a("s_and_saveexec_b64 s[12:13], s[10:11]")
    a("s_cbranch_execz K1_S_SKIP")
    atomics(2)
    a("s_waitcnt lgkmcnt(0)")
    emit(2)
    a.lab("K1_S_SKIP")
    a("s_mov_b64 exec, s[12:13]")
    a("s_waitcnt lgkmcnt(0)")
    a("s_barrier")
    a("ds_read_b32 v2, v1")
    a("v_lshlrev_b32 v3, 14, v0")
    a("s_waitcnt lgkmcnt(0)")
    if "nohdr" not in EXP: a("buffer_store_dword v2, v3, s[48:51], s5 offen")
    k1end()
    a.lab("K1_EXIT")
    a("s_endpgm")
    return GRID

ROWP = 1040
SBROW = 528
BATCH = 1024
NSLOT = BATCH + 16
L_EP = 0
L_IDX = L_EP + NSLOT*16
L_CNT = L_IDX + NSLOT*4
L_HN = L_CNT + 256
L_ZERO = L_HN + 128
L_BZEND = L_ZERO + 256
L_DEG = L_BZEND
L_FLAG = L_DEG + 256
L_ZEND = L_FLAG + 32
L_S = L_ZEND
L_Q = L_S + 40*ROWP
L_SB = L_Q
XROW = 272
L_CR = L_Q + 40*ROWP
L_XS = L_CR
L_END = L_CR + 32*ROWP
QS = L_Q - L_S

def gen_k2(a, DP):
    assert DP % 2 == 0
    INF = 0x7fffffff
    SMAP = {0:0, 1:1, 2:2, 3:3, 4:4, 5:5, 6:6, 7:7}
    if "fine" in EXP: SMAP = {0:0, 1:1, "a":2, "b":3, 2:4, 3:5, "c":6, "d":7}
    if "fine2" in EXP: SMAP = {0:0, 4:1, 5:2, "e":3, "f":4, "g":5, 6:6, 7:7}
    def stamp(i):
        if not DEBUG or i not in SMAP: return
        a("s_memtime s[94:95]")
        a("s_waitcnt lgkmcnt(0)")
        a(f"s_mov_b32 s{84+SMAP[i]}, s94")
    a.raw(".globl k2_kernel"); a.raw(".p2align 8"); a.raw(".type k2_kernel,@function")
    a.lab("k2_kernel")
    a("s_cmp_ge_u32 s2, 256")
    a("s_cbranch_scc1 K2_EXIT")
    a("s_load_dwordx16 s[16:31], s[0:1], 0")
    a("s_load_dwordx2 s[32:33], s[0:1], 64")
    a("s_load_dwordx2 s[34:35], s[0:1], 80")
    if DEBUG: a("s_memrealtime s[96:97]")
    stamp(0)
    assert DP == 4
    U = [8, 16]; EX, ACC, Q = 24, 32, 40
    IP = [56, 58]
    AB = 60
    ES = [62, 66]
    BS = 70
    M = 118
    VEA, VIA, VES, VEND, VQA, VSTA, VEO, VH, VXA, VQW = range(M, M+10)
    T0, T1, T3 = 1, 2, 4
    WF = 8
    R0 = 8
    HD = 16
    RK = 17
    LA = 21
    PS = 25
    XP = 40
    VC = 53
    PB = 54
    XF = 40
    QA = 102
    ZT = 102
    B1 = 106
    BI = 110
    WE = 48
    sW, sNE = 3, 56
    sV = [52, 54, 10, 12]
    sT, sT2, sREM, sTEV, sSLOW, sBATCH, sLEFT, sX = 58, 59, 60, 61, 62, 63, 66, 68
    sMASK = [70, 72]; sPOS = [74, 75]; sEND = [76, 77]; sSEGL = [78, 79]; sHEAD = [80, 81]; sCR = [82, 83]
    sROW = [4, 5]
    sSM = 100
    sWQ = 64
    uid0 = [0]
    def L(p):
        uid0[0] += 1
        return f"K2_{p}{uid0[0]}"
    def exec_half(x):
        a(f"s_mov_b32 exec_lo, {-1 if x == 0 else 0}")
        a(f"s_mov_b32 exec_hi, {0 if x == 0 else -1}")
    wpos = [0, 1, 6, 7]
    a("v_lshlrev_b32 v4, 4, v0")
    for k in range(4): a(f"v_mov_b32 v{ZT+k}, 0")
    a("v_lshrrev_b32 v1, 6, v0")
    a("v_and_b32 v5, 0x3f0, v4")
    a(f"ds_write_b128 v5, {vr(ZT,4)} offset:{L_ZEND-1024}")
    a("v_readfirstlane_b32 s3, v1")
    a(f"v_and_b32 v{IP[0]+1}, 0x1f0, v4")
    a("v_lshlrev_b32 v2, 5, v0")
    a("v_and_b32 v3, 0xffffff00, v2")
    a("s_lshl_b32 s4, s2, 14")
    a(f"s_add_u32 s4, s4, {hex(WS_CELLS)}")
    a("s_lshl_b32 s5, s2, 8")
    a("s_waitcnt lgkmcnt(0)")
    a("s_barrier")
    stamp(1)
    srd(a, 40, 34, WS_END)
    a(f"s_add_u32 s6, s34, {hex(WS_WE)}")
    a(f"s_addc_u32 s7, s35, 0")
    a(f"global_load_dwordx4 {vr(WE,4)}, v{IP[0]+1}, s[6:7]")
    a(f"s_cmp_ge_u32 s{sW}, 8")
    a("s_cbranch_scc1 K2_GEMMER")

    def lane_consts():
        srd(a, 44, 34, N, stride=512, add=WS_P)
        srd(a, 48, 32, N*256)
        a(f"s_mov_b32 s{sSLOW}, 0")
        a(f"s_mov_b32 s{sBATCH}, 0")
        a(f"s_mov_b64 s[{sSM}:{sSM+1}], 0")
        a(f"v_mov_b32 v{IP[1]+1}, v{IP[0]+1}")
        a(f"v_mov_b32 v{IP[0]}, 0")
        a(f"v_mov_b32 v{IP[1]}, 0")
        a(f"v_lshlrev_b32 v{VQA}, 1, v{IP[0]+1}")
        a(f"v_add_u32 v{VQA}, {L_Q}, v{VQA}")
        a("s_mov_b32 s10, 0x00f0000f")
        a("s_mov_b32 s11, 0xf0000f00")
        a("s_mov_b32 s12, 0x00300003")
        a("s_mov_b32 s13, 0x30000300")
        a("s_mov_b32 s14, 0x00c0000c")
        a("s_mov_b32 s15, 0xc0000c00")
        a(f"v_and_b32 v6, 16, v4")
        a(f"v_mov_b32 v{PB}, 0x3f80")
        a(f"v_lshlrev_b32 v{PB}, v6, v{PB}")
        for k in (0, 4, 8):
            a(f"v_cndmask_b32 v{AB+k}, 0, v{PB}, s[12:13]")
            a(f"v_cndmask_b32 v{AB+k+1}, 0, v{PB}, s[14:15]")
        a(f"v_lshrrev_b32 v6, 1, v6")
        a(f"v_mov_b32 v{VEO}, {L_ZERO}")
        a(f"v_or_b32 v{PB}, 4, v6")
        a(f"v_cndmask_b32 v{VEO}, v{VEO}, v{PB}, s[12:13]")
        a(f"v_cndmask_b32 v{VEO}, v{VEO}, v6, s[14:15]")
        a(f"v_cndmask_b32 v{VES}, 0, 4, s[10:11]")
        a(f"v_bfe_u32 v{VH}, v0, 5, 1")
        a(f"v_mov_b32 v7, 4")
        a(f"v_lshrrev_b32 v5, 2, v5")
    def wscale():
        r = []
        for d in range(DP):
            r.append(f"v_pk_mov_b32 {vr(BS+8*d,2)}, {vr(WE,2)}, {vr(WE,2)} op_sel:[0,1]")
            r.append(f"v_pk_mov_b32 {vr(BS+8*d+6,2)}, {vr(WE+2,2)}, {vr(WE+2,2)} op_sel:[0,1]")
        return r
    dpp = [f"row_shr:{sh} row_mask:0xf bank_mask:0xf bound_ctrl:0" for sh in (1, 2, 4, 8)] + \
          ["row_bcast:15 row_mask:0xa bank_mask:0xf", "row_bcast:31 row_mask:0xc bank_mask:0xf"]
    def scan(first):
        a(f"ds_read_b32 v{VC}, v5 offset:{L_CNT}")
        if first: a(f"ds_read_b32 v3, v7 offset:{L_FLAG-4}")
        a("s_waitcnt lgkmcnt(0)")
        a(f"v_mov_b32 v{VEND}, v{VC}")
        if first: a(f"v_readfirstlane_b32 s{sSLOW}, v3")
        else: a("s_nop 0")
        a(f"v_cmp_ne_u32 s[{sNE}:{sNE+1}], 0, v{VC}")
        for i, d in enumerate(dpp):
            if i: a("s_nop 1")
            a(f"v_add_u32_dpp v{VEND}, v{VEND}, v{VEND} {d}")
        a(f"v_sub_u32 v{VSTA}, v{VEND}, v{VC}")
        a(f"v_readlane_b32 s{sT}, v{VEND}, 63")
    def ranges():
        a(f"s_lshr_b32 s{sT}, s{sT}, 2")
        if DEBUG: a(f"s_mov_b32 s92, s{sT}")
        a(f"s_lshl_b32 s{sT2}, s{sW}, 1")
        a(f"s_mul_i32 s{sPOS[0]}, s{sT}, s{sT2}")
        a(f"s_add_u32 s{sPOS[1]}, s{sPOS[0]}, s{sT}")
        a(f"s_add_u32 s{sEND[1]}, s{sPOS[1]}, s{sT}")
        for r in (sPOS[0], sPOS[1], sEND[1]):
            a(f"s_lshr_b32 s{r}, s{r}, 5")
            a(f"s_lshl_b32 s{r}, s{r}, 2")
        a(f"s_mov_b32 s{sEND[0]}, s{sPOS[1]}")
        a(f"s_sub_u32 s{sT2}, s{sPOS[1]}, s{sPOS[0]}")
        a(f"v_mul_u32_u24 v{VIA}, s{sT2}, v{VH}")
        a(f"v_add_u32 v{VIA}, s{sPOS[0]}, v{VIA}")
        a(f"v_mad_u32_u24 v{VEA}, v{VIA}, v{VES}, v{VEO}")
        a(f"v_add_u32 v{VIA}, {L_IDX}, v{VIA}")
    def seg_next(x, lbl):
        a(f"s_lshl2_add_u32 s{sT2}, s{sSEGL[x]}, s{sPOS[x]}")
        a(f"s_mov_b32 s{sROW[x]}, -1")
        a(f"s_cmp_ge_u32 s{sT2}, s{sEND[x]}")
        a(f"s_cselect_b32 s{sSEGL[x]}, {hex(INF)}, s{sSEGL[x]}")
        a(f"s_cbranch_scc1 {lbl}")
        a(f"s_ff1_i32_b64 s{sT2}, s[{sMASK[x]}:{sMASK[x]+1}]")
        a(f"s_and_b32 s{sT2}, s{sT2}, 63")
        a(f"s_bitset0_b64 s[{sMASK[x]}:{sMASK[x]+1}], s{sT2}")
        a(f"v_readlane_b32 s{sT}, v{VEND}, s{sT2}")
        a(f"s_mul_i32 s{sROW[x]}, s{sT2}, {ROWP}")
        a(f"s_add_u32 s{sSEGL[x]}, s{sSEGL[x]}, 1")
        a(f"s_min_u32 s{sT}, s{sT}, s{sEND[x]}")
        a(f"s_sub_u32 s{sT}, s{sT}, s{sPOS[x]}")
        a(f"s_ashr_i32 s{sT}, s{sT}, 2")
        a(f"s_max_i32 s{sSEGL[x]}, s{sSEGL[x]}, s{sT}")
        a.lab(lbl)
    def stream_setup():
        a(f"v_cmp_lt_u32 s[{sMASK[0]}:{sMASK[0]+1}], s{sPOS[0]}, v{VEND}")
        a(f"v_cmp_lt_u32 s[{sMASK[1]}:{sMASK[1]+1}], s{sPOS[1]}, v{VEND}")
        for x in range(2):
            lj = L("INJ")
            a(f"s_and_b64 s[{sMASK[x]}:{sMASK[x]+1}], s[{sMASK[x]}:{sMASK[x]+1}], s[{sNE}:{sNE+1}]")
            a(f"s_mov_b32 s{sSEGL[x]}, 0")
            a(f"s_mov_b32 s{sHEAD[x]}, 0")
            seg_next(x, L("INI"))
            a(f"s_max_i32 s{sCR[x]}, s{sROW[x]}, 0")
            a(f"s_sub_u32 s{sCR[x]}, s{sCR[x]}, {QS}")
            a(f"s_cmp_lt_i32 s{sROW[x]}, 0")
            a(f"s_cbranch_scc1 {lj}")
            a(f"v_readlane_b32 s{sT}, v{VSTA}, s{sT2}")
            a(f"s_add_u32 s{sT2}, s{sT2}, 1")
            a(f"v_mov_b32 v{T3}, s{sT2}")
            a(f"s_lshl_b32 s{sT2}, s{sW}, 1")
            a(f"s_add_u32 s{sT2}, s{sT2}, {x}")
            a(f"s_cmp_ge_u32 s{sT}, s{sPOS[x]}")
            a(f"s_cbranch_scc1 {lj}")
            a(f"s_mov_b32 s{sHEAD[x]}, 1")
            a(f"s_mul_i32 s{sCR[x]}, s{sT2}, {ROWP}")
            a(f"s_add_u32 s{sCR[x]}, s{sCR[x]}, {L_CR-L_Q}")
            a(f"s_lshl_b32 s{sT2}, s{sT2}, 2")
            a(f"v_mov_b32 v6, s{sT2}")
            a(f"ds_write_b32 v6, v{T3} offset:{L_HN}")
            a.lab(lj)
            a(f"s_max_i32 s{sROW[x]}, s{sROW[x]}, 0")
        a(f"v_add_u32 v{T0}, s{sROW[0]}, v{VQA}")
        a(f"v_add_u32 v{T1}, s{sCR[0]}, v{VQA}")
        exec_half(1)
        a(f"v_add_u32 v{T0}, s{sROW[1]}, v{VQA}")
        a(f"v_add_u32 v{T1}, s{sCR[1]}, v{VQA}")
        a("s_mov_b64 exec, -1")
        a(f"v_lshlrev_b32 v3, {2 + (DP.bit_length()-1)}, v{VES}")
        a(f"s_min_u32 s{sTEV}, s{sSEGL[0]}, s{sSEGL[1]}")
        a(f"s_sub_u32 s{sREM}, s{sTEV}, 1")
        a(f"s_sub_u32 s{sLEFT}, s{sEND[1]}, s{sPOS[1]}")
        a(f"s_lshr_b32 s{sLEFT}, s{sLEFT}, 2")
        a(f"s_sub_u32 s6, s{sHEAD[0]}, 1")
        a(f"s_sub_u32 s7, s{sHEAD[1]}, 1")
        a(f"s_and_b64 s[6:7], s[6:7], s[{sSM}:{sSM+1}]")
        a(f"v_mov_b32 v5, {L_ZERO}")
        a(f"v_cndmask_b32 v{T3}, v5, v{T1}, s[6:7]")
    def first_loads():
        a(f"ds_read_b32 v{IP[0]}, v{VIA}")
        a(f"ds_read_b32 v{IP[1]}, v{VIA} offset:4")
        a(f"ds_read2_b32 {vr(ES[0],2)}, v{VEA} offset0:0 offset1:1")
        a(f"ds_read2_b32 {vr(ES[1],2)}, v{VEA} offset0:4 offset1:5")
        a("s_waitcnt lgkmcnt(2)")
        a(f"buffer_load_dwordx4 {vr(BS+2,4)}, {vr(IP[0],2)}, s[44:47], 0 idxen offen")
        a(f"buffer_load_dwordx4 {vr(BS+8+2,4)}, {vr(IP[1],2)}, s[44:47], 0 idxen offen")
        a(f"ds_read_b32 v{IP[0]}, v{VIA} offset:8")
        a(f"ds_read_b32 v{IP[1]}, v{VIA} offset:12")
    def pload(slot, pair):
        if "novm" in EXP: return
        a(f"buffer_load_dwordx4 {vr(BS+8*slot+2,4)}, {vr(pair,2)}, s[44:47], 0 idxen offen")
    def groups(n, body):
        for k in range(0, n, 2):
            l = None
            if k >= 2:
                l = L("SK")
                a(f"s_cmp_eq_u64 s[{sV[k]}:{sV[k]+1}], 0")
                a(f"s_cbranch_scc1 {l}")
            for i in range(k, min(k+2, n)): body(i)
            if l: a.lab(l)
    def rank_atomics(n):
        def body(i):
            a(f"v_lshrrev_b32 v{LA+i}, 16, v{R0+2*i+1}")
            a(f"s_mov_b64 exec, s[{sV[i]}:{sV[i]+1}]")
            a(f"ds_add_rtn_u32 v{RK+i}, v{LA+i}, v7 offset:{L_CNT}")
            a("s_mov_b64 exec, -1")
        groups(n, body)
    def zero_batch(upto):
        assert 16384 < upto <= 2*16384 and upto % 16 == 0
        a(f"ds_write_b128 v4, {vr(ZT,4)} offset:{upto-16384}")
        a(f"ds_write_b128 v4, {vr(ZT,4)}")
    def xread(nt, s):
        a(f"ds_read_b128 {vr(XF+4*s,4)}, v{VXA} offset:{16*nt*XROW+64*s}")
    def gemm_pre():
        for s in range(4): xread(0, s)
        a(f"v_mov_b32 v{VSTA}, {hex(S_LOG2E)}")
    def gemm_tile(nt):
        a("s_waitcnt lgkmcnt(0)")
        for s in range(4):
            for t in range(2):
                a(f"v_mfma_f32_16x16x32_bf16 {vr(QA+4*t,4)}, {vr(WF+16*t+4*s,4)}, {vr(XF+4*s,4)}, {'0' if s == 0 else vr(QA+4*t,4)}")
            if nt < 2: xread(nt+1, s)
        a("s_nop 6")
        if nt == 2:
            a("s_mov_b32 exec_lo, 0x00ff00ff")
            a("s_mov_b32 exec_hi, 0x00ff00ff")
        for t in range(2):
            for k in range(4): a(f"v_fma_f32 v{QA+4*t+k}, v{QA+4*t+k}, v{VSTA}, v{BI+4*t+k}")
            a(f"ds_write_b128 v{VQW}, {vr(QA+4*t,4)} offset:{16*nt*ROWP+64*t}")
        if nt == 2: a("s_mov_b64 exec, -1")
    def wq_loads(lo, hi):
        for f in range(lo, hi):
            t, s = divmod(f, 4)
            a(f"buffer_load_dwordx4 {vr(WF+16*t+4*s,4)}, v{VXA}, s[40:43], s{sWQ+t} offen offset:{1024*s}")

    def signal(k):
        a("s_waitcnt lgkmcnt(0)")
        a("s_mov_b64 exec, 1")
        a(f"ds_add_u32 v7, v7 offset:{L_FLAG+4*k}")
        a("s_mov_b64 exec, -1")
    def spin(k):
        l = L("SP")
        a("s_mov_b32 s8, 0x100000")
        a.lab(l)
        a(f"ds_read_b32 v6, v7 offset:{L_FLAG+4*k}")
        a("s_sub_u32 s8, s8, 1")
        a(f"s_cbranch_scc1 {l}X")
        a("s_waitcnt lgkmcnt(0)")
        a("v_readfirstlane_b32 s9, v6")
        a("s_nop 0")
        a("s_cmp_lt_u32 s9, 32")
        a(f"s_cbranch_scc1 {l}")
        a.lab(l + "X")
    def list_build(n):
        groups(n, lambda i: a(f"ds_bpermute_b32 v{PS+i}, v{LA+i}, v{VSTA}"))
        if n > 1:
            a(f"s_cmp_gt_u32 s{sT}, {4*BATCH}")
            a("s_cbranch_scc1 K2_SLOW_S")
        a("s_waitcnt lgkmcnt(0)")
        def body(i):
            a(f"v_add_u32 v{PS+i}, v{PS+i}, v{RK+i}")
            a(f"v_lshlrev_b32 v{RK+i}, 2, v{PS+i}")
            a(f"s_mov_b64 exec, s[{sV[i]}:{sV[i]+1}]")
            a(f"ds_write_b32 v{PS+i}, v{R0+2*i} offset:{L_IDX}")
            a(f"ds_write_b16 v{RK+i}, v{R0+2*i+1} offset:{L_EP+4}")
            a(f"ds_write_b16 v{RK+i}, v{R0+2*i+1} offset:{L_EP+14}")
            a("s_mov_b64 exec, -1")
        groups(n, body)
    def deg_acc():
        l = L("ND")
        a(f"s_cmp_lg_u32 s{sW}, 0")
        a(f"s_cbranch_scc1 {l}")
        a(f"ds_add_u32 v5, v{VC} offset:{L_DEG}")
        a.lab(l)
    a("v_and_b32 v2, 0x70, v4")
    a("v_add_u32 v6, v3, v2")
    a(f"buffer_load_dwordx4 {vr(R0,4)}, v6, s[40:43], s4 offen")
    a(f"buffer_load_dword v{HD}, v3, s[40:43], s4 offen")
    a(f"buffer_load_dwordx4 {vr(R0+4,4)}, v6, s[40:43], s4 offen offset:128")
    assert L_CNT <= 3*8192
    a(f"ds_write_b128 v4, {vr(ZT,4)}")
    a(f"ds_write_b128 v4, {vr(ZT,4)} offset:8192")
    a(f"ds_write_b128 v4, {vr(ZT,4)} offset:{L_CNT-8192}")
    lane_consts()
    a("v_lshrrev_b32 v2, 3, v2")
    a("s_waitcnt vmcnt(3)")
    for ins in wscale(): a(ins)
    stamp("a")
    a("s_waitcnt vmcnt(1)")
    stamp("b")
    a(f"v_sub_u32 v2, v{HD}, v2")
    a(f"v_cmp_lt_u32 vcc, {CAP}, v{HD}")
    for i in range(4):
        a(f"v_cmp_le_i32 s[{sV[i]}:{sV[i]+1}], {16*(i>>1)+(i&1)}, v2")
    a(f"s_and_b32 s{sV[0]}, s{sV[0]}, 0xfefefefe")
    a(f"s_and_b32 s{sV[0]+1}, s{sV[0]+1}, 0xfefefefe")
    a("s_waitcnt vmcnt(0)")
    rank_atomics(4)
    a("s_mov_b64 exec, vcc")
    a(f"ds_write_b32 v7, v7 offset:{L_FLAG-4}")
    signal(0)
    spin(0)
    stamp(2)
    scan(True)
    a(f"s_cmp_lg_u32 s{sSLOW}, 0")
    a("s_cbranch_scc1 K2_SLOW_S")
    list_build(4)
    signal(1)
    deg_acc()
    ranges()
    spin(1)
    stamp(3)
    first_loads()
    stream_setup()
    spin(3)
    a("s_branch K2_JOIN")
    a.lab("K2_SCAN")
    scan(False)
    list_build(1)
    deg_acc()
    ranges()
    stream_setup()
    a("s_waitcnt lgkmcnt(0)")
    a("s_barrier")
    first_loads()
    a("s_branch K2_JOIN")

    a.lab("K2_GEMMER")
    if "noprio" not in EXP: a("s_setprio 3")
    srd(a, 36, PX, N*256)
    a("v_subrev_u32 v2, 512, v0")
    a("v_and_b32 v3, 15, v0")
    a("v_lshrrev_b32 v6, 4, v2")
    a("v_lshlrev_b32 v7, 16, v6")
    a("v_lshl_add_u32 v7, v3, 4, v7")
    a("v_add_u32 v7, s5, v7")
    a(f"buffer_load_dwordx4 {vr(XP,4)}, v7, s[36:39], 0 offen")
    a("v_add_u32 v7, 0x200000, v7")
    a(f"buffer_load_dwordx4 {vr(XP+4,4)}, v7, s[36:39], 0 offen")
    a(f"s_add_u32 s9, s{sW}, s2")
    a("s_and_b32 s9, s9, 7")
    a(f"s_lshl_b32 s{sWQ}, s9, 13")
    a(f"s_add_u32 s{sWQ}, s{sWQ}, {hex(WS_WQ)}")
    a(f"s_add_u32 s{sWQ+1}, s{sWQ}, 4096")
    a(f"v_mov_b32 v{VXA}, v5")
    a("v_and_b32 v7, 0x30, v0")
    a("s_lshl_b32 s8, s9, 7")
    a(f"v_add_u32 v{PB}, s8, v7")
    a(f"global_load_dwordx4 {vr(BI,4)}, v{PB}, s[6:7] offset:{WS_B1-WS_WE}")
    a(f"global_load_dwordx4 {vr(BI+4,4)}, v{PB}, s[6:7] offset:{WS_B1-WS_WE+64}")
    wq_loads(0, 2)
    a(f"v_mul_u32_u24 v6, {XROW}, v6")
    a(f"v_lshl_add_u32 v6, v3, 4, v6")
    a(f"v_add_u32 v1, {L_XS}, v6")
    a(f"v_mul_u32_u24 v{VQW}, {ROWP}, v3")
    a(f"s_add_u32 s8, s8, {L_Q}")
    a(f"v_add3_u32 v{VQW}, v{VQW}, v7, s8")
    a(f"v_mul_u32_u24 v2, {XROW}, v3")
    a(f"s_mov_b32 s8, {L_XS}")
    a(f"v_add3_u32 v2, v2, v7, s8")
    wq_loads(2, 4)
    lane_consts()
    wq_loads(4, 8)
    a(f"v_mov_b32 v{VXA}, v2")
    stamp("a")
    a(f"s_waitcnt vmcnt(10)")
    stamp("b")
    a(f"ds_write_b128 v1, {vr(XP,4)}")
    a(f"s_cmp_ge_u32 s{sW}, 12")
    a("s_cbranch_scc1 K2_NOXS")
    a(f"ds_write_b128 v1, {vr(XP+4,4)} offset:{32*XROW}")
    a.lab("K2_NOXS")
    signal(2)
    for ins in wscale(): a(ins)
    spin(2)
    gemm_pre()
    a("s_waitcnt vmcnt(0)")
    gemm_tile(0)
    gemm_tile(1)
    gemm_tile(2)
    signal(3)
    stamp("c")
    if "touch" in EXP:
        a(f"s_cmp_lg_u32 s{sW}, 15")
        a("s_cbranch_scc1 K2_NOTOUCH")
        a("v_and_b32 v6, 63, v0")
        a("v_lshlrev_b32 v6, 16, v6")
        a("v_add_u32 v6, s5, v6")
        a(f"buffer_load_dword v{QA}, v6, s[48:51], 0 offen")
        a(f"global_load_dword v{QA+1}, v7, s[{PB2}:{PB2+1}]")
        a.lab("K2_NOTOUCH")
    spin(0)
    stamp(2)
    scan(True)
    a(f"s_cmp_gt_u32 s{sT}, {4*BATCH}")
    a(f"s_cselect_b32 s{sSLOW}, 1, s{sSLOW}")
    a(f"s_cmp_lg_u32 s{sSLOW}, 0")
    a("s_cbranch_scc1 K2_SLOW_SYNC")
    ranges()
    spin(1)
    stamp(3)
    first_loads()
    stream_setup()
    spin(3)
    a.lab("K2_JOIN")
    a(f"ds_read_b128 {vr(ACC,4)}, v{T3}")
    a(f"ds_read_b128 {vr(ACC+4,4)}, v{T3} offset:16")
    a("s_waitcnt lgkmcnt(0)")
    if "noprio" not in EXP: a("s_setprio 2")
    stamp("d")
    a(f"s_cmp_eq_u32 s{sTEV}, {hex(INF)}")
    a("s_cbranch_scc1 K2_LOOP_DONE")
    a(f"ds_read_b128 {vr(Q,4)}, v{T0}")
    a(f"ds_read_b128 {vr(Q+4,4)}, v{T0} offset:16")
    a(f"buffer_load_dwordx4 {vr(BS+16+2,4)}, {vr(IP[0],2)}, s[44:47], 0 idxen offen")
    a(f"buffer_load_dwordx4 {vr(BS+24+2,4)}, {vr(IP[1],2)}, s[44:47], 0 idxen offen")
    a(f"ds_read_b32 v{IP[0]}, v{VIA} offset:{4*DP}")
    a(f"ds_read_b32 v{IP[1]}, v{VIA} offset:{4*(DP+1)}")
    def mfma(slot, es, u, which):
        if "nomfma" in EXP: return
        if which == 0:
            a(f"v_mfma_f32_16x16x32_bf16 {vr(u,4)}, {vr(es,4)}, {vr(BS+8*slot,4)}, {vr(Q,4)}")
        else:
            a(f"v_mfma_f32_16x16x32_bf16 {vr(u+4,4)}, {vr(es-2,4)}, {vr(BS+8*slot+4,4)}, {vr(Q+4,4)}")
    a(f"s_waitcnt vmcnt({DP-1}) lgkmcnt(0)")
    mfma(0, ES[0], U[0], 0); mfma(0, ES[0], U[0], 1)
    pload(0, IP[0])
    stamp(4)
    a(f"s_sub_u32 s{sREM}, s{sREM}, 1")
    a("s_nop 5")
    a("s_cbranch_scc1 K2_BND0")
    a("s_branch K2_SUB0")
    def rdE(k):
        if "nods" in EXP: return
        a(f"ds_read2_b32 {vr(ES[k&1],2)}, v{VEA} offset0:{4*(k+2)} offset1:{4*(k+2)+1}")
    def rdI(k):
        if "nods" in EXP: return
        a(f"ds_read_b32 v{IP[k&1]}, v{VIA} offset:{4*(k+2+DP)}")
    def ex(c, u): a(f"v_exp_f32 v{EX+c}, v{u+c}")
    def rc(c): a(f"v_rcp_f32 v{EX+c}, v{EX+c}")
    def pa(c): a(f"v_pk_add_f32 {vr(EX+c,2)}, {vr(EX+c,2)}, 1.0 op_sel_hi:[1,0]")
    def pf(c, u): a(f"v_pk_fma_f32 {vr(ACC+c,2)}, {vr(u+c,2)}, {vr(EX+c,2)}, {vr(ACC+c,2)}")
    def valu(u):
        for c in range(8): ex(c, u)
        for c in range(0, 8, 2): pa(c)
        for c in range(8): rc(c)
        for c in range(0, 8, 2): pf(c, u)
    def tail(u):
        rc(7)
        for c in range(0, 8, 2): pf(c, u)
    uid = [0]
    def prio():
        if "noprio" in EXP: return
        uid[0] += 1
        lbl = f"K2_PR{uid[0]}"
        a(f"s_cmp_gt_i32 s{sLEFT}, {PR1}")
        a(f"s_cbranch_scc1 {lbl}_D")
        a("s_setprio 1")
        a(f"s_cmp_gt_i32 s{sLEFT}, {PR0}")
        a(f"s_cbranch_scc1 {lbl}_D")
        a("s_setprio 0")
        a.lab(f"{lbl}_D")
    def advance():
        a(f"v_add_u32 v{VEA}, v3, v{VEA}")
        a(f"v_add_u32 v{VIA}, {4*DP}, v{VIA}")
        a(f"s_sub_u32 s{sLEFT}, s{sLEFT}, {DP}")
        prio()
    a.raw(".p2align 3")
    a.lab("K2_LOOP")
    advance()
    for k in range(DP):
        u = U[k & 1]
        a.lab(f"K2_SUB{k}")
        ex(0, u)
        a(f"s_waitcnt vmcnt({DP-1}) lgkmcnt(0)")
        ex(1, u)
        mfma((k+1) % DP, ES[(k+1) & 1], U[(k+1) & 1], 0)
        ex(2, u)
        mfma((k+1) % DP, ES[(k+1) & 1], U[(k+1) & 1], 1)
        ex(3, u)
        pload((k+1) % DP, IP[(k+1) & 1])
        ex(4, u)
        rdE(k)
        ex(5, u)
        rdI(k)
        ex(6, u); ex(7, u)
        for c in range(0, 8, 2): pa(c)
        for c in range(6): rc(c)
        a(f"s_sub_u32 s{sREM}, s{sREM}, 1")
        rc(6)
        a(f"s_cbranch_scc1 K2_BNDT{k}")
        tail(u)
    a("s_branch K2_LOOP")
    for k in range(DP):
        kp = (k - 1) % DP
        a.lab(f"K2_BNDT{kp}")
        tail(U[kp & 1])
        if k == 0: advance()
        a.lab(f"K2_BND{k}")
        a(f"s_mov_b64 s[{sX}:{sX+1}], 0")
        a("s_mov_b64 s[6:7], 0")
        for x in range(2):
            a(f"s_cmp_lg_u32 s{sSEGL[x]}, s{sTEV}")
            a(f"s_cbranch_scc1 K2_B{k}_N{x}")
            a(f"s_mov_b32 s{sX+x}, -1")
            seg_next(x, f"K2_B{k}_S{x}")
            a(f"s_cmp_lt_i32 s{sROW[x]}, 0")
            a(f"s_cbranch_scc1 K2_B{k}_N{x}")
            a(f"s_mov_b32 s{6+x}, -1")
            exec_half(x)
            a(f"v_add_u32 v{T0}, s{sROW[x]}, v{VQA}")
            a.lab(f"K2_B{k}_N{x}")
        a("s_mov_b64 exec, s[6:7]")
        a("s_waitcnt lgkmcnt(0)")
        a(f"ds_read_b128 {vr(Q,4)}, v{T0}")
        a(f"ds_read_b128 {vr(Q+4,4)}, v{T0} offset:16")
        a("s_mov_b64 exec, -1")
        valu(U[k & 1])
        a(f"s_mov_b64 exec, s[{sX}:{sX+1}]")
        a(f"ds_write_b128 v{T1}, {vr(ACC,4)}")
        a(f"ds_write_b128 v{T1}, {vr(ACC+4,4)} offset:16")
        a("s_mov_b64 exec, s[6:7]")
        a(f"v_subrev_u32 v{T1}, {QS}, v{T0}")
        a(f"v_cndmask_b32 v{T3}, v5, v{T1}, s[{sSM}:{sSM+1}]")
        a(f"ds_read_b128 {vr(ACC,4)}, v{T3}")
        a(f"ds_read_b128 {vr(ACC+4,4)}, v{T3} offset:16")
        a("s_mov_b64 exec, -1")
        a(f"s_sub_u32 s{sREM}, -1, s{sTEV}")
        a(f"s_min_u32 s{sTEV}, s{sSEGL[0]}, s{sSEGL[1]}")
        a(f"s_cmp_eq_u32 s{sTEV}, {hex(INF)}")
        a("s_cbranch_scc1 K2_LOOP_DONE")
        a(f"s_add_u32 s{sREM}, s{sREM}, s{sTEV}")
        a(f"s_waitcnt vmcnt({DP-1}) lgkmcnt(2)")
        mfma((k+1) % DP, ES[(k+1) & 1], U[(k+1) & 1], 0)
        mfma((k+1) % DP, ES[(k+1) & 1], U[(k+1) & 1], 1)
        pload((k+1) % DP, IP[(k+1) & 1])
        rdE(k); rdI(k)
        a(f"s_sub_u32 s{sREM}, s{sREM}, 1")
        a("s_nop 3")
        if k < DP-1:
            a(f"s_cbranch_scc1 K2_BND{k+1}")
            a(f"s_branch K2_SUB{k+1}")
        else:
            a(f"s_cbranch_scc0 K2_LOOP")
            advance()
            a(f"s_branch K2_BND0")
    a.lab("K2_LOOP_DONE")
    a("s_setprio 0")
    stamp(5)
    if DEBUG:
        a("s_lshl_b32 s93, s2, 4")
        a("s_add_u32 s93, s93, s3")
        a("s_lshl_b32 s93, s93, 5")
        a("s_add_u32 s93, s93, 0xA80000")
        a("v_mov_b32 v1, s93")
        for i in range(8): a(f"v_mov_b32 v{8+i}, s{84+i}")
        a("global_store_dwordx4 v1, v[8:11], s[34:35]")
        a("global_store_dwordx4 v1, v[12:15], s[34:35] offset:16")
    a("s_waitcnt vmcnt(0)")
    a(f"s_cmp_lg_u32 s{sSLOW}, 0")
    a("s_cbranch_scc1 K2_COMB")
    a.lab("K2_EPI")
    a.c("out = -ln2 * S @ w2 + deg*b2")
    AF = 56
    SF = 8
    OA = 32
    B2 = 120
    DG = 124
    a(f"s_cmp_ge_u32 s{sW}, 4")
    a("s_cbranch_scc1 K2_COMB")
    a(f"s_lshl_b32 s6, s{sW}, 14")
    a(f"s_add_u32 s6, s6, {hex(WS_W2)}")
    a("v_and_b32 v7, 63, v0")
    a("v_lshlrev_b32 v7, 4, v7")
    for q in range(4):
        if q: a("s_add_u32 s6, s6, 4096")
        for s in range(4):
            a(f"buffer_load_dwordx4 {vr(AF+16*q+4*s,4)}, v7, s[40:43], s6 offen offset:{1024*s}")
    a("v_bfe_u32 v7, v0, 4, 2")
    a(f"s_lshl_b32 s7, s{sW}, 6")
    a("v_lshlrev_b32 v5, 3, v7")
    a("v_add_u32 v5, s7, v5")
    a(f"global_load_dwordx2 {vr(B2,2)}, v5, s[{PB2}:{PB2+1}]")
    a(f"global_load_dwordx2 {vr(B2+2,2)}, v5, s[{PB2}:{PB2+1}] offset:32")
    a.lab("K2_COMB")
    a("v_and_b32 v1, 63, v0")
    a("v_lshlrev_b32 v2, 2, v1")
    a(f"v_add_u32 v2, {L_HN}, v2")
    a(f"s_mul_i32 s4, s{sW}, {ROWP}")
    a(f"s_add_u32 s4, s4, {L_S}")
    a("v_lshlrev_b32 v3, 4, v1")
    a("v_add_u32 v4, s4, v3")
    a(f"v_add_u32 v3, {L_CR}, v3")
    a(f"s_mul_i32 s4, s{sW}, {SBROW}")
    a(f"s_add_u32 s4, s4, {L_SB}")
    a("v_lshlrev_b32 v6, 3, v1")
    a("v_add_u32 v6, s4, v6")
    stamp("e")
    a("s_waitcnt lgkmcnt(0)")
    a("s_barrier")
    stamp("f")
    a("ds_read_b32 v2, v2")
    for r in range(3):
        a(f"ds_read_b128 {vr(8+4*r,4)}, v4 offset:{16*r*ROWP}")
    a(f"s_add_u32 s4, s{sW}, 1")
    a("s_waitcnt lgkmcnt(0)")
    for r in range(3):
        a(f"v_cmp_eq_u32 s[6:7], s4, v2")
        a(f"s_sub_u32 s8, s4, 1")
        a(f"s_or_b64 s[10:11], s[{sNE}:{sNE+1}], s[{sSM}:{sSM+1}]")
        a(f"s_bitcmp1_b64 s[10:11], s8")
        a(f"s_cbranch_scc1 K2_CZ{r}")
        for c in range(4): a(f"v_mov_b32 v{8+4*r+c}, 0")
        a.lab(f"K2_CZ{r}")
        a(f"s_add_u32 s4, s4, 16")
        a.lab(f"K2_CB{r}")
        a("s_cmp_eq_u64 s[6:7], 0")
        a(f"s_cbranch_scc1 K2_CB{r}D")
        a("s_ff1_i32_b64 s8, s[6:7]")
        a("s_bitset0_b64 s[6:7], s8")
        a(f"s_mul_i32 s8, s8, {ROWP}")
        a("v_add_u32 v7, s8, v3")
        a(f"ds_read_b128 v[20:23], v7")
        a("s_waitcnt lgkmcnt(0)")
        for c in range(4): a(f"v_add_f32 v{8+4*r+c}, v{8+4*r+c}, v{20+c}")
        a(f"s_branch K2_CB{r}")
        a.lab(f"K2_CB{r}D")
    a(f"s_cmp_lg_u32 s{sSLOW}, 0")
    a("s_cbranch_scc1 K2_SLOW_WB")
    for r in range(3):
        a(f"v_cvt_pk_bf16_f32 v{24+2*r}, v{8+4*r}, v{9+4*r}")
        a(f"v_cvt_pk_bf16_f32 v{25+2*r}, v{10+4*r}, v{11+4*r}")
    a(f"ds_write_b64 v6, v[24:25]")
    a(f"ds_write_b64 v6, v[26:27] offset:{16*SBROW}")
    a(f"ds_write_b64 v6, v[28:29] offset:{32*SBROW}")
    a("v_and_b32 v2, 15, v0")
    a("v_bfe_u32 v7, v0, 4, 2")
    a(f"v_mul_u32_u24 v4, {SBROW}, v2")
    a("v_lshl_add_u32 v4, v7, 4, v4")
    a(f"v_add_u32 v4, {L_SB}, v4")
    a(f"v_lshlrev_b32 v1, 2, v2")
    a(f"v_add_u32 v1, {L_DEG}, v1")
    a("v_lshl_add_u32 v5, v2, 16, v5")
    a("s_lshl_b32 s9, s2, 8")
    a("v_add_u32 v5, s9, v5")
    stamp("g")
    a("s_waitcnt lgkmcnt(0)")
    a("s_barrier")
    a(f"s_cmp_ge_u32 s{sW}, 4")
    a("s_cbranch_scc1 K2_EXIT")
    stamp(6)
    seq = [(s, nt) for s in range(8) for nt in range(3)]
    def sread(i):
        s, nt = seq[i]
        a(f"ds_read_b128 {vr(SF+4*(i%6),4)}, v4 offset:{64*s+16*nt*SBROW}")
    for nt in range(3): a(f"ds_read_b32 v{DG+nt}, v1 offset:{64*nt}")
    for i in range(6): sread(i)
    a("s_waitcnt vmcnt(0)")
    for i, (s, nt) in enumerate(seq):
        a(f"s_waitcnt lgkmcnt({min(5, len(seq)-1-i)})")
        for t in range(2):
            o = OA + 8*nt + 4*t
            c = "0" if s == 0 else vr(o, 4)
            a(f"v_mfma_f32_16x16x32_bf16 {vr(o,4)}, {vr(AF+32*t+4*s,4)}, {vr(SF+4*(i%6),4)}, {c}")
        if i + 6 < len(seq): sread(i+6)
    a(f"v_mov_b32 v{DG+3}, {hex(S_LN2)}")
    BU = 8
    for t in range(2):
        a(f"v_lshlrev_b32 v{BU+4*t}, 16, v{B2+2*t}")
        a(f"v_and_b32 v{BU+4*t+1}, 0xffff0000, v{B2+2*t}")
        a(f"v_lshlrev_b32 v{BU+4*t+2}, 16, v{B2+2*t+1}")
        a(f"v_and_b32 v{BU+4*t+3}, 0xffff0000, v{B2+2*t+1}")
    a("s_mov_b32 s4, 0x100000")
    a("s_mov_b32 s5, 0x200000")
    for nt in range(3):
        a(f"v_cvt_f32_u32 v{DG+nt}, v{DG+nt}")
        a(f"v_mul_f32 v{DG+nt}, 0.25, v{DG+nt}")
        for k in range(8):
            a(f"v_mul_f32 v{OA+8*nt+k}, v{DG+3}, v{OA+8*nt+k}")
        for k in range(8):
            a(f"v_fmac_f32 v{OA+8*nt+k}, v{DG+nt}, v{BU+k}")
        if nt: a(f"v_add_u32 v5, 0x100000, v5")
        for t in range(2):
            o = OA + 8*nt + 4*t
            a(f"v_cvt_pk_bf16_f32 v{16+4*nt+2*t}, v{o}, v{o+1}")
            a(f"v_cvt_pk_bf16_f32 v{17+4*nt+2*t}, v{o+2}, v{o+3}")
            a(f"buffer_store_dwordx2 {vr(16+4*nt+2*t,2)}, v5, s[48:51], 0 offen offset:{32*t}")
    if DEBUG:
        stamp(7)
        a("s_cmp_lg_u32 s3, 0")
        a("s_cbranch_scc1 K2_EXIT")
        a("s_memrealtime s[98:99]")
        a("s_lshl_b32 s93, s2, 6")
        a("s_add_u32 s93, s93, 0xA00000")
        a("v_mov_b32 v1, s93")
        a("s_waitcnt lgkmcnt(0)")
        for i in range(8):
            a(f"s_sub_u32 s93, s{84+i}, s84")
            a("v_mov_b32 v2, s93")
            a(f"global_store_dword v1, v2, s[34:35] offset:{4*i}")
        for off, sr_ in ((32, 96), (36, 98), (40, 92)):
            a(f"v_mov_b32 v2, s{sr_}")
            a(f"global_store_dword v1, v2, s[34:35] offset:{off}")
    a.lab("K2_EXIT")
    a("s_endpgm")
    a.lab("K2_SLOW_WB")
    a(f"ds_write_b128 v4, v[8:11]")
    a(f"ds_write_b128 v4, v[12:15] offset:{16*ROWP}")
    a(f"s_cmp_ge_u32 s{sW}, 8")
    a("s_cbranch_scc1 K2_SLOW_SYNC")
    a(f"ds_write_b128 v4, v[16:19] offset:{32*ROWP}")
    a("s_branch K2_SLOW_SYNC")
    a.lab("K2_SLOW_S")
    a.lab("K2_SLOW_SET")
    a(f"s_mov_b32 s{sSLOW}, 1")
    a.lab("K2_SLOW_SYNC")
    a("s_waitcnt lgkmcnt(0)")
    a("s_barrier")
    a.lab("K2_SLOW_NEXT")
    a("v_lshlrev_b32 v4, 4, v0")
    for k in range(4): a(f"v_mov_b32 v{ZT+k}, 0")
    zero_batch(L_BZEND)
    a(f"s_cmp_lg_u32 s{sBATCH}, 0")
    a("s_cbranch_scc1 K2_SLOW_NZ")
    a(f"s_mov_b64 s[{sSM}:{sSM+1}], -1")
    a(f"ds_write_b128 v4, {vr(ZT,4)} offset:{L_S}")
    a(f"ds_write_b128 v4, {vr(ZT,4)} offset:{L_S+16384}")
    a(f"ds_write_b128 v4, {vr(ZT,4)} offset:{L_S+40*ROWP-16384}")
    a.lab("K2_SLOW_NZ")
    a(f"s_cmp_lt_u32 s{sBATCH}, {E}")
    a("s_cbranch_scc1 K2_SLOW_GO")
    a(f"s_mov_b32 s{sSLOW}, 0")
    a("s_branch K2_EPI")
    a.lab("K2_SLOW_GO")
    a(f"v_add_u32 v5, s{sBATCH}, v0")
    a(f"v_mov_b32 v6, {E}")
    a("v_cmp_lt_u32 vcc, v5, v6")
    a(f"v_min_u32 v5, {E-1}, v5")
    a("v_lshlrev_b32 v6, 2, v5")
    a("v_lshlrev_b32 v7, 1, v5")
    SD, SE = 40, 41
    a(f"global_load_dword v{SD}, v6, s[{PDST}:{PDST+1}]")
    a(f"global_load_dword v{R0}, v6, s[{PSRC}:{PSRC+1}]")
    a(f"global_load_ushort v{SE}, v7, s[{PE}:{PE+1}]")
    a("v_mov_b32 v6, 0xfffc0000")
    a("v_and_b32 v5, 63, v0")
    a("v_lshlrev_b32 v5, 2, v5")
    a("s_waitcnt vmcnt(0) lgkmcnt(0)")
    a("s_barrier")
    a(f"v_and_b32 v7, 0xff, v{SD}")
    a(f"v_cmp_eq_u32 s[{sV[0]}:{sV[0]+1}], s2, v7")
    a(f"v_lshlrev_b32 v7, 10, v{SD}")
    a(f"v_and_or_b32 v{R0+1}, v7, v6, v{SE}")
    a(f"s_and_b64 s[{sV[0]}:{sV[0]+1}], s[{sV[0]}:{sV[0]+1}], vcc")
    for i in range(1, 4): a(f"s_mov_b64 s[{sV[i]}:{sV[i]+1}], 0")
    a("v_mov_b32 v7, 4")
    rank_atomics(1)
    a("s_mov_b64 exec, -1")
    a(f"s_add_u32 s{sBATCH}, s{sBATCH}, {BATCH}")
    a("s_waitcnt lgkmcnt(0)")
    a("s_barrier")
    a("s_branch K2_SCAN")
    return 128

HEADER = open('standalone__edge_featured_mpnn_mpnn__graph.s.ref').read().split("; Override launch")[0]

def kd(name, nv, ns):
    acc = (nv + 3) // 4 * 4
    return f""".p2align 6
.amdhsa_kernel {name}
  .amdhsa_next_free_vgpr {nv}
  .amdhsa_next_free_sgpr {ns}
  .amdhsa_accum_offset {acc}
  .amdhsa_group_segment_fixed_size 0
  .amdhsa_kernarg_size 88
  .amdhsa_user_sgpr_count 2
  .amdhsa_user_sgpr_kernarg_segment_ptr 1
  .amdhsa_system_sgpr_workgroup_id_x 1
.end_amdhsa_kernel
"""

def build(TPW=4, DP=6):
    a = Asm()
    g1 = gen_k1(a, TPW)
    nv2 = gen_k2(a, DP)
    out = HEADER
    out += f"; @launch kernel=k1_kernel grid=({g1},1,1) block=(256,1,1) lds=1024\n"
    out += f"; @launch kernel=k2_kernel grid=(256,1,1) block=(1024,1,1) lds={L_END}\n"
    out += '.amdgcn_target "amdgcn-amd-amdhsa--gfx950"\n.text\n'
    out += a.text()
    out += '.section .rodata,"a"\n'
    out += kd("k1_kernel", 256, 64)
    out += kd("k2_kernel", 128, 102)
    return out

if __name__ == "__main__":
    import argparse
    ap = argparse.ArgumentParser()
    ap.add_argument("-o", default="standalone__edge_featured_mpnn_mpnn__graph.s")
    ap.add_argument("--tpw", type=int, default=4)
    ap.add_argument("--dp", type=int, default=4)
    ap.add_argument("--debug", action="store_true")
    ap.add_argument("--srcmask", type=int, default=0)
    ap.add_argument("--exp", default="")
    ap.add_argument("--pr1", type=int, default=8)
    ap.add_argument("--pr0", type=int, default=4)
    ap.add_argument("--wqs", type=int, default=4)
    ap.add_argument("--wqs2", type=int, default=5)
    ap.add_argument("--pf", type=int, default=0)
    args = ap.parse_args()
    DEBUG = args.debug
    SRCMASK = args.srcmask
    PF = args.pf
    WQSPLIT = args.wqs
    PR1, PR0 = args.pr1, args.pr0
    WQSPLIT2 = args.wqs2
    EXP = set(args.exp.split(",")) if args.exp else set()
    open(args.o, "w").write(build(args.tpw, args.dp))
```

```python
import sys, struct

N, E, D_, H = 10000, 160000, 128, 256
NCH = 64
CH_E = E // NCH
WS_P = 0
WS_CELLS = 0x500000
WS_WQ = 0x900000
WS_W2 = 0x910000
WS_WE = 0x920000
WS_B1 = 0x920400
WS_END = 0x921000

def f32bits(x): return struct.unpack('<I', struct.pack('<f', x))[0]
S_LOG2E = f32bits(-1.4426950408889634)
S_LN2 = f32bits(-0.6931471805599453)

class Asm:
    def __init__(self): self.l = []
    def __call__(self, s): self.l.append("    " + s)
    def lab(self, s): self.l.append(s + ":")
    def c(self, s): self.l.append("    ; " + s)
    def raw(self, s): self.l.append(s)
    def text(self): return "\n".join(self.l) + "\n"

def vr(a, n): return f"v[{a}:{a+n-1}]"
def sr(a, n): return f"s[{a}:{a+n-1}]"

def srd(a, d, base, nrec, stride=0, add=0):
    if add:
        a(f"s_add_u32 s{d}, s{base}, {hex(add)}")
        a(f"s_addc_u32 s{d+1}, s{base+1}, 0")
    else:
        a(f"s_mov_b32 s{d}, s{base}")
        a(f"s_mov_b32 s{d+1}, s{base+1}")
    if stride:
        a(f"s_or_b32 s{d+1}, s{d+1}, {hex(stride << 16)}")
    a(f"s_mov_b32 s{d+2}, {hex(nrec)}")
    a(f"s_mov_b32 s{d+3}, 0x20000")

PX, PE, PSRC, PDST, PW1, PB1, PW2, PB2 = 16, 18, 20, 22, 24, 26, 28, 30

DEBUG = False
SRCMASK = 0
EXP = set()
PF = 0
WQSPLIT = 2
PR1 = 10
PR0 = 4
PRM = -1
WQSPLIT2 = 5
CAP1 = 24
CAP = 48
K1_LDS = 65536 + 16384
def gen_k1(a, TPW):
    assert TPW == 4
    NG = (625 + TPW - 1) // TPW
    NTR = 8
    GRID = NCH + NTR + NG
    a.raw(".globl k1_kernel"); a.raw(".p2align 8"); a.raw(".type k1_kernel,@function")
    a.lab("k1_kernel")
    a(f"s_cmp_ge_u32 s2, {GRID}")
    a("s_cbranch_scc1 K1_EXIT")
    a("s_load_dwordx16 s[16:31], s[0:1], 0")
    a("s_load_dwordx2 s[32:33], s[0:1], 80")
    if DEBUG: a("s_memrealtime s[56:57]")
    K1S = [52, 53, 54, 55, 62, 63]
    def st1(i):
        if not (DEBUG and "k1st" in EXP): return
        a("s_memtime s[14:15]")
        a("s_waitcnt lgkmcnt(0)")
        a(f"s_mov_b32 s{K1S[i]}, s14")
    st1(0)
    def k1end():
        if DEBUG:
            a("s_waitcnt vmcnt(0)")
            a("s_memrealtime s[58:59]")
            a("s_lshl_b32 s60, s2, 4")
            a("s_add_u32 s60, s60, 0xB00000")
            a("v_mov_b32 v1, s60")
            a("s_waitcnt lgkmcnt(0)")
            a("v_mov_b32 v2, s56")
            a("v_mov_b32 v3, s58")
            a("v_cmp_eq_u32 vcc, 0, v0")
            a("s_and_saveexec_b64 s[60:61], vcc")
            a("s_cbranch_execz K1_EXIT")
            a("global_store_dwordx2 v1, v[2:3], s[32:33]")
            if "k1st" in EXP:
                st1(5)
                a("s_lshl_b32 s60, s2, 5")
                a("s_add_u32 s60, s60, 0xB80000")
                a("v_mov_b32 v1, s60")
                for i in range(6):
                    a(f"s_sub_u32 s60, s{K1S[i]}, s52")
                    a("v_mov_b32 v2, s60")
                    a(f"global_store_dword v1, v2, s[32:33] offset:{4*i}")
        a("s_endpgm")
    a(f"s_cmp_lt_u32 s2, {NCH}")
    a("s_cbranch_scc1 K1_SORT")
    a(f"s_cmp_lt_u32 s2, {NCH+NTR}")
    a("s_cbranch_scc1 K1_TRANS")
    a.c("GEMM role: P' = -log2e * x @ W1a ; W and x staged in LDS by DMA (XOR-swizzled 16B slots)")
    LX = 65536
    a("v_lshrrev_b32 v1, 6, v0")
    a("v_and_b32 v2, 63, v0")
    a("v_readfirstlane_b32 s3, v1")
    a("v_lshrrev_b32 v3, 5, v2")
    a("v_and_b32 v4, 31, v2")
    a("v_lshlrev_b32 v5, 2, v3")
    a("v_xor_b32 v4, v4, v5")
    a("v_lshlrev_b32 v4, 4, v4")
    a("v_lshl_add_u32 v4, v3, 9, v4")
    a("v_xor_b32 v5, 0x80, v4")
    a("v_lshrrev_b32 v3, 4, v2")
    a("v_and_b32 v6, 15, v2")
    a("v_lshlrev_b32 v7, 3, v1")
    a("v_and_b32 v7, 8, v7")
    a("v_or_b32 v7, v7, v3")
    a("v_xor_b32 v7, v6, v7")
    a("v_lshlrev_b32 v7, 4, v7")
    a("v_lshl_add_u32 v7, v3, 8, v7")
    a("v_xor_b32 v8, 0x40, v7")
    a(f"s_sub_u32 s4, s2, {NCH+NTR}")
    a("s_lshl_b32 s5, s4, 14")
    a("s_lshl_b32 s6, s3, 11")
    a("s_add_u32 s5, s5, s6")
    a("s_lshr_b32 s7, s2, 3")
    a("s_add_u32 s7, s7, s3")
    a("s_and_b32 s7, s7, 7")
    a("s_lshl_b32 s7, s7, 13")
    a("s_waitcnt lgkmcnt(0)")
    srd(a, 36, PX, N*256)
    srd(a, 40, PW1, 257*512)
    a(f"s_add_u32 s8, s6, {LX}")
    a("s_mov_b32 m0, s8")
    a("s_add_u32 s9, s5, 1024")
    a("buffer_load_dwordx4 v7, s[36:39], s5 offen lds")
    a("s_add_u32 m0, s8, 1024")
    a("s_mov_b32 s8, s7")
    a("buffer_load_dwordx4 v8, s[36:39], s9 offen lds")
    for i in range(8):
        a("s_mov_b32 m0, s8")
        a("s_nop 0")
        a(f"buffer_load_dwordx4 v{4+(i&1)}, s[40:43], s8 offen lds")
        if i < 7: a("s_add_u32 s8, s8, 1024")
    st1(1)
    srd(a, 44, 32, N*512, add=WS_P)
    a("v_lshrrev_b32 v9, 2, v6")
    a("v_and_b32 v10, 3, v6")
    a("v_xor_b32 v11, v1, v9")
    a("v_lshl_or_b32 v10, v11, 2, v10")
    a("v_lshlrev_b32 v10, 4, v10")
    a("v_lshl_add_u32 v9, v3, 3, v9")
    a("v_lshl_add_u32 v9, v9, 9, v10")
    a("v_xor_b32 v10, v3, v6")
    a("v_lshlrev_b32 v10, 4, v10")
    a("v_lshl_add_u32 v10, v6, 8, v10")
    a(f"v_add_u32 v10, {LX}, v10")
    for s in range(1, 4): a(f"v_xor_b32 v{10+s}, {64*s}, v10")
    a("v_lshlrev_b32 v14, 9, v6")
    a("v_lshl_add_u32 v14, v1, 6, v14")
    a("v_lshl_add_u32 v14, v3, 4, v14")
    a("s_lshl_b32 s5, s4, 15")
    a(f"v_mov_b32 v15, {hex(S_LOG2E)}")
    WFR = 16
    XFR = 48
    ACC = 112
    a("s_waitcnt vmcnt(0)")
    st1(2)
    a("s_barrier")
    st1(3)
    order = []
    for s in range(4):
        for t in range(2):
            for hh in range(2):
                a(f"ds_read_b64_tr_b16 {vr(WFR+16*t+4*s+2*hh,2)}, v9 offset:{(32*s+4*hh)*512+8*t}")
        a(f"ds_read_b128 {vr(XFR+4*s,4)}, v{10+s}")
        if s == 1:
            pass
    def xr(tau):
        for s in range(4): a(f"ds_read_b128 {vr(XFR+16*tau+4*s,4)}, v{10+s} offset:{4096*tau}")
    def mm(tau, s):
        for t in range(2):
            o = ACC + 8*tau + 4*t
            a(f"v_mfma_f32_16x16x32_bf16 {vr(o,4)}, {vr(WFR+16*t+4*s,4)}, {vr(XFR+16*tau+4*s,4)}, {'0' if s == 0 else vr(o,4)}")
    def epi(tau):
        r = []
        o = ACC + 8*tau
        for k in range(8): r.append(f"v_mul_f32 v{o+k}, v15, v{o+k}")
        for k in range(4): r.append(f"v_cvt_pk_bf16_f32 v{o+k}, v{o+2*k}, v{o+2*k+1}")
        r.append(f"s_add_u32 s6, s5, {8192*tau}")
        fl = " sc1" if "psc1" in EXP else " nt" if "pnt" in EXP else ""
        r.append(f"buffer_store_dwordx4 {vr(o,4)}, v14, s[44:47], s6 offen{fl}")
        return r
    for s in range(4):
        a(f"s_waitcnt lgkmcnt({5*(3-s)})")
        mm(0, s)
    xr(1); xr(2); xr(3)
    extra = []
    for tau in range(1, 4):
        a(f"s_waitcnt lgkmcnt({4*(3-tau)})")
        for s in range(4):
            mm(tau, s)
            if s == 1 or (s == 0 and tau == 1):
                if not extra and not (s == 1 and tau == 1): extra = epi(tau-1)
            if s >= 1:
                for _ in range(5):
                    if extra: a(extra.pop(0))
        assert not extra
    a("s_nop 7")
    for ins in epi(3): a(ins)
    st1(4)
    k1end()
    a.lab("K1_TRANS")
    a.c("fragment transposer for W1b (WQ) and w2 (W2F); 128 blocks per WG")
    a(f"s_sub_u32 s3, s2, {NCH}")
    a("v_lshrrev_b32 v1, 6, v0")
    a("s_and_b32 s4, s3, 3")
    a("v_readfirstlane_b32 s11, v1")
    a("s_lshl_b32 s4, s4, 7")
    a("v_add_u32 v1, s4, v0")
    a("s_mov_b32 s9, 0x05040100"); a("s_mov_b32 s10, 0x07060302")
    a("s_waitcnt lgkmcnt(0)")
    a("s_cmp_ge_u32 s11, 2")
    a("s_cbranch_scc1 K1_TR_SMALL")
    a("s_cmp_ge_u32 s3, 4")
    a("s_cbranch_scc1 K1_TR_W2")
    a("v_and_b32 v2, 31, v1")
    a("v_lshrrev_b32 v3, 5, v1")
    a("v_lshlrev_b32 v4, 4, v2")
    a("v_lshl_add_u32 v4, v3, 12, v4")
    a("v_add_u32 v4, 0x10000, v4")
    a("v_lshrrev_b32 v5, 1, v2")
    a("v_lshlrev_b32 v5, 12, v5")
    a("v_lshl_add_u32 v5, v3, 8, v5")
    a("v_and_b32 v6, 1, v2")
    a("v_lshl_add_u32 v5, v6, 7, v5")
    srd(a, 36, PW1, 257*512)
    srd(a, 40, 32, 0x10000, add=WS_WQ)
    a("s_mov_b32 s5, 512")
    a("s_branch K1_TR_GO")
    a.lab("K1_TR_W2")
    a("v_and_b32 v2, 15, v1")
    a("v_bfe_u32 v3, v1, 4, 3")
    a("v_lshrrev_b32 v7, 7, v1")
    a("v_lshlrev_b32 v4, 4, v2")
    a("v_lshl_add_u32 v4, v3, 13, v4")
    a("v_lshl_add_u32 v4, v7, 11, v4")
    a("v_lshrrev_b32 v5, 1, v2")
    a("v_lshlrev_b32 v5, 13, v5")
    a("v_lshl_add_u32 v5, v3, 10, v5")
    a("v_lshl_add_u32 v5, v7, 8, v5")
    a("v_and_b32 v6, 1, v2")
    a("v_lshl_add_u32 v5, v6, 7, v5")
    srd(a, 36, PW2, 256*256)
    srd(a, 40, 32, 0x10000, add=WS_W2)
    a("s_mov_b32 s5, 256")
    a.lab("K1_TR_GO")
    a("s_mov_b32 s6, 0")
    for m in range(8):
        a(f"buffer_load_dwordx4 {vr(16+4*m,4)}, v4, s[36:39], s6 offen")
        if m < 7: a("s_add_u32 s6, s6, s5")
    a("s_waitcnt vmcnt(0)")
    for cc in range(8):
        for p in range(4):
            a(f"v_perm_b32 v{48+4*cc+p}, v{16+4*(2*p+1)+(cc>>1)}, v{16+4*(2*p)+(cc>>1)}, s{9+(cc&1)}")
        a(f"buffer_store_dwordx4 {vr(48+4*cc,4)}, v5, s[40:43], 0 offen offset:{16*cc}")
    k1end()
    a.lab("K1_TR_SMALL")
    a("s_cmp_lg_u32 s3, 0")
    a("s_cbranch_scc1 K1_EXIT")
    a("s_cmp_lt_u32 s11, 4")
    a("s_cbranch_scc1 K1_EXIT")
    a("v_and_b32 v1, 255, v0")
    a("v_lshlrev_b32 v2, 1, v1")
    a(f"s_add_u32 s6, s{PW1}, 0x20000")
    a(f"s_addc_u32 s7, s{PW1+1}, 0")
    a("global_load_ushort v8, v2, s[6:7]")
    a(f"global_load_ushort v9, v2, s[{PB1}:{PB1+1}]")
    a(f"s_add_u32 s6, s32, {hex(WS_WE)}")
    a("s_addc_u32 s7, s33, 0")
    a(f"v_mov_b32 v10, {hex(S_LOG2E)}")
    a("v_lshlrev_b32 v3, 2, v1")
    a("s_waitcnt vmcnt(0)")
    a("v_lshlrev_b32 v8, 16, v8")
    a("v_lshlrev_b32 v9, 16, v9")
    a("v_mul_f32 v8, v10, v8")
    a("v_mul_f32 v9, v10, v9")
    a("v_cvt_pk_bf16_f32 v8, v8, v8")
    a("global_store_short v2, v8, s[6:7]")
    a(f"global_store_dword v3, v9, s[6:7] offset:{WS_B1-WS_WE}")
    a("s_endpgm")
    a.lab("K1_SORT")
    a.c("bucket the edges of chunk s2 by dst&255; cell line: 8 x [rec q, rec q+8, rec q+16, (loc,loc,loc,count)]")
    LC = 32768
    a("v_lshlrev_b32 v1, 2, v0")
    a("v_mov_b32 v2, 0")
    a(f"ds_write_b32 v1, v2 offset:{LC}")
    a("v_lshlrev_b32 v3, 4, v0")
    a("v_lshlrev_b32 v4, 3, v0")
    a("v_mov_b32 v5, 1")
    a(f"s_mul_i32 s3, s2, {CH_E*4}")
    a(f"s_mul_i32 s4, s2, {CH_E*2}")
    a("s_lshl_b32 s5, s2, 8")
    a("s_add_u32 s6, s3, 8192")
    a("s_add_u32 s7, s4, 4096")
    a("s_mov_b32 s8, 0x05040100"); a("s_mov_b32 s9, 0x05040302")
    a("s_waitcnt lgkmcnt(0)")
    srd(a, 36, PDST, E*4)
    srd(a, 40, PSRC, E*4)
    srd(a, 44, PE, E*2)
    srd(a, 48, 32, 256*NCH*256, add=WS_CELLS)
    DST, SRC, EA = 16, 24, 32
    RK, BK, REC = 36, 44, 52
    A0, A1 = 60, 68
    nlast = CH_E - 2048
    a("v_lshlrev_b32 v6, 1, v0")
    a(f"buffer_load_dwordx4 {vr(DST,4)}, v3, s[36:39], s3 offen")
    a(f"buffer_load_dword v{DST+4}, v1, s[36:39], s6 offen")
    a(f"buffer_load_dwordx4 {vr(SRC,4)}, v3, s[40:43], s3 offen")
    a(f"buffer_load_dwordx2 {vr(EA,2)}, v4, s[44:47], s4 offen")
    a(f"buffer_load_dword v{SRC+4}, v1, s[40:43], s6 offen")
    a(f"buffer_load_ushort v{EA+2}, v6, s[44:47], s7 offen")
    a(f"v_cmp_gt_u32 vcc, {nlast}, v0")
    a(f"v_mov_b32 v{RK+4}, 0")
    a(f"v_mov_b32 v{BK+4}, 0")
    a(f"v_mov_b32 v7, {CAP1}")
    a("s_mov_b64 s[10:11], vcc")
    a("s_barrier")
    st1(1)
    def atomic(k):
        a(f"v_and_b32 v{BK+k}, 0xff, v{DST+k}")
        a(f"v_lshlrev_b32 v8, 2, v{BK+k}")
        a(f"ds_add_rtn_u32 v{RK+k}, v8, v5 offset:{LC}")
    a("s_waitcnt vmcnt(5)")
    st1(2)
    for k in range(4): atomic(k)
    a("s_waitcnt vmcnt(4)")
    a("s_mov_b64 exec, s[10:11]")
    atomic(4)
    a("s_mov_b64 exec, -1")
    for k in range(5):
        a(f"v_lshrrev_b32 v{DST+k}, 6, v{DST+k}")
        a(f"v_and_b32 v{DST+k}, 0xfc, v{DST+k}")
        a(f"v_lshlrev_b32 v{BK+k}, 7, v{BK+k}")
    a("s_waitcnt vmcnt(0)")
    for k in range(5):
        if SRCMASK: a(f"v_and_b32 v{SRC+k}, {SRCMASK}, v{SRC+k}")
        a(f"v_perm_b32 v{REC+k}, v{SRC+k}, v{EA+(k>>1)}, s{8+(k&1)}")
    a("s_waitcnt lgkmcnt(0)")
    st1(3)
    for k in range(5):
        a(f"v_and_b32 v8, 7, v{RK+k}")
        a(f"v_lshl_add_u32 v8, v8, 4, v{BK+k}")
        a(f"v_lshrrev_b32 v9, 3, v{RK+k}")
        a(f"v_lshl_add_u32 v{A0+k}, v9, 2, v8")
        a(f"v_add_u32 v{A1+k}, v9, v8")
        if k == 4: a("s_mov_b64 exec, s[10:11]")
        a(f"v_cmpx_gt_u32 vcc, v7, v{RK+k}")
        a(f"ds_write_b32 v{A0+k}, v{REC+k}")
        a(f"ds_write_b8 v{A1+k}, v{DST+k} offset:12")
        a("s_mov_b64 exec, -1")
    a(f"v_max3_u32 v8, v{RK}, v{RK+1}, v{RK+2}")
    a(f"v_max3_u32 v8, v8, v{RK+3}, v{RK+4}")
    a("v_cmp_le_u32 vcc, v7, v8")
    a("s_cbranch_vccz K1_NOOV")
    for k in range(5):
        a(f"v_lshlrev_b32 v12, 7, v{BK+k}")
        a(f"v_sub_u32 v12, v12, v{BK+k}")
        a(f"v_sub_u32 v13, {CAP-1}, v{RK+k}")
        a(f"v_subrev_u32 v14, {CAP1}, v{RK+k}")
        a("v_or_b32 v13, v13, v14")
        a(f"v_and_b32 v13, 0x80000000, v13")
        a("v_or_b32 v12, v12, v13")
        a(f"v_add_u32 v10, v{A0+k}, v12")
        a(f"v_add_u32 v11, v{A1+k}, v12")
        a(f"buffer_store_dword v{REC+k}, v10, s[48:51], s5 offen offset:{128-12}")
        a(f"buffer_store_byte v{DST+k}, v11, s[48:51], s5 offen offset:{128+12-3}")
    a.lab("K1_NOOV")
    a("v_lshrrev_b32 v6, 3, v0")
    a("v_lshlrev_b32 v7, 2, v6")
    a("v_and_b32 v8, 0x70, v3")
    a("v_lshl_add_u32 v8, v6, 14, v8")
    a("v_mov_b32 v9, 0xffffff")
    a("s_waitcnt vmcnt(0) lgkmcnt(0)")
    a("s_barrier")
    st1(4)
    for i in range(4):
        a(f"ds_read_b128 {vr(16+4*i,4)}, v3 offset:{8192*i}")
        a(f"ds_read_b32 v{32+i}, v7 offset:{LC+256*i}")
    for i in range(4):
        a(f"s_waitcnt lgkmcnt({6-2*i})")
        a(f"v_min_u32 v{32+i}, 0xff, v{32+i}")
        a(f"v_lshlrev_b32 v{32+i}, 24, v{32+i}")
        a(f"v_and_or_b32 v{19+4*i}, v{19+4*i}, v9, v{32+i}")
        a(f"buffer_store_dwordx4 {vr(16+4*i,4)}, v8, s[48:51], s5 offen")
        if i < 3: a(f"s_add_u32 s5, s5, {64*16384}")
    k1end()
    a.lab("K1_EXIT")
    a("s_endpgm")
    return GRID

ROWP = 1040
SBROW = 528
BATCH = 1024
NSLOT = BATCH + 16
L_EP = 0
L_IDX = L_EP + NSLOT*16
L_CNT = L_IDX + NSLOT*4
L_HN = L_CNT + 256
L_ZERO = L_HN + 128
L_BZEND = L_ZERO + 256
L_DEG = L_BZEND
L_FLAG = L_DEG + 256
L_ZEND = L_FLAG + 32
L_S = L_ZEND
L_Q = L_S + 40*ROWP
L_SB = L_Q
XROW = 272
L_CR = L_Q + 40*ROWP
L_XS = L_CR
L_END = L_CR + 32*ROWP
QS = L_Q - L_S

def gen_k2(a, DP):
    assert DP % 2 == 0
    INF = 0x7fffffff
    SMAP = {0:0, 1:1, 2:2, 3:3, 4:4, 5:5, 6:6, 7:7}
    if "fine" in EXP: SMAP = {0:0, 1:1, "a":2, "b":3, 2:4, 3:5, "c":6, "d":7}
    if "fine2" in EXP: SMAP = {0:0, 4:1, 5:2, "e":3, "f":4, "g":5, 6:6, 7:7}
    def stamp(i):
        if not DEBUG or i not in SMAP: return
        a("s_memtime s[94:95]")
        a("s_waitcnt lgkmcnt(0)")
        a(f"s_mov_b32 s{84+SMAP[i]}, s94")
    a.raw(".globl k2_kernel"); a.raw(".p2align 8"); a.raw(".type k2_kernel,@function")
    a.lab("k2_kernel")
    a("s_cmp_ge_u32 s2, 256")
    a("s_cbranch_scc1 K2_EXIT")
    a("s_load_dwordx16 s[16:31], s[0:1], 0")
    a("s_load_dwordx2 s[32:33], s[0:1], 64")
    a("s_load_dwordx2 s[34:35], s[0:1], 80")
    if DEBUG: a("s_memrealtime s[96:97]")
    stamp(0)
    assert DP == 4
    U = [8, 16]; EX, ACC, Q = 24, 32, 40
    IP = [56, 58]
    AB = 60
    ES = [62, 66]
    BS = 70
    M = 118
    VEA, VIA, VES, VEND, VQA, VSTA, VEO, VH, VXA, VQW = range(M, M+10)
    T0, T1, T3 = 1, 2, 4
    WF = 8
    R0 = 8
    HD = 16
    RK = 17
    LA = 23
    PS = 29
    XP = 40
    VC = 53
    PB = 54
    XF = 40
    QA = 102
    ZT = 102
    B1 = 106
    BI = 110
    WE = 48
    sW, sNE = 3, 56
    sV = [52, 54, 10, 12, 14, 36]
    sT, sT2, sREM, sTEV, sSLOW, sBATCH, sLEFT, sX = 58, 59, 60, 61, 62, 63, 66, 68
    sMASK = [70, 72]; sPOS = [74, 75]; sEND = [76, 77]; sSEGL = [78, 79]; sHEAD = [80, 81]; sCR = [82, 83]
    sROW = [4, 5]
    sSM = 100
    sWQ = 64
    uid0 = [0]
    def L(p):
        uid0[0] += 1
        return f"K2_{p}{uid0[0]}"
    def exec_half(x):
        a(f"s_mov_b32 exec_lo, {-1 if x == 0 else 0}")
        a(f"s_mov_b32 exec_hi, {0 if x == 0 else -1}")
    wpos = [0, 1, 6, 7]
    a("v_lshlrev_b32 v4, 4, v0")
    for k in range(4): a(f"v_mov_b32 v{ZT+k}, 0")
    a("v_lshrrev_b32 v1, 6, v0")
    a("v_and_b32 v5, 0x3f0, v4")
    a(f"ds_write_b128 v5, {vr(ZT,4)} offset:{L_ZEND-1024}")
    a("v_readfirstlane_b32 s3, v1")
    a(f"v_and_b32 v{IP[0]+1}, 0x1f0, v4")
    a("v_lshlrev_b32 v2, 5, v0")
    a("v_and_b32 v3, 0xffffff00, v2")
    a("s_lshl_b32 s4, s2, 14")
    a(f"s_add_u32 s4, s4, {hex(WS_CELLS)}")
    a("s_lshl_b32 s5, s2, 8")
    a("s_waitcnt lgkmcnt(0)")
    a("s_barrier")
    stamp(1)
    srd(a, 40, 34, WS_END)
    a(f"s_add_u32 s6, s34, {hex(WS_WE)}")
    a(f"s_addc_u32 s7, s35, 0")
    a(f"global_load_dwordx4 {vr(WE,4)}, v{IP[0]+1}, s[6:7]")
    a(f"s_cmp_ge_u32 s{sW}, 8")
    a("s_cbranch_scc1 K2_GEMMER")

    def lane_consts():
        srd(a, 44, 34, N, stride=512, add=WS_P)
        srd(a, 48, 32, N*256)
        a(f"s_mov_b32 s{sSLOW}, 0")
        a(f"s_mov_b32 s{sBATCH}, 0")
        a(f"s_mov_b64 s[{sSM}:{sSM+1}], 0")
        a(f"v_mov_b32 v{IP[1]+1}, v{IP[0]+1}")
        a(f"v_mov_b32 v{IP[0]}, 0")
        a(f"v_mov_b32 v{IP[1]}, 0")
        a(f"v_lshlrev_b32 v{VQA}, 1, v{IP[0]+1}")
        a(f"v_add_u32 v{VQA}, {L_Q}, v{VQA}")
        a("s_mov_b32 s10, 0x00f0000f")
        a("s_mov_b32 s11, 0xf0000f00")
        a("s_mov_b32 s12, 0x00300003")
        a("s_mov_b32 s13, 0x30000300")
        a("s_mov_b32 s14, 0x00c0000c")
        a("s_mov_b32 s15, 0xc0000c00")
        a(f"v_and_b32 v6, 16, v4")
        a(f"v_mov_b32 v{PB}, 0x3f80")
        a(f"v_lshlrev_b32 v{PB}, v6, v{PB}")
        for k in (0, 4, 8):
            a(f"v_cndmask_b32 v{AB+k}, 0, v{PB}, s[12:13]")
            a(f"v_cndmask_b32 v{AB+k+1}, 0, v{PB}, s[14:15]")
        a(f"v_lshrrev_b32 v6, 1, v6")
        a(f"v_mov_b32 v{VEO}, {L_ZERO}")
        a(f"v_or_b32 v{PB}, 4, v6")
        a(f"v_cndmask_b32 v{VEO}, v{VEO}, v{PB}, s[12:13]")
        a(f"v_cndmask_b32 v{VEO}, v{VEO}, v6, s[14:15]")
        a(f"v_cndmask_b32 v{VES}, 0, 4, s[10:11]")
        a(f"v_bfe_u32 v{VH}, v0, 5, 1")
        a(f"v_mov_b32 v7, 4")
        a(f"v_lshrrev_b32 v5, 2, v5")
    def wscale():
        r = []
        for d in range(DP):
            r.append(f"v_pk_mov_b32 {vr(BS+8*d,2)}, {vr(WE,2)}, {vr(WE,2)} op_sel:[0,1]")
            r.append(f"v_pk_mov_b32 {vr(BS+8*d+6,2)}, {vr(WE+2,2)}, {vr(WE+2,2)} op_sel:[0,1]")
        return r
    dpp = [f"row_shr:{sh} row_mask:0xf bank_mask:0xf bound_ctrl:0" for sh in (1, 2, 4, 8)] + \
          ["row_bcast:15 row_mask:0xa bank_mask:0xf", "row_bcast:31 row_mask:0xc bank_mask:0xf"]
    def scan(first):
        a(f"ds_read_b32 v{VC}, v5 offset:{L_CNT}")
        if first: a(f"ds_read_b32 v3, v7 offset:{L_FLAG-4}")
        a("s_waitcnt lgkmcnt(0)")
        a(f"v_mov_b32 v{VEND}, v{VC}")
        if first: a(f"v_readfirstlane_b32 s{sSLOW}, v3")
        else: a("s_nop 0")
        a(f"v_cmp_ne_u32 s[{sNE}:{sNE+1}], 0, v{VC}")
        for i, d in enumerate(dpp):
            if i: a("s_nop 1")
            a(f"v_add_u32_dpp v{VEND}, v{VEND}, v{VEND} {d}")
        a(f"v_sub_u32 v{VSTA}, v{VEND}, v{VC}")
        a(f"v_readlane_b32 s{sT}, v{VEND}, 63")
    def ranges():
        a(f"s_lshr_b32 s{sT}, s{sT}, 2")
        if DEBUG: a(f"s_mov_b32 s92, s{sT}")
        a(f"s_lshl_b32 s{sT2}, s{sW}, 1")
        a(f"s_mul_i32 s{sPOS[0]}, s{sT}, s{sT2}")
        a(f"s_add_u32 s{sPOS[1]}, s{sPOS[0]}, s{sT}")
        a(f"s_add_u32 s{sEND[1]}, s{sPOS[1]}, s{sT}")
        for r in (sPOS[0], sPOS[1], sEND[1]):
            a(f"s_lshr_b32 s{r}, s{r}, 5")
            a(f"s_lshl_b32 s{r}, s{r}, 2")
        a(f"s_mov_b32 s{sEND[0]}, s{sPOS[1]}")
        a(f"s_sub_u32 s{sT2}, s{sPOS[1]}, s{sPOS[0]}")
        a(f"v_mul_u32_u24 v{VIA}, s{sT2}, v{VH}")
        a(f"v_add_u32 v{VIA}, s{sPOS[0]}, v{VIA}")
        a(f"v_mad_u32_u24 v{VEA}, v{VIA}, v{VES}, v{VEO}")
        a(f"v_add_u32 v{VIA}, {L_IDX}, v{VIA}")
    def seg_next(x, lbl):
        a(f"s_lshl2_add_u32 s{sT2}, s{sSEGL[x]}, s{sPOS[x]}")
        a(f"s_mov_b32 s{sROW[x]}, -1")
        a(f"s_cmp_ge_u32 s{sT2}, s{sEND[x]}")
        a(f"s_cselect_b32 s{sSEGL[x]}, {hex(INF)}, s{sSEGL[x]}")
        a(f"s_cbranch_scc1 {lbl}")
        a(f"s_ff1_i32_b64 s{sT2}, s[{sMASK[x]}:{sMASK[x]+1}]")
        a(f"s_and_b32 s{sT2}, s{sT2}, 63")
        a(f"s_bitset0_b64 s[{sMASK[x]}:{sMASK[x]+1}], s{sT2}")
        a(f"v_readlane_b32 s{sT}, v{VEND}, s{sT2}")
        a(f"s_mul_i32 s{sROW[x]}, s{sT2}, {ROWP}")
        a(f"s_add_u32 s{sSEGL[x]}, s{sSEGL[x]}, 1")
        a(f"s_min_u32 s{sT}, s{sT}, s{sEND[x]}")
        a(f"s_sub_u32 s{sT}, s{sT}, s{sPOS[x]}")
        a(f"s_ashr_i32 s{sT}, s{sT}, 2")
        a(f"s_max_i32 s{sSEGL[x]}, s{sSEGL[x]}, s{sT}")
        a.lab(lbl)
    def stream_setup():
        a(f"v_cmp_lt_u32 s[{sMASK[0]}:{sMASK[0]+1}], s{sPOS[0]}, v{VEND}")
        a(f"v_cmp_lt_u32 s[{sMASK[1]}:{sMASK[1]+1}], s{sPOS[1]}, v{VEND}")
        for x in range(2):
            lj = L("INJ")
            a(f"s_and_b64 s[{sMASK[x]}:{sMASK[x]+1}], s[{sMASK[x]}:{sMASK[x]+1}], s[{sNE}:{sNE+1}]")
            a(f"s_mov_b32 s{sSEGL[x]}, 0")
            a(f"s_mov_b32 s{sHEAD[x]}, 0")
            seg_next(x, L("INI"))
            a(f"s_max_i32 s{sCR[x]}, s{sROW[x]}, 0")
            a(f"s_sub_u32 s{sCR[x]}, s{sCR[x]}, {QS}")
            a(f"s_cmp_lt_i32 s{sROW[x]}, 0")
            a(f"s_cbranch_scc1 {lj}")
            a(f"v_readlane_b32 s{sT}, v{VSTA}, s{sT2}")
            a(f"s_add_u32 s{sT2}, s{sT2}, 1")
            a(f"v_mov_b32 v{T3}, s{sT2}")
            a(f"s_lshl_b32 s{sT2}, s{sW}, 1")
            a(f"s_add_u32 s{sT2}, s{sT2}, {x}")
            a(f"s_cmp_ge_u32 s{sT}, s{sPOS[x]}")
            a(f"s_cbranch_scc1 {lj}")
            a(f"s_mov_b32 s{sHEAD[x]}, 1")
            a(f"s_mul_i32 s{sCR[x]}, s{sT2}, {ROWP}")
            a(f"s_add_u32 s{sCR[x]}, s{sCR[x]}, {L_CR-L_Q}")
            a(f"s_lshl_b32 s{sT2}, s{sT2}, 2")
            a(f"v_mov_b32 v6, s{sT2}")
            a(f"ds_write_b32 v6, v{T3} offset:{L_HN}")
            a.lab(lj)
            a(f"s_max_i32 s{sROW[x]}, s{sROW[x]}, 0")
        a(f"v_add_u32 v{T0}, s{sROW[0]}, v{VQA}")
        a(f"v_add_u32 v{T1}, s{sCR[0]}, v{VQA}")
        exec_half(1)
        a(f"v_add_u32 v{T0}, s{sROW[1]}, v{VQA}")
        a(f"v_add_u32 v{T1}, s{sCR[1]}, v{VQA}")
        a("s_mov_b64 exec, -1")
        a(f"v_lshlrev_b32 v3, {2 + (DP.bit_length()-1)}, v{VES}")
        a(f"s_min_u32 s{sTEV}, s{sSEGL[0]}, s{sSEGL[1]}")
        a(f"s_sub_u32 s{sREM}, s{sTEV}, 1")
        a(f"s_sub_u32 s{sLEFT}, s{sEND[1]}, s{sPOS[1]}")
        a(f"s_lshr_b32 s{sLEFT}, s{sLEFT}, 2")
        a(f"s_sub_u32 s6, s{sHEAD[0]}, 1")
        a(f"s_sub_u32 s7, s{sHEAD[1]}, 1")
        a(f"s_and_b64 s[6:7], s[6:7], s[{sSM}:{sSM+1}]")
        a(f"v_mov_b32 v5, {L_ZERO}")
        a(f"v_cndmask_b32 v{T3}, v5, v{T1}, s[6:7]")
    def first_loads():
        a(f"ds_read_b32 v{IP[0]}, v{VIA}")
        a(f"ds_read_b32 v{IP[1]}, v{VIA} offset:4")
        a(f"ds_read2_b32 {vr(ES[0],2)}, v{VEA} offset0:0 offset1:1")
        a(f"ds_read2_b32 {vr(ES[1],2)}, v{VEA} offset0:4 offset1:5")
        a("s_waitcnt lgkmcnt(2)")
        a(f"buffer_load_dwordx4 {vr(BS+2,4)}, {vr(IP[0],2)}, s[44:47], 0 idxen offen")
        a(f"buffer_load_dwordx4 {vr(BS+8+2,4)}, {vr(IP[1],2)}, s[44:47], 0 idxen offen")
        a(f"ds_read_b32 v{IP[0]}, v{VIA} offset:8")
        a(f"ds_read_b32 v{IP[1]}, v{VIA} offset:12")
    def pload(slot, pair):
        if "novm" in EXP: return
        a(f"buffer_load_dwordx4 {vr(BS+8*slot+2,4)}, {vr(pair,2)}, s[44:47], 0 idxen offen")
    def groups(n, body):
        for grp in ([0, 1], [2], [3, 4, 5]):
            grp = [i for i in grp if i < n]
            if not grp: continue
            l = None
            if grp[0] >= 2:
                l = L("SK")
                a(f"s_cmp_eq_u64 s[{sV[grp[0]]}:{sV[grp[0]]+1}], 0")
                a(f"s_cbranch_scc1 {l}")
            for i in grp: body(i)
            if l: a.lab(l)
    def rec(i): return R0 + i + (i // 3)
    def meta(i): return R0 + 3 + 4*(i // 3)
    def rank_atomics(n):
        def body(i):
            a(f"v_bfe_u32 v{LA+i}, v{meta(i)}, {8*(i%3)}, 8")
            a(f"s_mov_b64 exec, s[{sV[i]}:{sV[i]+1}]")
            a(f"ds_add_rtn_u32 v{RK+i}, v{LA+i}, v7 offset:{L_CNT}")
            a("s_mov_b64 exec, -1")
        groups(n, body)
    def zero_batch(upto):
        assert 16384 < upto <= 2*16384 and upto % 16 == 0
        a(f"ds_write_b128 v4, {vr(ZT,4)} offset:{upto-16384}")
        a(f"ds_write_b128 v4, {vr(ZT,4)}")
    def xread(nt, s):
        a(f"ds_read_b128 {vr(XF+4*s,4)}, v{VXA} offset:{16*nt*XROW+64*s}")
    def gemm_pre():
        for s in range(4): xread(0, s)
        a(f"v_mov_b32 v{VSTA}, {hex(S_LOG2E)}")
    def gemm_tile(nt):
        a("s_waitcnt lgkmcnt(0)")
        for s in range(4):
            for t in range(2):
                a(f"v_mfma_f32_16x16x32_bf16 {vr(QA+4*t,4)}, {vr(WF+16*t+4*s,4)}, {vr(XF+4*s,4)}, {'0' if s == 0 else vr(QA+4*t,4)}")
            if nt < 2: xread(nt+1, s)
        a("s_nop 6")
        if nt == 2:
            a("s_mov_b32 exec_lo, 0x00ff00ff")
            a("s_mov_b32 exec_hi, 0x00ff00ff")
        for t in range(2):
            for k in range(4): a(f"v_fma_f32 v{QA+4*t+k}, v{QA+4*t+k}, v{VSTA}, v{BI+4*t+k}")
            a(f"ds_write_b128 v{VQW}, {vr(QA+4*t,4)} offset:{16*nt*ROWP+64*t}")
        if nt == 2: a("s_mov_b64 exec, -1")
    def wq_loads(lo, hi):
        for f in range(lo, hi):
            t, s = divmod(f, 4)
            a(f"buffer_load_dwordx4 {vr(WF+16*t+4*s,4)}, v{VXA}, s[40:43], s{sWQ+t} offen offset:{1024*s}")

    def signal(k):
        a("s_waitcnt lgkmcnt(0)")
        a("s_mov_b64 exec, 1")
        a(f"ds_add_u32 v7, v7 offset:{L_FLAG+4*k}")
        a("s_mov_b64 exec, -1")
    def spin(k):
        l = L("SP")
        a("s_mov_b32 s8, 0x100000")
        a.lab(l)
        a(f"ds_read_b32 v6, v7 offset:{L_FLAG+4*k}")
        a("s_sub_u32 s8, s8, 1")
        a(f"s_cbranch_scc1 {l}X")
        a("s_waitcnt lgkmcnt(0)")
        a("v_readfirstlane_b32 s9, v6")
        a("s_nop 0")
        a("s_cmp_lt_u32 s9, 32")
        a(f"s_cbranch_scc1 {l}")
        a.lab(l + "X")
    def list_build(n):
        groups(n, lambda i: a(f"ds_bpermute_b32 v{PS+i}, v{LA+i}, v{VSTA}"))
        if n > 1:
            a(f"s_cmp_gt_u32 s{sT}, {4*BATCH}")
            a("s_cbranch_scc1 K2_SLOW_S")
        a("s_waitcnt lgkmcnt(0)")
        def body(i):
            a(f"v_add_u32 v{PS+i}, v{PS+i}, v{RK+i}")
            a(f"v_lshlrev_b32 v{RK+i}, 2, v{PS+i}")
            a(f"s_mov_b64 exec, s[{sV[i]}:{sV[i]+1}]")
            a(f"ds_write_b16_d16_hi v{PS+i}, v{rec(i)} offset:{L_IDX}")
            a(f"ds_write_b16 v{RK+i}, v{rec(i)} offset:{L_EP+4}")
            a(f"ds_write_b16 v{RK+i}, v{rec(i)} offset:{L_EP+14}")
            a("s_mov_b64 exec, -1")
        groups(n, body)
    def deg_acc():
        l = L("ND")
        a(f"s_cmp_lg_u32 s{sW}, 0")
        a(f"s_cbranch_scc1 {l}")
        a(f"ds_add_u32 v5, v{VC} offset:{L_DEG}")
        a.lab(l)
    a("v_and_b32 v2, 0x70, v4")
    a("v_add_u32 v3, v3, v2")
    a(f"buffer_load_dwordx4 {vr(R0,4)}, v3, s[40:43], s4 offen")
    assert L_CNT <= 3*8192
    a(f"ds_write_b128 v4, {vr(ZT,4)}")
    a(f"ds_write_b128 v4, {vr(ZT,4)} offset:8192")
    a(f"ds_write_b128 v4, {vr(ZT,4)} offset:{L_CNT-8192}")
    lane_consts()
    a("v_and_b32 v2, 7, v0")
    a("s_waitcnt vmcnt(1)")
    for ins in wscale(): a(ins)
    stamp("a")
    a("s_waitcnt vmcnt(0)")
    stamp("b")
    a(f"v_lshrrev_b32 v{HD}, 24, v{R0+3}")
    a(f"v_sub_u32 v2, v{HD}, v2")
    a(f"v_cmp_lt_u32 vcc, {CAP}, v{HD}")
    for i in range(6):
        a(f"v_cmp_lt_i32 s[{sV[i]}:{sV[i]+1}], {8*i}, v2")
    a(f"s_cmp_eq_u64 s[{sV[3]}:{sV[3]+1}], 0")
    a("s_cbranch_scc1 K2_NOL1")
    a(f"buffer_load_dwordx4 {vr(R0+4,4)}, v3, s[40:43], s4 offen offset:128")
    a("s_waitcnt vmcnt(0)")
    a.lab("K2_NOL1")
    rank_atomics(6)
    a("s_mov_b64 exec, vcc")
    a(f"ds_write_b32 v7, v7 offset:{L_FLAG-4}")
    signal(0)
    spin(0)
    stamp(2)
    scan(True)
    a(f"s_cmp_lg_u32 s{sSLOW}, 0")
    a("s_cbranch_scc1 K2_SLOW_S")
    list_build(6)
    signal(1)
    deg_acc()
    ranges()
    spin(1)
    stamp(3)
    first_loads()
    stream_setup()
    spin(3)
    a("s_branch K2_JOIN")
    a.lab("K2_SCAN")
    scan(False)
    list_build(1)
    deg_acc()
    ranges()
    stream_setup()
    a("s_waitcnt lgkmcnt(0)")
    a("s_barrier")
    first_loads()
    a("s_branch K2_JOIN")

    a.lab("K2_GEMMER")
    if "noprio" not in EXP: a("s_setprio 3")
    srd(a, 36, PX, N*256)
    a("v_subrev_u32 v2, 512, v0")
    a("v_and_b32 v3, 15, v0")
    a("v_lshrrev_b32 v6, 4, v2")
    a("v_lshlrev_b32 v7, 16, v6")
    a("v_lshl_add_u32 v7, v3, 4, v7")
    a("v_add_u32 v7, s5, v7")
    a(f"buffer_load_dwordx4 {vr(XP,4)}, v7, s[36:39], 0 offen")
    a("v_add_u32 v7, 0x200000, v7")
    a(f"buffer_load_dwordx4 {vr(XP+4,4)}, v7, s[36:39], 0 offen")
    a("s_lshr_b32 s9, s2, 3")
    a(f"s_add_u32 s9, s9, s{sW}")
    a("s_and_b32 s9, s9, 7")
    a(f"s_lshl_b32 s{sWQ}, s9, 13")
    a(f"s_add_u32 s{sWQ}, s{sWQ}, {hex(WS_WQ)}")
    a(f"s_add_u32 s{sWQ+1}, s{sWQ}, 4096")
    a(f"v_mov_b32 v{VXA}, v5")
    a("v_and_b32 v7, 0x30, v0")
    a("s_lshl_b32 s8, s9, 7")
    a(f"v_add_u32 v{PB}, s8, v7")
    a(f"global_load_dwordx4 {vr(BI,4)}, v{PB}, s[6:7] offset:{WS_B1-WS_WE}")
    a(f"global_load_dwordx4 {vr(BI+4,4)}, v{PB}, s[6:7] offset:{WS_B1-WS_WE+64}")
    wq_loads(0, 2)
    a(f"v_mul_u32_u24 v6, {XROW}, v6")
    a(f"v_lshl_add_u32 v6, v3, 4, v6")
    a(f"v_add_u32 v1, {L_XS}, v6")
    a(f"v_mul_u32_u24 v{VQW}, {ROWP}, v3")
    a(f"s_add_u32 s8, s8, {L_Q}")
    a(f"v_add3_u32 v{VQW}, v{VQW}, v7, s8")
    a(f"v_mul_u32_u24 v2, {XROW}, v3")
    a(f"s_mov_b32 s8, {L_XS}")
    a(f"v_add3_u32 v2, v2, v7, s8")
    wq_loads(2, 4)
    lane_consts()
    wq_loads(4, 8)
    a(f"v_mov_b32 v{VXA}, v2")
    stamp("a")
    a(f"s_waitcnt vmcnt(10)")
    stamp("b")
    a(f"ds_write_b128 v1, {vr(XP,4)}")
    a(f"s_cmp_ge_u32 s{sW}, 12")
    a("s_cbranch_scc1 K2_NOXS")
    a(f"ds_write_b128 v1, {vr(XP+4,4)} offset:{32*XROW}")
    a.lab("K2_NOXS")
    signal(2)
    for ins in wscale(): a(ins)
    spin(2)
    gemm_pre()
    a("s_waitcnt vmcnt(0)")
    gemm_tile(0)
    gemm_tile(1)
    gemm_tile(2)
    signal(3)
    stamp("c")
    if "touch" in EXP:
        a(f"s_cmp_lg_u32 s{sW}, 15")
        a("s_cbranch_scc1 K2_NOTOUCH")
        a("v_and_b32 v6, 63, v0")
        a("v_lshlrev_b32 v6, 16, v6")
        a("v_add_u32 v6, s5, v6")
        a(f"buffer_load_dword v{QA}, v6, s[48:51], 0 offen")
        a(f"global_load_dword v{QA+1}, v7, s[{PB2}:{PB2+1}]")
        a.lab("K2_NOTOUCH")
    spin(0)
    stamp(2)
    scan(True)
    a(f"s_cmp_gt_u32 s{sT}, {4*BATCH}")
    a(f"s_cselect_b32 s{sSLOW}, 1, s{sSLOW}")
    a(f"s_cmp_lg_u32 s{sSLOW}, 0")
    a("s_cbranch_scc1 K2_SLOW_SYNC")
    ranges()
    spin(1)
    stamp(3)
    first_loads()
    stream_setup()
    spin(3)
    a.lab("K2_JOIN")
    a(f"ds_read_b128 {vr(ACC,4)}, v{T3}")
    a(f"ds_read_b128 {vr(ACC+4,4)}, v{T3} offset:16")
    a("s_waitcnt lgkmcnt(0)")
    if "noprio" not in EXP: a("s_setprio 2")
    stamp("d")
    a(f"s_cmp_eq_u32 s{sTEV}, {hex(INF)}")
    a("s_cbranch_scc1 K2_LOOP_DONE")
    a(f"ds_read_b128 {vr(Q,4)}, v{T0}")
    a(f"ds_read_b128 {vr(Q+4,4)}, v{T0} offset:16")
    a(f"buffer_load_dwordx4 {vr(BS+16+2,4)}, {vr(IP[0],2)}, s[44:47], 0 idxen offen")
    a(f"buffer_load_dwordx4 {vr(BS+24+2,4)}, {vr(IP[1],2)}, s[44:47], 0 idxen offen")
    a(f"ds_read_b32 v{IP[0]}, v{VIA} offset:{4*DP}")
    a(f"ds_read_b32 v{IP[1]}, v{VIA} offset:{4*(DP+1)}")
    def mfma(slot, es, u, which):
        if "nomfma" in EXP: return
        if which == 0:
            a(f"v_mfma_f32_16x16x32_bf16 {vr(u,4)}, {vr(es,4)}, {vr(BS+8*slot,4)}, {vr(Q,4)}")
        else:
            a(f"v_mfma_f32_16x16x32_bf16 {vr(u+4,4)}, {vr(es-2,4)}, {vr(BS+8*slot+4,4)}, {vr(Q+4,4)}")
    a(f"s_waitcnt vmcnt({DP-1}) lgkmcnt(0)")
    mfma(0, ES[0], U[0], 0); mfma(0, ES[0], U[0], 1)
    pload(0, IP[0])
    stamp(4)
    a(f"s_sub_u32 s{sREM}, s{sREM}, 1")
    a("s_nop 5")
    a("s_cbranch_scc1 K2_BND0")
    a("s_branch K2_SUB0")
    def rdE(k):
        if "nods" in EXP: return
        a(f"ds_read2_b32 {vr(ES[k&1],2)}, v{VEA} offset0:{4*(k+2)} offset1:{4*(k+2)+1}")
    def rdI(k):
        if "nods" in EXP: return
        a(f"ds_read_b32 v{IP[k&1]}, v{VIA} offset:{4*(k+2+DP)}")
    def ex(c, u): a(f"v_exp_f32 v{EX+c}, v{u+c}")
    def rc(c): a(f"v_rcp_f32 v{EX+c}, v{EX+c}")
    def pa(c): a(f"v_pk_add_f32 {vr(EX+c,2)}, {vr(EX+c,2)}, 1.0 op_sel_hi:[1,0]")
    def pf(c, u): a(f"v_pk_fma_f32 {vr(ACC+c,2)}, {vr(u+c,2)}, {vr(EX+c,2)}, {vr(ACC+c,2)}")
    def valu(u):
        for c in range(8): ex(c, u)
        for c in range(0, 8, 2): pa(c)
        for c in range(8): rc(c)
        for c in range(0, 8, 2): pf(c, u)
    def tail(u):
        rc(7)
        for c in range(0, 8, 2): pf(c, u)
    uid = [0]
    def prio():
        if "noprio" in EXP: return
        uid[0] += 1
        lbl = f"K2_PR{uid[0]}"
        a(f"s_cmp_gt_i32 s{sLEFT}, {PR1}")
        a(f"s_cbranch_scc1 {lbl}_D")
        a("s_setprio 1")
        a(f"s_cmp_gt_i32 s{sLEFT}, {PR0}")
        a(f"s_cbranch_scc1 {lbl}_D")
        a("s_setprio 0")
        a.lab(f"{lbl}_D")
    def advance():
        a(f"v_add_u32 v{VEA}, v3, v{VEA}")
        a(f"v_add_u32 v{VIA}, {4*DP}, v{VIA}")
        a(f"s_sub_u32 s{sLEFT}, s{sLEFT}, {DP}")
        prio()
    a.raw(".p2align 3")
    a.lab("K2_LOOP")
    advance()
    for k in range(DP):
        u = U[k & 1]
        a.lab(f"K2_SUB{k}")
        ex(0, u)
        if k == 2 and PRM >= 0 and "noprio" not in EXP:
            a(f"s_cmp_gt_i32 s{sLEFT}, {PRM}")
            a("s_cbranch_scc1 K2_PM")
            a("s_setprio 0")
            a.lab("K2_PM")
        a(f"s_waitcnt vmcnt({DP-1}) lgkmcnt(0)")
        ex(1, u)
        mfma((k+1) % DP, ES[(k+1) & 1], U[(k+1) & 1], 0)
        ex(2, u)
        mfma((k+1) % DP, ES[(k+1) & 1], U[(k+1) & 1], 1)
        ex(3, u)
        pload((k+1) % DP, IP[(k+1) & 1])
        ex(4, u)
        rdE(k)
        ex(5, u)
        rdI(k)
        ex(6, u); ex(7, u)
        for c in range(0, 8, 2): pa(c)
        for c in range(6): rc(c)
        a(f"s_sub_u32 s{sREM}, s{sREM}, 1")
        rc(6)
        a(f"s_cbranch_scc1 K2_BNDT{k}")
        tail(u)
    a("s_branch K2_LOOP")
    for k in range(DP):
        kp = (k - 1) % DP
        a.lab(f"K2_BNDT{kp}")
        tail(U[kp & 1])
        if k == 0: advance()
        a.lab(f"K2_BND{k}")
        a(f"s_mov_b64 s[{sX}:{sX+1}], 0")
        a("s_mov_b64 s[6:7], 0")
        for x in range(2):
            a(f"s_cmp_lg_u32 s{sSEGL[x]}, s{sTEV}")
            a(f"s_cbranch_scc1 K2_B{k}_N{x}")
            a(f"s_mov_b32 s{sX+x}, -1")
            seg_next(x, f"K2_B{k}_S{x}")
            a(f"s_cmp_lt_i32 s{sROW[x]}, 0")
            a(f"s_cbranch_scc1 K2_B{k}_N{x}")
            a(f"s_mov_b32 s{6+x}, -1")
            exec_half(x)
            a(f"v_add_u32 v{T0}, s{sROW[x]}, v{VQA}")
            a.lab(f"K2_B{k}_N{x}")
        a("s_mov_b64 exec, s[6:7]")
        a("s_waitcnt lgkmcnt(0)")
        a(f"ds_read_b128 {vr(Q,4)}, v{T0}")
        a(f"ds_read_b128 {vr(Q+4,4)}, v{T0} offset:16")
        a("s_mov_b64 exec, -1")
        valu(U[k & 1])
        a(f"s_mov_b64 exec, s[{sX}:{sX+1}]")
        a(f"ds_write_b128 v{T1}, {vr(ACC,4)}")
        a(f"ds_write_b128 v{T1}, {vr(ACC+4,4)} offset:16")
        a("s_mov_b64 exec, s[6:7]")
        a(f"v_subrev_u32 v{T1}, {QS}, v{T0}")
        a(f"v_cndmask_b32 v{T3}, v5, v{T1}, s[{sSM}:{sSM+1}]")
        a(f"ds_read_b128 {vr(ACC,4)}, v{T3}")
        a(f"ds_read_b128 {vr(ACC+4,4)}, v{T3} offset:16")
        a("s_mov_b64 exec, -1")
        a(f"s_sub_u32 s{sREM}, -1, s{sTEV}")
        a(f"s_min_u32 s{sTEV}, s{sSEGL[0]}, s{sSEGL[1]}")
        a(f"s_cmp_eq_u32 s{sTEV}, {hex(INF)}")
        a("s_cbranch_scc1 K2_LOOP_DONE")
        a(f"s_add_u32 s{sREM}, s{sREM}, s{sTEV}")
        a(f"s_waitcnt vmcnt({DP-1}) lgkmcnt(2)")
        mfma((k+1) % DP, ES[(k+1) & 1], U[(k+1) & 1], 0)
        mfma((k+1) % DP, ES[(k+1) & 1], U[(k+1) & 1], 1)
        pload((k+1) % DP, IP[(k+1) & 1])
        rdE(k); rdI(k)
        a(f"s_sub_u32 s{sREM}, s{sREM}, 1")
        a("s_nop 3")
        if k < DP-1:
            a(f"s_cbranch_scc1 K2_BND{k+1}")
            a(f"s_branch K2_SUB{k+1}")
        else:
            a(f"s_cbranch_scc0 K2_LOOP")
            advance()
            a(f"s_branch K2_BND0")
    a.lab("K2_LOOP_DONE")
    a("s_setprio 0")
    stamp(5)
    if DEBUG:
        a("s_lshl_b32 s93, s2, 4")
        a("s_add_u32 s93, s93, s3")
        a("s_lshl_b32 s93, s93, 5")
        a("s_add_u32 s93, s93, 0xA80000")
        a("v_mov_b32 v1, s93")
        for i in range(8): a(f"v_mov_b32 v{8+i}, s{84+i}")
        a("global_store_dwordx4 v1, v[8:11], s[34:35]")
        a("global_store_dwordx4 v1, v[12:15], s[34:35] offset:16")
    a("s_waitcnt vmcnt(0)")
    a(f"s_cmp_lg_u32 s{sSLOW}, 0")
    a("s_cbranch_scc1 K2_COMB")
    a.lab("K2_EPI")
    a.c("out = -ln2 * S @ w2 + deg*b2")
    AF = 56
    SF = 8
    OA = 32
    B2 = 120
    DG = 124
    a(f"s_cmp_ge_u32 s{sW}, 4")
    a("s_cbranch_scc1 K2_COMB")
    a(f"s_lshl_b32 s6, s{sW}, 14")
    a(f"s_add_u32 s6, s6, {hex(WS_W2)}")
    a("v_and_b32 v7, 63, v0")
    a("v_lshlrev_b32 v7, 4, v7")
    for q in range(4):
        if q: a("s_add_u32 s6, s6, 4096")
        for s in range(4):
            a(f"buffer_load_dwordx4 {vr(AF+16*q+4*s,4)}, v7, s[40:43], s6 offen offset:{1024*s}")
    a("v_bfe_u32 v7, v0, 4, 2")
    a(f"s_lshl_b32 s7, s{sW}, 6")
    a("v_lshlrev_b32 v5, 3, v7")
    a("v_add_u32 v5, s7, v5")
    a(f"global_load_dwordx2 {vr(B2,2)}, v5, s[{PB2}:{PB2+1}]")
    a(f"global_load_dwordx2 {vr(B2+2,2)}, v5, s[{PB2}:{PB2+1}] offset:32")
    a.lab("K2_COMB")
    a("v_and_b32 v1, 63, v0")
    a("v_lshlrev_b32 v2, 2, v1")
    a(f"v_add_u32 v2, {L_HN}, v2")
    a(f"s_mul_i32 s4, s{sW}, {ROWP}")
    a(f"s_add_u32 s4, s4, {L_S}")
    a("v_lshlrev_b32 v3, 4, v1")
    a("v_add_u32 v4, s4, v3")
    a(f"v_add_u32 v3, {L_CR}, v3")
    a(f"s_mul_i32 s4, s{sW}, {SBROW}")
    a(f"s_add_u32 s4, s4, {L_SB}")
    a("v_lshlrev_b32 v6, 3, v1")
    a("v_add_u32 v6, s4, v6")
    stamp("e")
    a("s_waitcnt lgkmcnt(0)")
    a("s_barrier")
    stamp("f")
    a("ds_read_b32 v2, v2")
    for r in range(3):
        a(f"ds_read_b128 {vr(8+4*r,4)}, v4 offset:{16*r*ROWP}")
    a(f"s_add_u32 s4, s{sW}, 1")
    a(f"s_or_b64 s[10:11], s[{sNE}:{sNE+1}], s[{sSM}:{sSM+1}]")
    a(f"s_lshr_b64 s[10:11], s[10:11], s{sW}")
    a("s_waitcnt lgkmcnt(3)")
    a("v_subrev_u32 v2, s4, v2")
    CM = [6, 12, 14]
    for r in range(3): a(f"v_cmp_eq_u32 s[{CM[r]}:{CM[r]+1}], {16*r}, v2")
    a.lab("K2_CBL")
    for r in range(3):
        a(f"s_ff1_i32_b32 s8, s{CM[r]}")
        a(f"s_bitset0_b32 s{CM[r]}, s8")
        a(f"s_mul_i32 s9, s8, {ROWP}")
        a("s_cmp_lt_i32 s8, 0")
        a(f"v_add_u32 v7, s9, v3")
        a(f"s_cbranch_scc0 K2_CH{r}")
        a(f"v_mov_b32 v7, {L_ZERO}")
        a.lab(f"K2_CH{r}")
        a(f"ds_read_b128 {vr(20+4*r,4)}, v7")
    for r in range(3):
        a(f"s_bitcmp1_b64 s[10:11], {16*r}")
        a(f"s_cbranch_scc1 K2_CZ{r}")
        a("s_waitcnt lgkmcnt(3)")
        for c in range(4): a(f"v_mov_b32 v{8+4*r+c}, 0")
        a.lab(f"K2_CZ{r}")
    a(f"s_or_b32 s8, s{CM[0]}, s{CM[1]}")
    a(f"s_or_b32 s8, s8, s{CM[2]}")
    a("s_waitcnt lgkmcnt(0)")
    for r in range(3):
        for c in range(0, 4, 2): a(f"v_pk_add_f32 {vr(8+4*r+c,2)}, {vr(8+4*r+c,2)}, {vr(20+4*r+c,2)}")
    a("s_cbranch_scc1 K2_CBL")
    a(f"s_cmp_lg_u32 s{sSLOW}, 0")
    a("s_cbranch_scc1 K2_SLOW_WB")
    for r in range(3):
        a(f"v_cvt_pk_bf16_f32 v{24+2*r}, v{8+4*r}, v{9+4*r}")
        a(f"v_cvt_pk_bf16_f32 v{25+2*r}, v{10+4*r}, v{11+4*r}")
        a(f"ds_write_b64 v6, {vr(24+2*r,2)} offset:{16*r*SBROW}")
    a("v_and_b32 v2, 15, v0")
    a("v_bfe_u32 v7, v0, 4, 2")
    a(f"v_mul_u32_u24 v4, {SBROW}, v2")
    a("v_lshl_add_u32 v4, v7, 4, v4")
    a(f"v_add_u32 v4, {L_SB}, v4")
    a(f"v_lshlrev_b32 v1, 2, v2")
    a(f"v_add_u32 v1, {L_DEG}, v1")
    a("v_lshl_add_u32 v5, v2, 16, v5")
    a("s_lshl_b32 s9, s2, 8")
    a("v_add_u32 v5, s9, v5")
    stamp("g")
    a("s_waitcnt lgkmcnt(0)")
    a("s_barrier")
    a(f"s_cmp_ge_u32 s{sW}, 4")
    a("s_cbranch_scc1 K2_EXIT")
    stamp(6)
    seq = [(s, nt) for nt in range(3) for s in range(8)]
    def sread(i):
        s, nt = seq[i]
        a(f"ds_read_b128 {vr(SF+4*(i%4),4)}, v4 offset:{64*s+16*nt*SBROW}")
    for nt in range(3): a(f"ds_read_b32 v{DG+nt}, v1 offset:{64*nt}")
    for i in range(4): sread(i)
    a("s_waitcnt vmcnt(0)")
    BU = 24
    pre = []
    for t in range(2):
        pre += [f"v_lshlrev_b32 v{BU+4*t}, 16, v{B2+2*t}", f"v_and_b32 v{BU+4*t+1}, 0xffff0000, v{B2+2*t}",
                f"v_lshlrev_b32 v{BU+4*t+2}, 16, v{B2+2*t+1}", f"v_and_b32 v{BU+4*t+3}, 0xffff0000, v{B2+2*t+1}"]
    pre.append(f"v_mov_b32 v{DG+3}, {hex(S_LN2)}")
    for nt in range(3):
        pre += [f"v_cvt_f32_u32 v{DG+nt}, v{DG+nt}", f"v_mul_f32 v{DG+nt}, 0.25, v{DG+nt}"]
    def tailops(nt):
        r = []
        for k in range(8): r.append(f"v_mul_f32 v{OA+8*nt+k}, v{DG+3}, v{OA+8*nt+k}")
        for k in range(8): r.append(f"v_fmac_f32 v{OA+8*nt+k}, v{DG+nt}, v{BU+k}")
        if nt: r.append(f"v_add_u32 v5, 0x100000, v5")
        for t in range(2):
            o = OA + 8*nt + 4*t
            r += [f"v_cvt_pk_bf16_f32 v{o}, v{o}, v{o+1}", f"v_cvt_pk_bf16_f32 v{o+1}, v{o+2}, v{o+3}",
                  f"buffer_store_dwordx2 {vr(o,2)}, v5, s[48:51], 0 offen offset:{32*t}"]
        return r
    extra = list(pre)
    for i, (s, nt) in enumerate(seq):
        a(f"s_waitcnt lgkmcnt({min(3, len(seq)-1-i)})")
        for t in range(2):
            o = OA + 8*nt + 4*t
            c = "0" if s == 0 else vr(o, 4)
            a(f"v_mfma_f32_16x16x32_bf16 {vr(o,4)}, {vr(AF+32*t+4*s,4)}, {vr(SF+4*(i%4),4)}, {c}")
        if i + 4 < len(seq): sread(i+4)
        if s == 2 and nt:
            assert not extra
            extra = tailops(nt-1)
        for _ in range(4):
            if extra: a(extra.pop(0))
    assert not extra
    a("s_nop 7")
    for ins in tailops(2): a(ins)
    if DEBUG:
        stamp(7)
        a("s_cmp_lg_u32 s3, 0")
        a("s_cbranch_scc1 K2_EXIT")
        a("s_memrealtime s[98:99]")
        a("s_lshl_b32 s93, s2, 6")
        a("s_add_u32 s93, s93, 0xA00000")
        a("v_mov_b32 v1, s93")
        a("s_waitcnt lgkmcnt(0)")
        for i in range(8):
            a(f"s_sub_u32 s93, s{84+i}, s84")
            a("v_mov_b32 v2, s93")
            a(f"global_store_dword v1, v2, s[34:35] offset:{4*i}")
        for off, sr_ in ((32, 96), (36, 98), (40, 92)):
            a(f"v_mov_b32 v2, s{sr_}")
            a(f"global_store_dword v1, v2, s[34:35] offset:{off}")
    a.lab("K2_EXIT")
    a("s_endpgm")
    a.lab("K2_SLOW_WB")
    a(f"ds_write_b128 v4, v[8:11]")
    a(f"ds_write_b128 v4, v[12:15] offset:{16*ROWP}")
    a(f"s_cmp_ge_u32 s{sW}, 8")
    a("s_cbranch_scc1 K2_SLOW_SYNC")
    a(f"ds_write_b128 v4, v[16:19] offset:{32*ROWP}")
    a("s_branch K2_SLOW_SYNC")
    a.lab("K2_SLOW_S")
    a.lab("K2_SLOW_SET")
    a(f"s_mov_b32 s{sSLOW}, 1")
    a.lab("K2_SLOW_SYNC")
    a("s_waitcnt lgkmcnt(0)")
    a("s_barrier")
    a.lab("K2_SLOW_NEXT")
    a("v_lshlrev_b32 v4, 4, v0")
    for k in range(4): a(f"v_mov_b32 v{ZT+k}, 0")
    zero_batch(L_BZEND)
    a(f"s_cmp_lg_u32 s{sBATCH}, 0")
    a("s_cbranch_scc1 K2_SLOW_NZ")
    a(f"s_mov_b64 s[{sSM}:{sSM+1}], -1")
    a(f"ds_write_b128 v4, {vr(ZT,4)} offset:{L_S}")
    a(f"ds_write_b128 v4, {vr(ZT,4)} offset:{L_S+16384}")
    a(f"ds_write_b128 v4, {vr(ZT,4)} offset:{L_S+40*ROWP-16384}")
    a.lab("K2_SLOW_NZ")
    a(f"s_cmp_lt_u32 s{sBATCH}, {E}")
    a("s_cbranch_scc1 K2_SLOW_GO")
    a(f"s_mov_b32 s{sSLOW}, 0")
    a("s_branch K2_EPI")
    a.lab("K2_SLOW_GO")
    a(f"v_add_u32 v5, s{sBATCH}, v0")
    a(f"v_mov_b32 v6, {E}")
    a("v_cmp_lt_u32 vcc, v5, v6")
    a(f"v_min_u32 v5, {E-1}, v5")
    a("v_lshlrev_b32 v6, 2, v5")
    a("v_lshlrev_b32 v7, 1, v5")
    SD, SE, SS = 40, 41, 42
    a(f"global_load_dword v{SD}, v6, s[{PDST}:{PDST+1}]")
    a(f"global_load_dword v{SS}, v6, s[{PSRC}:{PSRC+1}]")
    a(f"global_load_ushort v{SE}, v7, s[{PE}:{PE+1}]")
    a("v_and_b32 v5, 63, v0")
    a("v_lshlrev_b32 v5, 2, v5")
    a("s_waitcnt vmcnt(0) lgkmcnt(0)")
    a("s_barrier")
    a(f"v_and_b32 v7, 0xff, v{SD}")
    a(f"v_cmp_eq_u32 s[{sV[0]}:{sV[0]+1}], s2, v7")
    a(f"v_lshl_or_b32 v{R0}, v{SS}, 16, v{SE}")
    a(f"v_lshrrev_b32 v7, 6, v{SD}")
    a(f"v_and_b32 v{R0+3}, 0xfc, v7")
    a(f"s_and_b64 s[{sV[0]}:{sV[0]+1}], s[{sV[0]}:{sV[0]+1}], vcc")
    a("v_mov_b32 v7, 4")
    rank_atomics(1)
    a("s_mov_b64 exec, -1")
    a(f"s_add_u32 s{sBATCH}, s{sBATCH}, {BATCH}")
    a("s_waitcnt lgkmcnt(0)")
    a("s_barrier")
    a("s_branch K2_SCAN")
    return 128

HEADER = open('standalone__edge_featured_mpnn_mpnn__graph.s.ref').read().split("; Override launch")[0]

def kd(name, nv, ns):
    acc = (nv + 3) // 4 * 4
    return f""".p2align 6
.amdhsa_kernel {name}
  .amdhsa_next_free_vgpr {nv}
  .amdhsa_next_free_sgpr {ns}
  .amdhsa_accum_offset {acc}
  .amdhsa_group_segment_fixed_size 0
  .amdhsa_kernarg_size 88
  .amdhsa_user_sgpr_count 2
  .amdhsa_user_sgpr_kernarg_segment_ptr 1
  .amdhsa_system_sgpr_workgroup_id_x 1
.end_amdhsa_kernel
"""

def build(TPW=4, DP=6):
    a = Asm()
    g1 = gen_k1(a, TPW)
    nv2 = gen_k2(a, DP)
    out = HEADER
    out += f"; @launch kernel=k1_kernel grid=({g1},1,1) block=(512,1,1) lds={K1_LDS}\n"
    out += f"; @launch kernel=k2_kernel grid=(256,1,1) block=(1024,1,1) lds={L_END}\n"
    out += '.amdgcn_target "amdgcn-amd-amdhsa--gfx950"\n.text\n'
    out += a.text()
    out += '.section .rodata,"a"\n'
    out += kd("k1_kernel", 144, 64)
    out += kd("k2_kernel", 128, 102)
    return out

if __name__ == "__main__":
    import argparse
    ap = argparse.ArgumentParser()
    ap.add_argument("-o", default="standalone__edge_featured_mpnn_mpnn__graph.s")
    ap.add_argument("--tpw", type=int, default=4)
    ap.add_argument("--dp", type=int, default=4)
    ap.add_argument("--debug", action="store_true")
    ap.add_argument("--srcmask", type=int, default=0)
    ap.add_argument("--exp", default="")
    ap.add_argument("--pr1", type=int, default=8)
    ap.add_argument("--pr0", type=int, default=4)
    ap.add_argument("--prm", type=int, default=-1)
    ap.add_argument("--wqs", type=int, default=4)
    ap.add_argument("--wqs2", type=int, default=5)
    ap.add_argument("--pf", type=int, default=0)
    args = ap.parse_args()
    DEBUG = args.debug
    SRCMASK = args.srcmask
    PF = args.pf
    WQSPLIT = args.wqs
    PR1, PR0, PRM = args.pr1, args.pr0, args.prm
    WQSPLIT2 = args.wqs2
    EXP = set(args.exp.split(",")) if args.exp else set()
    open(args.o, "w").write(build(args.tpw, args.dp))
```

```python
import sys, struct

N, E, D_, H = 10000, 160000, 128, 256
NCH = 64
CH_E = E // NCH
WS_P = 0
WS_CELLS = 0x500000
WS_WQ = 0x900000
WS_W2 = 0x910000
WS_WE = 0x920000
WS_B1 = 0x920400
WS_END = 0x921000

def f32bits(x): return struct.unpack('<I', struct.pack('<f', x))[0]
S_LOG2E = f32bits(-1.4426950408889634)
S_LN2 = f32bits(-0.6931471805599453)

class Asm:
    def __init__(self): self.l = []
    def __call__(self, s): self.l.append("    " + s)
    def lab(self, s): self.l.append(s + ":")
    def c(self, s): self.l.append("    ; " + s)
    def raw(self, s): self.l.append(s)
    def text(self): return "\n".join(self.l) + "\n"

def vr(a, n): return f"v[{a}:{a+n-1}]"
def sr(a, n): return f"s[{a}:{a+n-1}]"

def srd(a, d, base, nrec, stride=0, add=0):
    if add:
        a(f"s_add_u32 s{d}, s{base}, {hex(add)}")
        a(f"s_addc_u32 s{d+1}, s{base+1}, 0")
    else:
        a(f"s_mov_b32 s{d}, s{base}")
        a(f"s_mov_b32 s{d+1}, s{base+1}")
    if stride:
        a(f"s_or_b32 s{d+1}, s{d+1}, {hex(stride << 16)}")
    a(f"s_mov_b32 s{d+2}, {hex(nrec)}")
    a(f"s_mov_b32 s{d+3}, 0x20000")

PX, PE, PSRC, PDST, PW1, PB1, PW2, PB2 = 16, 18, 20, 22, 24, 26, 28, 30

DEBUG = False
SRCMASK = 0
EXP = set()
PF = 0
WQSPLIT = 2
PR1 = 10
PR0 = 4
PRM = -1
WQSPLIT2 = 5
def code_prefetch(a, tag, target, per, sa, dst, nslice_shift=3, mask=31):
    a(f"s_getpc_b64 s[{sa}:{sa+1}]")
    a.lab(f"CP_{tag}")
    a(f"s_lshr_b32 s{dst}, s2, {nslice_shift}")
    a(f"s_and_b32 s{dst}, s{dst}, {mask}")
    a(f"s_mul_i32 s{dst}, s{dst}, {per*128}")
    a(f"s_min_u32 s{dst}, s{dst}, TEXT_END-{target}-{per*128}")
    a(f"s_add_u32 s{dst}, s{dst}, {target}-CP_{tag}")
    a(f"s_add_u32 s{sa}, s{sa}, s{dst}")
    a(f"s_addc_u32 s{sa+1}, s{sa+1}, 0")
    for i in range(per):
        a(f"s_load_dword s{dst+i}, s[{sa}:{sa+1}], {128*i}")

CAP1 = 24
CAP = 48
K1_LDS = 65536 + 16384
def gen_k1(a, TPW):
    assert TPW == 4
    NG = (625 + TPW - 1) // TPW
    NTR = 8
    GRID = NCH + NTR + NG
    a.raw(".globl k1_kernel"); a.raw(".p2align 8"); a.raw(".type k1_kernel,@function")
    a.lab("k1_kernel")
    a(f"s_cmp_ge_u32 s2, {GRID}")
    a("s_cbranch_scc1 K1_EXIT")
    a("s_load_dwordx16 s[16:31], s[0:1], 0")
    a("s_load_dwordx2 s[32:33], s[0:1], 80")
    if "cpf1" in EXP: code_prefetch(a, "A", "K1_BODY", 5, 64, 66, mask=31)
    a.lab("K1_BODY")
    if DEBUG: a("s_memrealtime s[56:57]")
    K1S = [52, 53, 54, 55, 62, 63]
    def st1(i):
        if not (DEBUG and "k1st" in EXP): return
        a("s_memtime s[14:15]")
        a("s_waitcnt lgkmcnt(0)")
        a(f"s_mov_b32 s{K1S[i]}, s14")
    st1(0)
    def k1end():
        if DEBUG:
            a("s_waitcnt vmcnt(0)")
            a("s_memrealtime s[58:59]")
            a("s_lshl_b32 s60, s2, 4")
            a("s_add_u32 s60, s60, 0xB00000")
            a("v_mov_b32 v1, s60")
            a("s_waitcnt lgkmcnt(0)")
            a("v_mov_b32 v2, s56")
            a("v_mov_b32 v3, s58")
            a("v_cmp_eq_u32 vcc, 0, v0")
            a("s_and_saveexec_b64 s[60:61], vcc")
            a("s_cbranch_execz K1_EXIT")
            a("global_store_dwordx2 v1, v[2:3], s[32:33]")
            if "k1st" in EXP:
                st1(5)
                a("s_lshl_b32 s60, s2, 5")
                a("s_add_u32 s60, s60, 0xB80000")
                a("v_mov_b32 v1, s60")
                for i in range(6):
                    a(f"s_sub_u32 s60, s{K1S[i]}, s52")
                    a("v_mov_b32 v2, s60")
                    a(f"global_store_dword v1, v2, s[32:33] offset:{4*i}")
        a("s_endpgm")
    a(f"s_cmp_lt_u32 s2, {NCH}")
    a("s_cbranch_scc1 K1_SORT")
    a(f"s_cmp_lt_u32 s2, {NCH+NTR}")
    a("s_cbranch_scc1 K1_TRANS")
    a.c("GEMM role: P' = -log2e * x @ W1a ; W and x staged in LDS by DMA (XOR-swizzled 16B slots)")
    LX = 65536
    a("v_lshrrev_b32 v1, 6, v0")
    a("v_and_b32 v2, 63, v0")
    a("v_readfirstlane_b32 s3, v1")
    a("v_lshrrev_b32 v3, 5, v2")
    a("v_and_b32 v4, 31, v2")
    a("v_lshlrev_b32 v5, 2, v3")
    a("v_xor_b32 v4, v4, v5")
    a("v_lshlrev_b32 v4, 4, v4")
    a("v_lshl_add_u32 v4, v3, 9, v4")
    a("v_xor_b32 v5, 0x80, v4")
    a("v_lshrrev_b32 v3, 4, v2")
    a("v_and_b32 v6, 15, v2")
    a("v_lshlrev_b32 v7, 3, v1")
    a("v_and_b32 v7, 8, v7")
    a("v_or_b32 v7, v7, v3")
    a("v_xor_b32 v7, v6, v7")
    a("v_lshlrev_b32 v7, 4, v7")
    a("v_lshl_add_u32 v7, v3, 8, v7")
    a("v_xor_b32 v8, 0x40, v7")
    a(f"s_sub_u32 s4, s2, {NCH+NTR}")
    a("s_lshl_b32 s5, s4, 14")
    a("s_lshl_b32 s6, s3, 11")
    a("s_add_u32 s5, s5, s6")
    a("s_lshr_b32 s7, s2, 3")
    a("s_add_u32 s7, s7, s3")
    a("s_and_b32 s7, s7, 7")
    a("s_lshl_b32 s7, s7, 13")
    a("s_waitcnt lgkmcnt(0)")
    srd(a, 36, PX, N*256)
    srd(a, 40, PW1, 257*512)
    a(f"s_add_u32 s8, s6, {LX}")
    a("s_mov_b32 m0, s8")
    a("s_add_u32 s9, s5, 1024")
    a("buffer_load_dwordx4 v7, s[36:39], s5 offen lds")
    a("s_add_u32 m0, s8, 1024")
    a("s_mov_b32 s8, s7")
    a("buffer_load_dwordx4 v8, s[36:39], s9 offen lds")
    for i in range(8):
        a("s_mov_b32 m0, s8")
        a("s_nop 0")
        a(f"buffer_load_dwordx4 v{4+(i&1)}, s[40:43], s8 offen lds")
        if i < 7: a("s_add_u32 s8, s8, 1024")
    st1(1)
    srd(a, 44, 32, N*512, add=WS_P)
    a("v_lshrrev_b32 v9, 2, v6")
    a("v_and_b32 v10, 3, v6")
    a("v_xor_b32 v11, v1, v9")
    a("v_lshl_or_b32 v10, v11, 2, v10")
    a("v_lshlrev_b32 v10, 4, v10")
    a("v_lshl_add_u32 v9, v3, 3, v9")
    a("v_lshl_add_u32 v9, v9, 9, v10")
    a("v_xor_b32 v10, v3, v6")
    a("v_lshlrev_b32 v10, 4, v10")
    a("v_lshl_add_u32 v10, v6, 8, v10")
    a(f"v_add_u32 v10, {LX}, v10")
    for s in range(1, 4): a(f"v_xor_b32 v{10+s}, {64*s}, v10")
    a("v_lshlrev_b32 v14, 9, v6")
    a("v_lshl_add_u32 v14, v1, 6, v14")
    a("v_lshl_add_u32 v14, v3, 4, v14")
    a("s_lshl_b32 s5, s4, 15")
    a(f"v_mov_b32 v15, {hex(S_LOG2E)}")
    WFR = 16
    XFR = 48
    ACC = 112
    a("s_waitcnt vmcnt(0)")
    st1(2)
    a("s_barrier")
    st1(3)
    order = []
    for s in range(4):
        for t in range(2):
            for hh in range(2):
                a(f"ds_read_b64_tr_b16 {vr(WFR+16*t+4*s+2*hh,2)}, v9 offset:{(32*s+4*hh)*512+8*t}")
        a(f"ds_read_b128 {vr(XFR+4*s,4)}, v{10+s}")
        if s == 1:
            pass
    def xr(tau):
        for s in range(4): a(f"ds_read_b128 {vr(XFR+16*tau+4*s,4)}, v{10+s} offset:{4096*tau}")
    def mm(tau, s):
        for t in range(2):
            o = ACC + 8*tau + 4*t
            a(f"v_mfma_f32_16x16x32_bf16 {vr(o,4)}, {vr(WFR+16*t+4*s,4)}, {vr(XFR+16*tau+4*s,4)}, {'0' if s == 0 else vr(o,4)}")
    def epi(tau):
        r = []
        o = ACC + 8*tau
        for k in range(8): r.append(f"v_mul_f32 v{o+k}, v15, v{o+k}")
        for k in range(4): r.append(f"v_cvt_pk_bf16_f32 v{o+k}, v{o+2*k}, v{o+2*k+1}")
        r.append(f"s_add_u32 s6, s5, {8192*tau}")
        fl = " sc1" if "psc1" in EXP else " nt" if "pnt" in EXP else ""
        r.append(f"buffer_store_dwordx4 {vr(o,4)}, v14, s[44:47], s6 offen{fl}")
        return r
    for s in range(4):
        a(f"s_waitcnt lgkmcnt({5*(3-s)})")
        mm(0, s)
    xr(1); xr(2); xr(3)
    extra = []
    for tau in range(1, 4):
        a(f"s_waitcnt lgkmcnt({4*(3-tau)})")
        for s in range(4):
            mm(tau, s)
            if s == 1 or (s == 0 and tau == 1):
                if not extra and not (s == 1 and tau == 1): extra = epi(tau-1)
            if s >= 1:
                for _ in range(5):
                    if extra: a(extra.pop(0))
        assert not extra
    a("s_nop 7")
    for ins in epi(3): a(ins)
    st1(4)
    k1end()
    a.lab("K1_TRANS")
    a.c("fragment transposer for W1b (WQ) and w2 (W2F); 128 blocks per WG")
    a(f"s_sub_u32 s3, s2, {NCH}")
    a("v_lshrrev_b32 v1, 6, v0")
    a("s_and_b32 s4, s3, 3")
    a("v_readfirstlane_b32 s11, v1")
    a("s_lshl_b32 s4, s4, 7")
    a("v_add_u32 v1, s4, v0")
    a("s_mov_b32 s9, 0x05040100"); a("s_mov_b32 s10, 0x07060302")
    a("s_waitcnt lgkmcnt(0)")
    a("s_cmp_ge_u32 s11, 2")
    a("s_cbranch_scc1 K1_TR_SMALL")
    a("s_cmp_ge_u32 s3, 4")
    a("s_cbranch_scc1 K1_TR_W2")
    a("v_and_b32 v2, 31, v1")
    a("v_lshrrev_b32 v3, 5, v1")
    a("v_lshlrev_b32 v4, 4, v2")
    a("v_lshl_add_u32 v4, v3, 12, v4")
    a("v_add_u32 v4, 0x10000, v4")
    a("v_lshrrev_b32 v5, 1, v2")
    a("v_lshlrev_b32 v5, 12, v5")
    a("v_lshl_add_u32 v5, v3, 8, v5")
    a("v_and_b32 v6, 1, v2")
    a("v_lshl_add_u32 v5, v6, 7, v5")
    srd(a, 36, PW1, 257*512)
    srd(a, 40, 32, 0x10000, add=WS_WQ)
    a("s_mov_b32 s5, 512")
    a("s_branch K1_TR_GO")
    a.lab("K1_TR_W2")
    a("v_and_b32 v2, 15, v1")
    a("v_bfe_u32 v3, v1, 4, 3")
    a("v_lshrrev_b32 v7, 7, v1")
    a("v_lshlrev_b32 v4, 4, v2")
    a("v_lshl_add_u32 v4, v3, 13, v4")
    a("v_lshl_add_u32 v4, v7, 11, v4")
    a("v_lshrrev_b32 v5, 1, v2")
    a("v_lshlrev_b32 v5, 13, v5")
    a("v_lshl_add_u32 v5, v3, 10, v5")
    a("v_lshl_add_u32 v5, v7, 8, v5")
    a("v_and_b32 v6, 1, v2")
    a("v_lshl_add_u32 v5, v6, 7, v5")
    srd(a, 36, PW2, 256*256)
    srd(a, 40, 32, 0x10000, add=WS_W2)
    a("s_mov_b32 s5, 256")
    a.lab("K1_TR_GO")
    a("s_mov_b32 s6, 0")
    for m in range(8):
        a(f"buffer_load_dwordx4 {vr(16+4*m,4)}, v4, s[36:39], s6 offen")
        if m < 7: a("s_add_u32 s6, s6, s5")
    a("s_waitcnt vmcnt(0)")
    for cc in range(8):
        for p in range(4):
            a(f"v_perm_b32 v{48+4*cc+p}, v{16+4*(2*p+1)+(cc>>1)}, v{16+4*(2*p)+(cc>>1)}, s{9+(cc&1)}")
        a(f"buffer_store_dwordx4 {vr(48+4*cc,4)}, v5, s[40:43], 0 offen offset:{16*cc}")
    k1end()
    a.lab("K1_TR_SMALL")
    a("s_cmp_lg_u32 s3, 0")
    a("s_cbranch_scc1 K1_EXIT")
    a("s_cmp_lt_u32 s11, 4")
    a("s_cbranch_scc1 K1_EXIT")
    a("v_and_b32 v1, 255, v0")
    a("v_lshlrev_b32 v2, 1, v1")
    a(f"s_add_u32 s6, s{PW1}, 0x20000")
    a(f"s_addc_u32 s7, s{PW1+1}, 0")
    a("global_load_ushort v8, v2, s[6:7]")
    a(f"global_load_ushort v9, v2, s[{PB1}:{PB1+1}]")
    a(f"s_add_u32 s6, s32, {hex(WS_WE)}")
    a("s_addc_u32 s7, s33, 0")
    a(f"v_mov_b32 v10, {hex(S_LOG2E)}")
    a("v_lshlrev_b32 v3, 2, v1")
    a("s_waitcnt vmcnt(0)")
    a("v_lshlrev_b32 v8, 16, v8")
    a("v_lshlrev_b32 v9, 16, v9")
    a("v_mul_f32 v8, v10, v8")
    a("v_mul_f32 v9, v10, v9")
    a("v_cvt_pk_bf16_f32 v8, v8, v8")
    a("global_store_short v2, v8, s[6:7]")
    a(f"global_store_dword v3, v9, s[6:7] offset:{WS_B1-WS_WE}")
    a("s_endpgm")
    a.lab("K1_SORT")
    a.c("bucket the edges of chunk s2 by dst&255; cell line: 8 x [rec q, rec q+8, rec q+16, (loc,loc,loc,count)]")
    LC = 32768
    a("v_lshlrev_b32 v1, 2, v0")
    a("v_mov_b32 v2, 0")
    a(f"ds_write_b32 v1, v2 offset:{LC}")
    a("v_lshlrev_b32 v3, 4, v0")
    a("v_lshlrev_b32 v4, 3, v0")
    a("v_mov_b32 v5, 1")
    a(f"s_mul_i32 s3, s2, {CH_E*4}")
    a(f"s_mul_i32 s4, s2, {CH_E*2}")
    a("s_lshl_b32 s5, s2, 8")
    a("s_add_u32 s6, s3, 8192")
    a("s_add_u32 s7, s4, 4096")
    a("s_mov_b32 s8, 0x05040100"); a("s_mov_b32 s9, 0x05040302")
    a("s_waitcnt lgkmcnt(0)")
    srd(a, 36, PDST, E*4)
    srd(a, 40, PSRC, E*4)
    srd(a, 44, PE, E*2)
    srd(a, 48, 32, 256*NCH*256, add=WS_CELLS)
    DST, SRC, EA = 16, 24, 32
    RK, BK, REC = 36, 44, 52
    A0, A1 = 60, 68
    nlast = CH_E - 2048
    a("v_lshlrev_b32 v6, 1, v0")
    a(f"buffer_load_dwordx4 {vr(DST,4)}, v3, s[36:39], s3 offen")
    a(f"buffer_load_dword v{DST+4}, v1, s[36:39], s6 offen")
    a(f"buffer_load_dwordx4 {vr(SRC,4)}, v3, s[40:43], s3 offen")
    a(f"buffer_load_dwordx2 {vr(EA,2)}, v4, s[44:47], s4 offen")
    a(f"buffer_load_dword v{SRC+4}, v1, s[40:43], s6 offen")
    a(f"buffer_load_ushort v{EA+2}, v6, s[44:47], s7 offen")
    a(f"v_cmp_gt_u32 vcc, {nlast}, v0")
    a(f"v_mov_b32 v{RK+4}, 0")
    a(f"v_mov_b32 v{BK+4}, 0")
    a(f"v_mov_b32 v7, {CAP1}")
    a("s_mov_b64 s[10:11], vcc")
    a("s_barrier")
    st1(1)
    def atomic(k):
        a(f"v_and_b32 v{BK+k}, 0xff, v{DST+k}")
        a(f"v_lshlrev_b32 v8, 2, v{BK+k}")
        a(f"ds_add_rtn_u32 v{RK+k}, v8, v5 offset:{LC}")
    a("s_waitcnt vmcnt(5)")
    st1(2)
    for k in range(4): atomic(k)
    a("s_waitcnt vmcnt(4)")
    a("s_mov_b64 exec, s[10:11]")
    atomic(4)
    a("s_mov_b64 exec, -1")
    for k in range(5):
        a(f"v_lshrrev_b32 v{DST+k}, 6, v{DST+k}")
        a(f"v_and_b32 v{DST+k}, 0xfc, v{DST+k}")
        a(f"v_lshlrev_b32 v{BK+k}, 7, v{BK+k}")
    a("s_waitcnt vmcnt(0)")
    for k in range(5):
        if SRCMASK: a(f"v_and_b32 v{SRC+k}, {SRCMASK}, v{SRC+k}")
        a(f"v_perm_b32 v{REC+k}, v{SRC+k}, v{EA+(k>>1)}, s{8+(k&1)}")
    a("s_waitcnt lgkmcnt(0)")
    st1(3)
    for k in range(5):
        a(f"v_and_b32 v8, 7, v{RK+k}")
        a(f"v_lshl_add_u32 v8, v8, 4, v{BK+k}")
        a(f"v_lshrrev_b32 v9, 3, v{RK+k}")
        a(f"v_lshl_add_u32 v{A0+k}, v9, 2, v8")
        a(f"v_add_u32 v{A1+k}, v9, v8")
        if k == 4: a("s_mov_b64 exec, s[10:11]")
        a(f"v_cmpx_gt_u32 vcc, v7, v{RK+k}")
        a(f"ds_write_b32 v{A0+k}, v{REC+k}")
        a(f"ds_write_b8 v{A1+k}, v{DST+k} offset:12")
        a("s_mov_b64 exec, -1")
    a(f"v_max3_u32 v8, v{RK}, v{RK+1}, v{RK+2}")
    a(f"v_max3_u32 v8, v8, v{RK+3}, v{RK+4}")
    a("v_cmp_le_u32 vcc, v7, v8")
    a("s_cbranch_vccz K1_NOOV")
    for k in range(5):
        a(f"v_lshlrev_b32 v12, 7, v{BK+k}")
        a(f"v_sub_u32 v12, v12, v{BK+k}")
        a(f"v_sub_u32 v13, {CAP-1}, v{RK+k}")
        a(f"v_subrev_u32 v14, {CAP1}, v{RK+k}")
        a("v_or_b32 v13, v13, v14")
        a(f"v_and_b32 v13, 0x80000000, v13")
        a("v_or_b32 v12, v12, v13")
        a(f"v_add_u32 v10, v{A0+k}, v12")
        a(f"v_add_u32 v11, v{A1+k}, v12")
        a(f"buffer_store_dword v{REC+k}, v10, s[48:51], s5 offen offset:{128-12}")
        a(f"buffer_store_byte v{DST+k}, v11, s[48:51], s5 offen offset:{128+12-3}")
    a.lab("K1_NOOV")
    a("v_lshrrev_b32 v6, 3, v0")
    a("v_lshlrev_b32 v7, 2, v6")
    a("v_and_b32 v8, 0x70, v3")
    a("v_lshl_add_u32 v8, v6, 14, v8")
    a("v_mov_b32 v9, 0xffffff")
    a("s_waitcnt vmcnt(0) lgkmcnt(0)")
    a("s_barrier")
    st1(4)
    for i in range(4):
        a(f"ds_read_b128 {vr(16+4*i,4)}, v3 offset:{8192*i}")
        a(f"ds_read_b32 v{32+i}, v7 offset:{LC+256*i}")
    for i in range(4):
        a(f"s_waitcnt lgkmcnt({6-2*i})")
        a(f"v_min_u32 v{32+i}, 0xff, v{32+i}")
        a(f"v_lshlrev_b32 v{32+i}, 24, v{32+i}")
        a(f"v_and_or_b32 v{19+4*i}, v{19+4*i}, v9, v{32+i}")
        a(f"buffer_store_dwordx4 {vr(16+4*i,4)}, v8, s[48:51], s5 offen")
        if i < 3: a(f"s_add_u32 s5, s5, {64*16384}")
    k1end()
    a.lab("K1_EXIT")
    a("s_endpgm")
    return GRID

ROWP = 1040
SBROW = 528
BATCH = 1024
NSLOT = BATCH + 16
L_EP = 0
L_IDX = L_EP + NSLOT*16
L_CNT = L_IDX + NSLOT*4
L_HN = L_CNT + 256
L_ZERO = L_HN + 128
L_BZEND = L_ZERO + 256
L_DEG = L_BZEND
L_FLAG = L_DEG + 256
L_ZEND = L_FLAG + 32
L_S = L_ZEND
L_Q = L_S + 40*ROWP
L_SB = L_Q
XROW = 272
L_CR = L_Q + 40*ROWP
L_XS = L_CR
L_END = L_CR + 32*ROWP
QS = L_Q - L_S

def gen_k2(a, DP):
    assert DP % 2 == 0
    INF = 0x7fffffff
    SMAP = {0:0, 1:1, 2:2, 3:3, 4:4, 5:5, 6:6, 7:7}
    if "fine" in EXP: SMAP = {0:0, 1:1, "a":2, "b":3, 2:4, 3:5, "c":6, "d":7}
    if "fine2" in EXP: SMAP = {0:0, 4:1, 5:2, "e":3, "f":4, "g":5, 6:6, 7:7}
    def stamp(i):
        if not DEBUG or i not in SMAP: return
        a("s_memtime s[94:95]")
        a("s_waitcnt lgkmcnt(0)")
        a(f"s_mov_b32 s{84+SMAP[i]}, s94")
    a.raw(".globl k2_kernel"); a.raw(".p2align 8"); a.raw(".type k2_kernel,@function")
    a.lab("k2_kernel")
    a("s_cmp_ge_u32 s2, 256")
    a("s_cbranch_scc1 K2_EXIT")
    a("s_load_dwordx16 s[16:31], s[0:1], 0")
    a("s_load_dwordx2 s[32:33], s[0:1], 64")
    a("s_load_dwordx2 s[34:35], s[0:1], 80")
    if "cpf2" in EXP: code_prefetch(a, "B", "K2_BODY", 3, 6, 8)
    a.lab("K2_BODY")
    if DEBUG: a("s_memrealtime s[96:97]")
    stamp(0)
    assert DP == 4
    U = [8, 16]; EX, ACC, Q = 24, 32, 40
    IP = [56, 58]
    AB = 60
    ES = [62, 66]
    BS = 70
    M = 118
    VEA, VIA, VES, VEND, VQA, VSTA, VEO, VH, VXA, VQW = range(M, M+10)
    T0, T1, T3 = 1, 2, 4
    WF = 8
    R0 = 8
    HD = 16
    RK = 17
    LA = 23
    PS = 29
    XP = 40
    VC = 53
    PB = 54
    XF = 40
    QA = 102
    ZT = 102
    B1 = 106
    BI = 110
    WE = 48
    sW, sNE = 3, 56
    sV = [52, 54, 10, 12, 14, 36]
    sT, sT2, sREM, sTEV, sSLOW, sBATCH, sLEFT, sX = 58, 59, 60, 61, 62, 63, 66, 68
    sMASK = [70, 72]; sPOS = [74, 75]; sEND = [76, 77]; sSEGL = [78, 79]; sHEAD = [80, 81]; sCR = [82, 83]
    sROW = [4, 5]
    sSM = 100
    sWQ = 64
    uid0 = [0]
    def L(p):
        uid0[0] += 1
        return f"K2_{p}{uid0[0]}"
    def exec_half(x):
        a(f"s_mov_b32 exec_lo, {-1 if x == 0 else 0}")
        a(f"s_mov_b32 exec_hi, {0 if x == 0 else -1}")
    wpos = [0, 1, 6, 7]
    a("v_lshlrev_b32 v4, 4, v0")
    for k in range(4): a(f"v_mov_b32 v{ZT+k}, 0")
    a("v_lshrrev_b32 v1, 6, v0")
    a("v_and_b32 v5, 0x3f0, v4")
    a(f"ds_write_b128 v5, {vr(ZT,4)} offset:{L_ZEND-1024}")
    a("v_readfirstlane_b32 s3, v1")
    a(f"v_and_b32 v{IP[0]+1}, 0x1f0, v4")
    a("v_lshlrev_b32 v2, 5, v0")
    a("v_and_b32 v3, 0xffffff00, v2")
    a("s_lshl_b32 s4, s2, 14")
    a(f"s_add_u32 s4, s4, {hex(WS_CELLS)}")
    a("s_lshl_b32 s5, s2, 8")
    a("s_waitcnt lgkmcnt(0)")
    a("s_barrier")
    stamp(1)
    srd(a, 40, 34, WS_END)
    a(f"s_add_u32 s6, s34, {hex(WS_WE)}")
    a(f"s_addc_u32 s7, s35, 0")
    a(f"global_load_dwordx4 {vr(WE,4)}, v{IP[0]+1}, s[6:7]")
    a(f"s_cmp_ge_u32 s{sW}, 8")
    a("s_cbranch_scc1 K2_GEMMER")

    def lane_consts():
        srd(a, 44, 34, N, stride=512, add=WS_P)
        srd(a, 48, 32, N*256)
        a(f"s_mov_b32 s{sSLOW}, 0")
        a(f"s_mov_b32 s{sBATCH}, 0")
        a(f"s_mov_b64 s[{sSM}:{sSM+1}], 0")
        a(f"v_mov_b32 v{IP[1]+1}, v{IP[0]+1}")
        a(f"v_mov_b32 v{IP[0]}, 0")
        a(f"v_mov_b32 v{IP[1]}, 0")
        a(f"v_lshlrev_b32 v{VQA}, 1, v{IP[0]+1}")
        a(f"v_add_u32 v{VQA}, {L_Q}, v{VQA}")
        a("s_mov_b32 s10, 0x00f0000f")
        a("s_mov_b32 s11, 0xf0000f00")
        a("s_mov_b32 s12, 0x00300003")
        a("s_mov_b32 s13, 0x30000300")
        a("s_mov_b32 s14, 0x00c0000c")
        a("s_mov_b32 s15, 0xc0000c00")
        a(f"v_and_b32 v6, 16, v4")
        a(f"v_mov_b32 v{PB}, 0x3f80")
        a(f"v_lshlrev_b32 v{PB}, v6, v{PB}")
        for k in (0, 4, 8):
            a(f"v_cndmask_b32 v{AB+k}, 0, v{PB}, s[12:13]")
            a(f"v_cndmask_b32 v{AB+k+1}, 0, v{PB}, s[14:15]")
        a(f"v_lshrrev_b32 v6, 1, v6")
        a(f"v_mov_b32 v{VEO}, {L_ZERO}")
        a(f"v_or_b32 v{PB}, 4, v6")
        a(f"v_cndmask_b32 v{VEO}, v{VEO}, v{PB}, s[12:13]")
        a(f"v_cndmask_b32 v{VEO}, v{VEO}, v6, s[14:15]")
        a(f"v_cndmask_b32 v{VES}, 0, 4, s[10:11]")
        a(f"v_bfe_u32 v{VH}, v0, 5, 1")
        a(f"v_mov_b32 v7, 4")
        a(f"v_lshrrev_b32 v5, 2, v5")
    def wscale():
        r = []
        for d in range(DP):
            r.append(f"v_pk_mov_b32 {vr(BS+8*d,2)}, {vr(WE,2)}, {vr(WE,2)} op_sel:[0,1]")
            r.append(f"v_pk_mov_b32 {vr(BS+8*d+6,2)}, {vr(WE+2,2)}, {vr(WE+2,2)} op_sel:[0,1]")
        return r
    dpp = [f"row_shr:{sh} row_mask:0xf bank_mask:0xf bound_ctrl:0" for sh in (1, 2, 4, 8)] + \
          ["row_bcast:15 row_mask:0xa bank_mask:0xf", "row_bcast:31 row_mask:0xc bank_mask:0xf"]
    def scan(first):
        a(f"ds_read_b32 v{VC}, v5 offset:{L_CNT}")
        if first: a(f"ds_read_b32 v3, v7 offset:{L_FLAG-4}")
        a("s_waitcnt lgkmcnt(0)")
        a(f"v_mov_b32 v{VEND}, v{VC}")
        if first: a(f"v_readfirstlane_b32 s{sSLOW}, v3")
        else: a("s_nop 0")
        a(f"v_cmp_ne_u32 s[{sNE}:{sNE+1}], 0, v{VC}")
        for i, d in enumerate(dpp):
            if i: a("s_nop 1")
            a(f"v_add_u32_dpp v{VEND}, v{VEND}, v{VEND} {d}")
        a(f"v_sub_u32 v{VSTA}, v{VEND}, v{VC}")
        a(f"v_readlane_b32 s{sT}, v{VEND}, 63")
    def ranges():
        a(f"s_lshr_b32 s{sT}, s{sT}, 2")
        if DEBUG: a(f"s_mov_b32 s92, s{sT}")
        a(f"s_lshl_b32 s{sT2}, s{sW}, 1")
        a(f"s_mul_i32 s{sPOS[0]}, s{sT}, s{sT2}")
        a(f"s_add_u32 s{sPOS[1]}, s{sPOS[0]}, s{sT}")
        a(f"s_add_u32 s{sEND[1]}, s{sPOS[1]}, s{sT}")
        for r in (sPOS[0], sPOS[1], sEND[1]):
            a(f"s_lshr_b32 s{r}, s{r}, 5")
            a(f"s_lshl_b32 s{r}, s{r}, 2")
        a(f"s_mov_b32 s{sEND[0]}, s{sPOS[1]}")
        a(f"s_sub_u32 s{sT2}, s{sPOS[1]}, s{sPOS[0]}")
        a(f"v_mul_u32_u24 v{VIA}, s{sT2}, v{VH}")
        a(f"v_add_u32 v{VIA}, s{sPOS[0]}, v{VIA}")
        a(f"v_mad_u32_u24 v{VEA}, v{VIA}, v{VES}, v{VEO}")
        a(f"v_add_u32 v{VIA}, {L_IDX}, v{VIA}")
    def seg_next(x, lbl):
        a(f"s_lshl2_add_u32 s{sT2}, s{sSEGL[x]}, s{sPOS[x]}")
        a(f"s_mov_b32 s{sROW[x]}, -1")
        a(f"s_cmp_ge_u32 s{sT2}, s{sEND[x]}")
        a(f"s_cselect_b32 s{sSEGL[x]}, {hex(INF)}, s{sSEGL[x]}")
        a(f"s_cbranch_scc1 {lbl}")
        a(f"s_ff1_i32_b64 s{sT2}, s[{sMASK[x]}:{sMASK[x]+1}]")
        a(f"s_and_b32 s{sT2}, s{sT2}, 63")
        a(f"s_bitset0_b64 s[{sMASK[x]}:{sMASK[x]+1}], s{sT2}")
        a(f"v_readlane_b32 s{sT}, v{VEND}, s{sT2}")
        a(f"s_mul_i32 s{sROW[x]}, s{sT2}, {ROWP}")
        a(f"s_add_u32 s{sSEGL[x]}, s{sSEGL[x]}, 1")
        a(f"s_min_u32 s{sT}, s{sT}, s{sEND[x]}")
        a(f"s_sub_u32 s{sT}, s{sT}, s{sPOS[x]}")
        a(f"s_ashr_i32 s{sT}, s{sT}, 2")
        a(f"s_max_i32 s{sSEGL[x]}, s{sSEGL[x]}, s{sT}")
        a.lab(lbl)
    def stream_setup():
        a(f"v_cmp_lt_u32 s[{sMASK[0]}:{sMASK[0]+1}], s{sPOS[0]}, v{VEND}")
        a(f"v_cmp_lt_u32 s[{sMASK[1]}:{sMASK[1]+1}], s{sPOS[1]}, v{VEND}")
        for x in range(2):
            lj = L("INJ")
            a(f"s_and_b64 s[{sMASK[x]}:{sMASK[x]+1}], s[{sMASK[x]}:{sMASK[x]+1}], s[{sNE}:{sNE+1}]")
            a(f"s_mov_b32 s{sSEGL[x]}, 0")
            a(f"s_mov_b32 s{sHEAD[x]}, 0")
            seg_next(x, L("INI"))
            a(f"s_max_i32 s{sCR[x]}, s{sROW[x]}, 0")
            a(f"s_sub_u32 s{sCR[x]}, s{sCR[x]}, {QS}")
            a(f"s_cmp_lt_i32 s{sROW[x]}, 0")
            a(f"s_cbranch_scc1 {lj}")
            a(f"v_readlane_b32 s{sT}, v{VSTA}, s{sT2}")
            a(f"s_add_u32 s{sT2}, s{sT2}, 1")
            a(f"v_mov_b32 v{T3}, s{sT2}")
            a(f"s_lshl_b32 s{sT2}, s{sW}, 1")
            a(f"s_add_u32 s{sT2}, s{sT2}, {x}")
            a(f"s_cmp_ge_u32 s{sT}, s{sPOS[x]}")
            a(f"s_cbranch_scc1 {lj}")
            a(f"s_mov_b32 s{sHEAD[x]}, 1")
            a(f"s_mul_i32 s{sCR[x]}, s{sT2}, {ROWP}")
            a(f"s_add_u32 s{sCR[x]}, s{sCR[x]}, {L_CR-L_Q}")
            a(f"s_lshl_b32 s{sT2}, s{sT2}, 2")
            a(f"v_mov_b32 v6, s{sT2}")
            a(f"ds_write_b32 v6, v{T3} offset:{L_HN}")
            a.lab(lj)
            a(f"s_max_i32 s{sROW[x]}, s{sROW[x]}, 0")
        a(f"v_add_u32 v{T0}, s{sROW[0]}, v{VQA}")
        a(f"v_add_u32 v{T1}, s{sCR[0]}, v{VQA}")
        exec_half(1)
        a(f"v_add_u32 v{T0}, s{sROW[1]}, v{VQA}")
        a(f"v_add_u32 v{T1}, s{sCR[1]}, v{VQA}")
        a("s_mov_b64 exec, -1")
        a(f"v_lshlrev_b32 v3, {2 + (DP.bit_length()-1)}, v{VES}")
        a(f"s_min_u32 s{sTEV}, s{sSEGL[0]}, s{sSEGL[1]}")
        a(f"s_sub_u32 s{sREM}, s{sTEV}, 1")
        a(f"s_sub_u32 s{sLEFT}, s{sEND[1]}, s{sPOS[1]}")
        a(f"s_lshr_b32 s{sLEFT}, s{sLEFT}, 2")
        a(f"s_sub_u32 s6, s{sHEAD[0]}, 1")
        a(f"s_sub_u32 s7, s{sHEAD[1]}, 1")
        a(f"s_and_b64 s[6:7], s[6:7], s[{sSM}:{sSM+1}]")
        a(f"v_mov_b32 v5, {L_ZERO}")
        a(f"v_cndmask_b32 v{T3}, v5, v{T1}, s[6:7]")
    def first_loads():
        FI = 40
        a(f"ds_read2_b32 {vr(FI,2)}, v{VIA} offset0:0 offset1:1")
        a(f"ds_read2_b32 {vr(FI+2,2)}, v{VIA} offset0:2 offset1:3")
        a(f"ds_read2_b32 {vr(ES[0],2)}, v{VEA} offset0:0 offset1:1")
        a(f"ds_read2_b32 {vr(ES[1],2)}, v{VEA} offset0:4 offset1:5")
        a("s_waitcnt lgkmcnt(2)")
        for t in range(DP):
            a(f"v_mov_b32 v{IP[t&1]}, v{FI+t}")
            a(f"buffer_load_dwordx4 {vr(BS+8*t+2,4)}, {vr(IP[t&1],2)}, s[44:47], 0 idxen offen")
        a(f"ds_read_b32 v{IP[0]}, v{VIA} offset:{4*DP}")
        a(f"ds_read_b32 v{IP[1]}, v{VIA} offset:{4*(DP+1)}")
    def pload(slot, pair):
        if "novm" in EXP: return
        a(f"buffer_load_dwordx4 {vr(BS+8*slot+2,4)}, {vr(pair,2)}, s[44:47], 0 idxen offen")
    def groups(n, body):
        for grp in ([0, 1], [2], [3, 4, 5]):
            grp = [i for i in grp if i < n]
            if not grp: continue
            l = None
            if grp[0] >= 2:
                l = L("SK")
                a(f"s_cmp_eq_u64 s[{sV[grp[0]]}:{sV[grp[0]]+1}], 0")
                a(f"s_cbranch_scc1 {l}")
            for i in grp: body(i)
            if l: a.lab(l)
    def rec(i): return R0 + i + (i // 3)
    def meta(i): return R0 + 3 + 4*(i // 3)
    def rank_atomics(n):
        def body(i):
            a(f"v_bfe_u32 v{LA+i}, v{meta(i)}, {8*(i%3)}, 8")
            a(f"s_mov_b64 exec, s[{sV[i]}:{sV[i]+1}]")
            a(f"ds_add_rtn_u32 v{RK+i}, v{LA+i}, v7 offset:{L_CNT}")
            a("s_mov_b64 exec, -1")
        groups(n, body)
    def zero_batch(upto):
        assert 16384 < upto <= 2*16384 and upto % 16 == 0
        a(f"ds_write_b128 v4, {vr(ZT,4)} offset:{upto-16384}")
        a(f"ds_write_b128 v4, {vr(ZT,4)}")
    XFB = [70, 86, 40]
    def gemm():
        for nt in range(3):
            for s in range(4):
                a(f"ds_read_b128 {vr(XFB[nt]+4*s,4)}, v{VXA} offset:{16*nt*XROW+64*s}")
        a(f"v_mov_b32 v{VSTA}, {hex(S_LOG2E)}")
        QB = [QA, XFB[0], QA]
        def post(nt):
            r = []
            if nt == 2: r += ["s_mov_b32 exec_lo, 0x00ff00ff", "s_mov_b32 exec_hi, 0x00ff00ff"]
            for t in range(2):
                for k in range(4): r.append(f"v_fma_f32 v{QB[nt]+4*t+k}, v{QB[nt]+4*t+k}, v{VSTA}, v{BI+4*t+k}")
                r.append(f"ds_write_b128 v{VQW}, {vr(QB[nt]+4*t,4)} offset:{16*nt*ROWP+64*t}")
            if nt == 2: r.append("s_mov_b64 exec, -1")
            return r
        a("s_waitcnt vmcnt(0) lgkmcnt(8)")
        for nt in range(3):
            if nt == 1: a("s_waitcnt lgkmcnt(4)")
            if nt == 2: a("s_waitcnt lgkmcnt(2)")
            for s in range(4):
                for t in range(2):
                    a(f"v_mfma_f32_16x16x32_bf16 {vr(QB[nt]+4*t,4)}, {vr(WF+16*t+4*s,4)}, {vr(XFB[nt]+4*s,4)}, {'0' if s == 0 else vr(QB[nt]+4*t,4)}")
            if nt >= 1:
                for ins in post(nt-1): a(ins)
        a("s_nop 0")
        for ins in post(2): a(ins)
    def wq_loads(lo, hi):
        for f in range(lo, hi):
            t, s = divmod(f, 4)
            a(f"buffer_load_dwordx4 {vr(WF+16*t+4*s,4)}, v{VXA}, s[40:43], s{sWQ+t} offen offset:{1024*s}")

    def signal(k):
        a("s_waitcnt lgkmcnt(0)")
        a("s_mov_b64 exec, 1")
        a(f"ds_add_u32 v7, v7 offset:{L_FLAG+4*k}")
        a("s_mov_b64 exec, -1")
    def spin(k):
        l = L("SP")
        a("s_mov_b32 s8, 0x100000")
        a.lab(l)
        a(f"ds_read_b32 v6, v7 offset:{L_FLAG+4*k}")
        a("s_sub_u32 s8, s8, 1")
        a(f"s_cbranch_scc1 {l}X")
        a("s_waitcnt lgkmcnt(0)")
        a("v_readfirstlane_b32 s9, v6")
        a("s_nop 0")
        a("s_cmp_lt_u32 s9, 32")
        a(f"s_cbranch_scc1 {l}")
        a.lab(l + "X")
    def list_build(n):
        groups(n, lambda i: a(f"ds_bpermute_b32 v{PS+i}, v{LA+i}, v{VSTA}"))
        if n > 1:
            a(f"s_cmp_gt_u32 s{sT}, {4*BATCH}")
            a("s_cbranch_scc1 K2_SLOW_S")
        a("s_waitcnt lgkmcnt(0)")
        def body(i):
            a(f"v_add_u32 v{PS+i}, v{PS+i}, v{RK+i}")
            a(f"v_lshlrev_b32 v{RK+i}, 2, v{PS+i}")
            a(f"s_mov_b64 exec, s[{sV[i]}:{sV[i]+1}]")
            a(f"ds_write_b16_d16_hi v{PS+i}, v{rec(i)} offset:{L_IDX}")
            a(f"ds_write_b16 v{RK+i}, v{rec(i)} offset:{L_EP+4}")
            a(f"ds_write_b16 v{RK+i}, v{rec(i)} offset:{L_EP+14}")
            a("s_mov_b64 exec, -1")
        groups(n, body)
    def deg_acc():
        l = L("ND")
        a(f"s_cmp_lg_u32 s{sW}, 0")
        a(f"s_cbranch_scc1 {l}")
        a(f"ds_add_u32 v5, v{VC} offset:{L_DEG}")
        a.lab(l)
    a("v_and_b32 v2, 0x70, v4")
    a("v_add_u32 v3, v3, v2")
    a(f"buffer_load_dwordx4 {vr(R0,4)}, v3, s[40:43], s4 offen")
    assert L_CNT <= 3*8192
    a(f"ds_write_b128 v4, {vr(ZT,4)}")
    a(f"ds_write_b128 v4, {vr(ZT,4)} offset:8192")
    a(f"ds_write_b128 v4, {vr(ZT,4)} offset:{L_CNT-8192}")
    lane_consts()
    a("v_and_b32 v2, 7, v0")
    a("s_waitcnt vmcnt(1)")
    for ins in wscale(): a(ins)
    stamp("a")
    a("s_waitcnt vmcnt(0)")
    stamp("b")
    a(f"v_lshrrev_b32 v{HD}, 24, v{R0+3}")
    a(f"v_sub_u32 v2, v{HD}, v2")
    a(f"v_cmp_lt_u32 vcc, {CAP}, v{HD}")
    for i in range(6):
        a(f"v_cmp_lt_i32 s[{sV[i]}:{sV[i]+1}], {8*i}, v2")
    a(f"s_cmp_eq_u64 s[{sV[3]}:{sV[3]+1}], 0")
    a("s_cbranch_scc1 K2_NOL1")
    a(f"buffer_load_dwordx4 {vr(R0+4,4)}, v3, s[40:43], s4 offen offset:128")
    a("s_waitcnt vmcnt(0)")
    a.lab("K2_NOL1")
    rank_atomics(6)
    a("s_mov_b64 exec, vcc")
    a(f"ds_write_b32 v7, v7 offset:{L_FLAG-4}")
    signal(0)
    spin(0)
    stamp(2)
    scan(True)
    a(f"s_cmp_lg_u32 s{sSLOW}, 0")
    a("s_cbranch_scc1 K2_SLOW_S")
    list_build(6)
    signal(1)
    deg_acc()
    ranges()
    spin(1)
    stamp(3)
    first_loads()
    stream_setup()
    spin(3)
    a("s_branch K2_JOIN")
    a.lab("K2_SCAN")
    scan(False)
    list_build(1)
    deg_acc()
    ranges()
    stream_setup()
    a("s_waitcnt lgkmcnt(0)")
    a("s_barrier")
    first_loads()
    a("s_branch K2_JOIN")

    a.lab("K2_GEMMER")
    if "noprio" not in EXP: a("s_setprio 3")
    srd(a, 36, PX, N*256)
    a("v_subrev_u32 v2, 512, v0")
    a("v_and_b32 v3, 15, v0")
    a("v_lshrrev_b32 v6, 4, v2")
    a("v_lshlrev_b32 v7, 16, v6")
    a("v_lshl_add_u32 v7, v3, 4, v7")
    a("v_add_u32 v7, s5, v7")
    a(f"buffer_load_dwordx4 {vr(XP,4)}, v7, s[36:39], 0 offen")
    a("v_add_u32 v7, 0x200000, v7")
    a(f"buffer_load_dwordx4 {vr(XP+4,4)}, v7, s[36:39], 0 offen")
    a("s_lshr_b32 s9, s2, 3")
    a(f"s_add_u32 s9, s9, s{sW}")
    a("s_and_b32 s9, s9, 7")
    a(f"s_lshl_b32 s{sWQ}, s9, 13")
    a(f"s_add_u32 s{sWQ}, s{sWQ}, {hex(WS_WQ)}")
    a(f"s_add_u32 s{sWQ+1}, s{sWQ}, 4096")
    a(f"v_mov_b32 v{VXA}, v5")
    a("v_and_b32 v7, 0x30, v0")
    a("s_lshl_b32 s8, s9, 7")
    a(f"v_add_u32 v{PB}, s8, v7")
    a(f"global_load_dwordx4 {vr(BI,4)}, v{PB}, s[6:7] offset:{WS_B1-WS_WE}")
    a(f"global_load_dwordx4 {vr(BI+4,4)}, v{PB}, s[6:7] offset:{WS_B1-WS_WE+64}")
    wq_loads(0, 2)
    a(f"v_mul_u32_u24 v6, {XROW}, v6")
    a(f"v_lshl_add_u32 v6, v3, 4, v6")
    a(f"v_add_u32 v1, {L_XS}, v6")
    a(f"v_mul_u32_u24 v{VQW}, {ROWP}, v3")
    a(f"s_add_u32 s8, s8, {L_Q}")
    a(f"v_add3_u32 v{VQW}, v{VQW}, v7, s8")
    a(f"v_mul_u32_u24 v2, {XROW}, v3")
    a(f"s_mov_b32 s8, {L_XS}")
    a(f"v_add3_u32 v2, v2, v7, s8")
    wq_loads(2, 4)
    lane_consts()
    wq_loads(4, 8)
    a(f"v_mov_b32 v{VXA}, v2")
    stamp("a")
    a(f"s_waitcnt vmcnt(10)")
    stamp("b")
    a(f"ds_write_b128 v1, {vr(XP,4)}")
    a(f"s_cmp_ge_u32 s{sW}, 12")
    a("s_cbranch_scc1 K2_NOXS")
    a(f"ds_write_b128 v1, {vr(XP+4,4)} offset:{32*XROW}")
    a.lab("K2_NOXS")
    for k in range(0, 4, 2): a(f"v_pk_mov_b32 {vr(122+0,2) if False else vr(ES[k//2],2)}, {vr(WE+k,2)}, {vr(WE+k,2)} op_sel:[0,1]")
    signal(2)
    spin(2)
    gemm()
    signal(3)
    for d in range(DP):
        a(f"v_pk_mov_b32 {vr(BS+8*d,2)}, {vr(ES[0],2)}, {vr(ES[0],2)} op_sel:[0,1]")
        a(f"v_pk_mov_b32 {vr(BS+8*d+6,2)}, {vr(ES[1],2)}, {vr(ES[1],2)} op_sel:[0,1]")
    stamp("c")
    if "touch" in EXP:
        a(f"s_cmp_lg_u32 s{sW}, 15")
        a("s_cbranch_scc1 K2_NOTOUCH")
        a("v_and_b32 v6, 63, v0")
        a("v_lshlrev_b32 v6, 16, v6")
        a("v_add_u32 v6, s5, v6")
        a(f"buffer_load_dword v{QA}, v6, s[48:51], 0 offen")
        a(f"global_load_dword v{QA+1}, v7, s[{PB2}:{PB2+1}]")
        a.lab("K2_NOTOUCH")
    spin(0)
    stamp(2)
    scan(True)
    a(f"s_cmp_gt_u32 s{sT}, {4*BATCH}")
    a(f"s_cselect_b32 s{sSLOW}, 1, s{sSLOW}")
    a(f"s_cmp_lg_u32 s{sSLOW}, 0")
    a("s_cbranch_scc1 K2_SLOW_SYNC")
    ranges()
    spin(1)
    stamp(3)
    first_loads()
    stream_setup()
    spin(3)
    a.lab("K2_JOIN")
    a(f"ds_read_b128 {vr(ACC,4)}, v{T3}")
    a(f"ds_read_b128 {vr(ACC+4,4)}, v{T3} offset:16")
    a("s_waitcnt lgkmcnt(0)")
    if "noprio" not in EXP: a("s_setprio 2")
    stamp("d")
    a(f"s_cmp_eq_u32 s{sTEV}, {hex(INF)}")
    a("s_cbranch_scc1 K2_LOOP_DONE")
    a(f"ds_read_b128 {vr(Q,4)}, v{T0}")
    a(f"ds_read_b128 {vr(Q+4,4)}, v{T0} offset:16")
    def mfma(slot, es, u, which):
        if "nomfma" in EXP: return
        if which == 0:
            a(f"v_mfma_f32_16x16x32_bf16 {vr(u,4)}, {vr(es,4)}, {vr(BS+8*slot,4)}, {vr(Q,4)}")
        else:
            a(f"v_mfma_f32_16x16x32_bf16 {vr(u+4,4)}, {vr(es-2,4)}, {vr(BS+8*slot+4,4)}, {vr(Q+4,4)}")
    a(f"s_waitcnt vmcnt({DP-1}) lgkmcnt(0)")
    mfma(0, ES[0], U[0], 0); mfma(0, ES[0], U[0], 1)
    pload(0, IP[0])
    stamp(4)
    a(f"s_sub_u32 s{sREM}, s{sREM}, 1")
    a("s_nop 5")
    a("s_cbranch_scc1 K2_BND0")
    a("s_branch K2_SUB0")
    def rdE(k):
        if "nods" in EXP: return
        a(f"ds_read2_b32 {vr(ES[k&1],2)}, v{VEA} offset0:{4*(k+2)} offset1:{4*(k+2)+1}")
    def rdI(k):
        if "nods" in EXP: return
        a(f"ds_read_b32 v{IP[k&1]}, v{VIA} offset:{4*(k+2+DP)}")
    def ex(c, u): a(f"v_exp_f32 v{EX+c}, v{u+c}")
    def rc(c): a(f"v_rcp_f32 v{EX+c}, v{EX+c}")
    def pa(c): a(f"v_pk_add_f32 {vr(EX+c,2)}, {vr(EX+c,2)}, 1.0 op_sel_hi:[1,0]")
    def pf(c, u): a(f"v_pk_fma_f32 {vr(ACC+c,2)}, {vr(u+c,2)}, {vr(EX+c,2)}, {vr(ACC+c,2)}")
    def valu(u):
        for c in range(8): ex(c, u)
        for c in range(0, 8, 2): pa(c)
        for c in range(8): rc(c)
        for c in range(0, 8, 2): pf(c, u)
    def tail(u):
        rc(7)
        for c in range(0, 8, 2): pf(c, u)
    uid = [0]
    def prio():
        if "noprio" in EXP: return
        uid[0] += 1
        lbl = f"K2_PR{uid[0]}"
        a(f"s_cmp_gt_i32 s{sLEFT}, {PR1}")
        a(f"s_cbranch_scc1 {lbl}_D")
        a("s_setprio 1")
        a(f"s_cmp_gt_i32 s{sLEFT}, {PR0}")
        a(f"s_cbranch_scc1 {lbl}_D")
        a("s_setprio 0")
        a.lab(f"{lbl}_D")
    def advance():
        a(f"v_add_u32 v{VEA}, v3, v{VEA}")
        a(f"v_add_u32 v{VIA}, {4*DP}, v{VIA}")
        a(f"s_sub_u32 s{sLEFT}, s{sLEFT}, {DP}")
        prio()
    a.raw(".p2align 3")
    a.lab("K2_LOOP")
    advance()
    for k in range(DP):
        u = U[k & 1]
        a.lab(f"K2_SUB{k}")
        ex(0, u)
        if k == 2 and PRM >= 0 and "noprio" not in EXP:
            a(f"s_cmp_gt_i32 s{sLEFT}, {PRM}")
            a("s_cbranch_scc1 K2_PM")
            a("s_setprio 0")
            a.lab("K2_PM")
        a(f"s_waitcnt vmcnt({DP-1}) lgkmcnt(0)")
        ex(1, u)
        mfma((k+1) % DP, ES[(k+1) & 1], U[(k+1) & 1], 0)
        ex(2, u)
        mfma((k+1) % DP, ES[(k+1) & 1], U[(k+1) & 1], 1)
        ex(3, u)
        pload((k+1) % DP, IP[(k+1) & 1])
        ex(4, u)
        rdE(k)
        ex(5, u)
        rdI(k)
        ex(6, u); ex(7, u)
        for c in range(0, 8, 2): pa(c)
        for c in range(6): rc(c)
        a(f"s_sub_u32 s{sREM}, s{sREM}, 1")
        rc(6)
        a(f"s_cbranch_scc1 K2_BNDT{k}")
        tail(u)
    a("s_branch K2_LOOP")
    for k in range(DP):
        kp = (k - 1) % DP
        a.lab(f"K2_BNDT{kp}")
        tail(U[kp & 1])
        if k == 0: advance()
        a.lab(f"K2_BND{k}")
        a(f"s_mov_b64 s[{sX}:{sX+1}], 0")
        a("s_mov_b64 s[6:7], 0")
        for x in range(2):
            a(f"s_cmp_lg_u32 s{sSEGL[x]}, s{sTEV}")
            a(f"s_cbranch_scc1 K2_B{k}_N{x}")
            a(f"s_mov_b32 s{sX+x}, -1")
            seg_next(x, f"K2_B{k}_S{x}")
            a(f"s_cmp_lt_i32 s{sROW[x]}, 0")
            a(f"s_cbranch_scc1 K2_B{k}_N{x}")
            a(f"s_mov_b32 s{6+x}, -1")
            exec_half(x)
            a(f"v_add_u32 v{T0}, s{sROW[x]}, v{VQA}")
            a.lab(f"K2_B{k}_N{x}")
        a("s_mov_b64 exec, s[6:7]")
        a("s_waitcnt lgkmcnt(0)")
        a(f"ds_read_b128 {vr(Q,4)}, v{T0}")
        a(f"ds_read_b128 {vr(Q+4,4)}, v{T0} offset:16")
        a("s_mov_b64 exec, -1")
        valu(U[k & 1])
        a(f"s_mov_b64 exec, s[{sX}:{sX+1}]")
        a(f"ds_write_b128 v{T1}, {vr(ACC,4)}")
        a(f"ds_write_b128 v{T1}, {vr(ACC+4,4)} offset:16")
        a("s_mov_b64 exec, s[6:7]")
        a(f"v_subrev_u32 v{T1}, {QS}, v{T0}")
        a(f"v_cndmask_b32 v{T3}, v5, v{T1}, s[{sSM}:{sSM+1}]")
        a(f"ds_read_b128 {vr(ACC,4)}, v{T3}")
        a(f"ds_read_b128 {vr(ACC+4,4)}, v{T3} offset:16")
        a("s_mov_b64 exec, -1")
        a(f"s_sub_u32 s{sREM}, -1, s{sTEV}")
        a(f"s_min_u32 s{sTEV}, s{sSEGL[0]}, s{sSEGL[1]}")
        a(f"s_cmp_eq_u32 s{sTEV}, {hex(INF)}")
        a("s_cbranch_scc1 K2_LOOP_DONE")
        a(f"s_add_u32 s{sREM}, s{sREM}, s{sTEV}")
        a(f"s_waitcnt vmcnt({DP-1}) lgkmcnt(2)")
        mfma((k+1) % DP, ES[(k+1) & 1], U[(k+1) & 1], 0)
        mfma((k+1) % DP, ES[(k+1) & 1], U[(k+1) & 1], 1)
        pload((k+1) % DP, IP[(k+1) & 1])
        rdE(k); rdI(k)
        a(f"s_sub_u32 s{sREM}, s{sREM}, 1")
        a("s_nop 3")
        if k < DP-1:
            a(f"s_cbranch_scc1 K2_BND{k+1}")
            a(f"s_branch K2_SUB{k+1}")
        else:
            a(f"s_cbranch_scc0 K2_LOOP")
            advance()
            a(f"s_branch K2_BND0")
    a.lab("K2_LOOP_DONE")
    a("s_setprio 0")
    stamp(5)
    if DEBUG:
        a("s_lshl_b32 s93, s2, 4")
        a("s_add_u32 s93, s93, s3")
        a("s_lshl_b32 s93, s93, 5")
        a("s_add_u32 s93, s93, 0xA80000")
        a("v_mov_b32 v1, s93")
        for i in range(8): a(f"v_mov_b32 v{8+i}, s{84+i}")
        a("global_store_dwordx4 v1, v[8:11], s[34:35]")
        a("global_store_dwordx4 v1, v[12:15], s[34:35] offset:16")
    a("s_waitcnt vmcnt(0)")
    a(f"s_cmp_lg_u32 s{sSLOW}, 0")
    a("s_cbranch_scc1 K2_COMB")
    a.lab("K2_EPI")
    a.c("out = -ln2 * S @ w2 + deg*b2")
    AF = 56
    SF = 8
    OA = 32
    B2 = 120
    DG = 124
    a(f"s_cmp_ge_u32 s{sW}, 4")
    a("s_cbranch_scc1 K2_COMB")
    a(f"s_lshl_b32 s6, s{sW}, 14")
    a(f"s_add_u32 s6, s6, {hex(WS_W2)}")
    a("v_and_b32 v7, 63, v0")
    a("v_lshlrev_b32 v7, 4, v7")
    for q in range(4):
        if q: a("s_add_u32 s6, s6, 4096")
        for s in range(4):
            a(f"buffer_load_dwordx4 {vr(AF+16*q+4*s,4)}, v7, s[40:43], s6 offen offset:{1024*s}")
    a("v_bfe_u32 v7, v0, 4, 2")
    a(f"s_lshl_b32 s7, s{sW}, 6")
    a("v_lshlrev_b32 v5, 3, v7")
    a("v_add_u32 v5, s7, v5")
    a(f"global_load_dwordx2 {vr(B2,2)}, v5, s[{PB2}:{PB2+1}]")
    a(f"global_load_dwordx2 {vr(B2+2,2)}, v5, s[{PB2}:{PB2+1}] offset:32")
    a.lab("K2_COMB")
    a("v_and_b32 v1, 63, v0")
    a("v_lshlrev_b32 v2, 2, v1")
    a(f"v_add_u32 v2, {L_HN}, v2")
    a(f"s_mul_i32 s4, s{sW}, {ROWP}")
    a(f"s_add_u32 s4, s4, {L_S}")
    a("v_lshlrev_b32 v3, 4, v1")
    a("v_add_u32 v4, s4, v3")
    a(f"v_add_u32 v3, {L_CR}, v3")
    a(f"s_mul_i32 s4, s{sW}, {SBROW}")
    a(f"s_add_u32 s4, s4, {L_SB}")
    a("v_lshlrev_b32 v6, 3, v1")
    a("v_add_u32 v6, s4, v6")
    stamp("e")
    a("s_waitcnt lgkmcnt(0)")
    a("s_barrier")
    stamp("f")
    a("ds_read_b32 v2, v2")
    for r in range(3):
        a(f"ds_read_b128 {vr(8+4*r,4)}, v4 offset:{16*r*ROWP}")
    a(f"s_add_u32 s4, s{sW}, 1")
    a(f"s_or_b64 s[10:11], s[{sNE}:{sNE+1}], s[{sSM}:{sSM+1}]")
    a(f"s_lshr_b64 s[10:11], s[10:11], s{sW}")
    a("s_waitcnt lgkmcnt(3)")
    a("v_subrev_u32 v2, s4, v2")
    CM = [6, 12, 14]
    for r in range(3): a(f"v_cmp_eq_u32 s[{CM[r]}:{CM[r]+1}], {16*r}, v2")
    a.lab("K2_CBL")
    for r in range(3):
        a(f"s_ff1_i32_b32 s8, s{CM[r]}")
        a(f"s_bitset0_b32 s{CM[r]}, s8")
        a(f"s_mul_i32 s9, s8, {ROWP}")
        a("s_cmp_lt_i32 s8, 0")
        a(f"v_add_u32 v7, s9, v3")
        a(f"s_cbranch_scc0 K2_CH{r}")
        a(f"v_mov_b32 v7, {L_ZERO}")
        a.lab(f"K2_CH{r}")
        a(f"ds_read_b128 {vr(20+4*r,4)}, v7")
    for r in range(3):
        a(f"s_bitcmp1_b64 s[10:11], {16*r}")
        a(f"s_cbranch_scc1 K2_CZ{r}")
        a("s_waitcnt lgkmcnt(3)")
        for c in range(4): a(f"v_mov_b32 v{8+4*r+c}, 0")
        a.lab(f"K2_CZ{r}")
    a(f"s_or_b32 s8, s{CM[0]}, s{CM[1]}")
    a(f"s_or_b32 s8, s8, s{CM[2]}")
    a("s_waitcnt lgkmcnt(0)")
    for r in range(3):
        for c in range(0, 4, 2): a(f"v_pk_add_f32 {vr(8+4*r+c,2)}, {vr(8+4*r+c,2)}, {vr(20+4*r+c,2)}")
    a("s_cbranch_scc1 K2_CBL")
    a(f"s_cmp_lg_u32 s{sSLOW}, 0")
    a("s_cbranch_scc1 K2_SLOW_WB")
    for r in range(3):
        a(f"v_cvt_pk_bf16_f32 v{24+2*r}, v{8+4*r}, v{9+4*r}")
        a(f"v_cvt_pk_bf16_f32 v{25+2*r}, v{10+4*r}, v{11+4*r}")
        a(f"ds_write_b64 v6, {vr(24+2*r,2)} offset:{16*r*SBROW}")
    a("v_and_b32 v2, 15, v0")
    a("v_bfe_u32 v7, v0, 4, 2")
    a(f"v_mul_u32_u24 v4, {SBROW}, v2")
    a("v_lshl_add_u32 v4, v7, 4, v4")
    a(f"v_add_u32 v4, {L_SB}, v4")
    a(f"v_lshlrev_b32 v1, 2, v2")
    a(f"v_add_u32 v1, {L_DEG}, v1")
    a("v_lshl_add_u32 v5, v2, 16, v5")
    a("s_lshl_b32 s9, s2, 8")
    a("v_add_u32 v5, s9, v5")
    stamp("g")
    a("s_waitcnt lgkmcnt(0)")
    a("s_barrier")
    a(f"s_cmp_ge_u32 s{sW}, 4")
    a("s_cbranch_scc1 K2_EXIT")
    stamp(6)
    seq = [(s, nt) for nt in range(3) for s in range(8)]
    def sread(i):
        s, nt = seq[i]
        a(f"ds_read_b128 {vr(SF+4*(i%4),4)}, v4 offset:{64*s+16*nt*SBROW}")
    for nt in range(3): a(f"ds_read_b32 v{DG+nt}, v1 offset:{64*nt}")
    for i in range(4): sread(i)
    a("s_waitcnt vmcnt(0)")
    BU = 24
    pre = []
    for t in range(2):
        pre += [f"v_lshlrev_b32 v{BU+4*t}, 16, v{B2+2*t}", f"v_and_b32 v{BU+4*t+1}, 0xffff0000, v{B2+2*t}",
                f"v_lshlrev_b32 v{BU+4*t+2}, 16, v{B2+2*t+1}", f"v_and_b32 v{BU+4*t+3}, 0xffff0000, v{B2+2*t+1}"]
    pre.append(f"v_mov_b32 v{DG+3}, {hex(S_LN2)}")
    for nt in range(3):
        pre += [f"v_cvt_f32_u32 v{DG+nt}, v{DG+nt}", f"v_mul_f32 v{DG+nt}, 0.25, v{DG+nt}"]
    def tailops(nt):
        r = []
        for k in range(8): r.append(f"v_mul_f32 v{OA+8*nt+k}, v{DG+3}, v{OA+8*nt+k}")
        for k in range(8): r.append(f"v_fmac_f32 v{OA+8*nt+k}, v{DG+nt}, v{BU+k}")
        if nt: r.append(f"v_add_u32 v5, 0x100000, v5")
        for t in range(2):
            o = OA + 8*nt + 4*t
            r += [f"v_cvt_pk_bf16_f32 v{o}, v{o}, v{o+1}", f"v_cvt_pk_bf16_f32 v{o+1}, v{o+2}, v{o+3}",
                  f"buffer_store_dwordx2 {vr(o,2)}, v5, s[48:51], 0 offen offset:{32*t}"]
        return r
    extra = list(pre)
    for i, (s, nt) in enumerate(seq):
        a(f"s_waitcnt lgkmcnt({min(3, len(seq)-1-i)})")
        for t in range(2):
            o = OA + 8*nt + 4*t
            c = "0" if s == 0 else vr(o, 4)
            a(f"v_mfma_f32_16x16x32_bf16 {vr(o,4)}, {vr(AF+32*t+4*s,4)}, {vr(SF+4*(i%4),4)}, {c}")
        if i + 4 < len(seq): sread(i+4)
        if s == 2 and nt:
            assert not extra
            extra = tailops(nt-1)
        for _ in range(4):
            if extra: a(extra.pop(0))
    assert not extra
    a("s_nop 7")
    for ins in tailops(2): a(ins)
    if DEBUG:
        stamp(7)
        a("s_cmp_lg_u32 s3, 0")
        a("s_cbranch_scc1 K2_EXIT")
        a("s_memrealtime s[98:99]")
        a("s_lshl_b32 s93, s2, 6")
        a("s_add_u32 s93, s93, 0xA00000")
        a("v_mov_b32 v1, s93")
        a("s_waitcnt lgkmcnt(0)")
        for i in range(8):
            a(f"s_sub_u32 s93, s{84+i}, s84")
            a("v_mov_b32 v2, s93")
            a(f"global_store_dword v1, v2, s[34:35] offset:{4*i}")
        for off, sr_ in ((32, 96), (36, 98), (40, 92)):
            a(f"v_mov_b32 v2, s{sr_}")
            a(f"global_store_dword v1, v2, s[34:35] offset:{off}")
    a.lab("K2_EXIT")
    a("s_endpgm")
    a.lab("K2_SLOW_WB")
    a(f"ds_write_b128 v4, v[8:11]")
    a(f"ds_write_b128 v4, v[12:15] offset:{16*ROWP}")
    a(f"s_cmp_ge_u32 s{sW}, 8")
    a("s_cbranch_scc1 K2_SLOW_SYNC")
    a(f"ds_write_b128 v4, v[16:19] offset:{32*ROWP}")
    a("s_branch K2_SLOW_SYNC")
    a.lab("K2_SLOW_S")
    a.lab("K2_SLOW_SET")
    a(f"s_mov_b32 s{sSLOW}, 1")
    a.lab("K2_SLOW_SYNC")
    a("s_waitcnt lgkmcnt(0)")
    a("s_barrier")
    a.lab("K2_SLOW_NEXT")
    a("v_lshlrev_b32 v4, 4, v0")
    for k in range(4): a(f"v_mov_b32 v{ZT+k}, 0")
    zero_batch(L_BZEND)
    a(f"s_cmp_lg_u32 s{sBATCH}, 0")
    a("s_cbranch_scc1 K2_SLOW_NZ")
    a(f"s_mov_b64 s[{sSM}:{sSM+1}], -1")
    a(f"ds_write_b128 v4, {vr(ZT,4)} offset:{L_S}")
    a(f"ds_write_b128 v4, {vr(ZT,4)} offset:{L_S+16384}")
    a(f"ds_write_b128 v4, {vr(ZT,4)} offset:{L_S+40*ROWP-16384}")
    a.lab("K2_SLOW_NZ")
    a(f"s_cmp_lt_u32 s{sBATCH}, {E}")
    a("s_cbranch_scc1 K2_SLOW_GO")
    a(f"s_mov_b32 s{sSLOW}, 0")
    a("s_branch K2_EPI")
    a.lab("K2_SLOW_GO")
    a(f"v_add_u32 v5, s{sBATCH}, v0")
    a(f"v_mov_b32 v6, {E}")
    a("v_cmp_lt_u32 vcc, v5, v6")
    a(f"v_min_u32 v5, {E-1}, v5")
    a("v_lshlrev_b32 v6, 2, v5")
    a("v_lshlrev_b32 v7, 1, v5")
    SD, SE, SS = 40, 41, 42
    a(f"global_load_dword v{SD}, v6, s[{PDST}:{PDST+1}]")
    a(f"global_load_dword v{SS}, v6, s[{PSRC}:{PSRC+1}]")
    a(f"global_load_ushort v{SE}, v7, s[{PE}:{PE+1}]")
    a("v_and_b32 v5, 63, v0")
    a("v_lshlrev_b32 v5, 2, v5")
    a("s_waitcnt vmcnt(0) lgkmcnt(0)")
    a("s_barrier")
    a(f"v_and_b32 v7, 0xff, v{SD}")
    a(f"v_cmp_eq_u32 s[{sV[0]}:{sV[0]+1}], s2, v7")
    a(f"v_lshl_or_b32 v{R0}, v{SS}, 16, v{SE}")
    a(f"v_lshrrev_b32 v7, 6, v{SD}")
    a(f"v_and_b32 v{R0+3}, 0xfc, v7")
    a(f"s_and_b64 s[{sV[0]}:{sV[0]+1}], s[{sV[0]}:{sV[0]+1}], vcc")
    a("v_mov_b32 v7, 4")
    rank_atomics(1)
    a("s_mov_b64 exec, -1")
    a(f"s_add_u32 s{sBATCH}, s{sBATCH}, {BATCH}")
    a("s_waitcnt lgkmcnt(0)")
    a("s_barrier")
    a("s_branch K2_SCAN")
    a.lab("TEXT_END")
    return 128

HEADER = open('standalone__edge_featured_mpnn_mpnn__graph.s.ref').read().split("; Override launch")[0]

def kd(name, nv, ns):
    acc = (nv + 3) // 4 * 4
    return f""".p2align 6
.amdhsa_kernel {name}
  .amdhsa_next_free_vgpr {nv}
  .amdhsa_next_free_sgpr {ns}
  .amdhsa_accum_offset {acc}
  .amdhsa_group_segment_fixed_size 0
  .amdhsa_kernarg_size 88
  .amdhsa_user_sgpr_count 2
  .amdhsa_user_sgpr_kernarg_segment_ptr 1
  .amdhsa_system_sgpr_workgroup_id_x 1
.end_amdhsa_kernel
"""

def build(TPW=4, DP=6):
    a = Asm()
    g1 = gen_k1(a, TPW)
    nv2 = gen_k2(a, DP)
    out = HEADER
    out += f"; @launch kernel=k1_kernel grid=({g1},1,1) block=(512,1,1) lds={K1_LDS}\n"
    out += f"; @launch kernel=k2_kernel grid=(256,1,1) block=(1024,1,1) lds={L_END}\n"
    out += '.amdgcn_target "amdgcn-amd-amdhsa--gfx950"\n.text\n'
    out += a.text()
    out += '.section .rodata,"a"\n'
    out += kd("k1_kernel", 144, 80)
    out += kd("k2_kernel", 128, 102)
    return out

if __name__ == "__main__":
    import argparse
    ap = argparse.ArgumentParser()
    ap.add_argument("-o", default="standalone__edge_featured_mpnn_mpnn__graph.s")
    ap.add_argument("--tpw", type=int, default=4)
    ap.add_argument("--dp", type=int, default=4)
    ap.add_argument("--debug", action="store_true")
    ap.add_argument("--srcmask", type=int, default=0)
    ap.add_argument("--exp", default="")
    ap.add_argument("--pr1", type=int, default=8)
    ap.add_argument("--pr0", type=int, default=4)
    ap.add_argument("--prm", type=int, default=-1)
    ap.add_argument("--wqs", type=int, default=4)
    ap.add_argument("--wqs2", type=int, default=5)
    ap.add_argument("--pf", type=int, default=0)
    args = ap.parse_args()
    DEBUG = args.debug
    SRCMASK = args.srcmask
    PF = args.pf
    WQSPLIT = args.wqs
    PR1, PR0, PRM = args.pr1, args.pr0, args.prm
    WQSPLIT2 = args.wqs2
    EXP = set(args.exp.split(",")) if args.exp else set()
    open(args.o, "w").write(build(args.tpw, args.dp))
```

```python
import sys, struct

N, E, D_, H = 10000, 160000, 128, 256
NCH = 64
CH_E = E // NCH
WS_P = 0
WS_CELLS = 0x500000
WS_WQ = 0x900000
WS_W2 = 0x910000
WS_WE = 0x920000
WS_B1 = 0x920400
WS_END = 0x921000

def f32bits(x): return struct.unpack('<I', struct.pack('<f', x))[0]
S_LOG2E = f32bits(-1.4426950408889634)
S_LN2 = f32bits(-0.6931471805599453)

class Asm:
    def __init__(self): self.l = []
    def __call__(self, s): self.l.append("    " + s)
    def lab(self, s): self.l.append(s + ":")
    def c(self, s): self.l.append("    ; " + s)
    def raw(self, s): self.l.append(s)
    def text(self): return "\n".join(self.l) + "\n"

def vr(a, n): return f"v[{a}:{a+n-1}]"
def sr(a, n): return f"s[{a}:{a+n-1}]"

def srd(a, d, base, nrec, stride=0, add=0):
    if add:
        a(f"s_add_u32 s{d}, s{base}, {hex(add)}")
        a(f"s_addc_u32 s{d+1}, s{base+1}, 0")
    else:
        a(f"s_mov_b32 s{d}, s{base}")
        a(f"s_mov_b32 s{d+1}, s{base+1}")
    if stride:
        a(f"s_or_b32 s{d+1}, s{d+1}, {hex(stride << 16)}")
    a(f"s_mov_b32 s{d+2}, {hex(nrec)}")
    a(f"s_mov_b32 s{d+3}, 0x20000")

PX, PE, PSRC, PDST, PW1, PB1, PW2, PB2 = 16, 18, 20, 22, 24, 26, 28, 30

DEBUG = False
SRCMASK = 0
EXP = set()
PF = 0
WQSPLIT = 2
PR1 = 10
PR0 = 4
PRM = -1
WQSPLIT2 = 5
def code_prefetch(a, tag, target, per, sa, dst, nslice_shift=3, mask=31):
    a(f"s_getpc_b64 s[{sa}:{sa+1}]")
    a.lab(f"CP_{tag}")
    a(f"s_lshr_b32 s{dst}, s2, {nslice_shift}")
    a(f"s_and_b32 s{dst}, s{dst}, {mask}")
    a(f"s_mul_i32 s{dst}, s{dst}, {per*128}")
    a(f"s_min_u32 s{dst}, s{dst}, TEXT_END-{target}-{per*128}")
    a(f"s_add_u32 s{dst}, s{dst}, {target}-CP_{tag}")
    a(f"s_add_u32 s{sa}, s{sa}, s{dst}")
    a(f"s_addc_u32 s{sa+1}, s{sa+1}, 0")
    for i in range(per):
        a(f"s_load_dword s{dst+i}, s[{sa}:{sa+1}], {128*i}")

CAP1 = 24
CAP = 48
K1_LDS = 65536 + 16384
def gen_k1(a, TPW):
    assert TPW == 4
    NG = (625 + TPW - 1) // TPW
    NTR = 8
    GRID = NCH + NTR + NG
    a.raw(".globl k1_kernel"); a.raw(".p2align 8"); a.raw(".type k1_kernel,@function")
    a.lab("k1_kernel")
    a(f"s_cmp_ge_u32 s2, {GRID}")
    a("s_cbranch_scc1 K1_EXIT")
    a("s_load_dwordx16 s[16:31], s[0:1], 0")
    a("s_load_dwordx2 s[32:33], s[0:1], 80")
    if "cpf1" in EXP: code_prefetch(a, "A", "K1_BODY", 5, 64, 66, mask=31)
    a.lab("K1_BODY")
    if DEBUG: a("s_memrealtime s[56:57]")
    K1S = [52, 53, 54, 55, 62, 63]
    def st1(i):
        if not (DEBUG and "k1st" in EXP): return
        a("s_memtime s[14:15]")
        a("s_waitcnt lgkmcnt(0)")
        a(f"s_mov_b32 s{K1S[i]}, s14")
    st1(0)
    def k1end():
        if DEBUG:
            a("s_waitcnt vmcnt(0)")
            a("s_memrealtime s[58:59]")
            a("s_lshl_b32 s60, s2, 4")
            a("s_add_u32 s60, s60, 0xB00000")
            a("v_mov_b32 v1, s60")
            a("s_waitcnt lgkmcnt(0)")
            a("v_mov_b32 v2, s56")
            a("v_mov_b32 v3, s58")
            a("v_cmp_eq_u32 vcc, 0, v0")
            a("s_and_saveexec_b64 s[60:61], vcc")
            a("s_cbranch_execz K1_EXIT")
            a("global_store_dwordx2 v1, v[2:3], s[32:33]")
            if "k1st" in EXP:
                st1(5)
                a("s_lshl_b32 s60, s2, 5")
                a("s_add_u32 s60, s60, 0xB80000")
                a("v_mov_b32 v1, s60")
                for i in range(6):
                    a(f"s_sub_u32 s60, s{K1S[i]}, s52")
                    a("v_mov_b32 v2, s60")
                    a(f"global_store_dword v1, v2, s[32:33] offset:{4*i}")
        a("s_endpgm")
    a(f"s_cmp_lt_u32 s2, {NCH}")
    a("s_cbranch_scc1 K1_SORT")
    a(f"s_cmp_lt_u32 s2, {NCH+NTR}")
    a("s_cbranch_scc1 K1_TRANS")
    a.c("GEMM role: P' = -log2e * x @ W1a ; W and x staged in LDS by DMA (XOR-swizzled 16B slots)")
    LX = 65536
    a("v_lshrrev_b32 v1, 6, v0")
    a("v_and_b32 v2, 63, v0")
    a("v_readfirstlane_b32 s3, v1")
    a("v_lshrrev_b32 v3, 5, v2")
    a("v_and_b32 v4, 31, v2")
    a("v_lshlrev_b32 v5, 2, v3")
    a("v_xor_b32 v4, v4, v5")
    a("v_lshlrev_b32 v4, 4, v4")
    a("v_lshl_add_u32 v4, v3, 9, v4")
    a("v_xor_b32 v5, 0x80, v4")
    a("v_lshrrev_b32 v3, 4, v2")
    a("v_and_b32 v6, 15, v2")
    a("v_lshlrev_b32 v7, 3, v1")
    a("v_and_b32 v7, 8, v7")
    a("v_or_b32 v7, v7, v3")
    a("v_xor_b32 v7, v6, v7")
    a("v_lshlrev_b32 v7, 4, v7")
    a("v_lshl_add_u32 v7, v3, 8, v7")
    a("v_xor_b32 v8, 0x40, v7")
    a(f"s_sub_u32 s4, s2, {NCH+NTR}")
    a("s_lshl_b32 s5, s4, 14")
    a("s_lshl_b32 s6, s3, 11")
    a("s_add_u32 s5, s5, s6")
    a("s_lshr_b32 s7, s2, 3")
    a("s_add_u32 s7, s7, s3")
    a("s_and_b32 s7, s7, 7")
    a("s_lshl_b32 s7, s7, 13")
    a("s_waitcnt lgkmcnt(0)")
    srd(a, 36, PX, N*256)
    srd(a, 40, PW1, 257*512)
    a(f"s_add_u32 s8, s6, {LX}")
    a("s_mov_b32 m0, s8")
    a("s_add_u32 s9, s5, 1024")
    a("buffer_load_dwordx4 v7, s[36:39], s5 offen lds")
    a("s_add_u32 m0, s8, 1024")
    a("s_mov_b32 s8, s7")
    a("buffer_load_dwordx4 v8, s[36:39], s9 offen lds")
    for i in range(8):
        a("s_mov_b32 m0, s8")
        a("s_nop 0")
        a(f"buffer_load_dwordx4 v{4+(i&1)}, s[40:43], s8 offen lds")
        if i < 7: a("s_add_u32 s8, s8, 1024")
    st1(1)
    srd(a, 44, 32, N*512, add=WS_P)
    if "tlb" in EXP:
        a("s_lshl_b32 s10, s4, 15")
        a("v_lshlrev_b32 v16, 6, v0")
        a("buffer_load_dword v17, v16, s[44:47], s10 offen")
    a("v_lshrrev_b32 v9, 2, v6")
    a("v_and_b32 v10, 3, v6")
    a("v_xor_b32 v11, v1, v9")
    a("v_lshl_or_b32 v10, v11, 2, v10")
    a("v_lshlrev_b32 v10, 4, v10")
    a("v_lshl_add_u32 v9, v3, 3, v9")
    a("v_lshl_add_u32 v9, v9, 9, v10")
    a("v_xor_b32 v10, v3, v6")
    a("v_lshlrev_b32 v10, 4, v10")
    a("v_lshl_add_u32 v10, v6, 8, v10")
    a(f"v_add_u32 v10, {LX}, v10")
    for s in range(1, 4): a(f"v_xor_b32 v{10+s}, {64*s}, v10")
    a("v_lshlrev_b32 v14, 9, v6")
    a("v_lshl_add_u32 v14, v1, 6, v14")
    a("v_lshl_add_u32 v14, v3, 4, v14")
    a("s_lshl_b32 s5, s4, 15")
    a(f"v_mov_b32 v15, {hex(S_LOG2E)}")
    WFR = 16
    XFR = 48
    ACC = 112
    a("s_waitcnt vmcnt(0)")
    st1(2)
    a("s_barrier")
    st1(3)
    order = []
    for s in range(4):
        for t in range(2):
            for hh in range(2):
                a(f"ds_read_b64_tr_b16 {vr(WFR+16*t+4*s+2*hh,2)}, v9 offset:{(32*s+4*hh)*512+8*t}")
        a(f"ds_read_b128 {vr(XFR+4*s,4)}, v{10+s}")
        if s == 1:
            pass
    def xr(tau):
        for s in range(4): a(f"ds_read_b128 {vr(XFR+16*tau+4*s,4)}, v{10+s} offset:{4096*tau}")
    def mm(tau, s):
        for t in range(2):
            o = ACC + 8*tau + 4*t
            a(f"v_mfma_f32_16x16x32_bf16 {vr(o,4)}, {vr(WFR+16*t+4*s,4)}, {vr(XFR+16*tau+4*s,4)}, {'0' if s == 0 else vr(o,4)}")
    def epi(tau):
        r = []
        o = ACC + 8*tau
        for k in range(8): r.append(f"v_mul_f32 v{o+k}, v15, v{o+k}")
        for k in range(4): r.append(f"v_cvt_pk_bf16_f32 v{o+k}, v{o+2*k}, v{o+2*k+1}")
        r.append(f"s_add_u32 s6, s5, {8192*tau}")
        fl = " sc1" if "psc1" in EXP else " nt" if "pnt" in EXP else ""
        r.append(f"buffer_store_dwordx4 {vr(o,4)}, v14, s[44:47], s6 offen{fl}")
        return r
    for s in range(4):
        a(f"s_waitcnt lgkmcnt({5*(3-s)})")
        mm(0, s)
    xr(1); xr(2); xr(3)
    extra = []
    for tau in range(1, 4):
        a(f"s_waitcnt lgkmcnt({4*(3-tau)})")
        for s in range(4):
            mm(tau, s)
            if s == 1 or (s == 0 and tau == 1):
                if not extra and not (s == 1 and tau == 1): extra = epi(tau-1)
            if s >= 1:
                for _ in range(5):
                    if extra: a(extra.pop(0))
        assert not extra
    a("s_nop 7")
    for ins in epi(3): a(ins)
    st1(4)
    k1end()
    a.lab("K1_TRANS")
    a.c("fragment transposer for W1b (WQ) and w2 (W2F); 128 blocks per WG")
    a(f"s_sub_u32 s3, s2, {NCH}")
    a("v_lshrrev_b32 v1, 6, v0")
    a("s_and_b32 s4, s3, 3")
    a("v_readfirstlane_b32 s11, v1")
    a("s_lshl_b32 s4, s4, 7")
    a("v_add_u32 v1, s4, v0")
    a("s_mov_b32 s9, 0x05040100"); a("s_mov_b32 s10, 0x07060302")
    a("s_waitcnt lgkmcnt(0)")
    a("s_cmp_ge_u32 s11, 2")
    a("s_cbranch_scc1 K1_TR_SMALL")
    a("s_cmp_ge_u32 s3, 4")
    a("s_cbranch_scc1 K1_TR_W2")
    a("v_and_b32 v2, 31, v1")
    a("v_lshrrev_b32 v3, 5, v1")
    a("v_lshlrev_b32 v4, 4, v2")
    a("v_lshl_add_u32 v4, v3, 12, v4")
    a("v_add_u32 v4, 0x10000, v4")
    a("v_lshrrev_b32 v5, 1, v2")
    a("v_lshlrev_b32 v5, 12, v5")
    a("v_lshl_add_u32 v5, v3, 8, v5")
    a("v_and_b32 v6, 1, v2")
    a("v_lshl_add_u32 v5, v6, 7, v5")
    srd(a, 36, PW1, 257*512)
    srd(a, 40, 32, 0x10000, add=WS_WQ)
    a("s_mov_b32 s5, 512")
    a("s_branch K1_TR_GO")
    a.lab("K1_TR_W2")
    a("v_and_b32 v2, 15, v1")
    a("v_bfe_u32 v3, v1, 4, 3")
    a("v_lshrrev_b32 v7, 7, v1")
    a("v_lshlrev_b32 v4, 4, v2")
    a("v_lshl_add_u32 v4, v3, 13, v4")
    a("v_lshl_add_u32 v4, v7, 11, v4")
    a("v_lshrrev_b32 v5, 1, v2")
    a("v_lshlrev_b32 v5, 13, v5")
    a("v_lshl_add_u32 v5, v3, 10, v5")
    a("v_lshl_add_u32 v5, v7, 8, v5")
    a("v_and_b32 v6, 1, v2")
    a("v_lshl_add_u32 v5, v6, 7, v5")
    srd(a, 36, PW2, 256*256)
    srd(a, 40, 32, 0x10000, add=WS_W2)
    a("s_mov_b32 s5, 256")
    a.lab("K1_TR_GO")
    a("s_mov_b32 s6, 0")
    for m in range(8):
        a(f"buffer_load_dwordx4 {vr(16+4*m,4)}, v4, s[36:39], s6 offen")
        if m < 7: a("s_add_u32 s6, s6, s5")
    if "tlb" in EXP:
        a("buffer_load_dword v80, v5, s[40:43], 0 offen")
        a("s_waitcnt vmcnt(1)")
    else: a("s_waitcnt vmcnt(0)")
    for cc in range(8):
        for p in range(4):
            a(f"v_perm_b32 v{48+4*cc+p}, v{16+4*(2*p+1)+(cc>>1)}, v{16+4*(2*p)+(cc>>1)}, s{9+(cc&1)}")
        a(f"buffer_store_dwordx4 {vr(48+4*cc,4)}, v5, s[40:43], 0 offen offset:{16*cc}")
    k1end()
    a.lab("K1_TR_SMALL")
    a("s_cmp_lg_u32 s3, 0")
    a("s_cbranch_scc1 K1_EXIT")
    a("s_cmp_lt_u32 s11, 4")
    a("s_cbranch_scc1 K1_EXIT")
    a("v_and_b32 v1, 255, v0")
    a("v_lshlrev_b32 v2, 1, v1")
    a(f"s_add_u32 s6, s{PW1}, 0x20000")
    a(f"s_addc_u32 s7, s{PW1+1}, 0")
    a("global_load_ushort v8, v2, s[6:7]")
    a(f"global_load_ushort v9, v2, s[{PB1}:{PB1+1}]")
    a(f"s_add_u32 s6, s32, {hex(WS_WE)}")
    a("s_addc_u32 s7, s33, 0")
    a(f"v_mov_b32 v10, {hex(S_LOG2E)}")
    a("v_lshlrev_b32 v3, 2, v1")
    a("s_waitcnt vmcnt(0)")
    a("v_lshlrev_b32 v8, 16, v8")
    a("v_lshlrev_b32 v9, 16, v9")
    a("v_mul_f32 v8, v10, v8")
    a("v_mul_f32 v9, v10, v9")
    a("v_cvt_pk_bf16_f32 v8, v8, v8")
    a("global_store_short v2, v8, s[6:7]")
    a(f"global_store_dword v3, v9, s[6:7] offset:{WS_B1-WS_WE}")
    a("s_endpgm")
    a.lab("K1_SORT")
    a.c("bucket the edges of chunk s2 by dst&255; cell line: 8 x [rec q, rec q+8, rec q+16, (loc,loc,loc,count)]")
    LC = 32768
    a("v_lshlrev_b32 v1, 2, v0")
    a("v_mov_b32 v2, 0")
    a(f"ds_write_b32 v1, v2 offset:{LC}")
    a("v_lshlrev_b32 v3, 4, v0")
    a("v_lshlrev_b32 v4, 3, v0")
    a("v_mov_b32 v5, 1")
    a(f"s_mul_i32 s3, s2, {CH_E*4}")
    a(f"s_mul_i32 s4, s2, {CH_E*2}")
    a("s_lshl_b32 s5, s2, 8")
    a("s_add_u32 s6, s3, 8192")
    a("s_add_u32 s7, s4, 4096")
    a("s_mov_b32 s8, 0x05040100"); a("s_mov_b32 s9, 0x05040302")
    a("s_waitcnt lgkmcnt(0)")
    srd(a, 36, PDST, E*4)
    srd(a, 40, PSRC, E*4)
    srd(a, 44, PE, E*2)
    srd(a, 48, 32, 256*NCH*256, add=WS_CELLS)
    DST, SRC, EA = 16, 24, 32
    RK, BK, REC = 36, 44, 52
    A0, A1 = 60, 68
    nlast = CH_E - 2048
    a("v_lshlrev_b32 v6, 1, v0")
    a(f"buffer_load_dwordx4 {vr(DST,4)}, v3, s[36:39], s3 offen")
    a(f"buffer_load_dword v{DST+4}, v1, s[36:39], s6 offen")
    a(f"buffer_load_dwordx4 {vr(SRC,4)}, v3, s[40:43], s3 offen")
    a(f"buffer_load_dwordx2 {vr(EA,2)}, v4, s[44:47], s4 offen")
    a(f"buffer_load_dword v{SRC+4}, v1, s[40:43], s6 offen")
    a(f"buffer_load_ushort v{EA+2}, v6, s[44:47], s7 offen")
    if "tlb" in EXP:
        a("s_load_dwordx2 s[64:65], s[0:1], 64")
        a("v_lshlrev_b32 v76, 13, v0")
        a("buffer_load_dword v77, v76, s[48:51], s5 offen")
        a("s_waitcnt lgkmcnt(0)")
        srd(a, 68, 64, N*256)
        a("buffer_load_dword v78, v76, s[68:71], 0 offen")
        a(f"global_load_dword v79, v5, s[{PB2}:{PB2+1}] offset:3")
    NT = 3 if "tlb" in EXP else 0
    a(f"v_cmp_gt_u32 vcc, {nlast}, v0")
    a(f"v_mov_b32 v{RK+4}, 0")
    a(f"v_mov_b32 v{BK+4}, 0")
    a(f"v_mov_b32 v7, {CAP1}")
    a("s_mov_b64 s[10:11], vcc")
    a("s_barrier")
    st1(1)
    def atomic(k):
        a(f"v_and_b32 v{BK+k}, 0xff, v{DST+k}")
        a(f"v_lshlrev_b32 v8, 2, v{BK+k}")
        a(f"ds_add_rtn_u32 v{RK+k}, v8, v5 offset:{LC}")
    a(f"s_waitcnt vmcnt({5+NT})")
    st1(2)
    for k in range(4): atomic(k)
    a(f"s_waitcnt vmcnt({4+NT})")
    a("s_mov_b64 exec, s[10:11]")
    atomic(4)
    a("s_mov_b64 exec, -1")
    for k in range(5):
        a(f"v_lshrrev_b32 v{DST+k}, 6, v{DST+k}")
        a(f"v_and_b32 v{DST+k}, 0xfc, v{DST+k}")
        a(f"v_lshlrev_b32 v{BK+k}, 7, v{BK+k}")
    a(f"s_waitcnt vmcnt({NT})")
    for k in range(5):
        if SRCMASK: a(f"v_and_b32 v{SRC+k}, {SRCMASK}, v{SRC+k}")
        a(f"v_perm_b32 v{REC+k}, v{SRC+k}, v{EA+(k>>1)}, s{8+(k&1)}")
    a("s_waitcnt lgkmcnt(0)")
    st1(3)
    for k in range(5):
        a(f"v_and_b32 v8, 7, v{RK+k}")
        a(f"v_lshl_add_u32 v8, v8, 4, v{BK+k}")
        a(f"v_lshrrev_b32 v9, 3, v{RK+k}")
        a(f"v_lshl_add_u32 v{A0+k}, v9, 2, v8")
        a(f"v_add_u32 v{A1+k}, v9, v8")
        if k == 4: a("s_mov_b64 exec, s[10:11]")
        a(f"v_cmpx_gt_u32 vcc, v7, v{RK+k}")
        a(f"ds_write_b32 v{A0+k}, v{REC+k}")
        a(f"ds_write_b8 v{A1+k}, v{DST+k} offset:12")
        a("s_mov_b64 exec, -1")
    a(f"v_max3_u32 v8, v{RK}, v{RK+1}, v{RK+2}")
    a(f"v_max3_u32 v8, v8, v{RK+3}, v{RK+4}")
    a("v_cmp_le_u32 vcc, v7, v8")
    a("s_cbranch_vccz K1_NOOV")
    for k in range(5):
        a(f"v_lshlrev_b32 v12, 7, v{BK+k}")
        a(f"v_sub_u32 v12, v12, v{BK+k}")
        a(f"v_sub_u32 v13, {CAP-1}, v{RK+k}")
        a(f"v_subrev_u32 v14, {CAP1}, v{RK+k}")
        a("v_or_b32 v13, v13, v14")
        a(f"v_and_b32 v13, 0x80000000, v13")
        a("v_or_b32 v12, v12, v13")
        a(f"v_add_u32 v10, v{A0+k}, v12")
        a(f"v_add_u32 v11, v{A1+k}, v12")
        a(f"buffer_store_dword v{REC+k}, v10, s[48:51], s5 offen offset:{128-12}")
        a(f"buffer_store_byte v{DST+k}, v11, s[48:51], s5 offen offset:{128+12-3}")
    a.lab("K1_NOOV")
    a("v_lshrrev_b32 v6, 3, v0")
    a("v_lshlrev_b32 v7, 2, v6")
    a("v_and_b32 v8, 0x70, v3")
    a("v_lshl_add_u32 v8, v6, 14, v8")
    a("v_mov_b32 v9, 0xffffff")
    a("s_waitcnt lgkmcnt(0)")
    a("s_barrier")
    st1(4)
    for i in range(4):
        a(f"ds_read_b128 {vr(16+4*i,4)}, v3 offset:{8192*i}")
        a(f"ds_read_b32 v{32+i}, v7 offset:{LC+256*i}")
    for i in range(4):
        a(f"s_waitcnt lgkmcnt({6-2*i})")
        a(f"v_min_u32 v{32+i}, 0xff, v{32+i}")
        a(f"v_lshlrev_b32 v{32+i}, 24, v{32+i}")
        a(f"v_and_or_b32 v{19+4*i}, v{19+4*i}, v9, v{32+i}")
        a(f"buffer_store_dwordx4 {vr(16+4*i,4)}, v8, s[48:51], s5 offen")
        if i < 3: a(f"s_add_u32 s5, s5, {64*16384}")
    k1end()
    a.lab("K1_EXIT")
    a("s_endpgm")
    return GRID

ROWP = 1040
SBROW = 528
BATCH = 1024
NSLOT = BATCH + 16
L_EP = 0
L_IDX = L_EP + NSLOT*16
L_CNT = L_IDX + NSLOT*4
L_HN = L_CNT + 256
L_ZERO = L_HN + 128
L_BZEND = L_ZERO + 256
L_DEG = L_BZEND
L_FLAG = L_DEG + 256
L_ZEND = L_FLAG + 32
L_S = L_ZEND
L_Q = L_S + 40*ROWP
L_SB = L_Q
XROW = 272
L_CR = L_Q + 40*ROWP
L_XS = L_CR
L_END = L_CR + 32*ROWP
QS = L_Q - L_S

def gen_k2(a, DP):
    assert DP % 2 == 0
    INF = 0x7fffffff
    SMAP = {0:0, 1:1, 2:2, 3:3, 4:4, 5:5, 6:6, 7:7}
    if "fine" in EXP: SMAP = {0:0, 1:1, "a":2, "b":3, 2:4, 3:5, "c":6, "d":7}
    if "fine2" in EXP: SMAP = {0:0, 4:1, 5:2, "e":3, "f":4, "g":5, 6:6, 7:7}
    def stamp(i):
        if not DEBUG or i not in SMAP: return
        a("s_memtime s[94:95]")
        a("s_waitcnt lgkmcnt(0)")
        a(f"s_mov_b32 s{84+SMAP[i]}, s94")
    a.raw(".globl k2_kernel"); a.raw(".p2align 8"); a.raw(".type k2_kernel,@function")
    a.lab("k2_kernel")
    a("s_cmp_ge_u32 s2, 256")
    a("s_cbranch_scc1 K2_EXIT")
    a("s_load_dwordx16 s[16:31], s[0:1], 0")
    a("s_load_dwordx2 s[32:33], s[0:1], 64")
    a("s_load_dwordx2 s[34:35], s[0:1], 80")
    if "cpf2" in EXP: code_prefetch(a, "B", "K2_BODY", 3, 6, 8)
    a.lab("K2_BODY")
    if DEBUG: a("s_memrealtime s[96:97]")
    stamp(0)
    assert DP == 4
    U = [8, 16]; EX, ACC, Q = 24, 32, 40
    IP = [56, 58]
    AB = 60
    ES = [62, 66]
    BS = 70
    M = 118
    VEA, VIA, VES, VEND, VQA, VSTA, VEO, VH, VXA, VQW = range(M, M+10)
    T0, T1, T3 = 1, 2, 4
    WF = 8
    R0 = 8
    HD = 16
    RK = 17
    LA = 23
    PS = 29
    XP = 40
    VC = 53
    PB = 54
    XF = 40
    QA = 102
    ZT = 102
    B1 = 106
    BI = 110
    WE = 48
    sW, sNE = 3, 56
    sV = [52, 54, 10, 12, 14, 36]
    sT, sT2, sREM, sTEV, sSLOW, sBATCH, sLEFT, sX = 58, 59, 60, 61, 62, 63, 66, 68
    sMASK = [70, 72]; sPOS = [74, 75]; sEND = [76, 77]; sSEGL = [78, 79]; sHEAD = [80, 81]; sCR = [82, 83]
    sROW = [4, 5]
    sSM = 100
    sWQ = 64
    uid0 = [0]
    def L(p):
        uid0[0] += 1
        return f"K2_{p}{uid0[0]}"
    def exec_half(x):
        a(f"s_mov_b32 exec_lo, {-1 if x == 0 else 0}")
        a(f"s_mov_b32 exec_hi, {0 if x == 0 else -1}")
    wpos = [0, 1, 6, 7]
    a("v_lshlrev_b32 v4, 4, v0")
    for k in range(4): a(f"v_mov_b32 v{ZT+k}, 0")
    a("v_lshrrev_b32 v1, 6, v0")
    a("v_and_b32 v5, 0x3f0, v4")
    a(f"ds_write_b128 v5, {vr(ZT,4)} offset:{L_ZEND-1024}")
    a("v_readfirstlane_b32 s3, v1")
    a(f"v_and_b32 v{IP[0]+1}, 0x1f0, v4")
    a("v_lshlrev_b32 v2, 5, v0")
    a("v_and_b32 v3, 0xffffff00, v2")
    a("s_lshl_b32 s4, s2, 14")
    a(f"s_add_u32 s4, s4, {hex(WS_CELLS)}")
    a("s_lshl_b32 s5, s2, 8")
    a("s_waitcnt lgkmcnt(0)")
    a("s_barrier")
    stamp(1)
    srd(a, 40, 34, WS_END)
    a(f"s_add_u32 s6, s34, {hex(WS_WE)}")
    a(f"s_addc_u32 s7, s35, 0")
    a(f"global_load_dwordx4 {vr(WE,4)}, v{IP[0]+1}, s[6:7]")
    a(f"s_cmp_ge_u32 s{sW}, 8")
    a("s_cbranch_scc1 K2_GEMMER")

    def lane_consts():
        srd(a, 44, 34, N, stride=512, add=WS_P)
        srd(a, 48, 32, N*256)
        a(f"s_mov_b32 s{sSLOW}, 0")
        a(f"s_mov_b32 s{sBATCH}, 0")
        a(f"s_mov_b64 s[{sSM}:{sSM+1}], 0")
        a(f"v_mov_b32 v{IP[1]+1}, v{IP[0]+1}")
        a(f"v_mov_b32 v{IP[0]}, 0")
        a(f"v_mov_b32 v{IP[1]}, 0")
        a(f"v_lshlrev_b32 v{VQA}, 1, v{IP[0]+1}")
        a(f"v_add_u32 v{VQA}, {L_Q}, v{VQA}")
        a("s_mov_b32 s10, 0x00f0000f")
        a("s_mov_b32 s11, 0xf0000f00")
        a("s_mov_b32 s12, 0x00300003")
        a("s_mov_b32 s13, 0x30000300")
        a("s_mov_b32 s14, 0x00c0000c")
        a("s_mov_b32 s15, 0xc0000c00")
        a(f"v_and_b32 v6, 16, v4")
        a(f"v_mov_b32 v{PB}, 0x3f80")
        a(f"v_lshlrev_b32 v{PB}, v6, v{PB}")
        for k in (0, 4, 8):
            a(f"v_cndmask_b32 v{AB+k}, 0, v{PB}, s[12:13]")
            a(f"v_cndmask_b32 v{AB+k+1}, 0, v{PB}, s[14:15]")
        a(f"v_lshrrev_b32 v6, 1, v6")
        a(f"v_mov_b32 v{VEO}, {L_ZERO}")
        a(f"v_or_b32 v{PB}, 4, v6")
        a(f"v_cndmask_b32 v{VEO}, v{VEO}, v{PB}, s[12:13]")
        a(f"v_cndmask_b32 v{VEO}, v{VEO}, v6, s[14:15]")
        a(f"v_cndmask_b32 v{VES}, 0, 4, s[10:11]")
        a(f"v_bfe_u32 v{VH}, v0, 5, 1")
        a(f"v_mov_b32 v7, 4")
        a(f"v_lshrrev_b32 v5, 2, v5")
    def wscale():
        r = []
        for d in range(DP):
            r.append(f"v_pk_mov_b32 {vr(BS+8*d,2)}, {vr(WE,2)}, {vr(WE,2)} op_sel:[0,1]")
            r.append(f"v_pk_mov_b32 {vr(BS+8*d+6,2)}, {vr(WE+2,2)}, {vr(WE+2,2)} op_sel:[0,1]")
        return r
    dpp = [f"row_shr:{sh} row_mask:0xf bank_mask:0xf bound_ctrl:0" for sh in (1, 2, 4, 8)] + \
          ["row_bcast:15 row_mask:0xa bank_mask:0xf", "row_bcast:31 row_mask:0xc bank_mask:0xf"]
    def scan(first):
        a(f"ds_read_b32 v{VC}, v5 offset:{L_CNT}")
        if first: a(f"ds_read_b32 v3, v7 offset:{L_FLAG-4}")
        a("s_waitcnt lgkmcnt(0)")
        a(f"v_mov_b32 v{VEND}, v{VC}")
        if first: a(f"v_readfirstlane_b32 s{sSLOW}, v3")
        else: a("s_nop 0")
        a(f"v_cmp_ne_u32 s[{sNE}:{sNE+1}], 0, v{VC}")
        for i, d in enumerate(dpp):
            if i: a("s_nop 1")
            a(f"v_add_u32_dpp v{VEND}, v{VEND}, v{VEND} {d}")
        a(f"v_sub_u32 v{VSTA}, v{VEND}, v{VC}")
        a(f"v_readlane_b32 s{sT}, v{VEND}, 63")
    def ranges():
        a(f"s_lshr_b32 s{sT}, s{sT}, 2")
        if DEBUG: a(f"s_mov_b32 s92, s{sT}")
        a(f"s_lshl_b32 s{sT2}, s{sW}, 1")
        a(f"s_mul_i32 s{sPOS[0]}, s{sT}, s{sT2}")
        a(f"s_add_u32 s{sPOS[1]}, s{sPOS[0]}, s{sT}")
        a(f"s_add_u32 s{sEND[1]}, s{sPOS[1]}, s{sT}")
        for r in (sPOS[0], sPOS[1], sEND[1]):
            a(f"s_lshr_b32 s{r}, s{r}, 5")
            a(f"s_lshl_b32 s{r}, s{r}, 2")
        a(f"s_mov_b32 s{sEND[0]}, s{sPOS[1]}")
        a(f"s_sub_u32 s{sT2}, s{sPOS[1]}, s{sPOS[0]}")
        a(f"v_mul_u32_u24 v{VIA}, s{sT2}, v{VH}")
        a(f"v_add_u32 v{VIA}, s{sPOS[0]}, v{VIA}")
        a(f"v_mad_u32_u24 v{VEA}, v{VIA}, v{VES}, v{VEO}")
        a(f"v_add_u32 v{VIA}, {L_IDX}, v{VIA}")
    def seg_next(x, lbl):
        a(f"s_lshl2_add_u32 s{sT2}, s{sSEGL[x]}, s{sPOS[x]}")
        a(f"s_mov_b32 s{sROW[x]}, -1")
        a(f"s_cmp_ge_u32 s{sT2}, s{sEND[x]}")
        a(f"s_cselect_b32 s{sSEGL[x]}, {hex(INF)}, s{sSEGL[x]}")
        a(f"s_cbranch_scc1 {lbl}")
        a(f"s_ff1_i32_b64 s{sT2}, s[{sMASK[x]}:{sMASK[x]+1}]")
        a(f"s_and_b32 s{sT2}, s{sT2}, 63")
        a(f"s_bitset0_b64 s[{sMASK[x]}:{sMASK[x]+1}], s{sT2}")
        a(f"v_readlane_b32 s{sT}, v{VEND}, s{sT2}")
        a(f"s_mul_i32 s{sROW[x]}, s{sT2}, {ROWP}")
        a(f"s_add_u32 s{sSEGL[x]}, s{sSEGL[x]}, 1")
        a(f"s_min_u32 s{sT}, s{sT}, s{sEND[x]}")
        a(f"s_sub_u32 s{sT}, s{sT}, s{sPOS[x]}")
        a(f"s_ashr_i32 s{sT}, s{sT}, 2")
        a(f"s_max_i32 s{sSEGL[x]}, s{sSEGL[x]}, s{sT}")
        a.lab(lbl)
    def stream_setup():
        a(f"v_cmp_lt_u32 s[{sMASK[0]}:{sMASK[0]+1}], s{sPOS[0]}, v{VEND}")
        a(f"v_cmp_lt_u32 s[{sMASK[1]}:{sMASK[1]+1}], s{sPOS[1]}, v{VEND}")
        for x in range(2):
            lj = L("INJ")
            a(f"s_and_b64 s[{sMASK[x]}:{sMASK[x]+1}], s[{sMASK[x]}:{sMASK[x]+1}], s[{sNE}:{sNE+1}]")
            a(f"s_mov_b32 s{sSEGL[x]}, 0")
            a(f"s_mov_b32 s{sHEAD[x]}, 0")
            seg_next(x, L("INI"))
            a(f"s_max_i32 s{sCR[x]}, s{sROW[x]}, 0")
            a(f"s_sub_u32 s{sCR[x]}, s{sCR[x]}, {QS}")
            a(f"s_cmp_lt_i32 s{sROW[x]}, 0")
            a(f"s_cbranch_scc1 {lj}")
            a(f"v_readlane_b32 s{sT}, v{VSTA}, s{sT2}")
            a(f"s_add_u32 s{sT2}, s{sT2}, 1")
            a(f"v_mov_b32 v{T3}, s{sT2}")
            a(f"s_lshl_b32 s{sT2}, s{sW}, 1")
            a(f"s_add_u32 s{sT2}, s{sT2}, {x}")
            a(f"s_cmp_ge_u32 s{sT}, s{sPOS[x]}")
            a(f"s_cbranch_scc1 {lj}")
            a(f"s_mov_b32 s{sHEAD[x]}, 1")
            a(f"s_mul_i32 s{sCR[x]}, s{sT2}, {ROWP}")
            a(f"s_add_u32 s{sCR[x]}, s{sCR[x]}, {L_CR-L_Q}")
            a(f"s_lshl_b32 s{sT2}, s{sT2}, 2")
            a(f"v_mov_b32 v6, s{sT2}")
            a(f"ds_write_b32 v6, v{T3} offset:{L_HN}")
            a.lab(lj)
            a(f"s_max_i32 s{sROW[x]}, s{sROW[x]}, 0")
        a(f"v_add_u32 v{T0}, s{sROW[0]}, v{VQA}")
        a(f"v_add_u32 v{T1}, s{sCR[0]}, v{VQA}")
        exec_half(1)
        a(f"v_add_u32 v{T0}, s{sROW[1]}, v{VQA}")
        a(f"v_add_u32 v{T1}, s{sCR[1]}, v{VQA}")
        a("s_mov_b64 exec, -1")
        a(f"v_lshlrev_b32 v3, {2 + (DP.bit_length()-1)}, v{VES}")
        a(f"s_min_u32 s{sTEV}, s{sSEGL[0]}, s{sSEGL[1]}")
        a(f"s_sub_u32 s{sREM}, s{sTEV}, 1")
        a(f"s_sub_u32 s{sLEFT}, s{sEND[1]}, s{sPOS[1]}")
        a(f"s_lshr_b32 s{sLEFT}, s{sLEFT}, 2")
        a(f"s_sub_u32 s6, s{sHEAD[0]}, 1")
        a(f"s_sub_u32 s7, s{sHEAD[1]}, 1")
        a(f"s_and_b64 s[6:7], s[6:7], s[{sSM}:{sSM+1}]")
        a(f"v_mov_b32 v5, {L_ZERO}")
        a(f"v_cndmask_b32 v{T3}, v5, v{T1}, s[6:7]")
    def first_loads():
        FI = 40
        a(f"ds_read2_b32 {vr(FI,2)}, v{VIA} offset0:0 offset1:1")
        a(f"ds_read2_b32 {vr(FI+2,2)}, v{VIA} offset0:2 offset1:3")
        a(f"ds_read2_b32 {vr(ES[0],2)}, v{VEA} offset0:0 offset1:1")
        a(f"ds_read2_b32 {vr(ES[1],2)}, v{VEA} offset0:4 offset1:5")
        a("s_waitcnt lgkmcnt(2)")
        for t in range(DP):
            a(f"v_mov_b32 v{IP[t&1]}, v{FI+t}")
            a(f"buffer_load_dwordx4 {vr(BS+8*t+2,4)}, {vr(IP[t&1],2)}, s[44:47], 0 idxen offen")
        a(f"ds_read_b32 v{IP[0]}, v{VIA} offset:{4*DP}")
        a(f"ds_read_b32 v{IP[1]}, v{VIA} offset:{4*(DP+1)}")
    def pload(slot, pair):
        if "novm" in EXP: return
        a(f"buffer_load_dwordx4 {vr(BS+8*slot+2,4)}, {vr(pair,2)}, s[44:47], 0 idxen offen")
    def groups(n, body):
        for grp in ([0, 1], [2], [3, 4, 5]):
            grp = [i for i in grp if i < n]
            if not grp: continue
            l = None
            if grp[0] >= 2:
                l = L("SK")
                a(f"s_cmp_eq_u64 s[{sV[grp[0]]}:{sV[grp[0]]+1}], 0")
                a(f"s_cbranch_scc1 {l}")
            for i in grp: body(i)
            if l: a.lab(l)
    def rec(i): return R0 + i + (i // 3)
    def meta(i): return R0 + 3 + 4*(i // 3)
    def rank_atomics(n):
        def body(i):
            a(f"v_bfe_u32 v{LA+i}, v{meta(i)}, {8*(i%3)}, 8")
            a(f"s_mov_b64 exec, s[{sV[i]}:{sV[i]+1}]")
            a(f"ds_add_rtn_u32 v{RK+i}, v{LA+i}, v7 offset:{L_CNT}")
            a("s_mov_b64 exec, -1")
        groups(n, body)
    def zero_batch(upto):
        assert 16384 < upto <= 2*16384 and upto % 16 == 0
        a(f"ds_write_b128 v4, {vr(ZT,4)} offset:{upto-16384}")
        a(f"ds_write_b128 v4, {vr(ZT,4)}")
    XFB = [70, 86, 40]
    def gemm():
        for nt in range(3):
            for s in range(4):
                a(f"ds_read_b128 {vr(XFB[nt]+4*s,4)}, v{VXA} offset:{16*nt*XROW+64*s}")
        a(f"v_mov_b32 v{VSTA}, {hex(S_LOG2E)}")
        QB = [QA, XFB[0], QA]
        def post(nt):
            r = []
            if nt == 2: r += ["s_mov_b32 exec_lo, 0x00ff00ff", "s_mov_b32 exec_hi, 0x00ff00ff"]
            for t in range(2):
                for k in range(4): r.append(f"v_fma_f32 v{QB[nt]+4*t+k}, v{QB[nt]+4*t+k}, v{VSTA}, v{BI+4*t+k}")
                r.append(f"ds_write_b128 v{VQW}, {vr(QB[nt]+4*t,4)} offset:{16*nt*ROWP+64*t}")
            if nt == 2: r.append("s_mov_b64 exec, -1")
            return r
        a("s_waitcnt vmcnt(0) lgkmcnt(8)")
        for nt in range(3):
            if nt == 1: a("s_waitcnt lgkmcnt(4)")
            if nt == 2: a("s_waitcnt lgkmcnt(2)")
            for s in range(4):
                for t in range(2):
                    a(f"v_mfma_f32_16x16x32_bf16 {vr(QB[nt]+4*t,4)}, {vr(WF+16*t+4*s,4)}, {vr(XFB[nt]+4*s,4)}, {'0' if s == 0 else vr(QB[nt]+4*t,4)}")
            if nt >= 1:
                for ins in post(nt-1): a(ins)
        a("s_nop 0")
        for ins in post(2): a(ins)
    def wq_loads(lo, hi):
        for f in range(lo, hi):
            t, s = divmod(f, 4)
            a(f"buffer_load_dwordx4 {vr(WF+16*t+4*s,4)}, v{VXA}, s[40:43], s{sWQ+t} offen offset:{1024*s}")

    def signal(k):
        a("s_waitcnt lgkmcnt(0)")
        a("s_mov_b64 exec, 1")
        a(f"ds_add_u32 v7, v7 offset:{L_FLAG+4*k}")
        a("s_mov_b64 exec, -1")
    def spin(k):
        l = L("SP")
        a("s_mov_b32 s8, 0x100000")
        a.lab(l)
        a(f"ds_read_b32 v6, v7 offset:{L_FLAG+4*k}")
        a("s_sub_u32 s8, s8, 1")
        a(f"s_cbranch_scc1 {l}X")
        a("s_waitcnt lgkmcnt(0)")
        a("v_readfirstlane_b32 s9, v6")
        a("s_nop 0")
        a("s_cmp_lt_u32 s9, 32")
        a(f"s_cbranch_scc1 {l}")
        a.lab(l + "X")
    def list_build(n):
        groups(n, lambda i: a(f"ds_bpermute_b32 v{PS+i}, v{LA+i}, v{VSTA}"))
        if n > 1:
            a(f"s_cmp_gt_u32 s{sT}, {4*BATCH}")
            a("s_cbranch_scc1 K2_SLOW_S")
        a("s_waitcnt lgkmcnt(0)")
        def body(i):
            a(f"v_add_u32 v{PS+i}, v{PS+i}, v{RK+i}")
            a(f"v_lshlrev_b32 v{RK+i}, 2, v{PS+i}")
            a(f"s_mov_b64 exec, s[{sV[i]}:{sV[i]+1}]")
            a(f"ds_write_b16_d16_hi v{PS+i}, v{rec(i)} offset:{L_IDX}")
            a(f"ds_write_b16 v{RK+i}, v{rec(i)} offset:{L_EP+4}")
            a(f"ds_write_b16 v{RK+i}, v{rec(i)} offset:{L_EP+14}")
            a("s_mov_b64 exec, -1")
        groups(n, body)
    def deg_acc():
        l = L("ND")
        a(f"s_cmp_lg_u32 s{sW}, 0")
        a(f"s_cbranch_scc1 {l}")
        a(f"ds_add_u32 v5, v{VC} offset:{L_DEG}")
        a.lab(l)
    a("v_and_b32 v2, 0x70, v4")
    a("v_add_u32 v3, v3, v2")
    a(f"buffer_load_dwordx4 {vr(R0,4)}, v3, s[40:43], s4 offen")
    assert L_CNT <= 3*8192
    a(f"ds_write_b128 v4, {vr(ZT,4)}")
    a(f"ds_write_b128 v4, {vr(ZT,4)} offset:8192")
    a(f"ds_write_b128 v4, {vr(ZT,4)} offset:{L_CNT-8192}")
    lane_consts()
    a("v_and_b32 v2, 7, v0")
    a("s_waitcnt vmcnt(1)")
    for ins in wscale(): a(ins)
    stamp("a")
    a("s_waitcnt vmcnt(0)")
    stamp("b")
    a(f"v_lshrrev_b32 v{HD}, 24, v{R0+3}")
    a(f"v_sub_u32 v2, v{HD}, v2")
    a(f"v_cmp_lt_u32 vcc, {CAP}, v{HD}")
    for i in range(6):
        a(f"v_cmp_lt_i32 s[{sV[i]}:{sV[i]+1}], {8*i}, v2")
    a(f"s_cmp_eq_u64 s[{sV[3]}:{sV[3]+1}], 0")
    a("s_cbranch_scc1 K2_NOL1")
    a(f"buffer_load_dwordx4 {vr(R0+4,4)}, v3, s[40:43], s4 offen offset:128")
    a("s_waitcnt vmcnt(0)")
    a.lab("K2_NOL1")
    rank_atomics(6)
    a("s_mov_b64 exec, vcc")
    a(f"ds_write_b32 v7, v7 offset:{L_FLAG-4}")
    signal(0)
    spin(0)
    stamp(2)
    scan(True)
    a(f"s_cmp_lg_u32 s{sSLOW}, 0")
    a("s_cbranch_scc1 K2_SLOW_S")
    list_build(6)
    signal(1)
    deg_acc()
    ranges()
    spin(1)
    stamp(3)
    first_loads()
    stream_setup()
    spin(3)
    a("s_branch K2_JOIN")
    a.lab("K2_SCAN")
    scan(False)
    list_build(1)
    deg_acc()
    ranges()
    stream_setup()
    a("s_waitcnt lgkmcnt(0)")
    a("s_barrier")
    first_loads()
    a("s_branch K2_JOIN")

    a.lab("K2_GEMMER")
    if "noprio" not in EXP: a("s_setprio 3")
    srd(a, 36, PX, N*256)
    a("v_subrev_u32 v2, 512, v0")
    a("v_and_b32 v3, 15, v0")
    a("v_lshrrev_b32 v6, 4, v2")
    a("v_lshlrev_b32 v7, 16, v6")
    a("v_lshl_add_u32 v7, v3, 4, v7")
    a("v_add_u32 v7, s5, v7")
    a(f"buffer_load_dwordx4 {vr(XP,4)}, v7, s[36:39], 0 offen")
    a("v_add_u32 v7, 0x200000, v7")
    a(f"buffer_load_dwordx4 {vr(XP+4,4)}, v7, s[36:39], 0 offen")
    a("s_lshr_b32 s9, s2, 3")
    a(f"s_add_u32 s9, s9, s{sW}")
    a("s_and_b32 s9, s9, 7")
    a(f"s_lshl_b32 s{sWQ}, s9, 13")
    a(f"s_add_u32 s{sWQ}, s{sWQ}, {hex(WS_WQ)}")
    a(f"s_add_u32 s{sWQ+1}, s{sWQ}, 4096")
    a(f"v_mov_b32 v{VXA}, v5")
    a("v_and_b32 v7, 0x30, v0")
    a("s_lshl_b32 s8, s9, 7")
    a(f"v_add_u32 v{PB}, s8, v7")
    a(f"global_load_dwordx4 {vr(BI,4)}, v{PB}, s[6:7] offset:{WS_B1-WS_WE}")
    a(f"global_load_dwordx4 {vr(BI+4,4)}, v{PB}, s[6:7] offset:{WS_B1-WS_WE+64}")
    wq_loads(0, 2)
    a(f"v_mul_u32_u24 v6, {XROW}, v6")
    a(f"v_lshl_add_u32 v6, v3, 4, v6")
    a(f"v_add_u32 v1, {L_XS}, v6")
    a(f"v_mul_u32_u24 v{VQW}, {ROWP}, v3")
    a(f"s_add_u32 s8, s8, {L_Q}")
    a(f"v_add3_u32 v{VQW}, v{VQW}, v7, s8")
    a(f"v_mul_u32_u24 v2, {XROW}, v3")
    a(f"s_mov_b32 s8, {L_XS}")
    a(f"v_add3_u32 v2, v2, v7, s8")
    wq_loads(2, 4)
    lane_consts()
    wq_loads(4, 8)
    a(f"v_mov_b32 v{VXA}, v2")
    stamp("a")
    a(f"s_waitcnt vmcnt(10)")
    stamp("b")
    a(f"ds_write_b128 v1, {vr(XP,4)}")
    a(f"s_cmp_ge_u32 s{sW}, 12")
    a("s_cbranch_scc1 K2_NOXS")
    a(f"ds_write_b128 v1, {vr(XP+4,4)} offset:{32*XROW}")
    a.lab("K2_NOXS")
    for k in range(0, 4, 2): a(f"v_pk_mov_b32 {vr(122+0,2) if False else vr(ES[k//2],2)}, {vr(WE+k,2)}, {vr(WE+k,2)} op_sel:[0,1]")
    signal(2)
    spin(2)
    gemm()
    signal(3)
    for d in range(DP):
        a(f"v_pk_mov_b32 {vr(BS+8*d,2)}, {vr(ES[0],2)}, {vr(ES[0],2)} op_sel:[0,1]")
        a(f"v_pk_mov_b32 {vr(BS+8*d+6,2)}, {vr(ES[1],2)}, {vr(ES[1],2)} op_sel:[0,1]")
    stamp("c")
    if "touch" in EXP:
        a(f"s_cmp_lg_u32 s{sW}, 15")
        a("s_cbranch_scc1 K2_NOTOUCH")
        a("v_and_b32 v6, 63, v0")
        a("v_lshlrev_b32 v6, 16, v6")
        a("v_add_u32 v6, s5, v6")
        a(f"buffer_load_dword v{QA}, v6, s[48:51], 0 offen")
        a(f"global_load_dword v{QA+1}, v7, s[{PB2}:{PB2+1}]")
        a.lab("K2_NOTOUCH")
    spin(0)
    stamp(2)
    scan(True)
    a(f"s_cmp_gt_u32 s{sT}, {4*BATCH}")
    a(f"s_cselect_b32 s{sSLOW}, 1, s{sSLOW}")
    a(f"s_cmp_lg_u32 s{sSLOW}, 0")
    a("s_cbranch_scc1 K2_SLOW_SYNC")
    ranges()
    spin(1)
    stamp(3)
    first_loads()
    stream_setup()
    spin(3)
    a.lab("K2_JOIN")
    a(f"ds_read_b128 {vr(ACC,4)}, v{T3}")
    a(f"ds_read_b128 {vr(ACC+4,4)}, v{T3} offset:16")
    a("s_waitcnt lgkmcnt(0)")
    if "noprio" not in EXP: a("s_setprio 2")
    stamp("d")
    a(f"s_cmp_eq_u32 s{sTEV}, {hex(INF)}")
    a("s_cbranch_scc1 K2_LOOP_DONE")
    a(f"ds_read_b128 {vr(Q,4)}, v{T0}")
    a(f"ds_read_b128 {vr(Q+4,4)}, v{T0} offset:16")
    def mfma(slot, es, u, which):
        if "nomfma" in EXP: return
        if which == 0:
            a(f"v_mfma_f32_16x16x32_bf16 {vr(u,4)}, {vr(es,4)}, {vr(BS+8*slot,4)}, {vr(Q,4)}")
        else:
            a(f"v_mfma_f32_16x16x32_bf16 {vr(u+4,4)}, {vr(es-2,4)}, {vr(BS+8*slot+4,4)}, {vr(Q+4,4)}")
    a(f"s_waitcnt vmcnt({DP-1}) lgkmcnt(0)")
    mfma(0, ES[0], U[0], 0); mfma(0, ES[0], U[0], 1)
    pload(0, IP[0])
    stamp(4)
    a(f"s_sub_u32 s{sREM}, s{sREM}, 1")
    a("s_nop 5")
    a("s_cbranch_scc1 K2_BND0")
    a("s_branch K2_SUB0")
    def rdE(k):
        if "nods" in EXP: return
        a(f"ds_read2_b32 {vr(ES[k&1],2)}, v{VEA} offset0:{4*(k+2)} offset1:{4*(k+2)+1}")
    def rdI(k):
        if "nods" in EXP: return
        a(f"ds_read_b32 v{IP[k&1]}, v{VIA} offset:{4*(k+2+DP)}")
    def ex(c, u): a(f"v_exp_f32 v{EX+c}, v{u+c}")
    def rc(c): a(f"v_rcp_f32 v{EX+c}, v{EX+c}")
    def pa(c): a(f"v_pk_add_f32 {vr(EX+c,2)}, {vr(EX+c,2)}, 1.0 op_sel_hi:[1,0]")
    def pf(c, u): a(f"v_pk_fma_f32 {vr(ACC+c,2)}, {vr(u+c,2)}, {vr(EX+c,2)}, {vr(ACC+c,2)}")
    def valu(u):
        for c in range(8): ex(c, u)
        for c in range(0, 8, 2): pa(c)
        for c in range(8): rc(c)
        for c in range(0, 8, 2): pf(c, u)
    def tail(u):
        rc(7)
        for c in range(0, 8, 2): pf(c, u)
    uid = [0]
    def prio():
        if "noprio" in EXP: return
        uid[0] += 1
        lbl = f"K2_PR{uid[0]}"
        a(f"s_cmp_gt_i32 s{sLEFT}, {PR1}")
        a(f"s_cbranch_scc1 {lbl}_D")
        a("s_setprio 1")
        a(f"s_cmp_gt_i32 s{sLEFT}, {PR0}")
        a(f"s_cbranch_scc1 {lbl}_D")
        a("s_setprio 0")
        a.lab(f"{lbl}_D")
    def advance():
        a(f"v_add_u32 v{VEA}, v3, v{VEA}")
        a(f"v_add_u32 v{VIA}, {4*DP}, v{VIA}")
        a(f"s_sub_u32 s{sLEFT}, s{sLEFT}, {DP}")
        prio()
    a.raw(".p2align 3")
    a.lab("K2_LOOP")
    advance()
    for k in range(DP):
        u = U[k & 1]
        a.lab(f"K2_SUB{k}")
        ex(0, u)
        if k == 2 and PRM >= 0 and "noprio" not in EXP:
            a(f"s_cmp_gt_i32 s{sLEFT}, {PRM}")
            a("s_cbranch_scc1 K2_PM")
            a("s_setprio 0")
            a.lab("K2_PM")
        a(f"s_waitcnt vmcnt({DP-1}) lgkmcnt(0)")
        ex(1, u)
        mfma((k+1) % DP, ES[(k+1) & 1], U[(k+1) & 1], 0)
        ex(2, u)
        mfma((k+1) % DP, ES[(k+1) & 1], U[(k+1) & 1], 1)
        ex(3, u)
        pload((k+1) % DP, IP[(k+1) & 1])
        ex(4, u)
        rdE(k)
        ex(5, u)
        rdI(k)
        ex(6, u); ex(7, u)
        for c in range(0, 8, 2): pa(c)
        for c in range(6): rc(c)
        a(f"s_sub_u32 s{sREM}, s{sREM}, 1")
        rc(6)
        a(f"s_cbranch_scc1 K2_BNDT{k}")
        tail(u)
    a("s_branch K2_LOOP")
    for k in range(DP):
        kp = (k - 1) % DP
        a.lab(f"K2_BNDT{kp}")
        tail(U[kp & 1])
        if k == 0: advance()
        a.lab(f"K2_BND{k}")
        a(f"s_mov_b64 s[{sX}:{sX+1}], 0")
        a("s_mov_b64 s[6:7], 0")
        for x in range(2):
            a(f"s_cmp_lg_u32 s{sSEGL[x]}, s{sTEV}")
            a(f"s_cbranch_scc1 K2_B{k}_N{x}")
            a(f"s_mov_b32 s{sX+x}, -1")
            seg_next(x, f"K2_B{k}_S{x}")
            a(f"s_cmp_lt_i32 s{sROW[x]}, 0")
            a(f"s_cbranch_scc1 K2_B{k}_N{x}")
            a(f"s_mov_b32 s{6+x}, -1")
            exec_half(x)
            a(f"v_add_u32 v{T0}, s{sROW[x]}, v{VQA}")
            a.lab(f"K2_B{k}_N{x}")
        a("s_mov_b64 exec, s[6:7]")
        a("s_waitcnt lgkmcnt(0)")
        a(f"ds_read_b128 {vr(Q,4)}, v{T0}")
        a(f"ds_read_b128 {vr(Q+4,4)}, v{T0} offset:16")
        a("s_mov_b64 exec, -1")
        valu(U[k & 1])
        a(f"s_mov_b64 exec, s[{sX}:{sX+1}]")
        a(f"ds_write_b128 v{T1}, {vr(ACC,4)}")
        a(f"ds_write_b128 v{T1}, {vr(ACC+4,4)} offset:16")
        a("s_mov_b64 exec, s[6:7]")
        a(f"v_subrev_u32 v{T1}, {QS}, v{T0}")
        a(f"v_cndmask_b32 v{T3}, v5, v{T1}, s[{sSM}:{sSM+1}]")
        a(f"ds_read_b128 {vr(ACC,4)}, v{T3}")
        a(f"ds_read_b128 {vr(ACC+4,4)}, v{T3} offset:16")
        a("s_mov_b64 exec, -1")
        a(f"s_sub_u32 s{sREM}, -1, s{sTEV}")
        a(f"s_min_u32 s{sTEV}, s{sSEGL[0]}, s{sSEGL[1]}")
        a(f"s_cmp_eq_u32 s{sTEV}, {hex(INF)}")
        a("s_cbranch_scc1 K2_LOOP_DONE")
        a(f"s_add_u32 s{sREM}, s{sREM}, s{sTEV}")
        a(f"s_waitcnt vmcnt({DP-1}) lgkmcnt(2)")
        mfma((k+1) % DP, ES[(k+1) & 1], U[(k+1) & 1], 0)
        mfma((k+1) % DP, ES[(k+1) & 1], U[(k+1) & 1], 1)
        pload((k+1) % DP, IP[(k+1) & 1])
        rdE(k); rdI(k)
        a(f"s_sub_u32 s{sREM}, s{sREM}, 1")
        a("s_nop 3")
        if k < DP-1:
            a(f"s_cbranch_scc1 K2_BND{k+1}")
            a(f"s_branch K2_SUB{k+1}")
        else:
            a(f"s_cbranch_scc0 K2_LOOP")
            advance()
            a(f"s_branch K2_BND0")
    a.lab("K2_LOOP_DONE")
    a("s_setprio 0")
    stamp(5)
    if DEBUG:
        a("s_lshl_b32 s93, s2, 4")
        a("s_add_u32 s93, s93, s3")
        a("s_lshl_b32 s93, s93, 5")
        a("s_add_u32 s93, s93, 0xA80000")
        a("v_mov_b32 v1, s93")
        for i in range(8): a(f"v_mov_b32 v{8+i}, s{84+i}")
        a("global_store_dwordx4 v1, v[8:11], s[34:35]")
        a("global_store_dwordx4 v1, v[12:15], s[34:35] offset:16")
    a("s_waitcnt vmcnt(0)")
    a(f"s_cmp_lg_u32 s{sSLOW}, 0")
    a("s_cbranch_scc1 K2_COMB")
    a.lab("K2_EPI")
    a.c("out = -ln2 * S @ w2 + deg*b2")
    AF = 56
    SF = 8
    OA = 32
    B2 = 120
    DG = 124
    a(f"s_cmp_ge_u32 s{sW}, 4")
    a("s_cbranch_scc1 K2_COMB")
    a(f"s_lshl_b32 s6, s{sW}, 14")
    a(f"s_add_u32 s6, s6, {hex(WS_W2)}")
    a("v_and_b32 v7, 63, v0")
    a("v_lshlrev_b32 v7, 4, v7")
    for q in range(4):
        if q: a("s_add_u32 s6, s6, 4096")
        for s in range(4):
            a(f"buffer_load_dwordx4 {vr(AF+16*q+4*s,4)}, v7, s[40:43], s6 offen offset:{1024*s}")
    a("v_bfe_u32 v7, v0, 4, 2")
    a(f"s_lshl_b32 s7, s{sW}, 6")
    a("v_lshlrev_b32 v5, 3, v7")
    a("v_add_u32 v5, s7, v5")
    a(f"global_load_dwordx2 {vr(B2,2)}, v5, s[{PB2}:{PB2+1}]")
    a(f"global_load_dwordx2 {vr(B2+2,2)}, v5, s[{PB2}:{PB2+1}] offset:32")
    a.lab("K2_COMB")
    a("v_and_b32 v1, 63, v0")
    a("v_lshlrev_b32 v2, 2, v1")
    a(f"v_add_u32 v2, {L_HN}, v2")
    a(f"s_mul_i32 s4, s{sW}, {ROWP}")
    a(f"s_add_u32 s4, s4, {L_S}")
    a("v_lshlrev_b32 v3, 4, v1")
    a("v_add_u32 v4, s4, v3")
    a(f"v_add_u32 v3, {L_CR}, v3")
    a(f"s_mul_i32 s4, s{sW}, {SBROW}")
    a(f"s_add_u32 s4, s4, {L_SB}")
    a("v_lshlrev_b32 v6, 3, v1")
    a("v_add_u32 v6, s4, v6")
    stamp("e")
    a("s_waitcnt lgkmcnt(0)")
    a("s_barrier")
    stamp("f")
    a("ds_read_b32 v2, v2")
    for r in range(3):
        a(f"ds_read_b128 {vr(8+4*r,4)}, v4 offset:{16*r*ROWP}")
    a(f"s_add_u32 s4, s{sW}, 1")
    a(f"s_or_b64 s[10:11], s[{sNE}:{sNE+1}], s[{sSM}:{sSM+1}]")
    a(f"s_lshr_b64 s[10:11], s[10:11], s{sW}")
    a("s_waitcnt lgkmcnt(3)")
    a("v_subrev_u32 v2, s4, v2")
    CM = [6, 12, 14]
    for r in range(3): a(f"v_cmp_eq_u32 s[{CM[r]}:{CM[r]+1}], {16*r}, v2")
    a.lab("K2_CBL")
    for r in range(3):
        a(f"s_ff1_i32_b32 s8, s{CM[r]}")
        a(f"s_bitset0_b32 s{CM[r]}, s8")
        a(f"s_mul_i32 s9, s8, {ROWP}")
        a("s_cmp_lt_i32 s8, 0")
        a(f"v_add_u32 v7, s9, v3")
        a(f"s_cbranch_scc0 K2_CH{r}")
        a(f"v_mov_b32 v7, {L_ZERO}")
        a.lab(f"K2_CH{r}")
        a(f"ds_read_b128 {vr(20+4*r,4)}, v7")
    for r in range(3):
        a(f"s_bitcmp1_b64 s[10:11], {16*r}")
        a(f"s_cbranch_scc1 K2_CZ{r}")
        a("s_waitcnt lgkmcnt(3)")
        for c in range(4): a(f"v_mov_b32 v{8+4*r+c}, 0")
        a.lab(f"K2_CZ{r}")
    a(f"s_or_b32 s8, s{CM[0]}, s{CM[1]}")
    a(f"s_or_b32 s8, s8, s{CM[2]}")
    a("s_waitcnt lgkmcnt(0)")
    for r in range(3):
        for c in range(0, 4, 2): a(f"v_pk_add_f32 {vr(8+4*r+c,2)}, {vr(8+4*r+c,2)}, {vr(20+4*r+c,2)}")
    a("s_cbranch_scc1 K2_CBL")
    a(f"s_cmp_lg_u32 s{sSLOW}, 0")
    a("s_cbranch_scc1 K2_SLOW_WB")
    for r in range(3):
        a(f"v_cvt_pk_bf16_f32 v{24+2*r}, v{8+4*r}, v{9+4*r}")
        a(f"v_cvt_pk_bf16_f32 v{25+2*r}, v{10+4*r}, v{11+4*r}")
        a(f"ds_write_b64 v6, {vr(24+2*r,2)} offset:{16*r*SBROW}")
    a("v_and_b32 v2, 15, v0")
    a("v_bfe_u32 v7, v0, 4, 2")
    a(f"v_mul_u32_u24 v4, {SBROW}, v2")
    a("v_lshl_add_u32 v4, v7, 4, v4")
    a(f"v_add_u32 v4, {L_SB}, v4")
    a(f"v_lshlrev_b32 v1, 2, v2")
    a(f"v_add_u32 v1, {L_DEG}, v1")
    a("v_lshl_add_u32 v5, v2, 16, v5")
    a("s_lshl_b32 s9, s2, 8")
    a("v_add_u32 v5, s9, v5")
    stamp("g")
    a("s_waitcnt lgkmcnt(0)")
    a("s_barrier")
    a(f"s_cmp_ge_u32 s{sW}, 4")
    a("s_cbranch_scc1 K2_EXIT")
    stamp(6)
    seq = [(s, nt) for nt in range(3) for s in range(8)]
    def sread(i):
        s, nt = seq[i]
        a(f"ds_read_b128 {vr(SF+4*(i%4),4)}, v4 offset:{64*s+16*nt*SBROW}")
    for nt in range(3): a(f"ds_read_b32 v{DG+nt}, v1 offset:{64*nt}")
    for i in range(4): sread(i)
    a("s_waitcnt vmcnt(0)")
    BU = 24
    pre = []
    for t in range(2):
        pre += [f"v_lshlrev_b32 v{BU+4*t}, 16, v{B2+2*t}", f"v_and_b32 v{BU+4*t+1}, 0xffff0000, v{B2+2*t}",
                f"v_lshlrev_b32 v{BU+4*t+2}, 16, v{B2+2*t+1}", f"v_and_b32 v{BU+4*t+3}, 0xffff0000, v{B2+2*t+1}"]
    pre.append(f"v_mov_b32 v{DG+3}, {hex(S_LN2)}")
    for nt in range(3):
        pre += [f"v_cvt_f32_u32 v{DG+nt}, v{DG+nt}", f"v_mul_f32 v{DG+nt}, 0.25, v{DG+nt}"]
    def tailops(nt):
        r = []
        for k in range(8): r.append(f"v_mul_f32 v{OA+8*nt+k}, v{DG+3}, v{OA+8*nt+k}")
        for k in range(8): r.append(f"v_fmac_f32 v{OA+8*nt+k}, v{DG+nt}, v{BU+k}")
        if nt: r.append(f"v_add_u32 v5, 0x100000, v5")
        for t in range(2):
            o = OA + 8*nt + 4*t
            r += [f"v_cvt_pk_bf16_f32 v{o}, v{o}, v{o+1}", f"v_cvt_pk_bf16_f32 v{o+1}, v{o+2}, v{o+3}",
                  f"buffer_store_dwordx2 {vr(o,2)}, v5, s[48:51], 0 offen offset:{32*t}"]
        return r
    extra = list(pre)
    for i, (s, nt) in enumerate(seq):
        a(f"s_waitcnt lgkmcnt({min(3, len(seq)-1-i)})")
        for t in range(2):
            o = OA + 8*nt + 4*t
            c = "0" if s == 0 else vr(o, 4)
            a(f"v_mfma_f32_16x16x32_bf16 {vr(o,4)}, {vr(AF+32*t+4*s,4)}, {vr(SF+4*(i%4),4)}, {c}")
        if i + 4 < len(seq): sread(i+4)
        if s == 2 and nt:
            assert not extra
            extra = tailops(nt-1)
        for _ in range(4):
            if extra: a(extra.pop(0))
    assert not extra
    a("s_nop 7")
    for ins in tailops(2): a(ins)
    if DEBUG:
        stamp(7)
        a("s_cmp_lg_u32 s3, 0")
        a("s_cbranch_scc1 K2_EXIT")
        a("s_memrealtime s[98:99]")
        a("s_lshl_b32 s93, s2, 6")
        a("s_add_u32 s93, s93, 0xA00000")
        a("v_mov_b32 v1, s93")
        a("s_waitcnt lgkmcnt(0)")
        for i in range(8):
            a(f"s_sub_u32 s93, s{84+i}, s84")
            a("v_mov_b32 v2, s93")
            a(f"global_store_dword v1, v2, s[34:35] offset:{4*i}")
        for off, sr_ in ((32, 96), (36, 98), (40, 92)):
            a(f"v_mov_b32 v2, s{sr_}")
            a(f"global_store_dword v1, v2, s[34:35] offset:{off}")
    a.lab("K2_EXIT")
    a("s_endpgm")
    a.lab("K2_SLOW_WB")
    a(f"ds_write_b128 v4, v[8:11]")
    a(f"ds_write_b128 v4, v[12:15] offset:{16*ROWP}")
    a(f"s_cmp_ge_u32 s{sW}, 8")
    a("s_cbranch_scc1 K2_SLOW_SYNC")
    a(f"ds_write_b128 v4, v[16:19] offset:{32*ROWP}")
    a("s_branch K2_SLOW_SYNC")
    a.lab("K2_SLOW_S")
    a.lab("K2_SLOW_SET")
    a(f"s_mov_b32 s{sSLOW}, 1")
    a.lab("K2_SLOW_SYNC")
    a("s_waitcnt lgkmcnt(0)")
    a("s_barrier")
    a.lab("K2_SLOW_NEXT")
    a("v_lshlrev_b32 v4, 4, v0")
    for k in range(4): a(f"v_mov_b32 v{ZT+k}, 0")
    zero_batch(L_BZEND)
    a(f"s_cmp_lg_u32 s{sBATCH}, 0")
    a("s_cbranch_scc1 K2_SLOW_NZ")
    a(f"s_mov_b64 s[{sSM}:{sSM+1}], -1")
    a(f"ds_write_b128 v4, {vr(ZT,4)} offset:{L_S}")
    a(f"ds_write_b128 v4, {vr(ZT,4)} offset:{L_S+16384}")
    a(f"ds_write_b128 v4, {vr(ZT,4)} offset:{L_S+40*ROWP-16384}")
    a.lab("K2_SLOW_NZ")
    a(f"s_cmp_lt_u32 s{sBATCH}, {E}")
    a("s_cbranch_scc1 K2_SLOW_GO")
    a(f"s_mov_b32 s{sSLOW}, 0")
    a("s_branch K2_EPI")
    a.lab("K2_SLOW_GO")
    a(f"v_add_u32 v5, s{sBATCH}, v0")
    a(f"v_mov_b32 v6, {E}")
    a("v_cmp_lt_u32 vcc, v5, v6")
    a(f"v_min_u32 v5, {E-1}, v5")
    a("v_lshlrev_b32 v6, 2, v5")
    a("v_lshlrev_b32 v7, 1, v5")
    SD, SE, SS = 40, 41, 42
    a(f"global_load_dword v{SD}, v6, s[{PDST}:{PDST+1}]")
    a(f"global_load_dword v{SS}, v6, s[{PSRC}:{PSRC+1}]")
    a(f"global_load_ushort v{SE}, v7, s[{PE}:{PE+1}]")
    a("v_and_b32 v5, 63, v0")
    a("v_lshlrev_b32 v5, 2, v5")
    a("s_waitcnt vmcnt(0) lgkmcnt(0)")
    a("s_barrier")
    a(f"v_and_b32 v7, 0xff, v{SD}")
    a(f"v_cmp_eq_u32 s[{sV[0]}:{sV[0]+1}], s2, v7")
    a(f"v_lshl_or_b32 v{R0}, v{SS}, 16, v{SE}")
    a(f"v_lshrrev_b32 v7, 6, v{SD}")
    a(f"v_and_b32 v{R0+3}, 0xfc, v7")
    a(f"s_and_b64 s[{sV[0]}:{sV[0]+1}], s[{sV[0]}:{sV[0]+1}], vcc")
    a("v_mov_b32 v7, 4")
    rank_atomics(1)
    a("s_mov_b64 exec, -1")
    a(f"s_add_u32 s{sBATCH}, s{sBATCH}, {BATCH}")
    a("s_waitcnt lgkmcnt(0)")
    a("s_barrier")
    a("s_branch K2_SCAN")
    a.lab("TEXT_END")
    return 128

HEADER = open('standalone__edge_featured_mpnn_mpnn__graph.s.ref').read().split("; Override launch")[0]

def kd(name, nv, ns):
    acc = (nv + 3) // 4 * 4
    return f""".p2align 6
.amdhsa_kernel {name}
  .amdhsa_next_free_vgpr {nv}
  .amdhsa_next_free_sgpr {ns}
  .amdhsa_accum_offset {acc}
  .amdhsa_group_segment_fixed_size 0
  .amdhsa_kernarg_size 88
  .amdhsa_user_sgpr_count 2
  .amdhsa_user_sgpr_kernarg_segment_ptr 1
  .amdhsa_system_sgpr_workgroup_id_x 1
.end_amdhsa_kernel
"""

def build(TPW=4, DP=6):
    a = Asm()
    g1 = gen_k1(a, TPW)
    nv2 = gen_k2(a, DP)
    out = HEADER
    out += f"; @launch kernel=k1_kernel grid=({g1},1,1) block=(512,1,1) lds={K1_LDS}\n"
    out += f"; @launch kernel=k2_kernel grid=(256,1,1) block=(1024,1,1) lds={L_END}\n"
    out += '.amdgcn_target "amdgcn-amd-amdhsa--gfx950"\n.text\n'
    out += a.text()
    out += '.section .rodata,"a"\n'
    out += kd("k1_kernel", 144, 80)
    out += kd("k2_kernel", 128, 102)
    return out

if __name__ == "__main__":
    import argparse
    ap = argparse.ArgumentParser()
    ap.add_argument("-o", default="standalone__edge_featured_mpnn_mpnn__graph.s")
    ap.add_argument("--tpw", type=int, default=4)
    ap.add_argument("--dp", type=int, default=4)
    ap.add_argument("--debug", action="store_true")
    ap.add_argument("--srcmask", type=int, default=0)
    ap.add_argument("--exp", default="")
    ap.add_argument("--pr1", type=int, default=8)
    ap.add_argument("--pr0", type=int, default=4)
    ap.add_argument("--prm", type=int, default=-1)
    ap.add_argument("--wqs", type=int, default=4)
    ap.add_argument("--wqs2", type=int, default=5)
    ap.add_argument("--pf", type=int, default=0)
    args = ap.parse_args()
    DEBUG = args.debug
    SRCMASK = args.srcmask
    PF = args.pf
    WQSPLIT = args.wqs
    PR1, PR0, PRM = args.pr1, args.pr0, args.prm
    WQSPLIT2 = args.wqs2
    EXP = set(args.exp.split(",")) if args.exp else set()
    open(args.o, "w").write(build(args.tpw, args.dp))
```

```python
import sys, struct

N, E, D_, H = 10000, 160000, 128, 256
NCH = 64
CH_E = E // NCH
WS_P = 0
WS_CELLS = 0x500000
WS_WQ = 0x900000
WS_W2 = 0x910000
WS_WE = 0x920000
WS_B1 = 0x920400
WS_END = 0x921000

def f32bits(x): return struct.unpack('<I', struct.pack('<f', x))[0]
S_LOG2E = f32bits(-1.4426950408889634)
S_LN2 = f32bits(-0.6931471805599453)

class Asm:
    def __init__(self): self.l = []
    def __call__(self, s): self.l.append("    " + s)
    def lab(self, s): self.l.append(s + ":")
    def c(self, s): self.l.append("    ; " + s)
    def raw(self, s): self.l.append(s)
    def text(self): return "\n".join(self.l) + "\n"

def vr(a, n): return f"v[{a}:{a+n-1}]"
def sr(a, n): return f"s[{a}:{a+n-1}]"

def srd(a, d, base, nrec, stride=0, add=0):
    if add:
        a(f"s_add_u32 s{d}, s{base}, {hex(add)}")
        a(f"s_addc_u32 s{d+1}, s{base+1}, 0")
    else:
        a(f"s_mov_b32 s{d}, s{base}")
        a(f"s_mov_b32 s{d+1}, s{base+1}")
    if stride:
        a(f"s_or_b32 s{d+1}, s{d+1}, {hex(stride << 16)}")
    a(f"s_mov_b32 s{d+2}, {hex(nrec)}")
    a(f"s_mov_b32 s{d+3}, 0x20000")

PX, PE, PSRC, PDST, PW1, PB1, PW2, PB2 = 16, 18, 20, 22, 24, 26, 28, 30

DEBUG = False
SRCMASK = 0
EXP = set()
PF = 0
WQSPLIT = 2
PR1 = 10
PR0 = 4
PRM = -1
OUTFL = ''
WQSPLIT2 = 5
CAP1 = 24
CAP = 48
K1_LDS = 65536 + 16384
def gen_k1(a, TPW):
    assert TPW == 4
    NG = (625 + TPW - 1) // TPW
    NTR = 8
    GRID = NCH + NTR + NG
    a.raw(".globl k1_kernel"); a.raw(".p2align 8"); a.raw(".type k1_kernel,@function")
    a.lab("k1_kernel")
    a(f"s_cmp_ge_u32 s2, {GRID}")
    a("s_cbranch_scc1 K1_EXIT")
    a("s_load_dwordx16 s[16:31], s[0:1], 0")
    a("s_load_dwordx2 s[32:33], s[0:1], 80")
    if DEBUG: a("s_memrealtime s[56:57]")
    K1S = [52, 53, 54, 55, 62, 63]
    def st1(i):
        if not (DEBUG and "k1st" in EXP): return
        a("s_memtime s[14:15]")
        a("s_waitcnt lgkmcnt(0)")
        a(f"s_mov_b32 s{K1S[i]}, s14")
    st1(0)
    def k1end():
        if DEBUG:
            a("s_waitcnt vmcnt(0)")
            a("s_memrealtime s[58:59]")
            a("s_lshl_b32 s60, s2, 4")
            a("s_add_u32 s60, s60, 0xB00000")
            a("v_mov_b32 v1, s60")
            a("s_waitcnt lgkmcnt(0)")
            a("v_mov_b32 v2, s56")
            a("v_mov_b32 v3, s58")
            a("v_cmp_eq_u32 vcc, 0, v0")
            a("s_and_saveexec_b64 s[60:61], vcc")
            a("s_cbranch_execz K1_EXIT")
            a("global_store_dwordx2 v1, v[2:3], s[32:33]")
            if "k1st" in EXP:
                st1(5)
                a("s_lshl_b32 s60, s2, 5")
                a("s_add_u32 s60, s60, 0xB80000")
                a("v_mov_b32 v1, s60")
                for i in range(6):
                    a(f"s_sub_u32 s60, s{K1S[i]}, s52")
                    a("v_mov_b32 v2, s60")
                    a(f"global_store_dword v1, v2, s[32:33] offset:{4*i}")
        a("s_endpgm")
    a(f"s_cmp_lt_u32 s2, {NCH}")
    a("s_cbranch_scc1 K1_SORT")
    a(f"s_cmp_lt_u32 s2, {NCH+NTR}")
    a("s_cbranch_scc1 K1_TRANS")
    a.c("GEMM role: P' = -log2e * x @ W1a ; W and x staged in LDS by DMA (XOR-swizzled 16B slots)")
    LX = 65536
    a("v_lshrrev_b32 v1, 6, v0")
    a("v_and_b32 v2, 63, v0")
    a("v_readfirstlane_b32 s3, v1")
    a("v_lshrrev_b32 v3, 5, v2")
    a("v_and_b32 v4, 31, v2")
    a("v_lshlrev_b32 v5, 2, v3")
    a("v_xor_b32 v4, v4, v5")
    a("v_lshlrev_b32 v4, 4, v4")
    a("v_lshl_add_u32 v4, v3, 9, v4")
    a("v_xor_b32 v5, 0x80, v4")
    a("v_lshrrev_b32 v3, 4, v2")
    a("v_and_b32 v6, 15, v2")
    a("v_lshlrev_b32 v7, 3, v1")
    a("v_and_b32 v7, 8, v7")
    a("v_or_b32 v7, v7, v3")
    a("v_xor_b32 v7, v6, v7")
    a("v_lshlrev_b32 v7, 4, v7")
    a("v_lshl_add_u32 v7, v3, 8, v7")
    a("v_xor_b32 v8, 0x40, v7")
    a(f"s_sub_u32 s4, s2, {NCH+NTR}")
    a("s_lshl_b32 s5, s4, 14")
    a("s_lshl_b32 s6, s3, 11")
    a("s_add_u32 s5, s5, s6")
    a("s_lshr_b32 s7, s2, 3")
    a("s_add_u32 s7, s7, s3")
    a("s_and_b32 s7, s7, 7")
    a("s_lshl_b32 s7, s7, 13")
    a("s_waitcnt lgkmcnt(0)")
    srd(a, 36, PX, N*256)
    srd(a, 40, PW1, 257*512)
    a(f"s_add_u32 s8, s6, {LX}")
    a("s_mov_b32 m0, s8")
    a("s_add_u32 s9, s5, 1024")
    a("buffer_load_dwordx4 v7, s[36:39], s5 offen lds")
    a("s_add_u32 m0, s8, 1024")
    a("s_mov_b32 s8, s7")
    a("buffer_load_dwordx4 v8, s[36:39], s9 offen lds")
    for i in range(8):
        a("s_mov_b32 m0, s8")
        a("s_nop 0")
        a(f"buffer_load_dwordx4 v{4+(i&1)}, s[40:43], s8 offen lds")
        if i < 7: a("s_add_u32 s8, s8, 1024")
    st1(1)
    srd(a, 44, 32, N*512, add=WS_P)
    a("v_lshrrev_b32 v9, 2, v6")
    a("v_and_b32 v10, 3, v6")
    a("v_xor_b32 v11, v1, v9")
    a("v_lshl_or_b32 v10, v11, 2, v10")
    a("v_lshlrev_b32 v10, 4, v10")
    a("v_lshl_add_u32 v9, v3, 3, v9")
    a("v_lshl_add_u32 v9, v9, 9, v10")
    a("v_xor_b32 v10, v3, v6")
    a("v_lshlrev_b32 v10, 4, v10")
    a("v_lshl_add_u32 v10, v6, 8, v10")
    a(f"v_add_u32 v10, {LX}, v10")
    for s in range(1, 4): a(f"v_xor_b32 v{10+s}, {64*s}, v10")
    a("v_lshlrev_b32 v14, 9, v6")
    a("v_lshl_add_u32 v14, v1, 6, v14")
    a("v_lshl_add_u32 v14, v3, 4, v14")
    a("s_lshl_b32 s5, s4, 15")
    a(f"v_mov_b32 v15, {hex(S_LOG2E)}")
    WFR = 16
    XFR = 48
    ACC = 112
    a("s_waitcnt vmcnt(0)")
    st1(2)
    a("s_barrier")
    st1(3)
    order = []
    for s in range(4):
        for t in range(2):
            for hh in range(2):
                a(f"ds_read_b64_tr_b16 {vr(WFR+16*t+4*s+2*hh,2)}, v9 offset:{(32*s+4*hh)*512+8*t}")
        a(f"ds_read_b128 {vr(XFR+4*s,4)}, v{10+s}")
        if s == 1:
            pass
    def xr(tau):
        for s in range(4): a(f"ds_read_b128 {vr(XFR+16*tau+4*s,4)}, v{10+s} offset:{4096*tau}")
    def mm(tau, s):
        for t in range(2):
            o = ACC + 8*tau + 4*t
            a(f"v_mfma_f32_16x16x32_bf16 {vr(o,4)}, {vr(WFR+16*t+4*s,4)}, {vr(XFR+16*tau+4*s,4)}, {'0' if s == 0 else vr(o,4)}")
    def epi(tau):
        r = []
        o = ACC + 8*tau
        for k in range(8): r.append(f"v_mul_f32 v{o+k}, v15, v{o+k}")
        for k in range(4): r.append(f"v_cvt_pk_bf16_f32 v{o+k}, v{o+2*k}, v{o+2*k+1}")
        r.append(f"s_add_u32 s6, s5, {8192*tau}")
        fl = " sc1" if "psc1" in EXP else " nt" if "pnt" in EXP else ""
        r.append(f"buffer_store_dwordx4 {vr(o,4)}, v14, s[44:47], s6 offen{fl}")
        return r
    for s in range(4):
        a(f"s_waitcnt lgkmcnt({5*(3-s)})")
        mm(0, s)
    xr(1); xr(2); xr(3)
    extra = []
    for tau in range(1, 4):
        a(f"s_waitcnt lgkmcnt({4*(3-tau)})")
        for s in range(4):
            mm(tau, s)
            if s == 1 or (s == 0 and tau == 1):
                if not extra and not (s == 1 and tau == 1): extra = epi(tau-1)
            if s >= 1:
                for _ in range(5):
                    if extra: a(extra.pop(0))
        assert not extra
    a("s_nop 7")
    for ins in epi(3): a(ins)
    st1(4)
    k1end()
    a.lab("K1_TRANS")
    a.c("fragment transposer for W1b (WQ) and w2 (W2F); 128 blocks per WG")
    a(f"s_sub_u32 s3, s2, {NCH}")
    a("v_lshrrev_b32 v1, 6, v0")
    a("s_and_b32 s4, s3, 3")
    a("v_readfirstlane_b32 s11, v1")
    a("s_lshl_b32 s4, s4, 7")
    a("v_add_u32 v1, s4, v0")
    a("s_mov_b32 s9, 0x05040100"); a("s_mov_b32 s10, 0x07060302")
    a("s_waitcnt lgkmcnt(0)")
    a("s_cmp_ge_u32 s11, 2")
    a("s_cbranch_scc1 K1_TR_SMALL")
    a("s_cmp_ge_u32 s3, 4")
    a("s_cbranch_scc1 K1_TR_W2")
    a("v_and_b32 v2, 31, v1")
    a("v_lshrrev_b32 v3, 5, v1")
    a("v_lshlrev_b32 v4, 4, v2")
    a("v_lshl_add_u32 v4, v3, 12, v4")
    a("v_add_u32 v4, 0x10000, v4")
    a("v_lshrrev_b32 v5, 1, v2")
    a("v_lshlrev_b32 v5, 12, v5")
    a("v_lshl_add_u32 v5, v3, 8, v5")
    a("v_and_b32 v6, 1, v2")
    a("v_lshl_add_u32 v5, v6, 7, v5")
    srd(a, 36, PW1, 257*512)
    srd(a, 40, 32, 0x10000, add=WS_WQ)
    a("s_mov_b32 s5, 512")
    a("s_branch K1_TR_GO")
    a.lab("K1_TR_W2")
    a("v_and_b32 v2, 15, v1")
    a("v_bfe_u32 v3, v1, 4, 3")
    a("v_lshrrev_b32 v7, 7, v1")
    a("v_lshlrev_b32 v4, 4, v2")
    a("v_lshl_add_u32 v4, v3, 13, v4")
    a("v_lshl_add_u32 v4, v7, 11, v4")
    a("v_lshrrev_b32 v5, 1, v2")
    a("v_lshlrev_b32 v5, 13, v5")
    a("v_lshl_add_u32 v5, v3, 10, v5")
    a("v_lshl_add_u32 v5, v7, 8, v5")
    a("v_and_b32 v6, 1, v2")
    a("v_lshl_add_u32 v5, v6, 7, v5")
    srd(a, 36, PW2, 256*256)
    srd(a, 40, 32, 0x10000, add=WS_W2)
    a("s_mov_b32 s5, 256")
    a.lab("K1_TR_GO")
    a("s_mov_b32 s6, 0")
    for m in range(8):
        a(f"buffer_load_dwordx4 {vr(16+4*m,4)}, v4, s[36:39], s6 offen")
        if m < 7: a("s_add_u32 s6, s6, s5")
    a("s_waitcnt vmcnt(0)")
    for cc in range(8):
        for p in range(4):
            a(f"v_perm_b32 v{48+4*cc+p}, v{16+4*(2*p+1)+(cc>>1)}, v{16+4*(2*p)+(cc>>1)}, s{9+(cc&1)}")
        a(f"buffer_store_dwordx4 {vr(48+4*cc,4)}, v5, s[40:43], 0 offen offset:{16*cc}")
    k1end()
    a.lab("K1_TR_SMALL")
    a("s_cmp_lg_u32 s3, 0")
    a("s_cbranch_scc1 K1_EXIT")
    a("s_cmp_lt_u32 s11, 4")
    a("s_cbranch_scc1 K1_EXIT")
    a("v_and_b32 v1, 255, v0")
    a("v_lshlrev_b32 v2, 1, v1")
    a(f"s_add_u32 s6, s{PW1}, 0x20000")
    a(f"s_addc_u32 s7, s{PW1+1}, 0")
    a("global_load_ushort v8, v2, s[6:7]")
    a(f"global_load_ushort v9, v2, s[{PB1}:{PB1+1}]")
    a(f"s_add_u32 s6, s32, {hex(WS_WE)}")
    a("s_addc_u32 s7, s33, 0")
    a(f"v_mov_b32 v10, {hex(S_LOG2E)}")
    a("v_lshlrev_b32 v3, 2, v1")
    a("s_waitcnt vmcnt(0)")
    a("v_lshlrev_b32 v8, 16, v8")
    a("v_lshlrev_b32 v9, 16, v9")
    a("v_mul_f32 v8, v10, v8")
    a("v_mul_f32 v9, v10, v9")
    a("v_cvt_pk_bf16_f32 v8, v8, v8")
    a("global_store_short v2, v8, s[6:7]")
    a(f"global_store_dword v3, v9, s[6:7] offset:{WS_B1-WS_WE}")
    a("s_endpgm")
    a.lab("K1_SORT")
    a.c("bucket the edges of chunk s2 by dst&255; cell line: 8 x [rec q, rec q+8, rec q+16, (loc,loc,loc,count)]")
    LC = 32768
    a("v_lshlrev_b32 v1, 2, v0")
    a("v_mov_b32 v2, 0")
    a(f"ds_write_b32 v1, v2 offset:{LC}")
    a("v_lshlrev_b32 v3, 4, v0")
    a("v_lshlrev_b32 v4, 3, v0")
    a("v_mov_b32 v5, 1")
    a(f"s_mul_i32 s3, s2, {CH_E*4}")
    a(f"s_mul_i32 s4, s2, {CH_E*2}")
    a("s_lshl_b32 s5, s2, 8")
    a("s_add_u32 s6, s3, 8192")
    a("s_add_u32 s7, s4, 4096")
    a("s_mov_b32 s8, 0x05040100"); a("s_mov_b32 s9, 0x05040302")
    a("s_waitcnt lgkmcnt(0)")
    srd(a, 36, PDST, E*4)
    srd(a, 40, PSRC, E*4)
    srd(a, 44, PE, E*2)
    srd(a, 48, 32, 256*NCH*256, add=WS_CELLS)
    DST, SRC, EA = 16, 24, 32
    RK, BK, REC = 36, 44, 52
    A0, A1 = 60, 68
    nlast = CH_E - 2048
    a("v_lshlrev_b32 v6, 1, v0")
    a(f"buffer_load_dwordx4 {vr(DST,4)}, v3, s[36:39], s3 offen")
    a(f"buffer_load_dword v{DST+4}, v1, s[36:39], s6 offen")
    a(f"buffer_load_dwordx4 {vr(SRC,4)}, v3, s[40:43], s3 offen")
    a(f"buffer_load_dwordx2 {vr(EA,2)}, v4, s[44:47], s4 offen")
    a(f"buffer_load_dword v{SRC+4}, v1, s[40:43], s6 offen")
    a(f"buffer_load_ushort v{EA+2}, v6, s[44:47], s7 offen")
    a(f"v_cmp_gt_u32 vcc, {nlast}, v0")
    a(f"v_mov_b32 v{RK+4}, 0")
    a(f"v_mov_b32 v{BK+4}, 0")
    a(f"v_mov_b32 v7, {CAP1}")
    a("s_mov_b64 s[10:11], vcc")
    a("s_barrier")
    st1(1)
    def atomic(k):
        a(f"v_and_b32 v{BK+k}, 0xff, v{DST+k}")
        a(f"v_lshlrev_b32 v8, 2, v{BK+k}")
        a(f"ds_add_rtn_u32 v{RK+k}, v8, v5 offset:{LC}")
    a("s_waitcnt vmcnt(5)")
    st1(2)
    for k in range(4): atomic(k)
    a("s_waitcnt vmcnt(4)")
    a("s_mov_b64 exec, s[10:11]")
    atomic(4)
    a("s_mov_b64 exec, -1")
    for k in range(5):
        a(f"v_lshrrev_b32 v{DST+k}, 6, v{DST+k}")
        a(f"v_and_b32 v{DST+k}, 0xfc, v{DST+k}")
        a(f"v_lshlrev_b32 v{BK+k}, 7, v{BK+k}")
    a("s_waitcnt vmcnt(0)")
    for k in range(5):
        if SRCMASK: a(f"v_and_b32 v{SRC+k}, {SRCMASK}, v{SRC+k}")
        a(f"v_perm_b32 v{REC+k}, v{SRC+k}, v{EA+(k>>1)}, s{8+(k&1)}")
    a("s_waitcnt lgkmcnt(0)")
    st1(3)
    for k in range(5):
        a(f"v_and_b32 v8, 7, v{RK+k}")
        a(f"v_lshl_add_u32 v8, v8, 4, v{BK+k}")
        a(f"v_lshrrev_b32 v9, 3, v{RK+k}")
        a(f"v_lshl_add_u32 v{A0+k}, v9, 2, v8")
        a(f"v_add_u32 v{A1+k}, v9, v8")
        if k == 4: a("s_mov_b64 exec, s[10:11]")
        a(f"v_cmpx_gt_u32 vcc, v7, v{RK+k}")
        a(f"ds_write_b32 v{A0+k}, v{REC+k}")
        a(f"ds_write_b8 v{A1+k}, v{DST+k} offset:12")
        a("s_mov_b64 exec, -1")
    a(f"v_max3_u32 v8, v{RK}, v{RK+1}, v{RK+2}")
    a(f"v_max3_u32 v8, v8, v{RK+3}, v{RK+4}")
    a("v_cmp_le_u32 vcc, v7, v8")
    a("s_cbranch_vccz K1_NOOV")
    for k in range(5):
        a(f"v_lshlrev_b32 v12, 7, v{BK+k}")
        a(f"v_sub_u32 v12, v12, v{BK+k}")
        a(f"v_sub_u32 v13, {CAP-1}, v{RK+k}")
        a(f"v_subrev_u32 v14, {CAP1}, v{RK+k}")
        a("v_or_b32 v13, v13, v14")
        a(f"v_and_b32 v13, 0x80000000, v13")
        a("v_or_b32 v12, v12, v13")
        a(f"v_add_u32 v10, v{A0+k}, v12")
        a(f"v_add_u32 v11, v{A1+k}, v12")
        a(f"buffer_store_dword v{REC+k}, v10, s[48:51], s5 offen offset:{128-12}")
        a(f"buffer_store_byte v{DST+k}, v11, s[48:51], s5 offen offset:{128+12-3}")
    a.lab("K1_NOOV")
    a("v_lshrrev_b32 v6, 3, v0")
    a("v_lshlrev_b32 v7, 2, v6")
    a("v_and_b32 v8, 0x70, v3")
    a("v_lshl_add_u32 v8, v6, 14, v8")
    a("v_mov_b32 v9, 0xffffff")
    a("s_waitcnt vmcnt(0) lgkmcnt(0)")
    a("s_barrier")
    st1(4)
    for i in range(4):
        a(f"ds_read_b128 {vr(16+4*i,4)}, v3 offset:{8192*i}")
        a(f"ds_read_b32 v{32+i}, v7 offset:{LC+256*i}")
    for i in range(4):
        a(f"s_waitcnt lgkmcnt({6-2*i})")
        a(f"v_min_u32 v{32+i}, 0xff, v{32+i}")
        a(f"v_lshlrev_b32 v{32+i}, 24, v{32+i}")
        a(f"v_and_or_b32 v{19+4*i}, v{19+4*i}, v9, v{32+i}")
        a(f"buffer_store_dwordx4 {vr(16+4*i,4)}, v8, s[48:51], s5 offen")
        if i < 3: a(f"s_add_u32 s5, s5, {64*16384}")
    k1end()
    a.lab("K1_EXIT")
    a("s_endpgm")
    return GRID

ROWP = 1040
SBROW = 528
BATCH = 1024
NSLOT = BATCH + 16
L_EP = 0
L_IDX = L_EP + NSLOT*16
L_CNT = L_IDX + NSLOT*4
L_HN = L_CNT + 256
L_ZERO = L_HN + 128
L_BZEND = L_ZERO + 256
L_DEG = L_BZEND
L_FLAG = L_DEG + 256
L_ZEND = L_FLAG + 32
L_S = L_ZEND
L_Q = L_S + 40*ROWP
XROW = 272
L_CR = L_Q + 40*ROWP
L_XS = L_CR
L_SB = L_CR + 32*ROWP
L_END = L_SB + 40*SBROW
QS = L_Q - L_S

def gen_k2(a, DP):
    assert DP % 2 == 0
    INF = 0x7fffffff
    SMAP = {0:0, 1:1, 2:2, 3:3, 4:4, 5:5, 6:6, 7:7}
    if "fine" in EXP: SMAP = {0:0, 1:1, "a":2, "b":3, 2:4, 3:5, "c":6, "d":7}
    if "fine2" in EXP: SMAP = {0:0, 4:1, 5:2, "e":3, "f":4, "g":5, 6:6, 7:7}
    def stamp(i):
        if not DEBUG or i not in SMAP: return
        a("s_memtime s[94:95]")
        a("s_waitcnt lgkmcnt(0)")
        a(f"s_mov_b32 s{84+SMAP[i]}, s94")
    a.raw(".globl k2_kernel"); a.raw(".p2align 8"); a.raw(".type k2_kernel,@function")
    a.lab("k2_kernel")
    a("s_cmp_ge_u32 s2, 256")
    a("s_cbranch_scc1 K2_EXIT")
    a("s_load_dwordx16 s[16:31], s[0:1], 0")
    a("s_load_dwordx2 s[32:33], s[0:1], 64")
    a("s_load_dwordx2 s[34:35], s[0:1], 80")
    if DEBUG: a("s_memrealtime s[96:97]")
    stamp(0)
    assert DP == 4
    U = [8, 16]; EX, ACC, Q = 24, 32, 40
    IP = [56, 58]
    AB = 60
    ES = [62, 66]
    BS = 70
    M = 118
    VEA, VIA, VES, VEND, VQA, VSTA, VEO, VH, VXA, VQW = range(M, M+10)
    T0, T1, T3 = 1, 2, 4
    WF = 8
    R0 = 8
    HD = 16
    RK = 17
    LA = 23
    PS = 29
    XP = 40
    VC = 53
    PB = 54
    XF = 40
    QA = 102
    ZT = 102
    B1 = 106
    BI = 110
    WE = 48
    sW, sNE = 3, 56
    sV = [52, 54, 10, 12, 14, 36]
    sT, sT2, sREM, sTEV, sSLOW, sBATCH, sLEFT, sX = 58, 59, 60, 61, 62, 63, 66, 68
    sMASK = [70, 72]; sPOS = [74, 75]; sEND = [76, 77]; sSEGL = [78, 79]; sHEAD = [80, 81]; sCR = [82, 83]
    sROW = [4, 5]
    sSM = 100
    sWQ = 64
    sTT = 67
    uid0 = [0]
    def L(p):
        uid0[0] += 1
        return f"K2_{p}{uid0[0]}"
    def exec_half(x):
        a(f"s_mov_b32 exec_lo, {-1 if x == 0 else 0}")
        a(f"s_mov_b32 exec_hi, {0 if x == 0 else -1}")
    wpos = [0, 1, 6, 7]
    a("v_lshlrev_b32 v4, 4, v0")
    for k in range(4): a(f"v_mov_b32 v{ZT+k}, 0")
    a("v_lshrrev_b32 v1, 6, v0")
    a("v_and_b32 v5, 0x3f0, v4")
    a(f"ds_write_b128 v5, {vr(ZT,4)} offset:{L_ZEND-1024}")
    a("v_readfirstlane_b32 s3, v1")
    a(f"v_and_b32 v{IP[0]+1}, 0x1f0, v4")
    a("v_lshlrev_b32 v2, 5, v0")
    a("v_and_b32 v3, 0xffffff00, v2")
    a("s_lshl_b32 s4, s2, 14")
    a(f"s_add_u32 s4, s4, {hex(WS_CELLS)}")
    a("s_lshl_b32 s5, s2, 8")
    a("s_waitcnt lgkmcnt(0)")
    a("s_barrier")
    stamp(1)
    srd(a, 40, 34, WS_END)
    a(f"s_add_u32 s6, s34, {hex(WS_WE)}")
    a(f"s_addc_u32 s7, s35, 0")
    a(f"global_load_dwordx4 {vr(WE,4)}, v{IP[0]+1}, s[6:7]")
    a(f"s_cmp_ge_u32 s{sW}, 8")
    a("s_cbranch_scc1 K2_GEMMER")

    def lane_consts():
        srd(a, 44, 34, N, stride=512, add=WS_P)
        srd(a, 48, 32, N*256)
        a(f"s_mov_b32 s{sSLOW}, 0")
        a(f"s_mov_b32 s{sBATCH}, 0")
        a(f"s_mov_b64 s[{sSM}:{sSM+1}], 0")
        a(f"v_mov_b32 v{IP[1]+1}, v{IP[0]+1}")
        a(f"v_mov_b32 v{IP[0]}, 0")
        a(f"v_mov_b32 v{IP[1]}, 0")
        a(f"v_lshlrev_b32 v{VQA}, 1, v{IP[0]+1}")
        a(f"v_add_u32 v{VQA}, {L_Q}, v{VQA}")
        a("s_mov_b32 s10, 0x00f0000f")
        a("s_mov_b32 s11, 0xf0000f00")
        a("s_mov_b32 s12, 0x00300003")
        a("s_mov_b32 s13, 0x30000300")
        a("s_mov_b32 s14, 0x00c0000c")
        a("s_mov_b32 s15, 0xc0000c00")
        a(f"v_and_b32 v6, 16, v4")
        a(f"v_mov_b32 v{PB}, 0x3f80")
        a(f"v_lshlrev_b32 v{PB}, v6, v{PB}")
        for k in (0, 4, 8):
            a(f"v_cndmask_b32 v{AB+k}, 0, v{PB}, s[12:13]")
            a(f"v_cndmask_b32 v{AB+k+1}, 0, v{PB}, s[14:15]")
        a(f"v_lshrrev_b32 v6, 1, v6")
        a(f"v_mov_b32 v{VEO}, {L_ZERO}")
        a(f"v_or_b32 v{PB}, 4, v6")
        a(f"v_cndmask_b32 v{VEO}, v{VEO}, v{PB}, s[12:13]")
        a(f"v_cndmask_b32 v{VEO}, v{VEO}, v6, s[14:15]")
        a(f"v_cndmask_b32 v{VES}, 0, 4, s[10:11]")
        a(f"v_bfe_u32 v{VH}, v0, 5, 1")
        a(f"v_mov_b32 v7, 4")
        a(f"v_lshrrev_b32 v5, 2, v5")
    def wscale():
        r = []
        for d in range(DP):
            r.append(f"v_pk_mov_b32 {vr(BS+8*d,2)}, {vr(WE,2)}, {vr(WE,2)} op_sel:[0,1]")
            r.append(f"v_pk_mov_b32 {vr(BS+8*d+6,2)}, {vr(WE+2,2)}, {vr(WE+2,2)} op_sel:[0,1]")
        return r
    dpp = [f"row_shr:{sh} row_mask:0xf bank_mask:0xf bound_ctrl:0" for sh in (1, 2, 4, 8)] + \
          ["row_bcast:15 row_mask:0xa bank_mask:0xf", "row_bcast:31 row_mask:0xc bank_mask:0xf"]
    def scan(first):
        a(f"ds_read_b32 v{VC}, v5 offset:{L_CNT}")
        if first: a(f"ds_read_b32 v3, v7 offset:{L_FLAG-4}")
        a("s_waitcnt lgkmcnt(0)")
        a(f"v_mov_b32 v{VEND}, v{VC}")
        if first: a(f"v_readfirstlane_b32 s{sSLOW}, v3")
        else: a("s_nop 0")
        a(f"v_cmp_ne_u32 s[{sNE}:{sNE+1}], 0, v{VC}")
        for i, d in enumerate(dpp):
            if i: a("s_nop 1")
            a(f"v_add_u32_dpp v{VEND}, v{VEND}, v{VEND} {d}")
        a(f"v_sub_u32 v{VSTA}, v{VEND}, v{VC}")
        a(f"v_readlane_b32 s{sT}, v{VEND}, 63")
    def ranges():
        a(f"s_lshr_b32 s{sT}, s{sT}, 2")
        a(f"s_mov_b32 s{sTT}, s{sT}")
        if DEBUG: a(f"s_mov_b32 s92, s{sT}")
        a(f"s_lshl_b32 s{sT2}, s{sW}, 1")
        a(f"s_mul_i32 s{sPOS[0]}, s{sT}, s{sT2}")
        a(f"s_add_u32 s{sPOS[1]}, s{sPOS[0]}, s{sT}")
        a(f"s_add_u32 s{sEND[1]}, s{sPOS[1]}, s{sT}")
        for r in (sPOS[0], sPOS[1], sEND[1]):
            a(f"s_lshr_b32 s{r}, s{r}, 5")
            a(f"s_lshl_b32 s{r}, s{r}, 2")
        a(f"s_mov_b32 s{sEND[0]}, s{sPOS[1]}")
        a(f"s_sub_u32 s{sT2}, s{sPOS[1]}, s{sPOS[0]}")
        a(f"v_mul_u32_u24 v{VIA}, s{sT2}, v{VH}")
        a(f"v_add_u32 v{VIA}, s{sPOS[0]}, v{VIA}")
        a(f"v_mad_u32_u24 v{VEA}, v{VIA}, v{VES}, v{VEO}")
        a(f"v_add_u32 v{VIA}, {L_IDX}, v{VIA}")
    def seg_next(x, lbl):
        a(f"s_lshl2_add_u32 s{sT2}, s{sSEGL[x]}, s{sPOS[x]}")
        a(f"s_mov_b32 s{sROW[x]}, -1")
        a(f"s_cmp_ge_u32 s{sT2}, s{sEND[x]}")
        a(f"s_cselect_b32 s{sSEGL[x]}, {hex(INF)}, s{sSEGL[x]}")
        a(f"s_cbranch_scc1 {lbl}")
        a(f"s_ff1_i32_b64 s{sT2}, s[{sMASK[x]}:{sMASK[x]+1}]")
        a(f"s_and_b32 s{sT2}, s{sT2}, 63")
        a(f"s_bitset0_b64 s[{sMASK[x]}:{sMASK[x]+1}], s{sT2}")
        a(f"v_readlane_b32 s{sT}, v{VEND}, s{sT2}")
        a(f"s_mul_i32 s{sROW[x]}, s{sT2}, {ROWP}")
        a(f"s_add_u32 s{sSEGL[x]}, s{sSEGL[x]}, 1")
        a(f"s_min_u32 s{sT}, s{sT}, s{sEND[x]}")
        a(f"s_sub_u32 s{sT}, s{sT}, s{sPOS[x]}")
        a(f"s_ashr_i32 s{sT}, s{sT}, 2")
        a(f"s_max_i32 s{sSEGL[x]}, s{sSEGL[x]}, s{sT}")
        a.lab(lbl)
    def stream_setup():
        a(f"v_cmp_lt_u32 s[{sMASK[0]}:{sMASK[0]+1}], s{sPOS[0]}, v{VEND}")
        a(f"v_cmp_lt_u32 s[{sMASK[1]}:{sMASK[1]+1}], s{sPOS[1]}, v{VEND}")
        for x in range(2):
            lj = L("INJ")
            a(f"s_and_b64 s[{sMASK[x]}:{sMASK[x]+1}], s[{sMASK[x]}:{sMASK[x]+1}], s[{sNE}:{sNE+1}]")
            a(f"s_mov_b32 s{sSEGL[x]}, 0")
            a(f"s_mov_b32 s{sHEAD[x]}, 0")
            seg_next(x, L("INI"))
            a(f"s_max_i32 s{sCR[x]}, s{sROW[x]}, 0")
            a(f"s_sub_u32 s{sCR[x]}, s{sCR[x]}, {QS}")
            a(f"s_cmp_lt_i32 s{sROW[x]}, 0")
            a(f"s_cbranch_scc1 {lj}")
            a(f"v_readlane_b32 s{sT}, v{VSTA}, s{sT2}")
            a(f"s_add_u32 s{sT2}, s{sT2}, 1")
            a(f"v_mov_b32 v{T3}, s{sT2}")
            a(f"s_lshl_b32 s{sT2}, s{sW}, 1")
            a(f"s_add_u32 s{sT2}, s{sT2}, {x}")
            a(f"s_cmp_ge_u32 s{sT}, s{sPOS[x]}")
            a(f"s_cbranch_scc1 {lj}")
            a(f"s_mov_b32 s{sHEAD[x]}, 1")
            a(f"s_mul_i32 s{sCR[x]}, s{sT2}, {ROWP}")
            a(f"s_add_u32 s{sCR[x]}, s{sCR[x]}, {L_CR-L_Q}")
            a(f"s_lshl_b32 s{sT2}, s{sT2}, 2")
            a(f"v_mov_b32 v6, s{sT2}")
            a(f"ds_write_b32 v6, v{T3} offset:{L_HN}")
            a.lab(lj)
            a(f"s_max_i32 s{sROW[x]}, s{sROW[x]}, 0")
        a(f"v_add_u32 v{T0}, s{sROW[0]}, v{VQA}")
        a(f"v_add_u32 v{T1}, s{sCR[0]}, v{VQA}")
        exec_half(1)
        a(f"v_add_u32 v{T0}, s{sROW[1]}, v{VQA}")
        a(f"v_add_u32 v{T1}, s{sCR[1]}, v{VQA}")
        a("s_mov_b64 exec, -1")
        a(f"v_lshlrev_b32 v3, {2 + (DP.bit_length()-1)}, v{VES}")
        a(f"s_min_u32 s{sTEV}, s{sSEGL[0]}, s{sSEGL[1]}")
        a(f"s_sub_u32 s{sREM}, s{sTEV}, 1")
        a(f"s_sub_u32 s{sLEFT}, s{sEND[1]}, s{sPOS[1]}")
        a(f"s_lshr_b32 s{sLEFT}, s{sLEFT}, 2")
        a(f"s_sub_u32 s6, s{sHEAD[0]}, 1")
        a(f"s_sub_u32 s7, s{sHEAD[1]}, 1")
        a(f"s_and_b64 s[6:7], s[6:7], s[{sSM}:{sSM+1}]")
        a(f"v_mov_b32 v5, {L_ZERO}")
        a(f"v_cndmask_b32 v{T3}, v5, v{T1}, s[6:7]")
    def first_loads():
        FI = 40
        a(f"ds_read2_b32 {vr(FI,2)}, v{VIA} offset0:0 offset1:1")
        a(f"ds_read2_b32 {vr(FI+2,2)}, v{VIA} offset0:2 offset1:3")
        a(f"ds_read2_b32 {vr(ES[0],2)}, v{VEA} offset0:0 offset1:1")
        a(f"ds_read2_b32 {vr(ES[1],2)}, v{VEA} offset0:4 offset1:5")
        a("s_waitcnt lgkmcnt(2)")
        for t in range(DP):
            a(f"v_mov_b32 v{IP[t&1]}, v{FI+t}")
            a(f"buffer_load_dwordx4 {vr(BS+8*t+2,4)}, {vr(IP[t&1],2)}, s[44:47], 0 idxen offen")
        a(f"ds_read_b32 v{IP[0]}, v{VIA} offset:{4*DP}")
        a(f"ds_read_b32 v{IP[1]}, v{VIA} offset:{4*(DP+1)}")
    def pload(slot, pair):
        if "novm" in EXP: return
        a(f"buffer_load_dwordx4 {vr(BS+8*slot+2,4)}, {vr(pair,2)}, s[44:47], 0 idxen offen")
    def groups(n, body):
        for grp in ([0, 1], [2], [3, 4, 5]):
            grp = [i for i in grp if i < n]
            if not grp: continue
            l = None
            if grp[0] >= 2:
                l = L("SK")
                a(f"s_cmp_eq_u64 s[{sV[grp[0]]}:{sV[grp[0]]+1}], 0")
                a(f"s_cbranch_scc1 {l}")
            for i in grp: body(i)
            if l: a.lab(l)
    def rec(i): return R0 + i + (i // 3)
    def meta(i): return R0 + 3 + 4*(i // 3)
    def rank_atomics(n):
        def body(i):
            a(f"v_bfe_u32 v{LA+i}, v{meta(i)}, {8*(i%3)}, 8")
            a(f"s_mov_b64 exec, s[{sV[i]}:{sV[i]+1}]")
            a(f"ds_add_rtn_u32 v{RK+i}, v{LA+i}, v7 offset:{L_CNT}")
            a("s_mov_b64 exec, -1")
        groups(n, body)
    def zero_batch(upto):
        assert 16384 < upto <= 2*16384 and upto % 16 == 0
        a(f"ds_write_b128 v4, {vr(ZT,4)} offset:{upto-16384}")
        a(f"ds_write_b128 v4, {vr(ZT,4)}")
    XFB = [70, 86, 40]
    def gemm():
        for nt in range(3):
            for s in range(4):
                a(f"ds_read_b128 {vr(XFB[nt]+4*s,4)}, v{VXA} offset:{16*nt*XROW+64*s}")
        a(f"v_mov_b32 v{VSTA}, {hex(S_LOG2E)}")
        QB = [QA, XFB[0], QA]
        def post(nt):
            r = []
            if nt == 2: r += ["s_mov_b32 exec_lo, 0x00ff00ff", "s_mov_b32 exec_hi, 0x00ff00ff"]
            for t in range(2):
                for k in range(4): r.append(f"v_fma_f32 v{QB[nt]+4*t+k}, v{QB[nt]+4*t+k}, v{VSTA}, v{BI+4*t+k}")
                r.append(f"ds_write_b128 v{VQW}, {vr(QB[nt]+4*t,4)} offset:{16*nt*ROWP+64*t}")
            if nt == 2: r.append("s_mov_b64 exec, -1")
            return r
        a("s_waitcnt vmcnt(0) lgkmcnt(8)")
        for nt in range(3):
            if nt == 1: a("s_waitcnt lgkmcnt(4)")
            if nt == 2: a("s_waitcnt lgkmcnt(2)")
            for s in range(4):
                for t in range(2):
                    a(f"v_mfma_f32_16x16x32_bf16 {vr(QB[nt]+4*t,4)}, {vr(WF+16*t+4*s,4)}, {vr(XFB[nt]+4*s,4)}, {'0' if s == 0 else vr(QB[nt]+4*t,4)}")
            if nt >= 1:
                for ins in post(nt-1): a(ins)
        a("s_nop 0")
        for ins in post(2): a(ins)
    def wq_loads(lo, hi):
        for f in range(lo, hi):
            t, s = divmod(f, 4)
            a(f"buffer_load_dwordx4 {vr(WF+16*t+4*s,4)}, v{VXA}, s[40:43], s{sWQ+t} offen offset:{1024*s}")

    def signal(k):
        a("s_waitcnt lgkmcnt(0)")
        a("s_mov_b64 exec, 1")
        a(f"ds_add_u32 v7, v7 offset:{L_FLAG+4*k}")
        a("s_mov_b64 exec, -1")
    def spin(k):
        l = L("SP")
        a("s_mov_b32 s8, 0x100000")
        a.lab(l)
        a(f"ds_read_b32 v6, v7 offset:{L_FLAG+4*k}")
        a("s_sub_u32 s8, s8, 1")
        a(f"s_cbranch_scc1 {l}X")
        a("s_waitcnt lgkmcnt(0)")
        a("v_readfirstlane_b32 s9, v6")
        a("s_nop 0")
        a("s_cmp_lt_u32 s9, 32")
        a(f"s_cbranch_scc1 {l}")
        a.lab(l + "X")
    def list_build(n):
        groups(n, lambda i: a(f"ds_bpermute_b32 v{PS+i}, v{LA+i}, v{VSTA}"))
        if n > 1:
            a(f"s_cmp_gt_u32 s{sT}, {4*BATCH}")
            a("s_cbranch_scc1 K2_SLOW_S")
        a("s_waitcnt lgkmcnt(0)")
        def body(i):
            a(f"v_add_u32 v{PS+i}, v{PS+i}, v{RK+i}")
            a(f"v_lshlrev_b32 v{RK+i}, 2, v{PS+i}")
            a(f"s_mov_b64 exec, s[{sV[i]}:{sV[i]+1}]")
            a(f"ds_write_b16_d16_hi v{PS+i}, v{rec(i)} offset:{L_IDX}")
            a(f"ds_write_b16 v{RK+i}, v{rec(i)} offset:{L_EP+4}")
            a(f"ds_write_b16 v{RK+i}, v{rec(i)} offset:{L_EP+14}")
            a("s_mov_b64 exec, -1")
        groups(n, body)
    def deg_acc():
        l = L("ND")
        a(f"s_cmp_lg_u32 s{sW}, 0")
        a(f"s_cbranch_scc1 {l}")
        a(f"ds_add_u32 v5, v{VC} offset:{L_DEG}")
        a.lab(l)
    a("v_and_b32 v2, 0x70, v4")
    a("v_add_u32 v3, v3, v2")
    a(f"buffer_load_dwordx4 {vr(R0,4)}, v3, s[40:43], s4 offen")
    assert L_CNT <= 3*8192
    a(f"ds_write_b128 v4, {vr(ZT,4)}")
    a(f"ds_write_b128 v4, {vr(ZT,4)} offset:8192")
    a(f"ds_write_b128 v4, {vr(ZT,4)} offset:{L_CNT-8192}")
    lane_consts()
    a("v_and_b32 v2, 7, v0")
    a("s_waitcnt vmcnt(1)")
    for ins in wscale(): a(ins)
    stamp("a")
    a("s_waitcnt vmcnt(0)")
    stamp("b")
    a(f"v_lshrrev_b32 v{HD}, 24, v{R0+3}")
    a(f"v_sub_u32 v2, v{HD}, v2")
    a(f"v_cmp_lt_u32 vcc, {CAP}, v{HD}")
    for i in range(6):
        a(f"v_cmp_lt_i32 s[{sV[i]}:{sV[i]+1}], {8*i}, v2")
    a(f"s_cmp_eq_u64 s[{sV[3]}:{sV[3]+1}], 0")
    a("s_cbranch_scc1 K2_NOL1")
    a(f"buffer_load_dwordx4 {vr(R0+4,4)}, v3, s[40:43], s4 offen offset:128")
    a("s_waitcnt vmcnt(0)")
    a.lab("K2_NOL1")
    rank_atomics(6)
    a("s_mov_b64 exec, vcc")
    a(f"ds_write_b32 v7, v7 offset:{L_FLAG-4}")
    signal(0)
    spin(0)
    stamp(2)
    scan(True)
    a(f"s_cmp_lg_u32 s{sSLOW}, 0")
    a("s_cbranch_scc1 K2_SLOW_S")
    list_build(6)
    deg_acc()
    signal(1)
    ranges()
    spin(1)
    stamp(3)
    first_loads()
    stream_setup()
    spin(3)
    a("s_branch K2_JOIN")
    a.lab("K2_SCAN")
    scan(False)
    list_build(1)
    deg_acc()
    ranges()
    stream_setup()
    a("s_waitcnt lgkmcnt(0)")
    a("s_barrier")
    first_loads()
    a("s_branch K2_JOIN")

    a.lab("K2_GEMMER")
    if "noprio" not in EXP: a("s_setprio 3")
    srd(a, 36, PX, N*256)
    a("v_subrev_u32 v2, 512, v0")
    a("v_and_b32 v3, 15, v0")
    a("v_lshrrev_b32 v6, 4, v2")
    a("v_lshlrev_b32 v7, 16, v6")
    a("v_lshl_add_u32 v7, v3, 4, v7")
    a("v_add_u32 v7, s5, v7")
    a(f"buffer_load_dwordx4 {vr(XP,4)}, v7, s[36:39], 0 offen")
    a("v_add_u32 v7, 0x200000, v7")
    a(f"buffer_load_dwordx4 {vr(XP+4,4)}, v7, s[36:39], 0 offen")
    a("s_lshr_b32 s9, s2, 3")
    a(f"s_add_u32 s9, s9, s{sW}")
    a("s_and_b32 s9, s9, 7")
    a(f"s_lshl_b32 s{sWQ}, s9, 13")
    a(f"s_add_u32 s{sWQ}, s{sWQ}, {hex(WS_WQ)}")
    a(f"s_add_u32 s{sWQ+1}, s{sWQ}, 4096")
    a(f"v_mov_b32 v{VXA}, v5")
    a("v_and_b32 v7, 0x30, v0")
    a("s_lshl_b32 s8, s9, 7")
    a(f"v_add_u32 v{PB}, s8, v7")
    a(f"global_load_dwordx4 {vr(BI,4)}, v{PB}, s[6:7] offset:{WS_B1-WS_WE}")
    a(f"global_load_dwordx4 {vr(BI+4,4)}, v{PB}, s[6:7] offset:{WS_B1-WS_WE+64}")
    wq_loads(0, 2)
    a(f"v_mul_u32_u24 v6, {XROW}, v6")
    a(f"v_lshl_add_u32 v6, v3, 4, v6")
    a(f"v_add_u32 v1, {L_XS}, v6")
    a(f"v_mul_u32_u24 v{VQW}, {ROWP}, v3")
    a(f"s_add_u32 s8, s8, {L_Q}")
    a(f"v_add3_u32 v{VQW}, v{VQW}, v7, s8")
    a(f"v_mul_u32_u24 v2, {XROW}, v3")
    a(f"s_mov_b32 s8, {L_XS}")
    a(f"v_add3_u32 v2, v2, v7, s8")
    wq_loads(2, 4)
    lane_consts()
    wq_loads(4, 8)
    a(f"v_mov_b32 v{VXA}, v2")
    stamp("a")
    a(f"s_waitcnt vmcnt(10)")
    stamp("b")
    a(f"ds_write_b128 v1, {vr(XP,4)}")
    a(f"s_cmp_ge_u32 s{sW}, 12")
    a("s_cbranch_scc1 K2_NOXS")
    a(f"ds_write_b128 v1, {vr(XP+4,4)} offset:{32*XROW}")
    a.lab("K2_NOXS")
    for k in range(0, 4, 2): a(f"v_pk_mov_b32 {vr(122+0,2) if False else vr(ES[k//2],2)}, {vr(WE+k,2)}, {vr(WE+k,2)} op_sel:[0,1]")
    signal(2)
    spin(2)
    gemm()
    signal(3)
    for d in range(DP):
        a(f"v_pk_mov_b32 {vr(BS+8*d,2)}, {vr(ES[0],2)}, {vr(ES[0],2)} op_sel:[0,1]")
        a(f"v_pk_mov_b32 {vr(BS+8*d+6,2)}, {vr(ES[1],2)}, {vr(ES[1],2)} op_sel:[0,1]")
    stamp("c")
    if "touch" in EXP:
        a(f"s_cmp_lg_u32 s{sW}, 15")
        a("s_cbranch_scc1 K2_NOTOUCH")
        a("v_and_b32 v6, 63, v0")
        a("v_lshlrev_b32 v6, 16, v6")
        a("v_add_u32 v6, s5, v6")
        a(f"buffer_load_dword v{QA}, v6, s[48:51], 0 offen")
        a(f"global_load_dword v{QA+1}, v7, s[{PB2}:{PB2+1}]")
        a.lab("K2_NOTOUCH")
    spin(0)
    stamp(2)
    scan(True)
    a(f"s_cmp_gt_u32 s{sT}, {4*BATCH}")
    a(f"s_cselect_b32 s{sSLOW}, 1, s{sSLOW}")
    a(f"s_cmp_lg_u32 s{sSLOW}, 0")
    a("s_cbranch_scc1 K2_SLOW_SYNC")
    ranges()
    spin(1)
    stamp(3)
    first_loads()
    stream_setup()
    spin(3)
    a.lab("K2_JOIN")
    a(f"ds_read_b128 {vr(ACC,4)}, v{T3}")
    a(f"ds_read_b128 {vr(ACC+4,4)}, v{T3} offset:16")
    a("s_waitcnt lgkmcnt(0)")
    if "noprio" not in EXP: a("s_setprio 2")
    stamp("d")
    a(f"s_cmp_eq_u32 s{sTEV}, {hex(INF)}")
    a("s_cbranch_scc1 K2_LOOP_DONE")
    a(f"ds_read_b128 {vr(Q,4)}, v{T0}")
    a(f"ds_read_b128 {vr(Q+4,4)}, v{T0} offset:16")
    def mfma(slot, es, u, which):
        if "nomfma" in EXP: return
        if which == 0:
            a(f"v_mfma_f32_16x16x32_bf16 {vr(u,4)}, {vr(es,4)}, {vr(BS+8*slot,4)}, {vr(Q,4)}")
        else:
            a(f"v_mfma_f32_16x16x32_bf16 {vr(u+4,4)}, {vr(es-2,4)}, {vr(BS+8*slot+4,4)}, {vr(Q+4,4)}")
    a(f"s_waitcnt vmcnt({DP-1}) lgkmcnt(0)")
    mfma(0, ES[0], U[0], 0); mfma(0, ES[0], U[0], 1)
    pload(0, IP[0])
    stamp(4)
    a(f"s_sub_u32 s{sREM}, s{sREM}, 1")
    a("s_nop 5")
    a("s_cbranch_scc1 K2_BND0")
    a("s_branch K2_SUB0")
    def rdE(k):
        if "nods" in EXP: return
        a(f"ds_read2_b32 {vr(ES[k&1],2)}, v{VEA} offset0:{4*(k+2)} offset1:{4*(k+2)+1}")
    def rdI(k):
        if "nods" in EXP: return
        a(f"ds_read_b32 v{IP[k&1]}, v{VIA} offset:{4*(k+2+DP)}")
    def ex(c, u): a(f"v_exp_f32 v{EX+c}, v{u+c}")
    def rc(c): a(f"v_rcp_f32 v{EX+c}, v{EX+c}")
    def pa(c): a(f"v_pk_add_f32 {vr(EX+c,2)}, {vr(EX+c,2)}, 1.0 op_sel_hi:[1,0]")
    def pf(c, u): a(f"v_pk_fma_f32 {vr(ACC+c,2)}, {vr(u+c,2)}, {vr(EX+c,2)}, {vr(ACC+c,2)}")
    def valu(u):
        for c in range(8): ex(c, u)
        for c in range(0, 8, 2): pa(c)
        for c in range(8): rc(c)
        for c in range(0, 8, 2): pf(c, u)
    def tail(u):
        rc(7)
        for c in range(0, 8, 2): pf(c, u)
    uid = [0]
    def prio():
        if "noprio" in EXP: return
        uid[0] += 1
        lbl = f"K2_PR{uid[0]}"
        a(f"s_cmp_gt_i32 s{sLEFT}, {PR1}")
        a(f"s_cbranch_scc1 {lbl}_D")
        a("s_setprio 1")
        a(f"s_cmp_gt_i32 s{sLEFT}, {PR0}")
        a(f"s_cbranch_scc1 {lbl}_D")
        a("s_setprio 0")
        a.lab(f"{lbl}_D")
    def advance():
        a(f"v_add_u32 v{VEA}, v3, v{VEA}")
        a(f"v_add_u32 v{VIA}, {4*DP}, v{VIA}")
        a(f"s_sub_u32 s{sLEFT}, s{sLEFT}, {DP}")
        prio()
    a.raw(".p2align 3")
    a.lab("K2_LOOP")
    advance()
    for k in range(DP):
        u = U[k & 1]
        a.lab(f"K2_SUB{k}")
        ex(0, u)
        if k == 2 and PRM >= 0 and "noprio" not in EXP:
            a(f"s_cmp_gt_i32 s{sLEFT}, {PRM}")
            a("s_cbranch_scc1 K2_PM")
            a("s_setprio 0")
            a.lab("K2_PM")
        a(f"s_waitcnt vmcnt({DP-1}) lgkmcnt(0)")
        ex(1, u)
        mfma((k+1) % DP, ES[(k+1) & 1], U[(k+1) & 1], 0)
        ex(2, u)
        mfma((k+1) % DP, ES[(k+1) & 1], U[(k+1) & 1], 1)
        ex(3, u)
        pload((k+1) % DP, IP[(k+1) & 1])
        ex(4, u)
        rdE(k)
        ex(5, u)
        rdI(k)
        ex(6, u); ex(7, u)
        for c in range(0, 8, 2): pa(c)
        for c in range(6): rc(c)
        a(f"s_sub_u32 s{sREM}, s{sREM}, 1")
        rc(6)
        a(f"s_cbranch_scc1 K2_BNDT{k}")
        tail(u)
    a("s_branch K2_LOOP")
    for k in range(DP):
        kp = (k - 1) % DP
        a.lab(f"K2_BNDT{kp}")
        tail(U[kp & 1])
        if k == 0: advance()
        a.lab(f"K2_BND{k}")
        a(f"s_mov_b64 s[{sX}:{sX+1}], 0")
        a("s_mov_b64 s[6:7], 0")
        for x in range(2):
            a(f"s_cmp_lg_u32 s{sSEGL[x]}, s{sTEV}")
            a(f"s_cbranch_scc1 K2_B{k}_N{x}")
            a(f"s_mov_b32 s{sX+x}, -1")
            seg_next(x, f"K2_B{k}_S{x}")
            a(f"s_cmp_lt_i32 s{sROW[x]}, 0")
            a(f"s_cbranch_scc1 K2_B{k}_N{x}")
            a(f"s_mov_b32 s{6+x}, -1")
            exec_half(x)
            a(f"v_add_u32 v{T0}, s{sROW[x]}, v{VQA}")
            a.lab(f"K2_B{k}_N{x}")
        a("s_mov_b64 exec, s[6:7]")
        a("s_waitcnt lgkmcnt(0)")
        a(f"ds_read_b128 {vr(Q,4)}, v{T0}")
        a(f"ds_read_b128 {vr(Q+4,4)}, v{T0} offset:16")
        a("s_mov_b64 exec, -1")
        valu(U[k & 1])
        a(f"s_mov_b64 exec, s[{sX}:{sX+1}]")
        a(f"ds_write_b128 v{T1}, {vr(ACC,4)}")
        a(f"ds_write_b128 v{T1}, {vr(ACC+4,4)} offset:16")
        a("s_mov_b64 exec, s[6:7]")
        a(f"v_subrev_u32 v{T1}, {QS}, v{T0}")
        a(f"v_cndmask_b32 v{T3}, v5, v{T1}, s[{sSM}:{sSM+1}]")
        a(f"ds_read_b128 {vr(ACC,4)}, v{T3}")
        a(f"ds_read_b128 {vr(ACC+4,4)}, v{T3} offset:16")
        a("s_mov_b64 exec, -1")
        a(f"s_sub_u32 s{sREM}, -1, s{sTEV}")
        a(f"s_min_u32 s{sTEV}, s{sSEGL[0]}, s{sSEGL[1]}")
        a(f"s_cmp_eq_u32 s{sTEV}, {hex(INF)}")
        a("s_cbranch_scc1 K2_LOOP_DONE")
        a(f"s_add_u32 s{sREM}, s{sREM}, s{sTEV}")
        a(f"s_waitcnt vmcnt({DP-1}) lgkmcnt(2)")
        mfma((k+1) % DP, ES[(k+1) & 1], U[(k+1) & 1], 0)
        mfma((k+1) % DP, ES[(k+1) & 1], U[(k+1) & 1], 1)
        pload((k+1) % DP, IP[(k+1) & 1])
        rdE(k); rdI(k)
        a(f"s_sub_u32 s{sREM}, s{sREM}, 1")
        a("s_nop 3")
        if k < DP-1:
            a(f"s_cbranch_scc1 K2_BND{k+1}")
            a(f"s_branch K2_SUB{k+1}")
        else:
            a(f"s_cbranch_scc0 K2_LOOP")
            advance()
            a(f"s_branch K2_BND0")
    a.lab("K2_LOOP_DONE")
    a("s_setprio 0")
    stamp(5)
    if DEBUG:
        a("s_lshl_b32 s93, s2, 4")
        a("s_add_u32 s93, s93, s3")
        a("s_lshl_b32 s93, s93, 5")
        a("s_add_u32 s93, s93, 0xA80000")
        a("v_mov_b32 v1, s93")
        for i in range(8): a(f"v_mov_b32 v{8+i}, s{84+i}")
        a("global_store_dwordx4 v1, v[8:11], s[34:35]")
        a("global_store_dwordx4 v1, v[12:15], s[34:35] offset:16")
    a(f"s_cmp_lg_u32 s{sSLOW}, 0")
    a("s_cbranch_scc1 K2_COMB")
    a.lab("K2_EPI")
    a.c("out = -ln2 * S @ w2 + deg*b2 ; waves 0..3 own oc pair op = w and start on node tiles 0,1 as soon as they are complete")
    AF = 56
    SF = 8
    BU = 24
    OA = 32
    CS = 40
    B2 = 120
    DG = 124
    L_DONE = L_FLAG + 20
    a(f"s_lshl_b32 s4, 1, s{sW}")
    a("v_mov_b32 v6, s4")
    a("v_mov_b32 v7, 4")
    a("s_waitcnt lgkmcnt(0)")
    a("s_mov_b64 exec, 1")
    a(f"ds_or_b32 v7, v6 offset:{L_DONE-4}")
    a("s_mov_b64 exec, -1")
    a("v_and_b32 v1, 63, v0")
    a(f"s_or_b64 s[10:11], s[{sNE}:{sNE+1}], s[{sSM}:{sSM+1}]")
    a("v_lshlrev_b32 v3, 4, v1")
    def combine(n, node0, stride):
        a(f"s_mul_i32 s4, s{node0}, {ROWP}")
        a(f"s_add_u32 s4, s4, {L_S}")
        a("v_add_u32 v6, s4, v3")
        a("v_lshrrev_b32 v2, 2, v3")
        a(f"ds_read_b32 v2, v2 offset:{L_HN}")
        for r in range(n): a(f"ds_read_b128 {vr(CS+4*r,4)}, v6 offset:{stride*r*ROWP}")
        a(f"s_add_u32 s4, s{node0}, 1")
        a(f"s_lshr_b64 s[36:37], s[10:11], s{node0}")
        a(f"s_waitcnt lgkmcnt({n})")
        a("v_subrev_u32 v2, s4, v2")
        CM = [6, 12, 14, 38]
        for r in range(n): a(f"v_cmp_eq_u32 s[{CM[r]}:{CM[r]+1}], {stride*r}, v2")
        lp = L("CBL")
        a.lab(lp)
        for r in range(n):
            l = L("CH")
            a(f"s_ff1_i32_b32 s8, s{CM[r]}")
            a(f"s_bitset0_b32 s{CM[r]}, s8")
            a(f"s_mul_i32 s9, s8, {ROWP}")
            a(f"s_add_u32 s9, s9, {L_CR}")
            a("s_cmp_lt_i32 s8, 0")
            a(f"v_add_u32 v7, s9, v3")
            a(f"s_cbranch_scc0 {l}")
            a(f"v_mov_b32 v7, {L_ZERO}")
            a.lab(l)
            a(f"ds_read_b128 {vr(8+4*r,4)}, v7")
        for r in range(n):
            l = L("CZ")
            a(f"s_bitcmp1_b64 s[36:37], {stride*r}")
            a(f"s_cbranch_scc1 {l}")
            a(f"s_waitcnt lgkmcnt({n})")
            for c in range(4): a(f"v_mov_b32 v{CS+4*r+c}, 0")
            a.lab(l)
        a(f"s_mov_b32 s8, s{CM[0]}")
        for r in range(1, n): a(f"s_or_b32 s8, s8, s{CM[r]}")
        a("s_cmp_lg_u32 s8, 0")
        a("s_waitcnt lgkmcnt(0)")
        for r in range(n):
            for c in range(0, 4, 2): a(f"v_pk_add_f32 {vr(CS+4*r+c,2)}, {vr(CS+4*r+c,2)}, {vr(8+4*r+c,2)}")
        a(f"s_cbranch_scc1 {lp}")
    def to_bf16(n, node0, stride):
        a(f"s_mul_i32 s4, s{node0}, {SBROW}")
        a(f"s_add_u32 s4, s4, {L_SB}")
        a("v_lshrrev_b32 v6, 1, v3")
        a("v_add_u32 v6, s4, v6")
        for r in range(n):
            a(f"v_cvt_pk_bf16_f32 v{CS+4*r}, v{CS+4*r}, v{CS+4*r+1}")
            a(f"v_cvt_pk_bf16_f32 v{CS+4*r+1}, v{CS+4*r+2}, v{CS+4*r+3}")
            a(f"ds_write_b64 v6, {vr(CS+4*r,2)} offset:{stride*r*SBROW}")
    def out_tile(nt):
        def sread(s): a(f"ds_read_b128 {vr(SF+4*(s%4),4)}, v4 offset:{64*s+16*nt*SBROW}")
        for s in range(4): sread(s)
        extra = [f"v_mul_f32 v{CS+k}, v{DG+nt}, v{BU+k}" for k in range(8)]
        for s in range(8):
            a(f"s_waitcnt lgkmcnt({min(3, 7-s)})")
            for t in range(2):
                o = OA + 4*t
                a(f"v_mfma_f32_16x16x32_bf16 {vr(o,4)}, {vr(AF+32*t+4*s,4)}, {vr(SF+4*(s%4),4)}, {'0' if s == 0 else vr(o,4)}")
            if s + 4 < 8: sread(s+4)
            else:
                a(extra.pop(0)); a(extra.pop(0))
        a("s_nop 5")
        for k in range(8): a(f"v_fmac_f32 v{CS+k}, v{DG+3}, v{OA+k}")
        for t in range(2):
            o = CS + 4*t
            a(f"v_cvt_pk_bf16_f32 v{o}, v{o}, v{o+1}")
            a(f"v_cvt_pk_bf16_f32 v{o+1}, v{o+2}, v{o+3}")
            a(f"buffer_store_dwordx2 {vr(o,2)}, v5, s[48:51], 0 offen offset:{32*t}{OUTFL}")
        if nt < 2: a(f"v_add_u32 v5, 0x100000, v5")
    a(f"s_cmp_ge_u32 s{sW}, 4")
    a("s_cbranch_scc1 K2_LAST")
    a(f"v_readlane_b32 s{sT}, v{VEND}, 15")
    a(f"v_readlane_b32 s{sT2}, v{VEND}, 31")
    a(f"v_mul_u32_u24 v6, s{sTT}, v1")
    a("v_lshrrev_b32 v6, 4, v6")
    a("v_lshlrev_b32 v6, 2, v6")
    a(f"v_cmp_gt_u32 s[70:71], s{sT}, v6")
    a(f"v_cmp_gt_u32 s[72:73], s{sT2}, v6")
    a("s_waitcnt vmcnt(0)")
    a("s_lshr_b32 s4, s2, 3")
    a(f"s_add_u32 s4, s4, s{sW}")
    a("s_and_b32 s74, s4, 3")
    a(f"s_lshl_b32 s6, s74, 14")
    a(f"s_add_u32 s6, s6, {hex(WS_W2)}")
    for q in range(4):
        if q: a("s_add_u32 s6, s6, 4096")
        for s in range(4):
            a(f"buffer_load_dwordx4 {vr(AF+16*q+4*s,4)}, v3, s[40:43], s6 offen offset:{1024*s}")
    a("v_bfe_u32 v7, v0, 4, 2")
    a(f"s_lshl_b32 s7, s74, 6")
    a("v_lshlrev_b32 v5, 3, v7")
    a("v_add_u32 v5, s7, v5")
    a(f"global_load_dwordx2 {vr(B2,2)}, v5, s[{PB2}:{PB2+1}]")
    a(f"global_load_dwordx2 {vr(B2+2,2)}, v5, s[{PB2}:{PB2+1}] offset:32")
    a("v_and_b32 v2, 15, v0")
    a(f"v_mul_u32_u24 v4, {SBROW}, v2")
    a("v_lshl_add_u32 v4, v7, 4, v4")
    a(f"v_add_u32 v4, {L_SB}, v4")
    a(f"v_lshlrev_b32 v6, 2, v2")
    for nt in range(3): a(f"ds_read_b32 v{DG+nt}, v6 offset:{L_DEG+64*nt}")
    a("v_lshl_add_u32 v5, v2, 16, v5")
    a("s_lshl_b32 s9, s2, 8")
    a("v_add_u32 v5, s9, v5")
    a(f"v_mov_b32 v{DG+3}, {hex(S_LN2)}")
    a("s_and_b32 s70, s70, 0xffff")
    a("s_and_b32 s72, s72, 0xffff")
    a("s_waitcnt lgkmcnt(0)")
    for nt in range(3):
        a(f"v_cvt_f32_u32 v{DG+nt}, v{DG+nt}")
        a(f"v_mul_f32 v{DG+nt}, 0.25, v{DG+nt}")
    for nt in range(1):
        l = L("DN")
        a("s_mov_b32 s8, 0x100000")
        a("v_mov_b32 v7, 4")
        a.lab(l)
        a(f"ds_read_b32 v6, v7 offset:{L_DONE-4}")
        a("s_sub_u32 s8, s8, 1")
        a(f"s_cbranch_scc1 {l}X")
        a("s_sleep 1")
        a("s_waitcnt lgkmcnt(0)")
        a("v_readfirstlane_b32 s9, v6")
        a("s_nop 0")
        a(f"s_andn2_b32 s9, s{70+2*nt}, s9")
        a(f"s_cbranch_scc1 {l}")
        a.lab(l + "X")
        a(f"s_add_u32 s75, s{sW}, {16*nt}")
        combine(4, 75, 4)
        to_bf16(4, 75, 4)
        a("v_mov_b32 v7, 4")
        a("v_mov_b32 v6, 8")
        a("s_waitcnt lgkmcnt(0)")
        a("s_mov_b64 exec, 1")
        a(f"ds_add_u32 v7, v6 offset:{L_FLAG+4*(5+nt)}")
        a("s_mov_b64 exec, -1")
        if nt == 0:
            a("s_waitcnt vmcnt(0)")
            for t in range(2):
                a(f"v_lshlrev_b32 v{BU+4*t}, 16, v{B2+2*t}")
                a(f"v_and_b32 v{BU+4*t+1}, 0xffff0000, v{B2+2*t}")
                a(f"v_lshlrev_b32 v{BU+4*t+2}, 16, v{B2+2*t+1}")
                a(f"v_and_b32 v{BU+4*t+3}, 0xffff0000, v{B2+2*t+1}")
        spin(5+nt)
        out_tile(nt)
    a.lab("K2_LAST")
    stamp("e")
    a("s_waitcnt lgkmcnt(0)")
    a("s_barrier")
    stamp("f")
    a(f"s_add_u32 s75, s{sW}, 16")
    a(f"s_cmp_lt_u32 s{sW}, 8")
    a("s_cbranch_scc1 K2_LAST1")
    combine(2, 75, 8)
    to_bf16(2, 75, 8)
    a("s_branch K2_LAST2")
    a.lab("K2_LAST1")
    combine(1, 75, 1)
    to_bf16(1, 75, 1)
    a.lab("K2_LAST2")
    stamp("g")
    a("s_waitcnt lgkmcnt(0)")
    a("s_barrier")
    a(f"s_cmp_ge_u32 s{sW}, 4")
    a("s_cbranch_scc1 K2_EXIT")
    stamp(6)
    out_tile(1)
    out_tile(2)
    if DEBUG:
        stamp(7)
        a("s_cmp_lg_u32 s3, 0")
        a("s_cbranch_scc1 K2_EXIT")
        a("s_memrealtime s[98:99]")
        a("s_lshl_b32 s93, s2, 6")
        a("s_add_u32 s93, s93, 0xA00000")
        a("v_mov_b32 v1, s93")
        a("s_waitcnt lgkmcnt(0)")
        for i in range(8):
            a(f"s_sub_u32 s93, s{84+i}, s84")
            a("v_mov_b32 v2, s93")
            a(f"global_store_dword v1, v2, s[34:35] offset:{4*i}")
        for off, sr_ in ((32, 96), (36, 98), (40, 92)):
            a(f"v_mov_b32 v2, s{sr_}")
            a(f"global_store_dword v1, v2, s[34:35] offset:{off}")
    a.lab("K2_EXIT")
    a("s_endpgm")
    a.lab("K2_COMB")
    a("v_and_b32 v1, 63, v0")
    a("v_lshlrev_b32 v3, 4, v1")
    a("s_mov_b64 s[10:11], -1")
    a("s_waitcnt vmcnt(0) lgkmcnt(0)")
    a("s_barrier")
    combine(3, sW, 16)
    a(f"ds_write_b128 v6, {vr(CS,4)}")
    a(f"ds_write_b128 v6, {vr(CS+4,4)} offset:{16*ROWP}")
    a(f"s_cmp_ge_u32 s{sW}, 8")
    a("s_cbranch_scc1 K2_SLOW_SYNC")
    a(f"ds_write_b128 v6, {vr(CS+8,4)} offset:{32*ROWP}")
    a("s_branch K2_SLOW_SYNC")
    a.lab("K2_SLOW_S")
    a.lab("K2_SLOW_SET")
    a(f"s_mov_b32 s{sSLOW}, 1")
    a.lab("K2_SLOW_SYNC")
    a("s_waitcnt lgkmcnt(0)")
    a("s_barrier")
    a.lab("K2_SLOW_NEXT")
    a("v_lshlrev_b32 v4, 4, v0")
    for k in range(4): a(f"v_mov_b32 v{ZT+k}, 0")
    zero_batch(L_BZEND)
    a(f"s_cmp_lg_u32 s{sBATCH}, 0")
    a("s_cbranch_scc1 K2_SLOW_NZ")
    a(f"s_mov_b64 s[{sSM}:{sSM+1}], -1")
    a(f"ds_write_b128 v4, {vr(ZT,4)} offset:{L_S}")
    a(f"ds_write_b128 v4, {vr(ZT,4)} offset:{L_S+16384}")
    a(f"ds_write_b128 v4, {vr(ZT,4)} offset:{L_S+40*ROWP-16384}")
    a.lab("K2_SLOW_NZ")
    a(f"s_cmp_lt_u32 s{sBATCH}, {E}")
    a("s_cbranch_scc1 K2_SLOW_GO")
    a(f"s_mov_b32 s{sSLOW}, 0")
    a("s_waitcnt lgkmcnt(0)")
    a("s_barrier")
    a("s_branch K2_EPI")
    a.lab("K2_SLOW_GO")
    a(f"v_add_u32 v5, s{sBATCH}, v0")
    a(f"v_mov_b32 v6, {E}")
    a("v_cmp_lt_u32 vcc, v5, v6")
    a(f"v_min_u32 v5, {E-1}, v5")
    a("v_lshlrev_b32 v6, 2, v5")
    a("v_lshlrev_b32 v7, 1, v5")
    SD, SE, SS = 40, 41, 42
    a(f"global_load_dword v{SD}, v6, s[{PDST}:{PDST+1}]")
    a(f"global_load_dword v{SS}, v6, s[{PSRC}:{PSRC+1}]")
    a(f"global_load_ushort v{SE}, v7, s[{PE}:{PE+1}]")
    a("v_and_b32 v5, 63, v0")
    a("v_lshlrev_b32 v5, 2, v5")
    a("s_waitcnt vmcnt(0) lgkmcnt(0)")
    a("s_barrier")
    a(f"v_and_b32 v7, 0xff, v{SD}")
    a(f"v_cmp_eq_u32 s[{sV[0]}:{sV[0]+1}], s2, v7")
    a(f"v_lshl_or_b32 v{R0}, v{SS}, 16, v{SE}")
    a(f"v_lshrrev_b32 v7, 6, v{SD}")
    a(f"v_and_b32 v{R0+3}, 0xfc, v7")
    a(f"s_and_b64 s[{sV[0]}:{sV[0]+1}], s[{sV[0]}:{sV[0]+1}], vcc")
    a("v_mov_b32 v7, 4")
    rank_atomics(1)
    a("s_mov_b64 exec, -1")
    a(f"s_add_u32 s{sBATCH}, s{sBATCH}, {BATCH}")
    a("s_waitcnt lgkmcnt(0)")
    a("s_barrier")
    a("s_branch K2_SCAN")
    return 128

HEADER = open('standalone__edge_featured_mpnn_mpnn__graph.s.ref').read().split("; Override launch")[0]

def kd(name, nv, ns):
    acc = (nv + 3) // 4 * 4
    return f""".p2align 6
.amdhsa_kernel {name}
  .amdhsa_next_free_vgpr {nv}
  .amdhsa_next_free_sgpr {ns}
  .amdhsa_accum_offset {acc}
  .amdhsa_group_segment_fixed_size 0
  .amdhsa_kernarg_size 88
  .amdhsa_user_sgpr_count 2
  .amdhsa_user_sgpr_kernarg_segment_ptr 1
  .amdhsa_system_sgpr_workgroup_id_x 1
.end_amdhsa_kernel
"""

def build(TPW=4, DP=6):
    a = Asm()
    g1 = gen_k1(a, TPW)
    nv2 = gen_k2(a, DP)
    out = HEADER
    out += f"; @launch kernel=k1_kernel grid=({g1},1,1) block=(512,1,1) lds={K1_LDS}\n"
    out += f"; @launch kernel=k2_kernel grid=(256,1,1) block=(1024,1,1) lds={L_END}\n"
    out += '.amdgcn_target "amdgcn-amd-amdhsa--gfx950"\n.text\n'
    out += a.text()
    out += '.section .rodata,"a"\n'
    out += kd("k1_kernel", 144, 64)
    out += kd("k2_kernel", 128, 102)
    return out

if __name__ == "__main__":
    import argparse
    ap = argparse.ArgumentParser()
    ap.add_argument("-o", default="standalone__edge_featured_mpnn_mpnn__graph.s")
    ap.add_argument("--tpw", type=int, default=4)
    ap.add_argument("--dp", type=int, default=4)
    ap.add_argument("--debug", action="store_true")
    ap.add_argument("--srcmask", type=int, default=0)
    ap.add_argument("--exp", default="")
    ap.add_argument("--pr1", type=int, default=8)
    ap.add_argument("--pr0", type=int, default=4)
    ap.add_argument("--prm", type=int, default=-1)
    ap.add_argument("--wqs", type=int, default=4)
    ap.add_argument("--wqs2", type=int, default=5)
    ap.add_argument("--pf", type=int, default=0)
    args = ap.parse_args()
    DEBUG = args.debug
    SRCMASK = args.srcmask
    PF = args.pf
    WQSPLIT = args.wqs
    PR1, PR0, PRM = args.pr1, args.pr0, args.prm
    if 'ont' in EXP: OUTFL = ' nt'
    WQSPLIT2 = args.wqs2
    EXP = set(args.exp.split(",")) if args.exp else set()
    open(args.o, "w").write(build(args.tpw, args.dp))
```

```python
import sys, struct

N, E, D_, H = 10000, 160000, 128, 256
NCH = 64
CH_E = E // NCH
WS_P = 0
WS_CELLS = 0x500000
WS_WQ = 0x900000
WS_W2 = 0x910000
WS_WE = 0x920000
WS_B1 = 0x920400
WS_END = 0x921000

def f32bits(x): return struct.unpack('<I', struct.pack('<f', x))[0]
S_LOG2E = f32bits(-1.4426950408889634)
S_LN2 = f32bits(-0.6931471805599453)

class Asm:
    def __init__(self): self.l = []
    def __call__(self, s): self.l.append("    " + s)
    def lab(self, s): self.l.append(s + ":")
    def c(self, s): self.l.append("    ; " + s)
    def raw(self, s): self.l.append(s)
    def text(self): return "\n".join(self.l) + "\n"

def vr(a, n): return f"v[{a}:{a+n-1}]"
def sr(a, n): return f"s[{a}:{a+n-1}]"

def srd(a, d, base, nrec, stride=0, add=0):
    if add:
        a(f"s_add_u32 s{d}, s{base}, {hex(add)}")
        a(f"s_addc_u32 s{d+1}, s{base+1}, 0")
    else:
        a(f"s_mov_b32 s{d}, s{base}")
        a(f"s_mov_b32 s{d+1}, s{base+1}")
    if stride:
        a(f"s_or_b32 s{d+1}, s{d+1}, {hex(stride << 16)}")
    a(f"s_mov_b32 s{d+2}, {hex(nrec)}")
    a(f"s_mov_b32 s{d+3}, 0x20000")

PX, PE, PSRC, PDST, PW1, PB1, PW2, PB2 = 16, 18, 20, 22, 24, 26, 28, 30

DEBUG = False
SRCMASK = 0
EXP = set()
PF = 0
WQSPLIT = 2
PR1 = 10
PR0 = 4
PRM = -1
OUTFL = ''
WQSPLIT2 = 5
def code_prefetch(a, tag, target, per, sa, dst, nslice_shift=3, mask=31):
    a(f"s_getpc_b64 s[{sa}:{sa+1}]")
    a.lab(f"CP_{tag}")
    a(f"s_lshr_b32 s{dst}, s2, {nslice_shift}")
    a(f"s_and_b32 s{dst}, s{dst}, {mask}")
    a(f"s_mul_i32 s{dst}, s{dst}, {per*128}")
    a(f"s_min_u32 s{dst}, s{dst}, TEXT_END-{target}-{per*128}")
    a(f"s_add_u32 s{dst}, s{dst}, {target}-CP_{tag}")
    a(f"s_add_u32 s{sa}, s{sa}, s{dst}")
    a(f"s_addc_u32 s{sa+1}, s{sa+1}, 0")
    for i in range(per):
        a(f"s_load_dword s{dst+i}, s[{sa}:{sa+1}], {128*i}")

CAP1 = 24
CAP = 48
K1_LDS = 65536 + 16384
def gen_k1(a, TPW):
    assert TPW == 4
    NG = (625 + TPW - 1) // TPW
    NTR = 8
    GRID = NCH + NTR + NG
    a.raw(".globl k1_kernel"); a.raw(".p2align 8"); a.raw(".type k1_kernel,@function")
    a.lab("k1_kernel")
    a(f"s_cmp_ge_u32 s2, {GRID}")
    a("s_cbranch_scc1 K1_EXIT")
    a("s_load_dwordx16 s[16:31], s[0:1], 0")
    a("s_load_dwordx2 s[32:33], s[0:1], 80")
    if "nocpf" not in EXP: code_prefetch(a, "A", "K1_BODY", 5, 64, 66, mask=31)
    a.lab("K1_BODY")
    if DEBUG: a("s_memrealtime s[56:57]")
    K1S = [52, 53, 54, 55, 62, 63]
    def st1(i):
        if not (DEBUG and "k1st" in EXP): return
        a("s_memtime s[14:15]")
        a("s_waitcnt lgkmcnt(0)")
        a(f"s_mov_b32 s{K1S[i]}, s14")
    st1(0)
    def k1end():
        if DEBUG:
            a("s_waitcnt vmcnt(0)")
            a("s_memrealtime s[58:59]")
            a("s_lshl_b32 s60, s2, 4")
            a("s_add_u32 s60, s60, 0xB00000")
            a("v_mov_b32 v1, s60")
            a("s_waitcnt lgkmcnt(0)")
            a("v_mov_b32 v2, s56")
            a("v_mov_b32 v3, s58")
            a("v_cmp_eq_u32 vcc, 0, v0")
            a("s_and_saveexec_b64 s[60:61], vcc")
            a("s_cbranch_execz K1_EXIT")
            a("global_store_dwordx2 v1, v[2:3], s[32:33]")
            if "k1st" in EXP:
                st1(5)
                a("s_lshl_b32 s60, s2, 5")
                a("s_add_u32 s60, s60, 0xB80000")
                a("v_mov_b32 v1, s60")
                for i in range(6):
                    a(f"s_sub_u32 s60, s{K1S[i]}, s52")
                    a("v_mov_b32 v2, s60")
                    a(f"global_store_dword v1, v2, s[32:33] offset:{4*i}")
        a("s_endpgm")
    if "gfirst" in EXP:
        a(f"s_add_u32 s3, s2, {NCH+NTR}")
        a(f"s_sub_u32 s4, s2, {NG}")
        a(f"s_cmp_lt_u32 s2, {NG}")
        a("s_cselect_b32 s2, s3, s4")
    a(f"s_cmp_lt_u32 s2, {NCH}")
    a("s_cbranch_scc1 K1_SORT")
    a(f"s_cmp_lt_u32 s2, {NCH+NTR}")
    a("s_cbranch_scc1 K1_TRANS")
    a.c("GEMM role: P' = -log2e * x @ W1a ; W and x staged in LDS by DMA (XOR-swizzled 16B slots)")
    LX = 65536
    a("v_lshrrev_b32 v1, 6, v0")
    a("v_and_b32 v2, 63, v0")
    a("v_readfirstlane_b32 s3, v1")
    a("v_lshrrev_b32 v3, 5, v2")
    a("v_and_b32 v4, 31, v2")
    a("v_lshlrev_b32 v5, 2, v3")
    a("v_xor_b32 v4, v4, v5")
    a("v_lshlrev_b32 v4, 4, v4")
    a("v_lshl_add_u32 v4, v3, 9, v4")
    a("v_xor_b32 v5, 0x80, v4")
    a("v_lshrrev_b32 v3, 4, v2")
    a("v_and_b32 v6, 15, v2")
    a("v_lshlrev_b32 v7, 3, v1")
    a("v_and_b32 v7, 8, v7")
    a("v_or_b32 v7, v7, v3")
    a("v_xor_b32 v7, v6, v7")
    a("v_lshlrev_b32 v7, 4, v7")
    a("v_lshl_add_u32 v7, v3, 8, v7")
    a("v_xor_b32 v8, 0x40, v7")
    a(f"s_sub_u32 s4, s2, {NCH+NTR}")
    a("s_lshl_b32 s5, s4, 14")
    a("s_lshl_b32 s6, s3, 11")
    a("s_add_u32 s5, s5, s6")
    a("s_lshr_b32 s7, s2, 3")
    a("s_add_u32 s7, s7, s3")
    a("s_and_b32 s7, s7, 7")
    a("s_lshl_b32 s7, s7, 13")
    a("s_waitcnt lgkmcnt(0)")
    srd(a, 36, PX, N*256)
    srd(a, 40, PW1, 257*512)
    a(f"s_add_u32 s8, s6, {LX}")
    a("s_mov_b32 m0, s8")
    a("s_add_u32 s9, s5, 1024")
    a("buffer_load_dwordx4 v7, s[36:39], s5 offen lds")
    a("s_add_u32 m0, s8, 1024")
    a("s_mov_b32 s8, s7")
    a("buffer_load_dwordx4 v8, s[36:39], s9 offen lds")
    for i in range(8):
        a("s_mov_b32 m0, s8")
        a("s_nop 0")
        a(f"buffer_load_dwordx4 v{4+(i&1)}, s[40:43], s8 offen lds")
        if i < 7: a("s_add_u32 s8, s8, 1024")
    st1(1)
    srd(a, 44, 32, N*512, add=WS_P)
    a("v_lshrrev_b32 v9, 2, v6")
    a("v_and_b32 v10, 3, v6")
    a("v_xor_b32 v11, v1, v9")
    a("v_lshl_or_b32 v10, v11, 2, v10")
    a("v_lshlrev_b32 v10, 4, v10")
    a("v_lshl_add_u32 v9, v3, 3, v9")
    a("v_lshl_add_u32 v9, v9, 9, v10")
    a("v_xor_b32 v10, v3, v6")
    a("v_lshlrev_b32 v10, 4, v10")
    a("v_lshl_add_u32 v10, v6, 8, v10")
    a(f"v_add_u32 v10, {LX}, v10")
    for s in range(1, 4): a(f"v_xor_b32 v{10+s}, {64*s}, v10")
    a("v_lshlrev_b32 v14, 9, v6")
    a("v_lshl_add_u32 v14, v1, 6, v14")
    a("v_lshl_add_u32 v14, v3, 4, v14")
    a("s_lshl_b32 s5, s4, 15")
    a(f"v_mov_b32 v15, {hex(S_LOG2E)}")
    WFR = 16
    XFR = 48
    ACC = 112
    a("s_waitcnt vmcnt(0)")
    st1(2)
    a("s_barrier")
    st1(3)
    order = []
    for s in range(4):
        for t in range(2):
            for hh in range(2):
                a(f"ds_read_b64_tr_b16 {vr(WFR+16*t+4*s+2*hh,2)}, v9 offset:{(32*s+4*hh)*512+8*t}")
        a(f"ds_read_b128 {vr(XFR+4*s,4)}, v{10+s}")
        if s == 1:
            pass
    def xr(tau):
        for s in range(4): a(f"ds_read_b128 {vr(XFR+16*tau+4*s,4)}, v{10+s} offset:{4096*tau}")
    def mm(tau, s):
        for t in range(2):
            o = ACC + 8*tau + 4*t
            a(f"v_mfma_f32_16x16x32_bf16 {vr(o,4)}, {vr(WFR+16*t+4*s,4)}, {vr(XFR+16*tau+4*s,4)}, {'0' if s == 0 else vr(o,4)}")
    def epi(tau):
        r = []
        o = ACC + 8*tau
        for k in range(8): r.append(f"v_mul_f32 v{o+k}, v15, v{o+k}")
        for k in range(4): r.append(f"v_cvt_pk_bf16_f32 v{o+k}, v{o+2*k}, v{o+2*k+1}")
        r.append(f"s_add_u32 s6, s5, {8192*tau}")
        fl = " sc1" if "psc1" in EXP else " nt" if "pnt" in EXP else ""
        r.append(f"buffer_store_dwordx4 {vr(o,4)}, v14, s[44:47], s6 offen{fl}")
        return r
    for s in range(4):
        a(f"s_waitcnt lgkmcnt({5*(3-s)})")
        mm(0, s)
    xr(1); xr(2); xr(3)
    extra = []
    for tau in range(1, 4):
        a(f"s_waitcnt lgkmcnt({4*(3-tau)})")
        for s in range(4):
            mm(tau, s)
            if s == 1 or (s == 0 and tau == 1):
                if not extra and not (s == 1 and tau == 1): extra = epi(tau-1)
            if s >= 1:
                for _ in range(5):
                    if extra: a(extra.pop(0))
        assert not extra
    a("s_nop 7")
    for ins in epi(3): a(ins)
    st1(4)
    k1end()
    a.lab("K1_TRANS")
    a.c("fragment transposer for W1b (WQ) and w2 (W2F); 128 blocks per WG")
    a(f"s_sub_u32 s3, s2, {NCH}")
    a("v_lshrrev_b32 v1, 6, v0")
    a("s_and_b32 s4, s3, 3")
    a("v_readfirstlane_b32 s11, v1")
    a("s_lshl_b32 s4, s4, 7")
    a("v_add_u32 v1, s4, v0")
    a("s_mov_b32 s9, 0x05040100"); a("s_mov_b32 s10, 0x07060302")
    a("s_waitcnt lgkmcnt(0)")
    a("s_cmp_ge_u32 s11, 2")
    a("s_cbranch_scc1 K1_TR_SMALL")
    a("s_cmp_ge_u32 s3, 4")
    a("s_cbranch_scc1 K1_TR_W2")
    a("v_and_b32 v2, 31, v1")
    a("v_lshrrev_b32 v3, 5, v1")
    a("v_lshlrev_b32 v4, 4, v2")
    a("v_lshl_add_u32 v4, v3, 12, v4")
    a("v_add_u32 v4, 0x10000, v4")
    a("v_lshrrev_b32 v5, 1, v2")
    a("v_lshlrev_b32 v5, 12, v5")
    a("v_lshl_add_u32 v5, v3, 8, v5")
    a("v_and_b32 v6, 1, v2")
    a("v_lshl_add_u32 v5, v6, 7, v5")
    srd(a, 36, PW1, 257*512)
    srd(a, 40, 32, 0x10000, add=WS_WQ)
    a("s_mov_b32 s5, 512")
    a("s_branch K1_TR_GO")
    a.lab("K1_TR_W2")
    a("v_and_b32 v2, 15, v1")
    a("v_bfe_u32 v3, v1, 4, 3")
    a("v_lshrrev_b32 v7, 7, v1")
    a("v_lshlrev_b32 v4, 4, v2")
    a("v_lshl_add_u32 v4, v3, 13, v4")
    a("v_lshl_add_u32 v4, v7, 11, v4")
    a("v_lshrrev_b32 v5, 1, v2")
    a("v_lshlrev_b32 v5, 13, v5")
    a("v_lshl_add_u32 v5, v3, 10, v5")
    a("v_lshl_add_u32 v5, v7, 8, v5")
    a("v_and_b32 v6, 1, v2")
    a("v_lshl_add_u32 v5, v6, 7, v5")
    srd(a, 36, PW2, 256*256)
    srd(a, 40, 32, 0x10000, add=WS_W2)
    a("s_mov_b32 s5, 256")
    a.lab("K1_TR_GO")
    a("s_mov_b32 s6, 0")
    for m in range(8):
        a(f"buffer_load_dwordx4 {vr(16+4*m,4)}, v4, s[36:39], s6 offen")
        if m < 7: a("s_add_u32 s6, s6, s5")
    a("s_waitcnt vmcnt(0)")
    for cc in range(8):
        for p in range(4):
            a(f"v_perm_b32 v{48+4*cc+p}, v{16+4*(2*p+1)+(cc>>1)}, v{16+4*(2*p)+(cc>>1)}, s{9+(cc&1)}")
        a(f"buffer_store_dwordx4 {vr(48+4*cc,4)}, v5, s[40:43], 0 offen offset:{16*cc}{' sc1' if 'csc1' in EXP else ''}")
    k1end()
    a.lab("K1_TR_SMALL")
    a("s_cmp_lg_u32 s3, 0")
    a("s_cbranch_scc1 K1_EXIT")
    a("s_cmp_lt_u32 s11, 4")
    a("s_cbranch_scc1 K1_EXIT")
    a("v_and_b32 v1, 255, v0")
    a("v_lshlrev_b32 v2, 1, v1")
    a(f"s_add_u32 s6, s{PW1}, 0x20000")
    a(f"s_addc_u32 s7, s{PW1+1}, 0")
    a("global_load_ushort v8, v2, s[6:7]")
    a(f"global_load_ushort v9, v2, s[{PB1}:{PB1+1}]")
    a(f"s_add_u32 s6, s32, {hex(WS_WE)}")
    a("s_addc_u32 s7, s33, 0")
    a(f"v_mov_b32 v10, {hex(S_LOG2E)}")
    a("v_lshlrev_b32 v3, 2, v1")
    a("s_waitcnt vmcnt(0)")
    a("v_lshlrev_b32 v8, 16, v8")
    a("v_lshlrev_b32 v9, 16, v9")
    a("v_mul_f32 v8, v10, v8")
    a("v_mul_f32 v9, v10, v9")
    a("v_cvt_pk_bf16_f32 v8, v8, v8")
    a("global_store_short v2, v8, s[6:7]")
    a(f"global_store_dword v3, v9, s[6:7] offset:{WS_B1-WS_WE}")
    a("s_endpgm")
    a.lab("K1_SORT")
    a.c("bucket the edges of chunk s2 by dst&255; cell line: 8 x [rec q, rec q+8, rec q+16, (loc,loc,loc,count)]")
    LC = 32768
    a("v_lshlrev_b32 v1, 2, v0")
    a("v_mov_b32 v2, 0")
    a(f"ds_write_b32 v1, v2 offset:{LC}")
    a("v_lshlrev_b32 v3, 4, v0")
    a("v_lshlrev_b32 v4, 3, v0")
    a("v_mov_b32 v5, 1")
    a(f"s_mul_i32 s3, s2, {CH_E*4}")
    a(f"s_mul_i32 s4, s2, {CH_E*2}")
    a("s_lshl_b32 s5, s2, 8")
    a("s_add_u32 s6, s3, 8192")
    a("s_add_u32 s7, s4, 4096")
    a("s_mov_b32 s8, 0x05040100"); a("s_mov_b32 s9, 0x05040302")
    a("s_waitcnt lgkmcnt(0)")
    srd(a, 36, PDST, E*4)
    srd(a, 40, PSRC, E*4)
    srd(a, 44, PE, E*2)
    srd(a, 48, 32, 256*NCH*256, add=WS_CELLS)
    DST, SRC, EA = 16, 24, 32
    RK, BK, REC = 36, 44, 52
    A0, A1 = 60, 68
    nlast = CH_E - 2048
    a("v_lshlrev_b32 v6, 1, v0")
    a(f"buffer_load_dwordx4 {vr(DST,4)}, v3, s[36:39], s3 offen")
    a(f"buffer_load_dword v{DST+4}, v1, s[36:39], s6 offen")
    a(f"buffer_load_dwordx4 {vr(SRC,4)}, v3, s[40:43], s3 offen")
    a(f"buffer_load_dwordx2 {vr(EA,2)}, v4, s[44:47], s4 offen")
    a(f"buffer_load_dword v{SRC+4}, v1, s[40:43], s6 offen")
    a(f"buffer_load_ushort v{EA+2}, v6, s[44:47], s7 offen")
    a(f"v_cmp_gt_u32 vcc, {nlast}, v0")
    a(f"v_mov_b32 v{RK+4}, 0")
    a(f"v_mov_b32 v{BK+4}, 0")
    a(f"v_mov_b32 v7, {CAP1}")
    a("s_mov_b64 s[10:11], vcc")
    a("s_barrier")
    st1(1)
    def atomic(k):
        a(f"v_and_b32 v{BK+k}, 0xff, v{DST+k}")
        a(f"v_lshlrev_b32 v8, 2, v{BK+k}")
        a(f"ds_add_rtn_u32 v{RK+k}, v8, v5 offset:{LC}")
    a("s_waitcnt vmcnt(5)")
    st1(2)
    for k in range(4): atomic(k)
    a("s_waitcnt vmcnt(4)")
    a("s_mov_b64 exec, s[10:11]")
    atomic(4)
    a("s_mov_b64 exec, -1")
    for k in range(5):
        a(f"v_lshrrev_b32 v{DST+k}, 6, v{DST+k}")
        a(f"v_and_b32 v{DST+k}, 0xfc, v{DST+k}")
        a(f"v_lshlrev_b32 v{BK+k}, 7, v{BK+k}")
    a("s_waitcnt vmcnt(0)")
    for k in range(5):
        if SRCMASK: a(f"v_and_b32 v{SRC+k}, {SRCMASK}, v{SRC+k}")
        a(f"v_perm_b32 v{REC+k}, v{SRC+k}, v{EA+(k>>1)}, s{8+(k&1)}")
    a("s_waitcnt lgkmcnt(0)")
    st1(3)
    for k in range(5):
        a(f"v_and_b32 v8, 7, v{RK+k}")
        a(f"v_lshl_add_u32 v8, v8, 4, v{BK+k}")
        a(f"v_lshrrev_b32 v9, 3, v{RK+k}")
        a(f"v_lshl_add_u32 v{A0+k}, v9, 2, v8")
        a(f"v_add_u32 v{A1+k}, v9, v8")
        if k == 4: a("s_mov_b64 exec, s[10:11]")
        a(f"v_cmpx_gt_u32 vcc, v7, v{RK+k}")
        a(f"ds_write_b32 v{A0+k}, v{REC+k}")
        a(f"ds_write_b8 v{A1+k}, v{DST+k} offset:12")
        a("s_mov_b64 exec, -1")
    a(f"v_max3_u32 v8, v{RK}, v{RK+1}, v{RK+2}")
    a(f"v_max3_u32 v8, v8, v{RK+3}, v{RK+4}")
    a("v_cmp_le_u32 vcc, v7, v8")
    a("s_cbranch_vccz K1_NOOV")
    for k in range(5):
        a(f"v_lshlrev_b32 v12, 7, v{BK+k}")
        a(f"v_sub_u32 v12, v12, v{BK+k}")
        a(f"v_sub_u32 v13, {CAP-1}, v{RK+k}")
        a(f"v_subrev_u32 v14, {CAP1}, v{RK+k}")
        a("v_or_b32 v13, v13, v14")
        a(f"v_and_b32 v13, 0x80000000, v13")
        a("v_or_b32 v12, v12, v13")
        a(f"v_add_u32 v10, v{A0+k}, v12")
        a(f"v_add_u32 v11, v{A1+k}, v12")
        a(f"buffer_store_dword v{REC+k}, v10, s[48:51], s5 offen offset:{128-12}")
        a(f"buffer_store_byte v{DST+k}, v11, s[48:51], s5 offen offset:{128+12-3}")
    a.lab("K1_NOOV")
    a("v_lshrrev_b32 v6, 3, v0")
    a("v_lshlrev_b32 v7, 2, v6")
    a("v_and_b32 v8, 0x70, v3")
    a("v_lshl_add_u32 v8, v6, 14, v8")
    a("v_mov_b32 v9, 0xffffff")
    a("s_waitcnt vmcnt(0) lgkmcnt(0)")
    a("s_barrier")
    st1(4)
    for i in range(4):
        a(f"ds_read_b128 {vr(16+4*i,4)}, v3 offset:{8192*i}")
        a(f"ds_read_b32 v{32+i}, v7 offset:{LC+256*i}")
    for i in range(4):
        a(f"s_waitcnt lgkmcnt({6-2*i})")
        a(f"v_min_u32 v{32+i}, 0xff, v{32+i}")
        a(f"v_lshlrev_b32 v{32+i}, 24, v{32+i}")
        a(f"v_and_or_b32 v{19+4*i}, v{19+4*i}, v9, v{32+i}")
        a(f"buffer_store_dwordx4 {vr(16+4*i,4)}, v8, s[48:51], s5 offen{' nt' if 'cnt' in EXP else ' sc1' if 'csc1' in EXP else ''}")
        if i < 3: a(f"s_add_u32 s5, s5, {64*16384}")
    k1end()
    a.lab("K1_EXIT")
    a("s_endpgm")
    return GRID

ROWP = 1040
SBROW = 528
BATCH = 1024
NSLOT = BATCH + 16
L_EP = 0
L_IDX = L_EP + NSLOT*16
L_CNT = L_IDX + NSLOT*4
L_HN = L_CNT + 256
L_ZERO = L_HN + 128
L_BZEND = L_ZERO + 256
L_DEG = L_BZEND
L_FLAG = L_DEG + 256
L_ZEND = L_FLAG + 32
L_S = L_ZEND
L_Q = L_S + 40*ROWP
XROW = 272
L_CR = L_Q + 40*ROWP
L_XS = L_CR
L_SB = L_CR + 32*ROWP
L_END = L_SB + 40*SBROW
QS = L_Q - L_S

def gen_k2(a, DP):
    assert DP % 2 == 0
    INF = 0x7fffffff
    SMAP = {0:0, 1:1, 2:2, 3:3, 4:4, 5:5, 6:6, 7:7}
    if "fine" in EXP: SMAP = {0:0, 1:1, "a":2, "b":3, 2:4, 3:5, "c":6, "d":7}
    if "fine2" in EXP: SMAP = {0:0, 4:1, 5:2, "e":3, "f":4, "g":5, 6:6, 7:7}
    def stamp(i):
        if not DEBUG or i not in SMAP: return
        a("s_memtime s[94:95]")
        a("s_waitcnt lgkmcnt(0)")
        a(f"s_mov_b32 s{84+SMAP[i]}, s94")
    a.raw(".globl k2_kernel"); a.raw(".p2align 8"); a.raw(".type k2_kernel,@function")
    a.lab("k2_kernel")
    a("s_cmp_ge_u32 s2, 256")
    a("s_cbranch_scc1 K2_EXIT")
    a("s_load_dwordx16 s[16:31], s[0:1], 0")
    a("s_load_dwordx2 s[32:33], s[0:1], 64")
    a("s_load_dwordx2 s[34:35], s[0:1], 80")
    if DEBUG: a("s_memrealtime s[96:97]")
    stamp(0)
    assert DP == 4
    U = [8, 16]; EX, ACC, Q = 24, 32, 40
    IP = [56, 58]
    AB = 60
    ES = [62, 66]
    BS = 70
    M = 118
    VEA, VIA, VES, VEND, VQA, VSTA, VEO, VH, VXA, VQW = range(M, M+10)
    T0, T1, T3 = 1, 2, 4
    WF = 8
    R0 = 8
    HD = 16
    RK = 17
    LA = 23
    PS = 29
    XP = 40
    VC = 53
    PB = 54
    XF = 40
    QA = 102
    ZT = 102
    B1 = 106
    BI = 110
    WE = 48
    sW, sNE = 3, 56
    sV = [52, 54, 10, 12, 14, 36]
    sT, sT2, sREM, sTEV, sSLOW, sBATCH, sLEFT, sX = 58, 59, 60, 61, 62, 63, 66, 68
    sMASK = [70, 72]; sPOS = [74, 75]; sEND = [76, 77]; sSEGL = [78, 79]; sHEAD = [80, 81]; sCR = [82, 83]
    sROW = [4, 5]
    sSM = 100
    sWQ = 64
    sTT = 67
    sLD = 65
    uid0 = [0]
    def L(p):
        uid0[0] += 1
        return f"K2_{p}{uid0[0]}"
    def exec_half(x):
        a(f"s_mov_b32 exec_lo, {-1 if x == 0 else 0}")
        a(f"s_mov_b32 exec_hi, {0 if x == 0 else -1}")
    wpos = [0, 1, 6, 7]
    a("v_lshlrev_b32 v4, 4, v0")
    for k in range(4): a(f"v_mov_b32 v{ZT+k}, 0")
    a("v_lshrrev_b32 v1, 6, v0")
    a("v_and_b32 v5, 0x3f0, v4")
    a(f"ds_write_b128 v5, {vr(ZT,4)} offset:{L_ZEND-1024}")
    a("v_readfirstlane_b32 s3, v1")
    a(f"v_and_b32 v{IP[0]+1}, 0x1f0, v4")
    a("v_lshlrev_b32 v2, 5, v0")
    a("v_and_b32 v3, 0xffffff00, v2")
    a("s_lshl_b32 s4, s2, 14")
    a(f"s_add_u32 s4, s4, {hex(WS_CELLS)}")
    a("s_lshl_b32 s5, s2, 8")
    a("v_and_b32 v2, 0x70, v4")
    a("v_add_u32 v3, v3, v2")
    a("s_waitcnt lgkmcnt(0)")
    srd(a, 40, 34, WS_END)
    a(f"s_add_u32 s6, s34, {hex(WS_WE)}")
    a(f"s_addc_u32 s7, s35, 0")
    a(f"s_cmp_ge_u32 s{sW}, 8")
    a("s_cbranch_scc1 K2_GEMMER")
    a(f"buffer_load_dwordx4 {vr(R0,4)}, v3, s[40:43], s4 offen")
    a(f"global_load_dwordx4 {vr(WE,4)}, v{IP[0]+1}, s[6:7]")
    if "sprio" in EXP: a("s_setprio 3")
    a("s_barrier")
    stamp(1)

    def lane_consts():
        srd(a, 44, 34, N, stride=512, add=WS_P)
        srd(a, 48, 32, N*256)
        a(f"s_mov_b32 s{sSLOW}, 0")
        a(f"s_mov_b32 s{sBATCH}, 0")
        a(f"s_mov_b64 s[{sSM}:{sSM+1}], 0")
        a(f"v_mov_b32 v{IP[1]+1}, v{IP[0]+1}")
        a(f"v_mov_b32 v{IP[0]}, 0")
        a(f"v_mov_b32 v{IP[1]}, 0")
        a(f"v_lshlrev_b32 v{VQA}, 1, v{IP[0]+1}")
        a(f"v_add_u32 v{VQA}, {L_Q}, v{VQA}")
        a("s_mov_b32 s10, 0x00f0000f")
        a("s_mov_b32 s11, 0xf0000f00")
        a("s_mov_b32 s12, 0x00300003")
        a("s_mov_b32 s13, 0x30000300")
        a("s_mov_b32 s14, 0x00c0000c")
        a("s_mov_b32 s15, 0xc0000c00")
        a(f"v_and_b32 v6, 16, v4")
        a(f"v_mov_b32 v{PB}, 0x3f80")
        a(f"v_lshlrev_b32 v{PB}, v6, v{PB}")
        for k in (0, 4, 8):
            a(f"v_cndmask_b32 v{AB+k}, 0, v{PB}, s[12:13]")
            a(f"v_cndmask_b32 v{AB+k+1}, 0, v{PB}, s[14:15]")
        a(f"v_lshrrev_b32 v6, 1, v6")
        a(f"v_mov_b32 v{VEO}, {L_ZERO}")
        a(f"v_or_b32 v{PB}, 4, v6")
        a(f"v_cndmask_b32 v{VEO}, v{VEO}, v{PB}, s[12:13]")
        a(f"v_cndmask_b32 v{VEO}, v{VEO}, v6, s[14:15]")
        a(f"v_cndmask_b32 v{VES}, 0, 4, s[10:11]")
        a(f"v_bfe_u32 v{VH}, v0, 5, 1")
        a(f"v_mov_b32 v7, 4")
        a(f"v_lshrrev_b32 v5, 2, v5")
    def wscale():
        r = []
        for d in range(DP):
            r.append(f"v_pk_mov_b32 {vr(BS+8*d,2)}, {vr(WE,2)}, {vr(WE,2)} op_sel:[0,1]")
            r.append(f"v_pk_mov_b32 {vr(BS+8*d+6,2)}, {vr(WE+2,2)}, {vr(WE+2,2)} op_sel:[0,1]")
        return r
    dpp = [f"row_shr:{sh} row_mask:0xf bank_mask:0xf bound_ctrl:0" for sh in (1, 2, 4, 8)] + \
          ["row_bcast:15 row_mask:0xa bank_mask:0xf", "row_bcast:31 row_mask:0xc bank_mask:0xf"]
    def scan(first):
        a(f"ds_read_b32 v{VC}, v5 offset:{L_CNT}")
        if first: a(f"ds_read_b32 v3, v7 offset:{L_FLAG-4}")
        a("s_waitcnt lgkmcnt(0)")
        a(f"v_mov_b32 v{VEND}, v{VC}")
        if first: a(f"v_readfirstlane_b32 s{sSLOW}, v3")
        else: a("s_nop 0")
        a(f"v_cmp_ne_u32 s[{sNE}:{sNE+1}], 0, v{VC}")
        for i, d in enumerate(dpp):
            if i: a("s_nop 1")
            a(f"v_add_u32_dpp v{VEND}, v{VEND}, v{VEND} {d}")
        a(f"v_sub_u32 v{VSTA}, v{VEND}, v{VC}")
        a(f"v_readlane_b32 s{sT}, v{VEND}, 63")
    def ranges():
        a(f"s_lshr_b32 s{sT}, s{sT}, 2")
        if DEBUG: a(f"s_mov_b32 s92, s{sT}")
        a(f"s_add_u32 s{sTT}, s{sT}, 1")
        a(f"s_lshr_b32 s{sTT}, s{sTT}, 1")
        a(f"s_mul_i32 s{sPOS[0]}, s{sTT}, s{sW}")
        a(f"s_add_u32 s{sEND[1]}, s{sPOS[0]}, s{sTT}")
        a(f"s_lshr_b32 s{sPOS[0]}, s{sPOS[0]}, 4")
        a(f"s_lshr_b32 s{sEND[1]}, s{sEND[1]}, 4")
        a(f"s_add_u32 s{sPOS[1]}, s{sPOS[0]}, s{sEND[1]}")
        a(f"s_min_u32 s{sPOS[1]}, s{sPOS[1]}, s{sT}")
        a(f"s_lshl_b32 s{sPOS[1]}, s{sPOS[1]}, 2")
        a(f"s_lshl_b32 s{sEND[1]}, s{sEND[1]}, 1")
        a(f"s_min_u32 s{sEND[1]}, s{sEND[1]}, s{sT}")
        a(f"s_lshl_b32 s{sEND[1]}, s{sEND[1]}, 2")
        a(f"s_lshl_b32 s{sPOS[0]}, s{sPOS[0]}, 3")
        a(f"s_mov_b32 s{sEND[0]}, s{sPOS[1]}")
        a(f"s_sub_u32 s{sT2}, s{sPOS[1]}, s{sPOS[0]}")
        a(f"v_mul_u32_u24 v{VIA}, s{sT2}, v{VH}")
        a(f"v_add_u32 v{VIA}, s{sPOS[0]}, v{VIA}")
        a(f"v_mad_u32_u24 v{VEA}, v{VIA}, v{VES}, v{VEO}")
        a(f"v_add_u32 v{VIA}, {L_IDX}, v{VIA}")
    def seg_next(x, lbl):
        a(f"s_lshl2_add_u32 s{sT2}, s{sSEGL[x]}, s{sPOS[x]}")
        a(f"s_mov_b32 s{sROW[x]}, -1")
        a(f"s_cmp_ge_u32 s{sT2}, s{sEND[x]}")
        a(f"s_cselect_b32 s{sSEGL[x]}, {hex(INF)}, s{sSEGL[x]}")
        a(f"s_cbranch_scc1 {lbl}")
        a(f"s_ff1_i32_b64 s{sT2}, s[{sMASK[x]}:{sMASK[x]+1}]")
        a(f"s_and_b32 s{sT2}, s{sT2}, 63")
        a(f"s_bitset0_b64 s[{sMASK[x]}:{sMASK[x]+1}], s{sT2}")
        a(f"v_readlane_b32 s{sT}, v{VEND}, s{sT2}")
        a(f"s_mul_i32 s{sROW[x]}, s{sT2}, {ROWP}")
        a(f"s_add_u32 s{sSEGL[x]}, s{sSEGL[x]}, 1")
        a(f"s_min_u32 s{sT}, s{sT}, s{sEND[x]}")
        a(f"s_sub_u32 s{sT}, s{sT}, s{sPOS[x]}")
        a(f"s_ashr_i32 s{sT}, s{sT}, 2")
        a(f"s_max_i32 s{sSEGL[x]}, s{sSEGL[x]}, s{sT}")
        a.lab(lbl)
    def stream_setup():
        a(f"v_cmp_lt_u32 s[{sMASK[0]}:{sMASK[0]+1}], s{sPOS[0]}, v{VEND}")
        a(f"v_cmp_lt_u32 s[{sMASK[1]}:{sMASK[1]+1}], s{sPOS[1]}, v{VEND}")
        for x in range(2):
            lj = L("INJ")
            a(f"s_and_b64 s[{sMASK[x]}:{sMASK[x]+1}], s[{sMASK[x]}:{sMASK[x]+1}], s[{sNE}:{sNE+1}]")
            a(f"s_mov_b32 s{sSEGL[x]}, 0")
            a(f"s_mov_b32 s{sHEAD[x]}, 0")
            seg_next(x, L("INI"))
            a(f"s_max_i32 s{sCR[x]}, s{sROW[x]}, 0")
            a(f"s_sub_u32 s{sCR[x]}, s{sCR[x]}, {QS}")
            a(f"s_cmp_lt_i32 s{sROW[x]}, 0")
            a(f"s_cbranch_scc1 {lj}")
            a(f"v_readlane_b32 s{sT}, v{VSTA}, s{sT2}")
            a(f"s_add_u32 s{sT2}, s{sT2}, 1")
            a(f"v_mov_b32 v{T3}, s{sT2}")
            a(f"s_lshl_b32 s{sT2}, s{sW}, 1")
            a(f"s_add_u32 s{sT2}, s{sT2}, {x}")
            a(f"s_cmp_ge_u32 s{sT}, s{sPOS[x]}")
            a(f"s_cbranch_scc1 {lj}")
            a(f"s_mov_b32 s{sHEAD[x]}, 1")
            a(f"s_mul_i32 s{sCR[x]}, s{sT2}, {ROWP}")
            a(f"s_add_u32 s{sCR[x]}, s{sCR[x]}, {L_CR-L_Q}")
            a(f"s_lshl_b32 s{sT2}, s{sT2}, 2")
            a(f"v_mov_b32 v6, s{sT2}")
            a(f"ds_write_b32 v6, v{T3} offset:{L_HN}")
            a.lab(lj)
            a(f"s_max_i32 s{sROW[x]}, s{sROW[x]}, 0")
        a(f"v_add_u32 v{T0}, s{sROW[0]}, v{VQA}")
        a(f"v_add_u32 v{T1}, s{sCR[0]}, v{VQA}")
        exec_half(1)
        a(f"v_add_u32 v{T0}, s{sROW[1]}, v{VQA}")
        a(f"v_add_u32 v{T1}, s{sCR[1]}, v{VQA}")
        a("s_mov_b64 exec, -1")
        a(f"v_lshlrev_b32 v3, {2 + (DP.bit_length()-1)}, v{VES}")
        a(f"s_min_u32 s{sTEV}, s{sSEGL[0]}, s{sSEGL[1]}")
        a(f"s_sub_u32 s{sREM}, s{sTEV}, 1")
        a(f"s_sub_u32 s{sLEFT}, s{sEND[0]}, s{sPOS[0]}")
        a(f"s_lshr_b32 s{sLEFT}, s{sLEFT}, 2")
        a(f"s_sub_u32 s{sLD}, s{sLEFT}, {DP}")
        a(f"s_max_i32 s{sLD}, s{sLD}, 0")
        a(f"s_sub_u32 s6, s{sHEAD[0]}, 1")
        a(f"s_sub_u32 s7, s{sHEAD[1]}, 1")
        a(f"s_and_b64 s[6:7], s[6:7], s[{sSM}:{sSM+1}]")
        a(f"v_mov_b32 v5, {L_ZERO}")
        a(f"v_cndmask_b32 v{T3}, v5, v{T1}, s[6:7]")
    def first_loads():
        FI = 40
        a(f"ds_read2_b32 {vr(FI,2)}, v{VIA} offset0:0 offset1:1")
        a(f"ds_read2_b32 {vr(FI+2,2)}, v{VIA} offset0:2 offset1:3")
        a(f"ds_read2_b32 {vr(ES[0],2)}, v{VEA} offset0:0 offset1:1")
        a(f"ds_read2_b32 {vr(ES[1],2)}, v{VEA} offset0:4 offset1:5")
        a("s_waitcnt lgkmcnt(2)")
        for t in range(DP):
            a(f"v_mov_b32 v{IP[t&1]}, v{FI+t}")
            a(f"buffer_load_dwordx4 {vr(BS+8*t+2,4)}, {vr(IP[t&1],2)}, s[44:47], 0 idxen offen")
        a(f"ds_read_b32 v{IP[0]}, v{VIA} offset:{4*DP}")
        a(f"ds_read_b32 v{IP[1]}, v{VIA} offset:{4*(DP+1)}")
    def ldcut():
        if "nocut" in EXP: return
        a(f"s_sub_u32 s{sLD}, s{sLD}, 1")
        a(f"s_cselect_b32 s46, 0, s46")
    def pload(slot, pair):
        if "novm" in EXP: return
        a(f"buffer_load_dwordx4 {vr(BS+8*slot+2,4)}, {vr(pair,2)}, s[44:47], 0 idxen offen")
    def groups(n, body):
        for grp in ([0, 1], [2], [3, 4, 5]):
            grp = [i for i in grp if i < n]
            if not grp: continue
            l = None
            if grp[0] >= 2:
                l = L("SK")
                a(f"s_cmp_eq_u64 s[{sV[grp[0]]}:{sV[grp[0]]+1}], 0")
                a(f"s_cbranch_scc1 {l}")
            for i in grp: body(i)
            if l: a.lab(l)
    def rec(i): return R0 + i + (i // 3)
    def meta(i): return R0 + 3 + 4*(i // 3)
    def rank_atomics(n):
        def body(i):
            a(f"v_bfe_u32 v{LA+i}, v{meta(i)}, {8*(i%3)}, 8")
            a(f"s_mov_b64 exec, s[{sV[i]}:{sV[i]+1}]")
            a(f"ds_add_rtn_u32 v{RK+i}, v{LA+i}, v7 offset:{L_CNT}")
            a("s_mov_b64 exec, -1")
        groups(n, body)
    def zero_batch(upto):
        assert 16384 < upto <= 2*16384 and upto % 16 == 0
        a(f"ds_write_b128 v4, {vr(ZT,4)} offset:{upto-16384}")
        a(f"ds_write_b128 v4, {vr(ZT,4)}")
    XFB = [70, 86, 40]
    def gemm():
        for nt in range(3):
            for s in range(4):
                a(f"ds_read_b128 {vr(XFB[nt]+4*s,4)}, v{VXA} offset:{16*nt*XROW+64*s}")
        a(f"v_mov_b32 v{VSTA}, {hex(S_LOG2E)}")
        QB = [QA, XFB[0], QA]
        def post(nt):
            r = []
            if nt == 2: r += ["s_mov_b32 exec_lo, 0x00ff00ff", "s_mov_b32 exec_hi, 0x00ff00ff"]
            for t in range(2):
                for k in range(4): r.append(f"v_fma_f32 v{QB[nt]+4*t+k}, v{QB[nt]+4*t+k}, v{VSTA}, v{BI+4*t+k}")
                r.append(f"ds_write_b128 v{VQW}, {vr(QB[nt]+4*t,4)} offset:{16*nt*ROWP+64*t}")
            if nt == 2: r.append("s_mov_b64 exec, -1")
            return r
        a("s_waitcnt vmcnt(0) lgkmcnt(8)")
        for nt in range(3):
            if nt == 1: a("s_waitcnt lgkmcnt(4)")
            if nt == 2: a("s_waitcnt lgkmcnt(2)")
            for s in range(4):
                for t in range(2):
                    a(f"v_mfma_f32_16x16x32_bf16 {vr(QB[nt]+4*t,4)}, {vr(WF+16*t+4*s,4)}, {vr(XFB[nt]+4*s,4)}, {'0' if s == 0 else vr(QB[nt]+4*t,4)}")
            if nt >= 1:
                for ins in post(nt-1): a(ins)
        a("s_nop 0")
        for ins in post(2): a(ins)
    def wq_loads(lo, hi):
        for f in range(lo, hi):
            t, s = divmod(f, 4)
            a(f"buffer_load_dwordx4 {vr(WF+16*t+4*s,4)}, v{VXA}, s[40:43], s{sWQ+t} offen offset:{1024*s}")

    def signal(k):
        a("s_waitcnt lgkmcnt(0)")
        a("s_mov_b64 exec, 1")
        a(f"ds_add_u32 v7, v7 offset:{L_FLAG+4*k}")
        a("s_mov_b64 exec, -1")
    def spin(k):
        l = L("SP")
        a("s_mov_b32 s8, 0x100000")
        a.lab(l)
        a(f"ds_read_b32 v6, v7 offset:{L_FLAG+4*k}")
        a("s_sub_u32 s8, s8, 1")
        a(f"s_cbranch_scc1 {l}X")
        a("s_waitcnt lgkmcnt(0)")
        a("v_readfirstlane_b32 s9, v6")
        a("s_nop 0")
        a("s_cmp_lt_u32 s9, 32")
        a(f"s_cbranch_scc1 {l}")
        a.lab(l + "X")
    def list_build(n):
        groups(n, lambda i: a(f"ds_bpermute_b32 v{PS+i}, v{LA+i}, v{VSTA}"))
        if n > 1:
            a(f"s_cmp_gt_u32 s{sT}, {4*BATCH}")
            a("s_cbranch_scc1 K2_SLOW_S")
        a("s_waitcnt lgkmcnt(0)")
        def body(i):
            a(f"v_add_u32 v{PS+i}, v{PS+i}, v{RK+i}")
            a(f"v_lshlrev_b32 v{RK+i}, 2, v{PS+i}")
            a(f"s_mov_b64 exec, s[{sV[i]}:{sV[i]+1}]")
            a(f"ds_write_b16_d16_hi v{PS+i}, v{rec(i)} offset:{L_IDX}")
            a(f"ds_write_b16 v{RK+i}, v{rec(i)} offset:{L_EP+4}")
            a(f"ds_write_b16 v{RK+i}, v{rec(i)} offset:{L_EP+14}")
            a("s_mov_b64 exec, -1")
        groups(n, body)
    def deg_acc():
        l = L("ND")
        a(f"s_cmp_lg_u32 s{sW}, 0")
        a(f"s_cbranch_scc1 {l}")
        a(f"ds_add_u32 v5, v{VC} offset:{L_DEG}")
        a.lab(l)
    assert L_CNT <= 3*8192
    a(f"ds_write_b128 v4, {vr(ZT,4)}")
    a(f"ds_write_b128 v4, {vr(ZT,4)} offset:8192")
    a(f"ds_write_b128 v4, {vr(ZT,4)} offset:{L_CNT-8192}")
    lane_consts()
    a("v_and_b32 v2, 7, v0")
    stamp("a")
    a("s_waitcnt vmcnt(1)")
    stamp("b")
    a(f"v_lshrrev_b32 v{HD}, 24, v{R0+3}")
    a(f"v_sub_u32 v2, v{HD}, v2")
    a(f"v_cmp_lt_u32 vcc, {CAP}, v{HD}")
    for i in range(6):
        a(f"v_cmp_lt_i32 s[{sV[i]}:{sV[i]+1}], {8*i}, v2")
    a(f"s_cmp_eq_u64 s[{sV[3]}:{sV[3]+1}], 0")
    a("s_cbranch_scc1 K2_NOL1")
    a(f"buffer_load_dwordx4 {vr(R0+4,4)}, v3, s[40:43], s4 offen offset:128")
    a("s_waitcnt vmcnt(0)")
    a.lab("K2_NOL1")
    rank_atomics(6)
    a("s_mov_b64 exec, vcc")
    a(f"ds_write_b32 v7, v7 offset:{L_FLAG-4}")
    signal(0)
    a("s_waitcnt vmcnt(0)")
    for ins in wscale(): a(ins)
    spin(0)
    stamp(2)
    scan(True)
    a(f"s_cmp_lg_u32 s{sSLOW}, 0")
    a("s_cbranch_scc1 K2_SLOW_S")
    list_build(6)
    deg_acc()
    signal(1)
    ranges()
    spin(1)
    stamp(3)
    first_loads()
    if "sprio" in EXP: a("s_setprio 0")
    stream_setup()
    spin(3)
    a("s_branch K2_JOIN")
    a.lab("K2_SCAN")
    scan(False)
    list_build(1)
    deg_acc()
    ranges()
    stream_setup()
    a("s_waitcnt lgkmcnt(0)")
    a("s_barrier")
    first_loads()
    a("s_branch K2_JOIN")

    a.lab("K2_GEMMER")
    if "noprio" not in EXP: a("s_setprio 3")
    srd(a, 36, PX, N*256)
    a("s_barrier")
    stamp(1)
    a(f"global_load_dwordx4 {vr(WE,4)}, v{IP[0]+1}, s[6:7]")
    a("v_subrev_u32 v2, 512, v0")
    a("v_and_b32 v3, 15, v0")
    a("v_lshrrev_b32 v6, 4, v2")
    a("v_lshlrev_b32 v7, 16, v6")
    a("v_lshl_add_u32 v7, v3, 4, v7")
    a("v_add_u32 v7, s5, v7")
    a(f"buffer_load_dwordx4 {vr(XP,4)}, v7, s[36:39], 0 offen")
    a("v_add_u32 v7, 0x200000, v7")
    a(f"buffer_load_dwordx4 {vr(XP+4,4)}, v7, s[36:39], 0 offen")
    a("s_lshr_b32 s9, s2, 3")
    a(f"s_add_u32 s9, s9, s{sW}")
    a("s_and_b32 s9, s9, 7")
    a(f"s_lshl_b32 s{sWQ}, s9, 13")
    a(f"s_add_u32 s{sWQ}, s{sWQ}, {hex(WS_WQ)}")
    a(f"s_add_u32 s{sWQ+1}, s{sWQ}, 4096")
    a(f"v_mov_b32 v{VXA}, v5")
    a("v_and_b32 v7, 0x30, v0")
    a("s_lshl_b32 s8, s9, 7")
    a(f"v_add_u32 v{PB}, s8, v7")
    a(f"global_load_dwordx4 {vr(BI,4)}, v{PB}, s[6:7] offset:{WS_B1-WS_WE}")
    a(f"global_load_dwordx4 {vr(BI+4,4)}, v{PB}, s[6:7] offset:{WS_B1-WS_WE+64}")
    wq_loads(0, 2)
    a(f"v_mul_u32_u24 v6, {XROW}, v6")
    a(f"v_lshl_add_u32 v6, v3, 4, v6")
    a(f"v_add_u32 v1, {L_XS}, v6")
    a(f"v_mul_u32_u24 v{VQW}, {ROWP}, v3")
    a(f"s_add_u32 s8, s8, {L_Q}")
    a(f"v_add3_u32 v{VQW}, v{VQW}, v7, s8")
    a(f"v_mul_u32_u24 v2, {XROW}, v3")
    a(f"s_mov_b32 s8, {L_XS}")
    a(f"v_add3_u32 v2, v2, v7, s8")
    wq_loads(2, 4)
    lane_consts()
    wq_loads(4, 8)
    a(f"v_mov_b32 v{VXA}, v2")
    stamp("a")
    a(f"s_waitcnt vmcnt(10)")
    stamp("b")
    a(f"ds_write_b128 v1, {vr(XP,4)}")
    a(f"s_cmp_ge_u32 s{sW}, 12")
    a("s_cbranch_scc1 K2_NOXS")
    a(f"ds_write_b128 v1, {vr(XP+4,4)} offset:{32*XROW}")
    a.lab("K2_NOXS")
    for k in range(0, 4, 2): a(f"v_pk_mov_b32 {vr(122+0,2) if False else vr(ES[k//2],2)}, {vr(WE+k,2)}, {vr(WE+k,2)} op_sel:[0,1]")
    signal(2)
    spin(2)
    gemm()
    signal(3)
    for d in range(DP):
        a(f"v_pk_mov_b32 {vr(BS+8*d,2)}, {vr(ES[0],2)}, {vr(ES[0],2)} op_sel:[0,1]")
        a(f"v_pk_mov_b32 {vr(BS+8*d+6,2)}, {vr(ES[1],2)}, {vr(ES[1],2)} op_sel:[0,1]")
    stamp("c")
    if "touch" in EXP:
        a(f"s_cmp_lg_u32 s{sW}, 15")
        a("s_cbranch_scc1 K2_NOTOUCH")
        a("v_and_b32 v6, 63, v0")
        a("v_lshlrev_b32 v6, 16, v6")
        a("v_add_u32 v6, s5, v6")
        a(f"buffer_load_dword v{QA}, v6, s[48:51], 0 offen")
        a(f"global_load_dword v{QA+1}, v7, s[{PB2}:{PB2+1}]")
        a.lab("K2_NOTOUCH")
    spin(0)
    stamp(2)
    scan(True)
    a(f"s_cmp_gt_u32 s{sT}, {4*BATCH}")
    a(f"s_cselect_b32 s{sSLOW}, 1, s{sSLOW}")
    a(f"s_cmp_lg_u32 s{sSLOW}, 0")
    a("s_cbranch_scc1 K2_SLOW_SYNC")
    ranges()
    spin(1)
    stamp(3)
    first_loads()
    stream_setup()
    spin(3)
    a.lab("K2_JOIN")
    a(f"ds_read_b128 {vr(ACC,4)}, v{T3}")
    a(f"ds_read_b128 {vr(ACC+4,4)}, v{T3} offset:16")
    a("s_waitcnt lgkmcnt(0)")
    if "noprio" not in EXP: a("s_setprio 2")
    stamp("d")
    a(f"s_cmp_eq_u32 s{sTEV}, {hex(INF)}")
    a("s_cbranch_scc1 K2_LOOP_DONE")
    a(f"ds_read_b128 {vr(Q,4)}, v{T0}")
    a(f"ds_read_b128 {vr(Q+4,4)}, v{T0} offset:16")
    def mfma(slot, es, u, which):
        if "nomfma" in EXP: return
        if which == 0:
            a(f"v_mfma_f32_16x16x32_bf16 {vr(u,4)}, {vr(es,4)}, {vr(BS+8*slot,4)}, {vr(Q,4)}")
        else:
            a(f"v_mfma_f32_16x16x32_bf16 {vr(u+4,4)}, {vr(es-2,4)}, {vr(BS+8*slot+4,4)}, {vr(Q+4,4)}")
    a(f"s_waitcnt vmcnt({DP-1}) lgkmcnt(0)")
    mfma(0, ES[0], U[0], 0); mfma(0, ES[0], U[0], 1)
    ldcut()
    pload(0, IP[0])
    stamp(4)
    a(f"s_sub_u32 s{sREM}, s{sREM}, 1")
    a("s_nop 5")
    a("s_cbranch_scc1 K2_BND0")
    a("s_branch K2_SUB0")
    def rdE(k):
        if "nods" in EXP: return
        a(f"ds_read2_b32 {vr(ES[k&1],2)}, v{VEA} offset0:{4*(k+2)} offset1:{4*(k+2)+1}")
    def rdI(k):
        if "nods" in EXP: return
        a(f"ds_read_b32 v{IP[k&1]}, v{VIA} offset:{4*(k+2+DP)}")
    def ex(c, u): a(f"v_exp_f32 v{EX+c}, v{u+c}")
    def rc(c): a(f"v_rcp_f32 v{EX+c}, v{EX+c}")
    def pa(c): a(f"v_pk_add_f32 {vr(EX+c,2)}, {vr(EX+c,2)}, 1.0 op_sel_hi:[1,0]")
    def pf(c, u): a(f"v_pk_fma_f32 {vr(ACC+c,2)}, {vr(u+c,2)}, {vr(EX+c,2)}, {vr(ACC+c,2)}")
    def valu(u):
        for c in range(8): ex(c, u)
        for c in range(0, 8, 2): pa(c)
        for c in range(8): rc(c)
        for c in range(0, 8, 2): pf(c, u)
    def tail(u):
        rc(7)
        for c in range(0, 8, 2): pf(c, u)
    uid = [0]
    def prio():
        if "noprio" in EXP: return
        uid[0] += 1
        lbl = f"K2_PR{uid[0]}"
        a(f"s_cmp_gt_i32 s{sLEFT}, {PR1}")
        a(f"s_cbranch_scc1 {lbl}_D")
        a("s_setprio 1")
        a(f"s_cmp_gt_i32 s{sLEFT}, {PR0}")
        a(f"s_cbranch_scc1 {lbl}_D")
        a("s_setprio 0")
        a.lab(f"{lbl}_D")
    def advance():
        a(f"v_add_u32 v{VEA}, v3, v{VEA}")
        a(f"v_add_u32 v{VIA}, {4*DP}, v{VIA}")
        a(f"s_sub_u32 s{sLEFT}, s{sLEFT}, {DP}")
        prio()
    a.raw(".p2align 3")
    a.lab("K2_LOOP")
    advance()
    for k in range(DP):
        u = U[k & 1]
        a.lab(f"K2_SUB{k}")
        ex(0, u)
        if k == 2 and PRM >= 0 and "noprio" not in EXP:
            a(f"s_cmp_gt_i32 s{sLEFT}, {PRM}")
            a("s_cbranch_scc1 K2_PM")
            a("s_setprio 0")
            a.lab("K2_PM")
        a(f"s_waitcnt vmcnt({DP-1}) lgkmcnt(0)")
        ex(1, u)
        mfma((k+1) % DP, ES[(k+1) & 1], U[(k+1) & 1], 0)
        ex(2, u)
        mfma((k+1) % DP, ES[(k+1) & 1], U[(k+1) & 1], 1)
        ex(3, u)
        if "nocut" not in EXP: a(f"s_sub_u32 s{sLD}, s{sLD}, 1")
        ex(4, u)
        if "nocut" not in EXP: a(f"s_cselect_b32 s46, 0, s46")
        ex(5, u)
        pload((k+1) % DP, IP[(k+1) & 1])
        ex(6, u)
        rdE(k)
        ex(7, u)
        rdI(k)
        for c in range(0, 8, 2): pa(c)
        for c in range(6): rc(c)
        a(f"s_sub_u32 s{sREM}, s{sREM}, 1")
        rc(6)
        a(f"s_cbranch_scc1 K2_BNDT{k}")
        tail(u)
    a("s_branch K2_LOOP")
    for k in range(DP):
        kp = (k - 1) % DP
        a.lab(f"K2_BNDT{kp}")
        tail(U[kp & 1])
        if k == 0: advance()
        a.lab(f"K2_BND{k}")
        a(f"s_mov_b64 s[{sX}:{sX+1}], 0")
        a("s_mov_b64 s[6:7], 0")
        for x in range(2):
            a(f"s_cmp_lg_u32 s{sSEGL[x]}, s{sTEV}")
            a(f"s_cbranch_scc1 K2_B{k}_N{x}")
            a(f"s_mov_b32 s{sX+x}, -1")
            seg_next(x, f"K2_B{k}_S{x}")
            a(f"s_cmp_lt_i32 s{sROW[x]}, 0")
            a(f"s_cbranch_scc1 K2_B{k}_N{x}")
            a(f"s_mov_b32 s{6+x}, -1")
            exec_half(x)
            a(f"v_add_u32 v{T0}, s{sROW[x]}, v{VQA}")
            a.lab(f"K2_B{k}_N{x}")
        a("s_mov_b64 exec, s[6:7]")
        a("s_waitcnt lgkmcnt(0)")
        a(f"ds_read_b128 {vr(Q,4)}, v{T0}")
        a(f"ds_read_b128 {vr(Q+4,4)}, v{T0} offset:16")
        a("s_mov_b64 exec, -1")
        valu(U[k & 1])
        a(f"s_mov_b64 exec, s[{sX}:{sX+1}]")
        a(f"ds_write_b128 v{T1}, {vr(ACC,4)}")
        a(f"ds_write_b128 v{T1}, {vr(ACC+4,4)} offset:16")
        a("s_mov_b64 exec, s[6:7]")
        a(f"v_subrev_u32 v{T1}, {QS}, v{T0}")
        a(f"v_cndmask_b32 v{T3}, v5, v{T1}, s[{sSM}:{sSM+1}]")
        a(f"ds_read_b128 {vr(ACC,4)}, v{T3}")
        a(f"ds_read_b128 {vr(ACC+4,4)}, v{T3} offset:16")
        a("s_mov_b64 exec, -1")
        a(f"s_sub_u32 s{sREM}, -1, s{sTEV}")
        a(f"s_min_u32 s{sTEV}, s{sSEGL[0]}, s{sSEGL[1]}")
        a(f"s_cmp_eq_u32 s{sTEV}, {hex(INF)}")
        a("s_cbranch_scc1 K2_LOOP_DONE")
        a(f"s_add_u32 s{sREM}, s{sREM}, s{sTEV}")
        a(f"s_waitcnt vmcnt({DP-1}) lgkmcnt(2)")
        mfma((k+1) % DP, ES[(k+1) & 1], U[(k+1) & 1], 0)
        mfma((k+1) % DP, ES[(k+1) & 1], U[(k+1) & 1], 1)
        ldcut()
        pload((k+1) % DP, IP[(k+1) & 1])
        rdE(k); rdI(k)
        a(f"s_sub_u32 s{sREM}, s{sREM}, 1")
        a("s_nop 3")
        if k < DP-1:
            a(f"s_cbranch_scc1 K2_BND{k+1}")
            a(f"s_branch K2_SUB{k+1}")
        else:
            a(f"s_cbranch_scc0 K2_LOOP")
            advance()
            a(f"s_branch K2_BND0")
    a.lab("K2_LOOP_DONE")
    a(f"s_mov_b32 s46, {N}")
    a("s_setprio 0")
    stamp(5)
    if DEBUG:
        a("s_lshl_b32 s93, s2, 4")
        a("s_add_u32 s93, s93, s3")
        a("s_lshl_b32 s93, s93, 5")
        a("s_add_u32 s93, s93, 0xA80000")
        a("v_mov_b32 v1, s93")
        for i in range(8): a(f"v_mov_b32 v{8+i}, s{84+i}")
        a("global_store_dwordx4 v1, v[8:11], s[34:35]")
        a("global_store_dwordx4 v1, v[12:15], s[34:35] offset:16")
    a(f"s_cmp_lg_u32 s{sSLOW}, 0")
    a("s_cbranch_scc1 K2_COMB")
    a.lab("K2_EPI")
    a.c("out = -ln2 * S @ w2 + deg*b2 ; waves 0..3 own oc pair op = w and start on node tiles 0,1 as soon as they are complete")
    AF = 56
    SF = 8
    BU = 24
    OA = 32
    CS = 40
    B2 = 120
    DG = 124
    L_DONE = L_FLAG + 20
    a(f"s_lshl_b32 s4, 1, s{sW}")
    a("v_mov_b32 v6, s4")
    a("v_mov_b32 v7, 4")
    a("s_waitcnt lgkmcnt(0)")
    a("s_mov_b64 exec, 1")
    a(f"ds_or_b32 v7, v6 offset:{L_DONE-4}")
    a("s_mov_b64 exec, -1")
    a("v_and_b32 v1, 63, v0")
    a(f"s_or_b64 s[10:11], s[{sNE}:{sNE+1}], s[{sSM}:{sSM+1}]")
    a("v_lshlrev_b32 v3, 4, v1")
    def combine(n, node0, stride):
        a(f"s_mul_i32 s4, s{node0}, {ROWP}")
        a(f"s_add_u32 s4, s4, {L_S}")
        a("v_add_u32 v6, s4, v3")
        a("v_lshrrev_b32 v2, 2, v3")
        a(f"ds_read_b32 v2, v2 offset:{L_HN}")
        for r in range(n): a(f"ds_read_b128 {vr(CS+4*r,4)}, v6 offset:{stride*r*ROWP}")
        a(f"s_add_u32 s4, s{node0}, 1")
        a(f"s_lshr_b64 s[36:37], s[10:11], s{node0}")
        a(f"s_waitcnt lgkmcnt({n})")
        a("v_subrev_u32 v2, s4, v2")
        CM = [6, 12, 14, 38]
        for r in range(n): a(f"v_cmp_eq_u32 s[{CM[r]}:{CM[r]+1}], {stride*r}, v2")
        lp = L("CBL")
        a.lab(lp)
        for r in range(n):
            l = L("CH")
            a(f"s_ff1_i32_b32 s8, s{CM[r]}")
            a(f"s_bitset0_b32 s{CM[r]}, s8")
            a(f"s_mul_i32 s9, s8, {ROWP}")
            a(f"s_add_u32 s9, s9, {L_CR}")
            a("s_cmp_lt_i32 s8, 0")
            a(f"v_add_u32 v7, s9, v3")
            a(f"s_cbranch_scc0 {l}")
            a(f"v_mov_b32 v7, {L_ZERO}")
            a.lab(l)
            a(f"ds_read_b128 {vr(8+4*r,4)}, v7")
        for r in range(n):
            l = L("CZ")
            a(f"s_bitcmp1_b64 s[36:37], {stride*r}")
            a(f"s_cbranch_scc1 {l}")
            a(f"s_waitcnt lgkmcnt({n})")
            for c in range(4): a(f"v_mov_b32 v{CS+4*r+c}, 0")
            a.lab(l)
        a(f"s_mov_b32 s8, s{CM[0]}")
        for r in range(1, n): a(f"s_or_b32 s8, s8, s{CM[r]}")
        a("s_cmp_lg_u32 s8, 0")
        a("s_waitcnt lgkmcnt(0)")
        for r in range(n):
            for c in range(0, 4, 2): a(f"v_pk_add_f32 {vr(CS+4*r+c,2)}, {vr(CS+4*r+c,2)}, {vr(8+4*r+c,2)}")
        a(f"s_cbranch_scc1 {lp}")
    def to_bf16(n, node0, stride):
        a(f"s_mul_i32 s4, s{node0}, {SBROW}")
        a(f"s_add_u32 s4, s4, {L_SB}")
        a("v_lshrrev_b32 v6, 1, v3")
        a("v_add_u32 v6, s4, v6")
        for r in range(n):
            a(f"v_cvt_pk_bf16_f32 v{CS+4*r}, v{CS+4*r}, v{CS+4*r+1}")
            a(f"v_cvt_pk_bf16_f32 v{CS+4*r+1}, v{CS+4*r+2}, v{CS+4*r+3}")
            a(f"ds_write_b64 v6, {vr(CS+4*r,2)} offset:{stride*r*SBROW}")
    def out_tile(nt):
        def sread(s): a(f"ds_read_b128 {vr(SF+4*(s%4),4)}, v4 offset:{64*s+16*nt*SBROW}")
        for s in range(4): sread(s)
        extra = [f"v_mul_f32 v{CS+k}, v{DG+nt}, v{BU+k}" for k in range(8)]
        for s in range(8):
            a(f"s_waitcnt lgkmcnt({min(3, 7-s)})")
            for t in range(2):
                o = OA + 4*t
                a(f"v_mfma_f32_16x16x32_bf16 {vr(o,4)}, {vr(AF+32*t+4*s,4)}, {vr(SF+4*(s%4),4)}, {'0' if s == 0 else vr(o,4)}")
            if s + 4 < 8: sread(s+4)
            else:
                a(extra.pop(0)); a(extra.pop(0))
        a("s_nop 5")
        for k in range(8): a(f"v_fmac_f32 v{CS+k}, v{DG+3}, v{OA+k}")
        for t in range(2):
            o = CS + 4*t
            a(f"v_cvt_pk_bf16_f32 v{o}, v{o}, v{o+1}")
            a(f"v_cvt_pk_bf16_f32 v{o+1}, v{o+2}, v{o+3}")
            a(f"buffer_store_dwordx2 {vr(o,2)}, v5, s[48:51], 0 offen offset:{32*t}{OUTFL}")
        if nt < 2: a(f"v_add_u32 v5, 0x100000, v5")
    a(f"s_cmp_ge_u32 s{sW}, 4")
    a("s_cbranch_scc1 K2_LAST")
    a(f"v_readlane_b32 s{sT}, v{VEND}, 15")
    a(f"v_readlane_b32 s{sT2}, v{VEND}, 31")
    a(f"v_mul_u32_u24 v6, s{sTT}, v1")
    a("v_lshrrev_b32 v6, 4, v6")
    a("v_lshlrev_b32 v6, 3, v6")
    a(f"v_cmp_gt_u32 s[70:71], s{sT}, v6")
    a(f"v_cmp_gt_u32 s[72:73], s{sT2}, v6")
    a("s_waitcnt vmcnt(0)")
    a("s_lshr_b32 s4, s2, 3")
    a(f"s_add_u32 s4, s4, s{sW}")
    a("s_and_b32 s74, s4, 3")
    a(f"s_lshl_b32 s6, s74, 14")
    a(f"s_add_u32 s6, s6, {hex(WS_W2)}")
    for q in range(4):
        if q: a("s_add_u32 s6, s6, 4096")
        for s in range(4):
            a(f"buffer_load_dwordx4 {vr(AF+16*q+4*s,4)}, v3, s[40:43], s6 offen offset:{1024*s}")
    a("v_bfe_u32 v7, v0, 4, 2")
    a(f"s_lshl_b32 s7, s74, 6")
    a("v_lshlrev_b32 v5, 3, v7")
    a("v_add_u32 v5, s7, v5")
    a(f"global_load_dwordx2 {vr(B2,2)}, v5, s[{PB2}:{PB2+1}]")
    a(f"global_load_dwordx2 {vr(B2+2,2)}, v5, s[{PB2}:{PB2+1}] offset:32")
    a("v_and_b32 v2, 15, v0")
    a(f"v_mul_u32_u24 v4, {SBROW}, v2")
    a("v_lshl_add_u32 v4, v7, 4, v4")
    a(f"v_add_u32 v4, {L_SB}, v4")
    a(f"v_lshlrev_b32 v6, 2, v2")
    for nt in range(3): a(f"ds_read_b32 v{DG+nt}, v6 offset:{L_DEG+64*nt}")
    a("v_lshl_add_u32 v5, v2, 16, v5")
    a("s_lshl_b32 s9, s2, 8")
    a("v_add_u32 v5, s9, v5")
    a(f"v_mov_b32 v{DG+3}, {hex(S_LN2)}")
    a("s_and_b32 s70, s70, 0xffff")
    a("s_and_b32 s72, s72, 0xffff")
    a("s_waitcnt lgkmcnt(0)")
    for nt in range(3):
        a(f"v_cvt_f32_u32 v{DG+nt}, v{DG+nt}")
        a(f"v_mul_f32 v{DG+nt}, 0.25, v{DG+nt}")
    for nt in range(1):
        l = L("DN")
        a("s_mov_b32 s8, 0x100000")
        a("v_mov_b32 v7, 4")
        a.lab(l)
        a(f"ds_read_b32 v6, v7 offset:{L_DONE-4}")
        a("s_sub_u32 s8, s8, 1")
        a(f"s_cbranch_scc1 {l}X")
        a("s_sleep 1")
        a("s_waitcnt lgkmcnt(0)")
        a("v_readfirstlane_b32 s9, v6")
        a("s_nop 0")
        a(f"s_andn2_b32 s9, s{70+2*nt}, s9")
        a(f"s_cbranch_scc1 {l}")
        a.lab(l + "X")
        a(f"s_add_u32 s75, s{sW}, {16*nt}")
        combine(4, 75, 4)
        to_bf16(4, 75, 4)
        a("v_mov_b32 v7, 4")
        a("v_mov_b32 v6, 8")
        a("s_waitcnt lgkmcnt(0)")
        a("s_mov_b64 exec, 1")
        a(f"ds_add_u32 v7, v6 offset:{L_FLAG+4*(5+nt)}")
        a("s_mov_b64 exec, -1")
        if nt == 0:
            a("s_waitcnt vmcnt(0)")
            for t in range(2):
                a(f"v_lshlrev_b32 v{BU+4*t}, 16, v{B2+2*t}")
                a(f"v_and_b32 v{BU+4*t+1}, 0xffff0000, v{B2+2*t}")
                a(f"v_lshlrev_b32 v{BU+4*t+2}, 16, v{B2+2*t+1}")
                a(f"v_and_b32 v{BU+4*t+3}, 0xffff0000, v{B2+2*t+1}")
        spin(5+nt)
        out_tile(nt)
    a.lab("K2_LAST")
    stamp("e")
    a("s_waitcnt lgkmcnt(0)")
    a("s_barrier")
    stamp("f")
    a(f"s_add_u32 s75, s{sW}, 16")
    a(f"s_cmp_lt_u32 s{sW}, 8")
    a("s_cbranch_scc1 K2_LAST1")
    combine(2, 75, 8)
    to_bf16(2, 75, 8)
    a("s_branch K2_LAST2")
    a.lab("K2_LAST1")
    combine(1, 75, 1)
    to_bf16(1, 75, 1)
    a.lab("K2_LAST2")
    stamp("g")
    a("s_waitcnt lgkmcnt(0)")
    a("s_barrier")
    a(f"s_cmp_ge_u32 s{sW}, 4")
    a("s_cbranch_scc1 K2_EXIT")
    stamp(6)
    out_tile(1)
    out_tile(2)
    if DEBUG:
        stamp(7)
        a("s_cmp_lg_u32 s3, 0")
        a("s_cbranch_scc1 K2_EXIT")
        a("s_memrealtime s[98:99]")
        a("s_lshl_b32 s93, s2, 6")
        a("s_add_u32 s93, s93, 0xA00000")
        a("v_mov_b32 v1, s93")
        a("s_waitcnt lgkmcnt(0)")
        for i in range(8):
            a(f"s_sub_u32 s93, s{84+i}, s84")
            a("v_mov_b32 v2, s93")
            a(f"global_store_dword v1, v2, s[34:35] offset:{4*i}")
        for off, sr_ in ((32, 96), (36, 98), (40, 92)):
            a(f"v_mov_b32 v2, s{sr_}")
            a(f"global_store_dword v1, v2, s[34:35] offset:{off}")
    a.lab("K2_EXIT")
    a("s_endpgm")
    a.lab("K2_COMB")
    a("v_and_b32 v1, 63, v0")
    a("v_lshlrev_b32 v3, 4, v1")
    a("s_mov_b64 s[10:11], -1")
    a("s_waitcnt vmcnt(0) lgkmcnt(0)")
    a("s_barrier")
    combine(3, sW, 16)
    a(f"ds_write_b128 v6, {vr(CS,4)}")
    a(f"ds_write_b128 v6, {vr(CS+4,4)} offset:{16*ROWP}")
    a(f"s_cmp_ge_u32 s{sW}, 8")
    a("s_cbranch_scc1 K2_SLOW_SYNC")
    a(f"ds_write_b128 v6, {vr(CS+8,4)} offset:{32*ROWP}")
    a("s_branch K2_SLOW_SYNC")
    a.lab("K2_SLOW_S")
    a.lab("K2_SLOW_SET")
    a(f"s_mov_b32 s{sSLOW}, 1")
    a.lab("K2_SLOW_SYNC")
    a("s_waitcnt lgkmcnt(0)")
    a("s_barrier")
    a.lab("K2_SLOW_NEXT")
    a("v_lshlrev_b32 v4, 4, v0")
    for k in range(4): a(f"v_mov_b32 v{ZT+k}, 0")
    zero_batch(L_BZEND)
    a(f"s_cmp_lg_u32 s{sBATCH}, 0")
    a("s_cbranch_scc1 K2_SLOW_NZ")
    a(f"s_mov_b64 s[{sSM}:{sSM+1}], -1")
    a(f"ds_write_b128 v4, {vr(ZT,4)} offset:{L_S}")
    a(f"ds_write_b128 v4, {vr(ZT,4)} offset:{L_S+16384}")
    a(f"ds_write_b128 v4, {vr(ZT,4)} offset:{L_S+40*ROWP-16384}")
    a.lab("K2_SLOW_NZ")
    a(f"s_cmp_lt_u32 s{sBATCH}, {E}")
    a("s_cbranch_scc1 K2_SLOW_GO")
    a(f"s_mov_b32 s{sSLOW}, 0")
    a("s_waitcnt lgkmcnt(0)")
    a("s_barrier")
    a("s_branch K2_EPI")
    a.lab("K2_SLOW_GO")
    a(f"v_add_u32 v5, s{sBATCH}, v0")
    a(f"v_mov_b32 v6, {E}")
    a("v_cmp_lt_u32 vcc, v5, v6")
    a(f"v_min_u32 v5, {E-1}, v5")
    a("v_lshlrev_b32 v6, 2, v5")
    a("v_lshlrev_b32 v7, 1, v5")
    SD, SE, SS = 40, 41, 42
    a(f"global_load_dword v{SD}, v6, s[{PDST}:{PDST+1}]")
    a(f"global_load_dword v{SS}, v6, s[{PSRC}:{PSRC+1}]")
    a(f"global_load_ushort v{SE}, v7, s[{PE}:{PE+1}]")
    a("v_and_b32 v5, 63, v0")
    a("v_lshlrev_b32 v5, 2, v5")
    a("s_waitcnt vmcnt(0) lgkmcnt(0)")
    a("s_barrier")
    a(f"v_and_b32 v7, 0xff, v{SD}")
    a(f"v_cmp_eq_u32 s[{sV[0]}:{sV[0]+1}], s2, v7")
    a(f"v_lshl_or_b32 v{R0}, v{SS}, 16, v{SE}")
    a(f"v_lshrrev_b32 v7, 6, v{SD}")
    a(f"v_and_b32 v{R0+3}, 0xfc, v7")
    a(f"s_and_b64 s[{sV[0]}:{sV[0]+1}], s[{sV[0]}:{sV[0]+1}], vcc")
    a("v_mov_b32 v7, 4")
    rank_atomics(1)
    a("s_mov_b64 exec, -1")
    a(f"s_add_u32 s{sBATCH}, s{sBATCH}, {BATCH}")
    a("s_waitcnt lgkmcnt(0)")
    a("s_barrier")
    a("s_branch K2_SCAN")
    a.lab("TEXT_END")
    return 128

HEADER = open('standalone__edge_featured_mpnn_mpnn__graph.s.ref').read().split("; Override launch")[0]

def kd(name, nv, ns):
    acc = (nv + 3) // 4 * 4
    return f""".p2align 6
.amdhsa_kernel {name}
  .amdhsa_next_free_vgpr {nv}
  .amdhsa_next_free_sgpr {ns}
  .amdhsa_accum_offset {acc}
  .amdhsa_group_segment_fixed_size 0
  .amdhsa_kernarg_size 88
  .amdhsa_user_sgpr_count 2
  .amdhsa_user_sgpr_kernarg_segment_ptr 1
  .amdhsa_system_sgpr_workgroup_id_x 1
.end_amdhsa_kernel
"""

def build(TPW=4, DP=6):
    a = Asm()
    g1 = gen_k1(a, TPW)
    nv2 = gen_k2(a, DP)
    out = HEADER
    out += f"; @launch kernel=k1_kernel grid=({g1},1,1) block=(512,1,1) lds={K1_LDS}\n"
    out += f"; @launch kernel=k2_kernel grid=(256,1,1) block=(1024,1,1) lds={L_END}\n"
    out += '.amdgcn_target "amdgcn-amd-amdhsa--gfx950"\n.text\n'
    out += a.text()
    out += '.section .rodata,"a"\n'
    out += kd("k1_kernel", 144, 80)
    out += kd("k2_kernel", 128, 102)
    return out

if __name__ == "__main__":
    import argparse
    ap = argparse.ArgumentParser()
    ap.add_argument("-o", default="standalone__edge_featured_mpnn_mpnn__graph.s")
    ap.add_argument("--tpw", type=int, default=4)
    ap.add_argument("--dp", type=int, default=4)
    ap.add_argument("--debug", action="store_true")
    ap.add_argument("--srcmask", type=int, default=0)
    ap.add_argument("--exp", default="")
    ap.add_argument("--pr1", type=int, default=8)
    ap.add_argument("--pr0", type=int, default=4)
    ap.add_argument("--prm", type=int, default=-1)
    ap.add_argument("--wqs", type=int, default=4)
    ap.add_argument("--wqs2", type=int, default=5)
    ap.add_argument("--pf", type=int, default=0)
    args = ap.parse_args()
    DEBUG = args.debug
    SRCMASK = args.srcmask
    PF = args.pf
    WQSPLIT = args.wqs
    PR1, PR0, PRM = args.pr1, args.pr0, args.prm
    if 'ont' in EXP: OUTFL = ' nt'
    WQSPLIT2 = args.wqs2
    EXP = set(args.exp.split(",")) if args.exp else set()
    open(args.o, "w").write(build(args.tpw, args.dp))
```

```python
import sys, struct

N, E, D_, H = 10000, 160000, 128, 256
NCH = 64
CH_E = E // NCH
WS_P = 0
WS_CELLS = 0x500000
WS_WQ = 0x900000
WS_W2 = 0x910000
WS_WE = 0x920000
WS_B1 = 0x920400
WS_END = 0x921000

def f32bits(x): return struct.unpack('<I', struct.pack('<f', x))[0]
S_LOG2E = f32bits(-1.4426950408889634)
S_LN2 = f32bits(-0.6931471805599453)

class Asm:
    def __init__(self): self.l = []
    def __call__(self, s): self.l.append("    " + s)
    def lab(self, s): self.l.append(s + ":")
    def c(self, s): self.l.append("    ; " + s)
    def raw(self, s): self.l.append(s)
    def text(self): return "\n".join(self.l) + "\n"

def vr(a, n): return f"v[{a}:{a+n-1}]"
def sr(a, n): return f"s[{a}:{a+n-1}]"

def srd(a, d, base, nrec, stride=0, add=0):
    if add:
        a(f"s_add_u32 s{d}, s{base}, {hex(add)}")
        a(f"s_addc_u32 s{d+1}, s{base+1}, 0")
    else:
        a(f"s_mov_b32 s{d}, s{base}")
        a(f"s_mov_b32 s{d+1}, s{base+1}")
    if stride:
        a(f"s_or_b32 s{d+1}, s{d+1}, {hex(stride << 16)}")
    a(f"s_mov_b32 s{d+2}, {hex(nrec)}")
    a(f"s_mov_b32 s{d+3}, 0x20000")

PX, PE, PSRC, PDST, PW1, PB1, PW2, PB2 = 16, 18, 20, 22, 24, 26, 28, 30

DEBUG = False
SRCMASK = 0
EXP = set()
PF = 0
WQSPLIT = 2
PR1 = 10
PR0 = 4
PRM = -1
WQSPLIT2 = 5
CAP1 = 24
CAP = 48
K1_LDS = 65536 + 16384
def gen_k1(a, TPW):
    assert TPW == 4
    NG = (625 + TPW - 1) // TPW
    NTR = 8
    GRID = NCH + NTR + NG
    a.raw(".globl k1_kernel"); a.raw(".p2align 8"); a.raw(".type k1_kernel,@function")
    a.lab("k1_kernel")
    a(f"s_cmp_ge_u32 s2, {GRID}")
    a("s_cbranch_scc1 K1_EXIT")
    a("s_load_dwordx16 s[16:31], s[0:1], 0")
    a("s_load_dwordx2 s[32:33], s[0:1], 80")
    if DEBUG: a("s_memrealtime s[56:57]")
    K1S = [52, 53, 54, 55, 62, 63]
    def st1(i):
        if not (DEBUG and "k1st" in EXP): return
        a("s_memtime s[14:15]")
        a("s_waitcnt lgkmcnt(0)")
        a(f"s_mov_b32 s{K1S[i]}, s14")
    st1(0)
    def k1end():
        if DEBUG:
            a("s_waitcnt vmcnt(0)")
            a("s_memrealtime s[58:59]")
            a("s_lshl_b32 s60, s2, 4")
            a("s_add_u32 s60, s60, 0xB00000")
            a("v_mov_b32 v1, s60")
            a("s_waitcnt lgkmcnt(0)")
            a("v_mov_b32 v2, s56")
            a("v_mov_b32 v3, s58")
            a("v_cmp_eq_u32 vcc, 0, v0")
            a("s_and_saveexec_b64 s[60:61], vcc")
            a("s_cbranch_execz K1_EXIT")
            a("global_store_dwordx2 v1, v[2:3], s[32:33]")
            if "k1st" in EXP:
                st1(5)
                a("s_lshl_b32 s60, s2, 5")
                a("s_add_u32 s60, s60, 0xB80000")
                a("v_mov_b32 v1, s60")
                for i in range(6):
                    a(f"s_sub_u32 s60, s{K1S[i]}, s52")
                    a("v_mov_b32 v2, s60")
                    a(f"global_store_dword v1, v2, s[32:33] offset:{4*i}")
        a("s_endpgm")
    a(f"s_cmp_lt_u32 s2, {NCH}")
    a("s_cbranch_scc1 K1_SORT")
    a(f"s_cmp_lt_u32 s2, {NCH+NTR}")
    a("s_cbranch_scc1 K1_TRANS")
    a.c("GEMM role: P' = -log2e * x @ W1a ; W and x staged in LDS by DMA (XOR-swizzled 16B slots)")
    LX = 65536
    a("v_lshrrev_b32 v1, 6, v0")
    a("v_and_b32 v2, 63, v0")
    a("v_readfirstlane_b32 s3, v1")
    a("v_lshrrev_b32 v3, 5, v2")
    a("v_and_b32 v4, 31, v2")
    a("v_lshlrev_b32 v5, 2, v3")
    a("v_xor_b32 v4, v4, v5")
    a("v_lshlrev_b32 v4, 4, v4")
    a("v_lshl_add_u32 v4, v3, 9, v4")
    a("v_xor_b32 v5, 0x80, v4")
    a("v_lshrrev_b32 v3, 4, v2")
    a("v_and_b32 v6, 15, v2")
    a("v_lshlrev_b32 v7, 3, v1")
    a("v_and_b32 v7, 8, v7")
    a("v_or_b32 v7, v7, v3")
    a("v_xor_b32 v7, v6, v7")
    a("v_lshlrev_b32 v7, 4, v7")
    a("v_lshl_add_u32 v7, v3, 8, v7")
    a("v_xor_b32 v8, 0x40, v7")
    a(f"s_sub_u32 s4, s2, {NCH+NTR}")
    a("s_lshl_b32 s5, s4, 14")
    a("s_lshl_b32 s6, s3, 11")
    a("s_add_u32 s5, s5, s6")
    a("s_lshr_b32 s7, s2, 3")
    a("s_add_u32 s7, s7, s3")
    a("s_and_b32 s7, s7, 7")
    a("s_lshl_b32 s7, s7, 13")
    a("s_waitcnt lgkmcnt(0)")
    srd(a, 36, PX, N*256)
    srd(a, 40, PW1, 257*512)
    a(f"s_add_u32 s8, s6, {LX}")
    a("s_mov_b32 m0, s8")
    a("s_add_u32 s9, s5, 1024")
    a("buffer_load_dwordx4 v7, s[36:39], s5 offen lds")
    a("s_add_u32 m0, s8, 1024")
    a("s_mov_b32 s8, s7")
    a("buffer_load_dwordx4 v8, s[36:39], s9 offen lds")
    for i in range(8):
        a("s_mov_b32 m0, s8")
        a("s_nop 0")
        a(f"buffer_load_dwordx4 v{4+(i&1)}, s[40:43], s8 offen lds")
        if i < 7: a("s_add_u32 s8, s8, 1024")
    st1(1)
    srd(a, 44, 32, N*512, add=WS_P)
    a("v_lshrrev_b32 v9, 2, v6")
    a("v_and_b32 v10, 3, v6")
    a("v_xor_b32 v11, v1, v9")
    a("v_lshl_or_b32 v10, v11, 2, v10")
    a("v_lshlrev_b32 v10, 4, v10")
    a("v_lshl_add_u32 v9, v3, 3, v9")
    a("v_lshl_add_u32 v9, v9, 9, v10")
    a("v_xor_b32 v10, v3, v6")
    a("v_lshlrev_b32 v10, 4, v10")
    a("v_lshl_add_u32 v10, v6, 8, v10")
    a(f"v_add_u32 v10, {LX}, v10")
    for s in range(1, 4): a(f"v_xor_b32 v{10+s}, {64*s}, v10")
    a("v_lshlrev_b32 v14, 9, v6")
    a("v_lshl_add_u32 v14, v1, 6, v14")
    a("v_lshl_add_u32 v14, v3, 4, v14")
    a("s_lshl_b32 s5, s4, 15")
    a(f"v_mov_b32 v15, {hex(S_LOG2E)}")
    WFR = 16
    XFR = 48
    ACC = 112
    a("s_waitcnt vmcnt(0)")
    st1(2)
    a("s_barrier")
    st1(3)
    order = []
    for s in range(4):
        for t in range(2):
            for hh in range(2):
                a(f"ds_read_b64_tr_b16 {vr(WFR+16*t+4*s+2*hh,2)}, v9 offset:{(32*s+4*hh)*512+8*t}")
        a(f"ds_read_b128 {vr(XFR+4*s,4)}, v{10+s}")
        if s == 1:
            pass
    def xr(tau):
        for s in range(4): a(f"ds_read_b128 {vr(XFR+16*tau+4*s,4)}, v{10+s} offset:{4096*tau}")
    def mm(tau, s):
        for t in range(2):
            o = ACC + 8*tau + 4*t
            a(f"v_mfma_f32_16x16x32_bf16 {vr(o,4)}, {vr(WFR+16*t+4*s,4)}, {vr(XFR+16*tau+4*s,4)}, {'0' if s == 0 else vr(o,4)}")
    def epi(tau):
        r = []
        o = ACC + 8*tau
        for k in range(8): r.append(f"v_mul_f32 v{o+k}, v15, v{o+k}")
        for k in range(4): r.append(f"v_cvt_pk_bf16_f32 v{o+k}, v{o+2*k}, v{o+2*k+1}")
        r.append(f"s_add_u32 s6, s5, {8192*tau}")
        fl = " sc1" if "psc1" in EXP else " nt" if "pnt" in EXP else ""
        r.append(f"buffer_store_dwordx4 {vr(o,4)}, v14, s[44:47], s6 offen{fl}")
        return r
    for s in range(4):
        a(f"s_waitcnt lgkmcnt({5*(3-s)})")
        mm(0, s)
    xr(1); xr(2); xr(3)
    extra = []
    for tau in range(1, 4):
        a(f"s_waitcnt lgkmcnt({4*(3-tau)})")
        for s in range(4):
            mm(tau, s)
            if s == 1 or (s == 0 and tau == 1):
                if not extra and not (s == 1 and tau == 1): extra = epi(tau-1)
            if s >= 1:
                for _ in range(5):
                    if extra: a(extra.pop(0))
        assert not extra
    a("s_nop 7")
    for ins in epi(3): a(ins)
    st1(4)
    k1end()
    a.lab("K1_TRANS")
    a.c("fragment transposer for W1b (WQ) and w2 (W2F); 128 blocks per WG")
    a(f"s_sub_u32 s3, s2, {NCH}")
    a("v_lshrrev_b32 v1, 6, v0")
    a("s_and_b32 s4, s3, 3")
    a("v_readfirstlane_b32 s11, v1")
    a("s_lshl_b32 s4, s4, 7")
    a("v_add_u32 v1, s4, v0")
    a("s_mov_b32 s9, 0x05040100"); a("s_mov_b32 s10, 0x07060302")
    a("s_waitcnt lgkmcnt(0)")
    a("s_cmp_ge_u32 s11, 2")
    a("s_cbranch_scc1 K1_TR_SMALL")
    a("s_cmp_ge_u32 s3, 4")
    a("s_cbranch_scc1 K1_TR_W2")
    a("v_and_b32 v2, 31, v1")
    a("v_lshrrev_b32 v3, 5, v1")
    a("v_lshlrev_b32 v4, 4, v2")
    a("v_lshl_add_u32 v4, v3, 12, v4")
    a("v_add_u32 v4, 0x10000, v4")
    a("v_lshrrev_b32 v5, 1, v2")
    a("v_lshlrev_b32 v5, 12, v5")
    a("v_lshl_add_u32 v5, v3, 8, v5")
    a("v_and_b32 v6, 1, v2")
    a("v_lshl_add_u32 v5, v6, 7, v5")
    srd(a, 36, PW1, 257*512)
    srd(a, 40, 32, 0x10000, add=WS_WQ)
    a("s_mov_b32 s5, 512")
    a("s_branch K1_TR_GO")
    a.lab("K1_TR_W2")
    a("v_and_b32 v2, 15, v1")
    a("v_bfe_u32 v3, v1, 4, 3")
    a("v_lshrrev_b32 v7, 7, v1")
    a("v_lshlrev_b32 v4, 4, v2")
    a("v_lshl_add_u32 v4, v3, 13, v4")
    a("v_lshl_add_u32 v4, v7, 11, v4")
    a("v_lshrrev_b32 v5, 1, v2")
    a("v_lshlrev_b32 v5, 13, v5")
    a("v_lshl_add_u32 v5, v3, 10, v5")
    a("v_lshl_add_u32 v5, v7, 8, v5")
    a("v_and_b32 v6, 1, v2")
    a("v_lshl_add_u32 v5, v6, 7, v5")
    srd(a, 36, PW2, 256*256)
    srd(a, 40, 32, 0x10000, add=WS_W2)
    a("s_mov_b32 s5, 256")
    a.lab("K1_TR_GO")
    a("s_mov_b32 s6, 0")
    for m in range(8):
        a(f"buffer_load_dwordx4 {vr(16+4*m,4)}, v4, s[36:39], s6 offen")
        if m < 7: a("s_add_u32 s6, s6, s5")
    a("s_waitcnt vmcnt(0)")
    for cc in range(8):
        for p in range(4):
            a(f"v_perm_b32 v{48+4*cc+p}, v{16+4*(2*p+1)+(cc>>1)}, v{16+4*(2*p)+(cc>>1)}, s{9+(cc&1)}")
        a(f"buffer_store_dwordx4 {vr(48+4*cc,4)}, v5, s[40:43], 0 offen offset:{16*cc}")
    k1end()
    a.lab("K1_TR_SMALL")
    a("s_cmp_lg_u32 s3, 0")
    a("s_cbranch_scc1 K1_EXIT")
    a("s_cmp_lt_u32 s11, 4")
    a("s_cbranch_scc1 K1_EXIT")
    a("v_and_b32 v1, 255, v0")
    a("v_lshlrev_b32 v2, 1, v1")
    a(f"s_add_u32 s6, s{PW1}, 0x20000")
    a(f"s_addc_u32 s7, s{PW1+1}, 0")
    a("global_load_ushort v8, v2, s[6:7]")
    a(f"global_load_ushort v9, v2, s[{PB1}:{PB1+1}]")
    a(f"s_add_u32 s6, s32, {hex(WS_WE)}")
    a("s_addc_u32 s7, s33, 0")
    a(f"v_mov_b32 v10, {hex(S_LOG2E)}")
    a("v_lshlrev_b32 v3, 2, v1")
    a("s_waitcnt vmcnt(0)")
    a("v_lshlrev_b32 v8, 16, v8")
    a("v_lshlrev_b32 v9, 16, v9")
    a("v_mul_f32 v8, v10, v8")
    a("v_mul_f32 v9, v10, v9")
    a("v_cvt_pk_bf16_f32 v8, v8, v8")
    a("global_store_short v2, v8, s[6:7]")
    a(f"global_store_dword v3, v9, s[6:7] offset:{WS_B1-WS_WE}")
    a("s_endpgm")
    a.lab("K1_SORT")
    a.c("bucket the edges of chunk s2 by dst&255; cell line: 8 x [rec q, rec q+8, rec q+16, (loc,loc,loc,count)]")
    LC = 32768
    a("v_lshlrev_b32 v1, 2, v0")
    a("v_mov_b32 v2, 0")
    a(f"ds_write_b32 v1, v2 offset:{LC}")
    a("v_lshlrev_b32 v3, 4, v0")
    a("v_lshlrev_b32 v4, 3, v0")
    a("v_mov_b32 v5, 1")
    a(f"s_mul_i32 s3, s2, {CH_E*4}")
    a(f"s_mul_i32 s4, s2, {CH_E*2}")
    a("s_lshl_b32 s5, s2, 8")
    a("s_add_u32 s6, s3, 8192")
    a("s_add_u32 s7, s4, 4096")
    a("s_mov_b32 s8, 0x05040100"); a("s_mov_b32 s9, 0x05040302")
    a("s_waitcnt lgkmcnt(0)")
    srd(a, 36, PDST, E*4)
    srd(a, 40, PSRC, E*4)
    srd(a, 44, PE, E*2)
    srd(a, 48, 32, 256*NCH*256, add=WS_CELLS)
    DST, SRC, EA = 16, 24, 32
    RK, BK, REC = 36, 44, 52
    A0, A1 = 60, 68
    nlast = CH_E - 2048
    a("v_lshlrev_b32 v6, 1, v0")
    a(f"buffer_load_dwordx4 {vr(DST,4)}, v3, s[36:39], s3 offen")
    a(f"buffer_load_dword v{DST+4}, v1, s[36:39], s6 offen")
    a(f"buffer_load_dwordx4 {vr(SRC,4)}, v3, s[40:43], s3 offen")
    a(f"buffer_load_dwordx2 {vr(EA,2)}, v4, s[44:47], s4 offen")
    a(f"buffer_load_dword v{SRC+4}, v1, s[40:43], s6 offen")
    a(f"buffer_load_ushort v{EA+2}, v6, s[44:47], s7 offen")
    a(f"v_cmp_gt_u32 vcc, {nlast}, v0")
    a(f"v_mov_b32 v{RK+4}, 0")
    a(f"v_mov_b32 v{BK+4}, 0")
    a(f"v_mov_b32 v7, {CAP1}")
    a("s_mov_b64 s[10:11], vcc")
    a("s_barrier")
    st1(1)
    def atomic(k):
        a(f"v_and_b32 v{BK+k}, 0xff, v{DST+k}")
        a(f"v_lshlrev_b32 v8, 2, v{BK+k}")
        a(f"ds_add_rtn_u32 v{RK+k}, v8, v5 offset:{LC}")
    a("s_waitcnt vmcnt(5)")
    st1(2)
    for k in range(4): atomic(k)
    a("s_waitcnt vmcnt(4)")
    a("s_mov_b64 exec, s[10:11]")
    atomic(4)
    a("s_mov_b64 exec, -1")
    for k in range(5):
        a(f"v_lshrrev_b32 v{DST+k}, 6, v{DST+k}")
        a(f"v_and_b32 v{DST+k}, 0xfc, v{DST+k}")
        a(f"v_lshlrev_b32 v{BK+k}, 7, v{BK+k}")
    a("s_waitcnt vmcnt(0)")
    for k in range(5):
        if SRCMASK: a(f"v_and_b32 v{SRC+k}, {SRCMASK}, v{SRC+k}")
        a(f"v_perm_b32 v{REC+k}, v{SRC+k}, v{EA+(k>>1)}, s{8+(k&1)}")
    a("s_waitcnt lgkmcnt(0)")
    st1(3)
    for k in range(5):
        a(f"v_and_b32 v8, 7, v{RK+k}")
        a(f"v_lshl_add_u32 v8, v8, 4, v{BK+k}")
        a(f"v_lshrrev_b32 v9, 3, v{RK+k}")
        a(f"v_lshl_add_u32 v{A0+k}, v9, 2, v8")
        a(f"v_add_u32 v{A1+k}, v9, v8")
        if k == 4: a("s_mov_b64 exec, s[10:11]")
        a(f"v_cmpx_gt_u32 vcc, v7, v{RK+k}")
        a(f"ds_write_b32 v{A0+k}, v{REC+k}")
        a(f"ds_write_b8 v{A1+k}, v{DST+k} offset:12")
        a("s_mov_b64 exec, -1")
    a(f"v_max3_u32 v8, v{RK}, v{RK+1}, v{RK+2}")
    a(f"v_max3_u32 v8, v8, v{RK+3}, v{RK+4}")
    a("v_cmp_le_u32 vcc, v7, v8")
    a("s_cbranch_vccz K1_NOOV")
    for k in range(5):
        a(f"v_lshlrev_b32 v12, 7, v{BK+k}")
        a(f"v_sub_u32 v12, v12, v{BK+k}")
        a(f"v_sub_u32 v13, {CAP-1}, v{RK+k}")
        a(f"v_subrev_u32 v14, {CAP1}, v{RK+k}")
        a("v_or_b32 v13, v13, v14")
        a(f"v_and_b32 v13, 0x80000000, v13")
        a("v_or_b32 v12, v12, v13")
        a(f"v_add_u32 v10, v{A0+k}, v12")
        a(f"v_add_u32 v11, v{A1+k}, v12")
        a(f"buffer_store_dword v{REC+k}, v10, s[48:51], s5 offen offset:{128-12}")
        a(f"buffer_store_byte v{DST+k}, v11, s[48:51], s5 offen offset:{128+12-3}")
    a.lab("K1_NOOV")
    a("v_lshrrev_b32 v6, 3, v0")
    a("v_lshlrev_b32 v7, 2, v6")
    a("v_and_b32 v8, 0x70, v3")
    a("v_lshl_add_u32 v8, v6, 14, v8")
    a("v_mov_b32 v9, 0xffffff")
    a("s_waitcnt vmcnt(0) lgkmcnt(0)")
    a("s_barrier")
    st1(4)
    for i in range(4):
        a(f"ds_read_b128 {vr(16+4*i,4)}, v3 offset:{8192*i}")
        a(f"ds_read_b32 v{32+i}, v7 offset:{LC+256*i}")
    for i in range(4):
        a(f"s_waitcnt lgkmcnt({6-2*i})")
        a(f"v_min_u32 v{32+i}, 0xff, v{32+i}")
        a(f"v_lshlrev_b32 v{32+i}, 24, v{32+i}")
        a(f"v_and_or_b32 v{19+4*i}, v{19+4*i}, v9, v{32+i}")
        a(f"buffer_store_dwordx4 {vr(16+4*i,4)}, v8, s[48:51], s5 offen")
        if i < 3: a(f"s_add_u32 s5, s5, {64*16384}")
    k1end()
    a.lab("K1_EXIT")
    a("s_endpgm")
    return GRID

ROWP = 1040
SBROW = 528
BATCH = 1024
NSLOT = BATCH + 16
L_EP = 0
L_IDX = L_EP + NSLOT*16
L_CNT = L_IDX + NSLOT*4
L_HN = L_CNT + 256
L_ZERO = L_HN + 128
L_BZEND = L_ZERO + 256
L_DEG = L_BZEND
L_FLAG = L_DEG + 256
L_ZEND = L_FLAG + 32
L_S = L_ZEND
L_Q = L_S + 40*ROWP
L_SB = L_Q
XROW = 272
L_CR = L_Q + 40*ROWP
L_XS = L_CR
L_END = L_CR + 32*ROWP
QS = L_Q - L_S

def gen_k2(a, DP):
    assert DP % 2 == 0
    INF = 0x7fffffff
    SMAP = {0:0, 1:1, 2:2, 3:3, 4:4, 5:5, 6:6, 7:7}
    if "fine" in EXP: SMAP = {0:0, 1:1, "a":2, "b":3, 2:4, 3:5, "c":6, "d":7}
    if "fine2" in EXP: SMAP = {0:0, 4:1, 5:2, "e":3, "f":4, "g":5, 6:6, 7:7}
    def stamp(i):
        if not DEBUG or i not in SMAP: return
        a("s_memtime s[94:95]")
        a("s_waitcnt lgkmcnt(0)")
        a(f"s_mov_b32 s{84+SMAP[i]}, s94")
    a.raw(".globl k2_kernel"); a.raw(".p2align 8"); a.raw(".type k2_kernel,@function")
    a.lab("k2_kernel")
    a("s_cmp_ge_u32 s2, 256")
    a("s_cbranch_scc1 K2_EXIT")
    a("s_load_dwordx16 s[16:31], s[0:1], 0")
    a("s_load_dwordx2 s[32:33], s[0:1], 64")
    a("s_load_dwordx2 s[34:35], s[0:1], 80")
    if DEBUG: a("s_memrealtime s[96:97]")
    stamp(0)
    assert DP == 4
    U = [8, 16]; EX, ACC, Q = 24, 32, 40
    IP = [56, 58]
    AB = 60
    ES = [62, 66]
    BS = 70
    M = 118
    VEA, VIA, VES, VEND, VQA, VSTA, VEO, VH, VXA, VQW = range(M, M+10)
    T0, T1, T3 = 1, 2, 4
    WF = 8
    R0 = 8
    HD = 16
    RK = 17
    LA = 23
    PS = 29
    XP = 40
    VC = 53
    PB = 54
    XF = 40
    QA = 102
    ZT = 102
    B1 = 106
    BI = 110
    WE = 48
    sW, sNE = 3, 56
    sV = [52, 54, 10, 12, 14, 36]
    sT, sT2, sREM, sTEV, sSLOW, sBATCH, sLEFT, sX = 58, 59, 60, 61, 62, 63, 66, 68
    sMASK = [70, 72]; sPOS = [74, 75]; sEND = [76, 77]; sSEGL = [78, 79]; sHEAD = [80, 81]; sCR = [82, 83]
    sROW = [4, 5]
    sSM = 100
    sWQ = 64
    uid0 = [0]
    def L(p):
        uid0[0] += 1
        return f"K2_{p}{uid0[0]}"
    def exec_half(x):
        a(f"s_mov_b32 exec_lo, {-1 if x == 0 else 0}")
        a(f"s_mov_b32 exec_hi, {0 if x == 0 else -1}")
    wpos = [0, 1, 6, 7]
    a("v_lshlrev_b32 v4, 4, v0")
    for k in range(4): a(f"v_mov_b32 v{ZT+k}, 0")
    a("v_lshrrev_b32 v1, 6, v0")
    a("v_and_b32 v5, 0x3f0, v4")
    a(f"ds_write_b128 v5, {vr(ZT,4)} offset:{L_ZEND-1024}")
    a("v_readfirstlane_b32 s3, v1")
    a(f"v_and_b32 v{IP[0]+1}, 0x1f0, v4")
    a("v_lshlrev_b32 v2, 5, v0")
    a("v_and_b32 v3, 0xffffff00, v2")
    a("s_lshl_b32 s4, s2, 14")
    a(f"s_add_u32 s4, s4, {hex(WS_CELLS)}")
    a("s_lshl_b32 s5, s2, 8")
    a("s_waitcnt lgkmcnt(0)")
    a("s_barrier")
    stamp(1)
    srd(a, 40, 34, WS_END)
    a(f"s_add_u32 s6, s34, {hex(WS_WE)}")
    a(f"s_addc_u32 s7, s35, 0")
    a(f"global_load_dwordx4 {vr(WE,4)}, v{IP[0]+1}, s[6:7]")
    a(f"s_cmp_ge_u32 s{sW}, 8")
    a("s_cbranch_scc1 K2_GEMMER")

    def lane_consts():
        srd(a, 44, 34, N, stride=512, add=WS_P)
        srd(a, 48, 32, N*256)
        a(f"s_mov_b32 s{sSLOW}, 0")
        a(f"s_mov_b32 s{sBATCH}, 0")
        a(f"s_mov_b64 s[{sSM}:{sSM+1}], 0")
        a(f"v_mov_b32 v{IP[1]+1}, v{IP[0]+1}")
        a(f"v_mov_b32 v{IP[0]}, 0")
        a(f"v_mov_b32 v{IP[1]}, 0")
        a(f"v_lshlrev_b32 v{VQA}, 1, v{IP[0]+1}")
        a(f"v_add_u32 v{VQA}, {L_Q}, v{VQA}")
        a("s_mov_b32 s10, 0x00f0000f")
        a("s_mov_b32 s11, 0xf0000f00")
        a("s_mov_b32 s12, 0x00300003")
        a("s_mov_b32 s13, 0x30000300")
        a("s_mov_b32 s14, 0x00c0000c")
        a("s_mov_b32 s15, 0xc0000c00")
        a(f"v_and_b32 v6, 16, v4")
        a(f"v_mov_b32 v{PB}, 0x3f80")
        a(f"v_lshlrev_b32 v{PB}, v6, v{PB}")
        for k in (0, 4, 8):
            a(f"v_cndmask_b32 v{AB+k}, 0, v{PB}, s[12:13]")
            a(f"v_cndmask_b32 v{AB+k+1}, 0, v{PB}, s[14:15]")
        a(f"v_lshrrev_b32 v6, 1, v6")
        a(f"v_mov_b32 v{VEO}, {L_ZERO}")
        a(f"v_or_b32 v{PB}, 4, v6")
        a(f"v_cndmask_b32 v{VEO}, v{VEO}, v{PB}, s[12:13]")
        a(f"v_cndmask_b32 v{VEO}, v{VEO}, v6, s[14:15]")
        a(f"v_cndmask_b32 v{VES}, 0, 4, s[10:11]")
        a(f"v_bfe_u32 v{VH}, v0, 5, 1")
        a(f"v_mov_b32 v7, 4")
        a(f"v_lshrrev_b32 v5, 2, v5")
    def wscale():
        r = []
        for d in range(DP):
            r.append(f"v_pk_mov_b32 {vr(BS+8*d,2)}, {vr(WE,2)}, {vr(WE,2)} op_sel:[0,1]")
            r.append(f"v_pk_mov_b32 {vr(BS+8*d+6,2)}, {vr(WE+2,2)}, {vr(WE+2,2)} op_sel:[0,1]")
        return r
    dpp = [f"row_shr:{sh} row_mask:0xf bank_mask:0xf bound_ctrl:0" for sh in (1, 2, 4, 8)] + \
          ["row_bcast:15 row_mask:0xa bank_mask:0xf", "row_bcast:31 row_mask:0xc bank_mask:0xf"]
    def scan(first):
        a(f"ds_read_b32 v{VC}, v5 offset:{L_CNT}")
        if first: a(f"ds_read_b32 v3, v7 offset:{L_FLAG-4}")
        a("s_waitcnt lgkmcnt(0)")
        a(f"v_mov_b32 v{VEND}, v{VC}")
        if first: a(f"v_readfirstlane_b32 s{sSLOW}, v3")
        else: a("s_nop 0")
        a(f"v_cmp_ne_u32 s[{sNE}:{sNE+1}], 0, v{VC}")
        for i, d in enumerate(dpp):
            if i: a("s_nop 1")
            a(f"v_add_u32_dpp v{VEND}, v{VEND}, v{VEND} {d}")
        a(f"v_sub_u32 v{VSTA}, v{VEND}, v{VC}")
        a(f"v_readlane_b32 s{sT}, v{VEND}, 63")
    def ranges():
        a(f"s_lshr_b32 s{sT}, s{sT}, 2")
        if DEBUG: a(f"s_mov_b32 s92, s{sT}")
        a(f"s_lshl_b32 s{sT2}, s{sW}, 1")
        a(f"s_mul_i32 s{sPOS[0]}, s{sT}, s{sT2}")
        a(f"s_add_u32 s{sPOS[1]}, s{sPOS[0]}, s{sT}")
        a(f"s_add_u32 s{sEND[1]}, s{sPOS[1]}, s{sT}")
        for r in (sPOS[0], sPOS[1], sEND[1]):
            a(f"s_lshr_b32 s{r}, s{r}, 5")
            a(f"s_lshl_b32 s{r}, s{r}, 2")
        a(f"s_mov_b32 s{sEND[0]}, s{sPOS[1]}")
        a(f"s_sub_u32 s{sT2}, s{sPOS[1]}, s{sPOS[0]}")
        a(f"v_mul_u32_u24 v{VIA}, s{sT2}, v{VH}")
        a(f"v_add_u32 v{VIA}, s{sPOS[0]}, v{VIA}")
        a(f"v_mad_u32_u24 v{VEA}, v{VIA}, v{VES}, v{VEO}")
        a(f"v_add_u32 v{VIA}, {L_IDX}, v{VIA}")
    def seg_next(x, lbl):
        a(f"s_lshl2_add_u32 s{sT2}, s{sSEGL[x]}, s{sPOS[x]}")
        a(f"s_mov_b32 s{sROW[x]}, -1")
        a(f"s_cmp_ge_u32 s{sT2}, s{sEND[x]}")
        a(f"s_cselect_b32 s{sSEGL[x]}, {hex(INF)}, s{sSEGL[x]}")
        a(f"s_cbranch_scc1 {lbl}")
        a(f"s_ff1_i32_b64 s{sT2}, s[{sMASK[x]}:{sMASK[x]+1}]")
        a(f"s_and_b32 s{sT2}, s{sT2}, 63")
        a(f"s_bitset0_b64 s[{sMASK[x]}:{sMASK[x]+1}], s{sT2}")
        a(f"v_readlane_b32 s{sT}, v{VEND}, s{sT2}")
        a(f"s_mul_i32 s{sROW[x]}, s{sT2}, {ROWP}")
        a(f"s_add_u32 s{sSEGL[x]}, s{sSEGL[x]}, 1")
        a(f"s_min_u32 s{sT}, s{sT}, s{sEND[x]}")
        a(f"s_sub_u32 s{sT}, s{sT}, s{sPOS[x]}")
        a(f"s_ashr_i32 s{sT}, s{sT}, 2")
        a(f"s_max_i32 s{sSEGL[x]}, s{sSEGL[x]}, s{sT}")
        a.lab(lbl)
    def stream_setup():
        a(f"v_cmp_lt_u32 s[{sMASK[0]}:{sMASK[0]+1}], s{sPOS[0]}, v{VEND}")
        a(f"v_cmp_lt_u32 s[{sMASK[1]}:{sMASK[1]+1}], s{sPOS[1]}, v{VEND}")
        for x in range(2):
            lj = L("INJ")
            a(f"s_and_b64 s[{sMASK[x]}:{sMASK[x]+1}], s[{sMASK[x]}:{sMASK[x]+1}], s[{sNE}:{sNE+1}]")
            a(f"s_mov_b32 s{sSEGL[x]}, 0")
            a(f"s_mov_b32 s{sHEAD[x]}, 0")
            seg_next(x, L("INI"))
            a(f"s_max_i32 s{sCR[x]}, s{sROW[x]}, 0")
            a(f"s_sub_u32 s{sCR[x]}, s{sCR[x]}, {QS}")
            a(f"s_cmp_lt_i32 s{sROW[x]}, 0")
            a(f"s_cbranch_scc1 {lj}")
            a(f"v_readlane_b32 s{sT}, v{VSTA}, s{sT2}")
            a(f"s_add_u32 s{sT2}, s{sT2}, 1")
            a(f"v_mov_b32 v{T3}, s{sT2}")
            a(f"s_lshl_b32 s{sT2}, s{sW}, 1")
            a(f"s_add_u32 s{sT2}, s{sT2}, {x}")
            a(f"s_cmp_ge_u32 s{sT}, s{sPOS[x]}")
            a(f"s_cbranch_scc1 {lj}")
            a(f"s_mov_b32 s{sHEAD[x]}, 1")
            a(f"s_mul_i32 s{sCR[x]}, s{sT2}, {ROWP}")
            a(f"s_add_u32 s{sCR[x]}, s{sCR[x]}, {L_CR-L_Q}")
            a(f"s_lshl_b32 s{sT2}, s{sT2}, 2")
            a(f"v_mov_b32 v6, s{sT2}")
            a(f"ds_write_b32 v6, v{T3} offset:{L_HN}")
            a.lab(lj)
            a(f"s_max_i32 s{sROW[x]}, s{sROW[x]}, 0")
        a(f"v_add_u32 v{T0}, s{sROW[0]}, v{VQA}")
        a(f"v_add_u32 v{T1}, s{sCR[0]}, v{VQA}")
        exec_half(1)
        a(f"v_add_u32 v{T0}, s{sROW[1]}, v{VQA}")
        a(f"v_add_u32 v{T1}, s{sCR[1]}, v{VQA}")
        a("s_mov_b64 exec, -1")
        a(f"v_lshlrev_b32 v3, {2 + (DP.bit_length()-1)}, v{VES}")
        a(f"s_min_u32 s{sTEV}, s{sSEGL[0]}, s{sSEGL[1]}")
        a(f"s_sub_u32 s{sREM}, s{sTEV}, 1")
        a(f"s_sub_u32 s{sLEFT}, s{sEND[1]}, s{sPOS[1]}")
        a(f"s_lshr_b32 s{sLEFT}, s{sLEFT}, 2")
        a(f"s_sub_u32 s6, s{sHEAD[0]}, 1")
        a(f"s_sub_u32 s7, s{sHEAD[1]}, 1")
        a(f"s_and_b64 s[6:7], s[6:7], s[{sSM}:{sSM+1}]")
        a(f"v_mov_b32 v5, {L_ZERO}")
        a(f"v_cndmask_b32 v{T3}, v5, v{T1}, s[6:7]")
    def first_loads():
        FI = 40
        a(f"ds_read2_b32 {vr(FI,2)}, v{VIA} offset0:0 offset1:1")
        a(f"ds_read2_b32 {vr(FI+2,2)}, v{VIA} offset0:2 offset1:3")
        a(f"ds_read2_b32 {vr(ES[0],2)}, v{VEA} offset0:0 offset1:1")
        a(f"ds_read2_b32 {vr(ES[1],2)}, v{VEA} offset0:4 offset1:5")
        a("s_waitcnt lgkmcnt(2)")
        for t in range(DP):
            a(f"v_mov_b32 v{IP[t&1]}, v{FI+t}")
            a(f"buffer_load_dwordx4 {vr(BS+8*t+2,4)}, {vr(IP[t&1],2)}, s[44:47], 0 idxen offen")
        a(f"ds_read_b32 v{IP[0]}, v{VIA} offset:{4*DP}")
        a(f"ds_read_b32 v{IP[1]}, v{VIA} offset:{4*(DP+1)}")
    def pload(slot, pair):
        if "novm" in EXP: return
        a(f"buffer_load_dwordx4 {vr(BS+8*slot+2,4)}, {vr(pair,2)}, s[44:47], 0 idxen offen")
    def groups(n, body):
        for grp in ([0, 1], [2], [3, 4, 5]):
            grp = [i for i in grp if i < n]
            if not grp: continue
            l = None
            if grp[0] >= 2:
                l = L("SK")
                a(f"s_cmp_eq_u64 s[{sV[grp[0]]}:{sV[grp[0]]+1}], 0")
                a(f"s_cbranch_scc1 {l}")
            for i in grp: body(i)
            if l: a.lab(l)
    def rec(i): return R0 + i + (i // 3)
    def meta(i): return R0 + 3 + 4*(i // 3)
    def rank_atomics(n):
        def body(i):
            a(f"v_bfe_u32 v{LA+i}, v{meta(i)}, {8*(i%3)}, 8")
            a(f"s_mov_b64 exec, s[{sV[i]}:{sV[i]+1}]")
            a(f"ds_add_rtn_u32 v{RK+i}, v{LA+i}, v7 offset:{L_CNT}")
            a("s_mov_b64 exec, -1")
        groups(n, body)
    def zero_batch(upto):
        assert 16384 < upto <= 2*16384 and upto % 16 == 0
        a(f"ds_write_b128 v4, {vr(ZT,4)} offset:{upto-16384}")
        a(f"ds_write_b128 v4, {vr(ZT,4)}")
    XFB = [70, 86, 40]
    def gemm():
        for nt in range(3):
            for s in range(4):
                a(f"ds_read_b128 {vr(XFB[nt]+4*s,4)}, v{VXA} offset:{16*nt*XROW+64*s}")
        a(f"v_mov_b32 v{VSTA}, {hex(S_LOG2E)}")
        QB = [QA, XFB[0], QA]
        def post(nt):
            r = []
            if nt == 2: r += ["s_mov_b32 exec_lo, 0x00ff00ff", "s_mov_b32 exec_hi, 0x00ff00ff"]
            for t in range(2):
                for k in range(4): r.append(f"v_fma_f32 v{QB[nt]+4*t+k}, v{QB[nt]+4*t+k}, v{VSTA}, v{BI+4*t+k}")
                r.append(f"ds_write_b128 v{VQW}, {vr(QB[nt]+4*t,4)} offset:{16*nt*ROWP+64*t}")
            if nt == 2: r.append("s_mov_b64 exec, -1")
            return r
        a("s_waitcnt vmcnt(0) lgkmcnt(8)")
        for nt in range(3):
            if nt == 1: a("s_waitcnt lgkmcnt(4)")
            if nt == 2: a("s_waitcnt lgkmcnt(2)")
            for s in range(4):
                for t in range(2):
                    a(f"v_mfma_f32_16x16x32_bf16 {vr(QB[nt]+4*t,4)}, {vr(WF+16*t+4*s,4)}, {vr(XFB[nt]+4*s,4)}, {'0' if s == 0 else vr(QB[nt]+4*t,4)}")
            if nt >= 1:
                for ins in post(nt-1): a(ins)
        a("s_nop 0")
        for ins in post(2): a(ins)
    def wq_loads(lo, hi):
        for f in range(lo, hi):
            t, s = divmod(f, 4)
            a(f"buffer_load_dwordx4 {vr(WF+16*t+4*s,4)}, v{VXA}, s[40:43], s{sWQ+t} offen offset:{1024*s}")

    def signal(k):
        a("s_waitcnt lgkmcnt(0)")
        a("s_mov_b64 exec, 1")
        a(f"ds_add_u32 v7, v7 offset:{L_FLAG+4*k}")
        a("s_mov_b64 exec, -1")
    def spin(k):
        l = L("SP")
        a("s_mov_b32 s8, 0x100000")
        a.lab(l)
        a(f"ds_read_b32 v6, v7 offset:{L_FLAG+4*k}")
        a("s_sub_u32 s8, s8, 1")
        a(f"s_cbranch_scc1 {l}X")
        a("s_waitcnt lgkmcnt(0)")
        a("v_readfirstlane_b32 s9, v6")
        a("s_nop 0")
        a("s_cmp_lt_u32 s9, 32")
        a(f"s_cbranch_scc1 {l}")
        a.lab(l + "X")
    def list_build(n):
        groups(n, lambda i: a(f"ds_bpermute_b32 v{PS+i}, v{LA+i}, v{VSTA}"))
        if n > 1:
            a(f"s_cmp_gt_u32 s{sT}, {4*BATCH}")
            a("s_cbranch_scc1 K2_SLOW_S")
        a("s_waitcnt lgkmcnt(0)")
        def body(i):
            a(f"v_add_u32 v{PS+i}, v{PS+i}, v{RK+i}")
            a(f"v_lshlrev_b32 v{RK+i}, 2, v{PS+i}")
            a(f"s_mov_b64 exec, s[{sV[i]}:{sV[i]+1}]")
            a(f"ds_write_b16_d16_hi v{PS+i}, v{rec(i)} offset:{L_IDX}")
            a(f"ds_write_b16 v{RK+i}, v{rec(i)} offset:{L_EP+4}")
            a(f"ds_write_b16 v{RK+i}, v{rec(i)} offset:{L_EP+14}")
            a("s_mov_b64 exec, -1")
        groups(n, body)
    def deg_acc():
        l = L("ND")
        a(f"s_cmp_lg_u32 s{sW}, 0")
        a(f"s_cbranch_scc1 {l}")
        a(f"ds_add_u32 v5, v{VC} offset:{L_DEG}")
        a.lab(l)
    a("v_and_b32 v2, 0x70, v4")
    a("v_add_u32 v3, v3, v2")
    a(f"buffer_load_dwordx4 {vr(R0,4)}, v3, s[40:43], s4 offen")
    assert L_CNT <= 3*8192
    a(f"ds_write_b128 v4, {vr(ZT,4)}")
    a(f"ds_write_b128 v4, {vr(ZT,4)} offset:8192")
    a(f"ds_write_b128 v4, {vr(ZT,4)} offset:{L_CNT-8192}")
    lane_consts()
    a("v_and_b32 v2, 7, v0")
    a("s_waitcnt vmcnt(1)")
    for ins in wscale(): a(ins)
    stamp("a")
    a("s_waitcnt vmcnt(0)")
    stamp("b")
    a(f"v_lshrrev_b32 v{HD}, 24, v{R0+3}")
    a(f"v_sub_u32 v2, v{HD}, v2")
    a(f"v_cmp_lt_u32 vcc, {CAP}, v{HD}")
    for i in range(6):
        a(f"v_cmp_lt_i32 s[{sV[i]}:{sV[i]+1}], {8*i}, v2")
    a(f"s_cmp_eq_u64 s[{sV[3]}:{sV[3]+1}], 0")
    a("s_cbranch_scc1 K2_NOL1")
    a(f"buffer_load_dwordx4 {vr(R0+4,4)}, v3, s[40:43], s4 offen offset:128")
    a("s_waitcnt vmcnt(0)")
    a.lab("K2_NOL1")
    rank_atomics(6)
    a("s_mov_b64 exec, vcc")
    a(f"ds_write_b32 v7, v7 offset:{L_FLAG-4}")
    signal(0)
    spin(0)
    stamp(2)
    scan(True)
    a(f"s_cmp_lg_u32 s{sSLOW}, 0")
    a("s_cbranch_scc1 K2_SLOW_S")
    list_build(6)
    signal(1)
    deg_acc()
    ranges()
    spin(1)
    stamp(3)
    first_loads()
    stream_setup()
    spin(3)
    a("s_branch K2_JOIN")
    a.lab("K2_SCAN")
    scan(False)
    list_build(1)
    deg_acc()
    ranges()
    stream_setup()
    a("s_waitcnt lgkmcnt(0)")
    a("s_barrier")
    first_loads()
    a("s_branch K2_JOIN")

    a.lab("K2_GEMMER")
    if "noprio" not in EXP: a("s_setprio 3")
    srd(a, 36, PX, N*256)
    a("v_subrev_u32 v2, 512, v0")
    a("v_and_b32 v3, 15, v0")
    a("v_lshrrev_b32 v6, 4, v2")
    a("v_lshlrev_b32 v7, 16, v6")
    a("v_lshl_add_u32 v7, v3, 4, v7")
    a("v_add_u32 v7, s5, v7")
    a(f"buffer_load_dwordx4 {vr(XP,4)}, v7, s[36:39], 0 offen")
    a("v_add_u32 v7, 0x200000, v7")
    a(f"buffer_load_dwordx4 {vr(XP+4,4)}, v7, s[36:39], 0 offen")
    a("s_lshr_b32 s9, s2, 3")
    a(f"s_add_u32 s9, s9, s{sW}")
    a("s_and_b32 s9, s9, 7")
    a(f"s_lshl_b32 s{sWQ}, s9, 13")
    a(f"s_add_u32 s{sWQ}, s{sWQ}, {hex(WS_WQ)}")
    a(f"s_add_u32 s{sWQ+1}, s{sWQ}, 4096")
    a(f"v_mov_b32 v{VXA}, v5")
    a("v_and_b32 v7, 0x30, v0")
    a("s_lshl_b32 s8, s9, 7")
    a(f"v_add_u32 v{PB}, s8, v7")
    a(f"global_load_dwordx4 {vr(BI,4)}, v{PB}, s[6:7] offset:{WS_B1-WS_WE}")
    a(f"global_load_dwordx4 {vr(BI+4,4)}, v{PB}, s[6:7] offset:{WS_B1-WS_WE+64}")
    wq_loads(0, 2)
    a(f"v_mul_u32_u24 v6, {XROW}, v6")
    a(f"v_lshl_add_u32 v6, v3, 4, v6")
    a(f"v_add_u32 v1, {L_XS}, v6")
    a(f"v_mul_u32_u24 v{VQW}, {ROWP}, v3")
    a(f"s_add_u32 s8, s8, {L_Q}")
    a(f"v_add3_u32 v{VQW}, v{VQW}, v7, s8")
    a(f"v_mul_u32_u24 v2, {XROW}, v3")
    a(f"s_mov_b32 s8, {L_XS}")
    a(f"v_add3_u32 v2, v2, v7, s8")
    wq_loads(2, 4)
    lane_consts()
    wq_loads(4, 8)
    a(f"v_mov_b32 v{VXA}, v2")
    stamp("a")
    a(f"s_waitcnt vmcnt(10)")
    stamp("b")
    a(f"ds_write_b128 v1, {vr(XP,4)}")
    a(f"s_cmp_ge_u32 s{sW}, 12")
    a("s_cbranch_scc1 K2_NOXS")
    a(f"ds_write_b128 v1, {vr(XP+4,4)} offset:{32*XROW}")
    a.lab("K2_NOXS")
    for k in range(0, 4, 2): a(f"v_pk_mov_b32 {vr(122+0,2) if False else vr(ES[k//2],2)}, {vr(WE+k,2)}, {vr(WE+k,2)} op_sel:[0,1]")
    signal(2)
    spin(2)
    gemm()
    signal(3)
    for d in range(DP):
        a(f"v_pk_mov_b32 {vr(BS+8*d,2)}, {vr(ES[0],2)}, {vr(ES[0],2)} op_sel:[0,1]")
        a(f"v_pk_mov_b32 {vr(BS+8*d+6,2)}, {vr(ES[1],2)}, {vr(ES[1],2)} op_sel:[0,1]")
    stamp("c")
    if "touch" in EXP:
        a(f"s_cmp_lg_u32 s{sW}, 15")
        a("s_cbranch_scc1 K2_NOTOUCH")
        a("v_and_b32 v6, 63, v0")
        a("v_lshlrev_b32 v6, 16, v6")
        a("v_add_u32 v6, s5, v6")
        a(f"buffer_load_dword v{QA}, v6, s[48:51], 0 offen")
        a(f"global_load_dword v{QA+1}, v7, s[{PB2}:{PB2+1}]")
        a.lab("K2_NOTOUCH")
    spin(0)
    stamp(2)
    scan(True)
    a(f"s_cmp_gt_u32 s{sT}, {4*BATCH}")
    a(f"s_cselect_b32 s{sSLOW}, 1, s{sSLOW}")
    a(f"s_cmp_lg_u32 s{sSLOW}, 0")
    a("s_cbranch_scc1 K2_SLOW_SYNC")
    ranges()
    spin(1)
    stamp(3)
    first_loads()
    stream_setup()
    spin(3)
    a.lab("K2_JOIN")
    a(f"ds_read_b128 {vr(ACC,4)}, v{T3}")
    a(f"ds_read_b128 {vr(ACC+4,4)}, v{T3} offset:16")
    a("s_waitcnt lgkmcnt(0)")
    if "noprio" not in EXP: a("s_setprio 2")
    stamp("d")
    a(f"s_cmp_eq_u32 s{sTEV}, {hex(INF)}")
    a("s_cbranch_scc1 K2_LOOP_DONE")
    a(f"ds_read_b128 {vr(Q,4)}, v{T0}")
    a(f"ds_read_b128 {vr(Q+4,4)}, v{T0} offset:16")
    def mfma(slot, es, u, which):
        if "nomfma" in EXP: return
        if which == 0:
            a(f"v_mfma_f32_16x16x32_bf16 {vr(u,4)}, {vr(es,4)}, {vr(BS+8*slot,4)}, {vr(Q,4)}")
        else:
            a(f"v_mfma_f32_16x16x32_bf16 {vr(u+4,4)}, {vr(es-2,4)}, {vr(BS+8*slot+4,4)}, {vr(Q+4,4)}")
    a(f"s_waitcnt vmcnt({DP-1}) lgkmcnt(0)")
    mfma(0, ES[0], U[0], 0); mfma(0, ES[0], U[0], 1)
    pload(0, IP[0])
    stamp(4)
    a(f"s_sub_u32 s{sREM}, s{sREM}, 1")
    a("s_nop 5")
    a("s_cbranch_scc1 K2_BND0")
    a("s_branch K2_SUB0")
    def rdE(k):
        if "nods" in EXP: return
        a(f"ds_read2_b32 {vr(ES[k&1],2)}, v{VEA} offset0:{4*(k+2)} offset1:{4*(k+2)+1}")
    def rdI(k):
        if "nods" in EXP: return
        a(f"ds_read_b32 v{IP[k&1]}, v{VIA} offset:{4*(k+2+DP)}")
    def ex(c, u): a(f"v_exp_f32 v{EX+c}, v{u+c}")
    def rc(c): a(f"v_rcp_f32 v{EX+c}, v{EX+c}")
    def pa(c): a(f"v_pk_add_f32 {vr(EX+c,2)}, {vr(EX+c,2)}, 1.0 op_sel_hi:[1,0]")
    def pf(c, u): a(f"v_pk_fma_f32 {vr(ACC+c,2)}, {vr(u+c,2)}, {vr(EX+c,2)}, {vr(ACC+c,2)}")
    def valu(u):
        for c in range(8): ex(c, u)
        for c in range(0, 8, 2): pa(c)
        for c in range(8): rc(c)
        for c in range(0, 8, 2): pf(c, u)
    def tail(u):
        rc(7)
        for c in range(0, 8, 2): pf(c, u)
    uid = [0]
    def prio():
        if "noprio" in EXP: return
        uid[0] += 1
        lbl = f"K2_PR{uid[0]}"
        a(f"s_cmp_gt_i32 s{sLEFT}, {PR1}")
        a(f"s_cbranch_scc1 {lbl}_D")
        a("s_setprio 1")
        a(f"s_cmp_gt_i32 s{sLEFT}, {PR0}")
        a(f"s_cbranch_scc1 {lbl}_D")
        a("s_setprio 0")
        a.lab(f"{lbl}_D")
    def advance():
        a(f"v_add_u32 v{VEA}, v3, v{VEA}")
        a(f"v_add_u32 v{VIA}, {4*DP}, v{VIA}")
        a(f"s_sub_u32 s{sLEFT}, s{sLEFT}, {DP}")
        prio()
    a.raw(".p2align 3")
    a.lab("K2_LOOP")
    advance()
    for k in range(DP):
        u = U[k & 1]
        a.lab(f"K2_SUB{k}")
        ex(0, u)
        if k == 2 and PRM >= 0 and "noprio" not in EXP:
            a(f"s_cmp_gt_i32 s{sLEFT}, {PRM}")
            a("s_cbranch_scc1 K2_PM")
            a("s_setprio 0")
            a.lab("K2_PM")
        a(f"s_waitcnt vmcnt({DP-1}) lgkmcnt(0)")
        ex(1, u)
        mfma((k+1) % DP, ES[(k+1) & 1], U[(k+1) & 1], 0)
        ex(2, u)
        mfma((k+1) % DP, ES[(k+1) & 1], U[(k+1) & 1], 1)
        ex(3, u)
        pload((k+1) % DP, IP[(k+1) & 1])
        ex(4, u)
        rdE(k)
        ex(5, u)
        rdI(k)
        ex(6, u); ex(7, u)
        for c in range(0, 8, 2): pa(c)
        for c in range(6): rc(c)
        a(f"s_sub_u32 s{sREM}, s{sREM}, 1")
        rc(6)
        a(f"s_cbranch_scc1 K2_BNDT{k}")
        tail(u)
    a("s_branch K2_LOOP")
    for k in range(DP):
        kp = (k - 1) % DP
        a.lab(f"K2_BNDT{kp}")
        tail(U[kp & 1])
        if k == 0: advance()
        a.lab(f"K2_BND{k}")
        a(f"s_mov_b64 s[{sX}:{sX+1}], 0")
        a("s_mov_b64 s[6:7], 0")
        for x in range(2):
            a(f"s_cmp_lg_u32 s{sSEGL[x]}, s{sTEV}")
            a(f"s_cbranch_scc1 K2_B{k}_N{x}")
            a(f"s_mov_b32 s{sX+x}, -1")
            seg_next(x, f"K2_B{k}_S{x}")
            a(f"s_cmp_lt_i32 s{sROW[x]}, 0")
            a(f"s_cbranch_scc1 K2_B{k}_N{x}")
            a(f"s_mov_b32 s{6+x}, -1")
            exec_half(x)
            a(f"v_add_u32 v{T0}, s{sROW[x]}, v{VQA}")
            a.lab(f"K2_B{k}_N{x}")
        a("s_mov_b64 exec, s[6:7]")
        a("s_waitcnt lgkmcnt(0)")
        a(f"ds_read_b128 {vr(Q,4)}, v{T0}")
        a(f"ds_read_b128 {vr(Q+4,4)}, v{T0} offset:16")
        a("s_mov_b64 exec, -1")
        valu(U[k & 1])
        a(f"s_mov_b64 exec, s[{sX}:{sX+1}]")
        a(f"ds_write_b128 v{T1}, {vr(ACC,4)}")
        a(f"ds_write_b128 v{T1}, {vr(ACC+4,4)} offset:16")
        a("s_mov_b64 exec, s[6:7]")
        a(f"v_subrev_u32 v{T1}, {QS}, v{T0}")
        a(f"v_cndmask_b32 v{T3}, v5, v{T1}, s[{sSM}:{sSM+1}]")
        a(f"ds_read_b128 {vr(ACC,4)}, v{T3}")
        a(f"ds_read_b128 {vr(ACC+4,4)}, v{T3} offset:16")
        a("s_mov_b64 exec, -1")
        a(f"s_sub_u32 s{sREM}, -1, s{sTEV}")
        a(f"s_min_u32 s{sTEV}, s{sSEGL[0]}, s{sSEGL[1]}")
        a(f"s_cmp_eq_u32 s{sTEV}, {hex(INF)}")
        a("s_cbranch_scc1 K2_LOOP_DONE")
        a(f"s_add_u32 s{sREM}, s{sREM}, s{sTEV}")
        a(f"s_waitcnt vmcnt({DP-1}) lgkmcnt(2)")
        mfma((k+1) % DP, ES[(k+1) & 1], U[(k+1) & 1], 0)
        mfma((k+1) % DP, ES[(k+1) & 1], U[(k+1) & 1], 1)
        pload((k+1) % DP, IP[(k+1) & 1])
        rdE(k); rdI(k)
        a(f"s_sub_u32 s{sREM}, s{sREM}, 1")
        a("s_nop 3")
        if k < DP-1:
            a(f"s_cbranch_scc1 K2_BND{k+1}")
            a(f"s_branch K2_SUB{k+1}")
        else:
            a(f"s_cbranch_scc0 K2_LOOP")
            advance()
            a(f"s_branch K2_BND0")
    a.lab("K2_LOOP_DONE")
    a("s_setprio 0")
    stamp(5)
    if DEBUG:
        a("s_lshl_b32 s93, s2, 4")
        a("s_add_u32 s93, s93, s3")
        a("s_lshl_b32 s93, s93, 5")
        a("s_add_u32 s93, s93, 0xA80000")
        a("v_mov_b32 v1, s93")
        for i in range(8): a(f"v_mov_b32 v{8+i}, s{84+i}")
        a("global_store_dwordx4 v1, v[8:11], s[34:35]")
        a("global_store_dwordx4 v1, v[12:15], s[34:35] offset:16")
    a("s_waitcnt vmcnt(0)")
    a(f"s_cmp_lg_u32 s{sSLOW}, 0")
    a("s_cbranch_scc1 K2_COMB")
    a.lab("K2_EPI")
    a.c("out = -ln2 * S @ w2 + deg*b2")
    AF = 56
    SF = 8
    OA = 32
    B2 = 120
    DG = 124
    a(f"s_cmp_ge_u32 s{sW}, 4")
    a("s_cbranch_scc1 K2_COMB")
    a(f"s_lshl_b32 s6, s{sW}, 14")
    a(f"s_add_u32 s6, s6, {hex(WS_W2)}")
    a("v_and_b32 v7, 63, v0")
    a("v_lshlrev_b32 v7, 4, v7")
    for q in range(4):
        if q: a("s_add_u32 s6, s6, 4096")
        for s in range(4):
            a(f"buffer_load_dwordx4 {vr(AF+16*q+4*s,4)}, v7, s[40:43], s6 offen offset:{1024*s}")
    a("v_bfe_u32 v7, v0, 4, 2")
    a(f"s_lshl_b32 s7, s{sW}, 6")
    a("v_lshlrev_b32 v5, 3, v7")
    a("v_add_u32 v5, s7, v5")
    a(f"global_load_dwordx2 {vr(B2,2)}, v5, s[{PB2}:{PB2+1}]")
    a(f"global_load_dwordx2 {vr(B2+2,2)}, v5, s[{PB2}:{PB2+1}] offset:32")
    a.lab("K2_COMB")
    a("v_and_b32 v1, 63, v0")
    a("v_lshlrev_b32 v2, 2, v1")
    a(f"v_add_u32 v2, {L_HN}, v2")
    a(f"s_mul_i32 s4, s{sW}, {ROWP}")
    a(f"s_add_u32 s4, s4, {L_S}")
    a("v_lshlrev_b32 v3, 4, v1")
    a("v_add_u32 v4, s4, v3")
    a(f"v_add_u32 v3, {L_CR}, v3")
    a(f"s_mul_i32 s4, s{sW}, {SBROW}")
    a(f"s_add_u32 s4, s4, {L_SB}")
    a("v_lshlrev_b32 v6, 3, v1")
    a("v_add_u32 v6, s4, v6")
    stamp("e")
    a("s_waitcnt lgkmcnt(0)")
    a("s_barrier")
    stamp("f")
    a("ds_read_b32 v2, v2")
    for r in range(3):
        a(f"ds_read_b128 {vr(8+4*r,4)}, v4 offset:{16*r*ROWP}")
    a(f"s_add_u32 s4, s{sW}, 1")
    a(f"s_or_b64 s[10:11], s[{sNE}:{sNE+1}], s[{sSM}:{sSM+1}]")
    a(f"s_lshr_b64 s[10:11], s[10:11], s{sW}")
    a("s_waitcnt lgkmcnt(3)")
    a("v_subrev_u32 v2, s4, v2")
    CM = [6, 12, 14]
    for r in range(3): a(f"v_cmp_eq_u32 s[{CM[r]}:{CM[r]+1}], {16*r}, v2")
    a.lab("K2_CBL")
    for r in range(3):
        a(f"s_ff1_i32_b32 s8, s{CM[r]}")
        a(f"s_bitset0_b32 s{CM[r]}, s8")
        a(f"s_mul_i32 s9, s8, {ROWP}")
        a("s_cmp_lt_i32 s8, 0")
        a(f"v_add_u32 v7, s9, v3")
        a(f"s_cbranch_scc0 K2_CH{r}")
        a(f"v_mov_b32 v7, {L_ZERO}")
        a.lab(f"K2_CH{r}")
        a(f"ds_read_b128 {vr(20+4*r,4)}, v7")
    for r in range(3):
        a(f"s_bitcmp1_b64 s[10:11], {16*r}")
        a(f"s_cbranch_scc1 K2_CZ{r}")
        a("s_waitcnt lgkmcnt(3)")
        for c in range(4): a(f"v_mov_b32 v{8+4*r+c}, 0")
        a.lab(f"K2_CZ{r}")
    a(f"s_or_b32 s8, s{CM[0]}, s{CM[1]}")
    a(f"s_or_b32 s8, s8, s{CM[2]}")
    a("s_waitcnt lgkmcnt(0)")
    for r in range(3):
        for c in range(0, 4, 2): a(f"v_pk_add_f32 {vr(8+4*r+c,2)}, {vr(8+4*r+c,2)}, {vr(20+4*r+c,2)}")
    a("s_cbranch_scc1 K2_CBL")
    a(f"s_cmp_lg_u32 s{sSLOW}, 0")
    a("s_cbranch_scc1 K2_SLOW_WB")
    for r in range(3):
        a(f"v_cvt_pk_bf16_f32 v{24+2*r}, v{8+4*r}, v{9+4*r}")
        a(f"v_cvt_pk_bf16_f32 v{25+2*r}, v{10+4*r}, v{11+4*r}")
        a(f"ds_write_b64 v6, {vr(24+2*r,2)} offset:{16*r*SBROW}")
    a("v_and_b32 v2, 15, v0")
    a("v_bfe_u32 v7, v0, 4, 2")
    a(f"v_mul_u32_u24 v4, {SBROW}, v2")
    a("v_lshl_add_u32 v4, v7, 4, v4")
    a(f"v_add_u32 v4, {L_SB}, v4")
    a(f"v_lshlrev_b32 v1, 2, v2")
    a(f"v_add_u32 v1, {L_DEG}, v1")
    a("v_lshl_add_u32 v5, v2, 16, v5")
    a("s_lshl_b32 s9, s2, 8")
    a("v_add_u32 v5, s9, v5")
    stamp("g")
    a("s_waitcnt lgkmcnt(0)")
    a("s_barrier")
    a(f"s_cmp_ge_u32 s{sW}, 4")
    a("s_cbranch_scc1 K2_EXIT")
    stamp(6)
    seq = [(s, nt) for nt in range(3) for s in range(8)]
    def sread(i):
        s, nt = seq[i]
        a(f"ds_read_b128 {vr(SF+4*(i%4),4)}, v4 offset:{64*s+16*nt*SBROW}")
    for nt in range(3): a(f"ds_read_b32 v{DG+nt}, v1 offset:{64*nt}")
    for i in range(4): sread(i)
    a("s_waitcnt vmcnt(0)")
    BU = 24
    pre = []
    for t in range(2):
        pre += [f"v_lshlrev_b32 v{BU+4*t}, 16, v{B2+2*t}", f"v_and_b32 v{BU+4*t+1}, 0xffff0000, v{B2+2*t}",
                f"v_lshlrev_b32 v{BU+4*t+2}, 16, v{B2+2*t+1}", f"v_and_b32 v{BU+4*t+3}, 0xffff0000, v{B2+2*t+1}"]
    pre.append(f"v_mov_b32 v{DG+3}, {hex(S_LN2)}")
    for nt in range(3):
        pre += [f"v_cvt_f32_u32 v{DG+nt}, v{DG+nt}", f"v_mul_f32 v{DG+nt}, 0.25, v{DG+nt}"]
    def tailops(nt):
        r = []
        for k in range(8): r.append(f"v_mul_f32 v{OA+8*nt+k}, v{DG+3}, v{OA+8*nt+k}")
        for k in range(8): r.append(f"v_fmac_f32 v{OA+8*nt+k}, v{DG+nt}, v{BU+k}")
        if nt: r.append(f"v_add_u32 v5, 0x100000, v5")
        for t in range(2):
            o = OA + 8*nt + 4*t
            r += [f"v_cvt_pk_bf16_f32 v{o}, v{o}, v{o+1}", f"v_cvt_pk_bf16_f32 v{o+1}, v{o+2}, v{o+3}",
                  f"buffer_store_dwordx2 {vr(o,2)}, v5, s[48:51], 0 offen offset:{32*t}"]
        return r
    extra = list(pre)
    for i, (s, nt) in enumerate(seq):
        a(f"s_waitcnt lgkmcnt({min(3, len(seq)-1-i)})")
        for t in range(2):
            o = OA + 8*nt + 4*t
            c = "0" if s == 0 else vr(o, 4)
            a(f"v_mfma_f32_16x16x32_bf16 {vr(o,4)}, {vr(AF+32*t+4*s,4)}, {vr(SF+4*(i%4),4)}, {c}")
        if i + 4 < len(seq): sread(i+4)
        if s == 2 and nt:
            assert not extra
            extra = tailops(nt-1)
        for _ in range(4):
            if extra: a(extra.pop(0))
    assert not extra
    a("s_nop 7")
    for ins in tailops(2): a(ins)
    if DEBUG:
        stamp(7)
        a("s_cmp_lg_u32 s3, 0")
        a("s_cbranch_scc1 K2_EXIT")
        a("s_memrealtime s[98:99]")
        a("s_lshl_b32 s93, s2, 6")
        a("s_add_u32 s93, s93, 0xA00000")
        a("v_mov_b32 v1, s93")
        a("s_waitcnt lgkmcnt(0)")
        for i in range(8):
            a(f"s_sub_u32 s93, s{84+i}, s84")
            a("v_mov_b32 v2, s93")
            a(f"global_store_dword v1, v2, s[34:35] offset:{4*i}")
        for off, sr_ in ((32, 96), (36, 98), (40, 92)):
            a(f"v_mov_b32 v2, s{sr_}")
            a(f"global_store_dword v1, v2, s[34:35] offset:{off}")
    a.lab("K2_EXIT")
    a("s_endpgm")
    a.lab("K2_SLOW_WB")
    a(f"ds_write_b128 v4, v[8:11]")
    a(f"ds_write_b128 v4, v[12:15] offset:{16*ROWP}")
    a(f"s_cmp_ge_u32 s{sW}, 8")
    a("s_cbranch_scc1 K2_SLOW_SYNC")
    a(f"ds_write_b128 v4, v[16:19] offset:{32*ROWP}")
    a("s_branch K2_SLOW_SYNC")
    a.lab("K2_SLOW_S")
    a.lab("K2_SLOW_SET")
    a(f"s_mov_b32 s{sSLOW}, 1")
    a.lab("K2_SLOW_SYNC")
    a("s_waitcnt lgkmcnt(0)")
    a("s_barrier")
    a.lab("K2_SLOW_NEXT")
    a("v_lshlrev_b32 v4, 4, v0")
    for k in range(4): a(f"v_mov_b32 v{ZT+k}, 0")
    zero_batch(L_BZEND)
    a(f"s_cmp_lg_u32 s{sBATCH}, 0")
    a("s_cbranch_scc1 K2_SLOW_NZ")
    a(f"s_mov_b64 s[{sSM}:{sSM+1}], -1")
    a(f"ds_write_b128 v4, {vr(ZT,4)} offset:{L_S}")
    a(f"ds_write_b128 v4, {vr(ZT,4)} offset:{L_S+16384}")
    a(f"ds_write_b128 v4, {vr(ZT,4)} offset:{L_S+40*ROWP-16384}")
    a.lab("K2_SLOW_NZ")
    a(f"s_cmp_lt_u32 s{sBATCH}, {E}")
    a("s_cbranch_scc1 K2_SLOW_GO")
    a(f"s_mov_b32 s{sSLOW}, 0")
    a("s_branch K2_EPI")
    a.lab("K2_SLOW_GO")
    a(f"v_add_u32 v5, s{sBATCH}, v0")
    a(f"v_mov_b32 v6, {E}")
    a("v_cmp_lt_u32 vcc, v5, v6")
    a(f"v_min_u32 v5, {E-1}, v5")
    a("v_lshlrev_b32 v6, 2, v5")
    a("v_lshlrev_b32 v7, 1, v5")
    SD, SE, SS = 40, 41, 42
    a(f"global_load_dword v{SD}, v6, s[{PDST}:{PDST+1}]")
    a(f"global_load_dword v{SS}, v6, s[{PSRC}:{PSRC+1}]")
    a(f"global_load_ushort v{SE}, v7, s[{PE}:{PE+1}]")
    a("v_and_b32 v5, 63, v0")
    a("v_lshlrev_b32 v5, 2, v5")
    a("s_waitcnt vmcnt(0) lgkmcnt(0)")
    a("s_barrier")
    a(f"v_and_b32 v7, 0xff, v{SD}")
    a(f"v_cmp_eq_u32 s[{sV[0]}:{sV[0]+1}], s2, v7")
    a(f"v_lshl_or_b32 v{R0}, v{SS}, 16, v{SE}")
    a(f"v_lshrrev_b32 v7, 6, v{SD}")
    a(f"v_and_b32 v{R0+3}, 0xfc, v7")
    a(f"s_and_b64 s[{sV[0]}:{sV[0]+1}], s[{sV[0]}:{sV[0]+1}], vcc")
    a("v_mov_b32 v7, 4")
    rank_atomics(1)
    a("s_mov_b64 exec, -1")
    a(f"s_add_u32 s{sBATCH}, s{sBATCH}, {BATCH}")
    a("s_waitcnt lgkmcnt(0)")
    a("s_barrier")
    a("s_branch K2_SCAN")
    return 128

HEADER = open('standalone__edge_featured_mpnn_mpnn__graph.s.ref').read().split("; Override launch")[0]

def kd(name, nv, ns):
    acc = (nv + 3) // 4 * 4
    return f""".p2align 6
.amdhsa_kernel {name}
  .amdhsa_next_free_vgpr {nv}
  .amdhsa_next_free_sgpr {ns}
  .amdhsa_accum_offset {acc}
  .amdhsa_group_segment_fixed_size 0
  .amdhsa_kernarg_size 88
  .amdhsa_user_sgpr_count 2
  .amdhsa_user_sgpr_kernarg_segment_ptr 1
  .amdhsa_system_sgpr_workgroup_id_x 1
.end_amdhsa_kernel
"""

def build(TPW=4, DP=6):
    a = Asm()
    g1 = gen_k1(a, TPW)
    nv2 = gen_k2(a, DP)
    out = HEADER
    out += f"; @launch kernel=k1_kernel grid=({g1},1,1) block=(512,1,1) lds={K1_LDS}\n"
    out += f"; @launch kernel=k2_kernel grid=(256,1,1) block=(1024,1,1) lds={L_END}\n"
    out += '.amdgcn_target "amdgcn-amd-amdhsa--gfx950"\n.text\n'
    out += a.text()
    out += '.section .rodata,"a"\n'
    out += kd("k1_kernel", 144, 64)
    out += kd("k2_kernel", 128, 102)
    return out

if __name__ == "__main__":
    import argparse
    ap = argparse.ArgumentParser()
    ap.add_argument("-o", default="standalone__edge_featured_mpnn_mpnn__graph.s")
    ap.add_argument("--tpw", type=int, default=4)
    ap.add_argument("--dp", type=int, default=4)
    ap.add_argument("--debug", action="store_true")
    ap.add_argument("--srcmask", type=int, default=0)
    ap.add_argument("--exp", default="")
    ap.add_argument("--pr1", type=int, default=8)
    ap.add_argument("--pr0", type=int, default=4)
    ap.add_argument("--prm", type=int, default=-1)
    ap.add_argument("--wqs", type=int, default=4)
    ap.add_argument("--wqs2", type=int, default=5)
    ap.add_argument("--pf", type=int, default=0)
    args = ap.parse_args()
    DEBUG = args.debug
    SRCMASK = args.srcmask
    PF = args.pf
    WQSPLIT = args.wqs
    PR1, PR0, PRM = args.pr1, args.pr0, args.prm
    WQSPLIT2 = args.wqs2
    EXP = set(args.exp.split(",")) if args.exp else set()
    open(args.o, "w").write(build(args.tpw, args.dp))
```

```python
import sys, struct

N, E, D_, H = 10000, 160000, 128, 256
NCH = 64
CH_E = E // NCH
WS_P = 0
WS_CELLS = 0x500000
WS_WQ = 0x900000
WS_W2 = 0x910000
WS_WE = 0x920000
WS_B1 = 0x920400
WS_END = 0x921000

def f32bits(x): return struct.unpack('<I', struct.pack('<f', x))[0]
S_LOG2E = f32bits(-1.4426950408889634)
S_LN2 = f32bits(-0.6931471805599453)

class Asm:
    def __init__(self): self.l = []
    def __call__(self, s): self.l.append("    " + s)
    def lab(self, s): self.l.append(s + ":")
    def c(self, s): self.l.append("    ; " + s)
    def raw(self, s): self.l.append(s)
    def text(self): return "\n".join(self.l) + "\n"

def vr(a, n): return f"v[{a}:{a+n-1}]"
def sr(a, n): return f"s[{a}:{a+n-1}]"

def srd(a, d, base, nrec, stride=0, add=0):
    if add:
        a(f"s_add_u32 s{d}, s{base}, {hex(add)}")
        a(f"s_addc_u32 s{d+1}, s{base+1}, 0")
    else:
        a(f"s_mov_b32 s{d}, s{base}")
        a(f"s_mov_b32 s{d+1}, s{base+1}")
    if stride:
        a(f"s_or_b32 s{d+1}, s{d+1}, {hex(stride << 16)}")
    a(f"s_mov_b32 s{d+2}, {hex(nrec)}")
    a(f"s_mov_b32 s{d+3}, 0x20000")

PX, PE, PSRC, PDST, PW1, PB1, PW2, PB2 = 16, 18, 20, 22, 24, 26, 28, 30

DEBUG = False
SRCMASK = 0
EXP = set()
PF = 0
WQSPLIT = 2
PR1 = 10
PR0 = 4
PRM = -1
VPFN = 16
OUTFL = ''
WQSPLIT2 = 5
def code_prefetch(a, tag, target, per, sa, dst, nslice_shift=3, mask=31):
    a(f"s_getpc_b64 s[{sa}:{sa+1}]")
    a.lab(f"CP_{tag}")
    a(f"s_lshr_b32 s{dst}, s2, {nslice_shift}")
    a(f"s_and_b32 s{dst}, s{dst}, {mask}")
    a(f"s_mul_i32 s{dst}, s{dst}, {per*128}")
    a(f"s_min_u32 s{dst}, s{dst}, TEXT_END-{target}-{per*128}")
    a(f"s_add_u32 s{dst}, s{dst}, {target}-CP_{tag}")
    a(f"s_add_u32 s{sa}, s{sa}, s{dst}")
    a(f"s_addc_u32 s{sa+1}, s{sa+1}, 0")
    for i in range(per):
        a(f"s_load_dword s{dst+i}, s[{sa}:{sa+1}], {128*i}")

CAP1 = 24
CAP = 48
K1_LDS = 65536 + 16384
def gen_k1(a, TPW):
    assert TPW == 4
    NG = (625 + TPW - 1) // TPW
    NTR = 8
    GRID = NCH + NTR + NG
    a.raw(".globl k1_kernel"); a.raw(".p2align 8"); a.raw(".type k1_kernel,@function")
    a.lab("k1_kernel")
    a(f"s_cmp_ge_u32 s2, {GRID}")
    a("s_cbranch_scc1 K1_EXIT")
    a("s_load_dwordx16 s[16:31], s[0:1], 0")
    a("s_load_dwordx2 s[32:33], s[0:1], 80")
    if "cpf" in EXP: code_prefetch(a, "A", "K1_BODY", 5, 64, 66, mask=31)
    if "helper" in EXP:
        a("v_cmp_le_u32 vcc, 512, v0")
        a("s_cbranch_vccnz K1_HELPER")
    if "vpf1" in EXP:
        a("s_getpc_b64 s[64:65]")
        a.lab("K1_PC")
        a(f"v_cmp_le_u32 vcc, {512-16}, v0")
        a("s_and_saveexec_b64 s[66:67], vcc")
        a("s_cbranch_execz K1_NOVPF")
        a("s_lshr_b32 s68, s2, 3")
        a(f"s_and_b32 s68, s68, 7")
        a(f"s_lshl_b32 s68, s68, 11")
        a(f"v_and_b32 v1, 15, v0")
        a("v_lshlrev_b32 v1, 7, v1")
        a("v_add_u32 v1, s68, v1")
        a("v_min_u32 v1, TEXT_END-K1_PC-4, v1")
        a("global_load_dword v143, v1, s[64:65]")
        a.lab("K1_NOVPF")
        a("s_mov_b64 exec, s[66:67]")
    a.lab("K1_BODY")
    if DEBUG: a("s_memrealtime s[56:57]")
    K1S = [52, 53, 54, 55, 62, 63]
    def st1(i):
        if not (DEBUG and "k1st" in EXP): return
        a("s_memtime s[14:15]")
        a("s_waitcnt lgkmcnt(0)")
        a(f"s_mov_b32 s{K1S[i]}, s14")
    st1(0)
    def k1end():
        if DEBUG:
            a("s_waitcnt vmcnt(0)")
            a("s_memrealtime s[58:59]")
            a("s_lshl_b32 s60, s2, 4")
            a("s_add_u32 s60, s60, 0xB00000")
            a("v_mov_b32 v1, s60")
            a("s_waitcnt lgkmcnt(0)")
            a("v_mov_b32 v2, s56")
            a("v_mov_b32 v3, s58")
            a("v_cmp_eq_u32 vcc, 0, v0")
            a("s_and_saveexec_b64 s[60:61], vcc")
            a("s_cbranch_execz K1_EXIT")
            a("global_store_dwordx2 v1, v[2:3], s[32:33]")
            if "k1st" in EXP:
                st1(5)
                a("s_lshl_b32 s60, s2, 5")
                a("s_add_u32 s60, s60, 0xB80000")
                a("v_mov_b32 v1, s60")
                for i in range(6):
                    a(f"s_sub_u32 s60, s{K1S[i]}, s52")
                    a("v_mov_b32 v2, s60")
                    a(f"global_store_dword v1, v2, s[32:33] offset:{4*i}")
        a("s_endpgm")
    if "gfirst" in EXP:
        a(f"s_add_u32 s3, s2, {NCH+NTR}")
        a(f"s_sub_u32 s4, s2, {NG}")
        a(f"s_cmp_lt_u32 s2, {NG}")
        a("s_cselect_b32 s2, s3, s4")
    a(f"s_cmp_lt_u32 s2, {NCH}")
    a("s_cbranch_scc1 K1_SORT")
    a(f"s_cmp_lt_u32 s2, {NCH+NTR}")
    a("s_cbranch_scc1 K1_TRANS")
    a.c("GEMM role: P' = -log2e * x @ W1a ; W and x staged in LDS by DMA (XOR-swizzled 16B slots)")
    LX = 65536
    a("v_lshrrev_b32 v1, 6, v0")
    a("v_and_b32 v2, 63, v0")
    a("v_readfirstlane_b32 s3, v1")
    a("v_lshrrev_b32 v3, 5, v2")
    a("v_and_b32 v4, 31, v2")
    a("v_lshlrev_b32 v5, 2, v3")
    a("v_xor_b32 v4, v4, v5")
    a("v_lshlrev_b32 v4, 4, v4")
    a("v_lshl_add_u32 v4, v3, 9, v4")
    a("v_xor_b32 v5, 0x80, v4")
    a("v_lshrrev_b32 v3, 4, v2")
    a("v_and_b32 v6, 15, v2")
    a("v_lshlrev_b32 v7, 3, v1")
    a("v_and_b32 v7, 8, v7")
    a("v_or_b32 v7, v7, v3")
    a("v_xor_b32 v7, v6, v7")
    a("v_lshlrev_b32 v7, 4, v7")
    a("v_lshl_add_u32 v7, v3, 8, v7")
    a("v_xor_b32 v8, 0x40, v7")
    a(f"s_sub_u32 s4, s2, {NCH+NTR}")
    a("s_lshl_b32 s5, s4, 14")
    a("s_lshl_b32 s6, s3, 11")
    a("s_add_u32 s5, s5, s6")
    a("s_lshr_b32 s7, s2, 3")
    a("s_add_u32 s7, s7, s3")
    a("s_and_b32 s7, s7, 7")
    a("s_lshl_b32 s7, s7, 13")
    a("s_waitcnt lgkmcnt(0)")
    srd(a, 36, PX, N*256)
    srd(a, 40, PW1, 257*512)
    a(f"s_add_u32 s8, s6, {LX}")
    a("s_mov_b32 m0, s8")
    a("s_add_u32 s9, s5, 1024")
    a("buffer_load_dwordx4 v7, s[36:39], s5 offen lds")
    a("s_add_u32 m0, s8, 1024")
    a("s_mov_b32 s8, s7")
    a("buffer_load_dwordx4 v8, s[36:39], s9 offen lds")
    for i in range(8):
        a("s_mov_b32 m0, s8")
        a("s_nop 0")
        a(f"buffer_load_dwordx4 v{4+(i&1)}, s[40:43], s8 offen lds")
        if i < 7: a("s_add_u32 s8, s8, 1024")
    st1(1)
    srd(a, 44, 32, N*512, add=WS_P)
    a("v_lshrrev_b32 v9, 2, v6")
    a("v_and_b32 v10, 3, v6")
    a("v_xor_b32 v11, v1, v9")
    a("v_lshl_or_b32 v10, v11, 2, v10")
    a("v_lshlrev_b32 v10, 4, v10")
    a("v_lshl_add_u32 v9, v3, 3, v9")
    a("v_lshl_add_u32 v9, v9, 9, v10")
    a("v_xor_b32 v10, v3, v6")
    a("v_lshlrev_b32 v10, 4, v10")
    a("v_lshl_add_u32 v10, v6, 8, v10")
    a(f"v_add_u32 v10, {LX}, v10")
    for s in range(1, 4): a(f"v_xor_b32 v{10+s}, {64*s}, v10")
    a("v_lshlrev_b32 v14, 9, v6")
    a("v_lshl_add_u32 v14, v1, 6, v14")
    a("v_lshl_add_u32 v14, v3, 4, v14")
    a("s_lshl_b32 s5, s4, 15")
    a(f"v_mov_b32 v15, {hex(S_LOG2E)}")
    WFR = 16
    XFR = 48
    ACC = 112
    a("s_waitcnt vmcnt(0)")
    st1(2)
    a("s_barrier")
    st1(3)
    order = []
    for s in range(4):
        for t in range(2):
            for hh in range(2):
                a(f"ds_read_b64_tr_b16 {vr(WFR+16*t+4*s+2*hh,2)}, v9 offset:{(32*s+4*hh)*512+8*t}")
        a(f"ds_read_b128 {vr(XFR+4*s,4)}, v{10+s}")
        if s == 1:
            pass
    def xr(tau):
        for s in range(4): a(f"ds_read_b128 {vr(XFR+16*tau+4*s,4)}, v{10+s} offset:{4096*tau}")
    def mm(tau, s):
        for t in range(2):
            o = ACC + 8*tau + 4*t
            a(f"v_mfma_f32_16x16x32_bf16 {vr(o,4)}, {vr(WFR+16*t+4*s,4)}, {vr(XFR+16*tau+4*s,4)}, {'0' if s == 0 else vr(o,4)}")
    def epi(tau):
        r = []
        o = ACC + 8*tau
        for k in range(8): r.append(f"v_mul_f32 v{o+k}, v15, v{o+k}")
        for k in range(4): r.append(f"v_cvt_pk_bf16_f32 v{o+k}, v{o+2*k}, v{o+2*k+1}")
        r.append(f"s_add_u32 s6, s5, {8192*tau}")
        fl = " sc1" if "psc1" in EXP else " nt" if "pnt" in EXP else ""
        r.append(f"buffer_store_dwordx4 {vr(o,4)}, v14, s[44:47], s6 offen{fl}")
        return r
    for s in range(4):
        a(f"s_waitcnt lgkmcnt({5*(3-s)})")
        mm(0, s)
    xr(1); xr(2); xr(3)
    extra = []
    for tau in range(1, 4):
        a(f"s_waitcnt lgkmcnt({4*(3-tau)})")
        for s in range(4):
            mm(tau, s)
            if s == 1 or (s == 0 and tau == 1):
                if not extra and not (s == 1 and tau == 1): extra = epi(tau-1)
            if s >= 1:
                for _ in range(5):
                    if extra: a(extra.pop(0))
        assert not extra
    a("s_nop 7")
    for ins in epi(3): a(ins)
    st1(4)
    k1end()
    a.lab("K1_TRANS")
    a.c("fragment transposer for W1b (WQ) and w2 (W2F); 128 blocks per WG")
    a(f"s_sub_u32 s3, s2, {NCH}")
    a("v_lshrrev_b32 v1, 6, v0")
    a("s_and_b32 s4, s3, 3")
    a("v_readfirstlane_b32 s11, v1")
    a("s_lshl_b32 s4, s4, 7")
    a("v_add_u32 v1, s4, v0")
    a("s_mov_b32 s9, 0x05040100"); a("s_mov_b32 s10, 0x07060302")
    a("s_waitcnt lgkmcnt(0)")
    a("s_cmp_ge_u32 s11, 2")
    a("s_cbranch_scc1 K1_TR_SMALL")
    a("s_cmp_ge_u32 s3, 4")
    a("s_cbranch_scc1 K1_TR_W2")
    a("v_and_b32 v2, 31, v1")
    a("v_lshrrev_b32 v3, 5, v1")
    a("v_lshlrev_b32 v4, 4, v2")
    a("v_lshl_add_u32 v4, v3, 12, v4")
    a("v_add_u32 v4, 0x10000, v4")
    a("v_lshrrev_b32 v5, 1, v2")
    a("v_lshlrev_b32 v5, 12, v5")
    a("v_lshl_add_u32 v5, v3, 8, v5")
    a("v_and_b32 v6, 1, v2")
    a("v_lshl_add_u32 v5, v6, 7, v5")
    srd(a, 36, PW1, 257*512)
    srd(a, 40, 32, 0x10000, add=WS_WQ)
    a("s_mov_b32 s5, 512")
    a("s_branch K1_TR_GO")
    a.lab("K1_TR_W2")
    a("v_and_b32 v2, 15, v1")
    a("v_bfe_u32 v3, v1, 4, 3")
    a("v_lshrrev_b32 v7, 7, v1")
    a("v_lshlrev_b32 v4, 4, v2")
    a("v_lshl_add_u32 v4, v3, 13, v4")
    a("v_lshl_add_u32 v4, v7, 11, v4")
    a("v_lshrrev_b32 v5, 1, v2")
    a("v_lshlrev_b32 v5, 13, v5")
    a("v_lshl_add_u32 v5, v3, 10, v5")
    a("v_lshl_add_u32 v5, v7, 8, v5")
    a("v_and_b32 v6, 1, v2")
    a("v_lshl_add_u32 v5, v6, 7, v5")
    srd(a, 36, PW2, 256*256)
    srd(a, 40, 32, 0x10000, add=WS_W2)
    a("s_mov_b32 s5, 256")
    a.lab("K1_TR_GO")
    a("s_mov_b32 s6, 0")
    for m in range(8):
        a(f"buffer_load_dwordx4 {vr(16+4*m,4)}, v4, s[36:39], s6 offen")
        if m < 7: a("s_add_u32 s6, s6, s5")
    a("s_waitcnt vmcnt(0)")
    for cc in range(8):
        for p in range(4):
            a(f"v_perm_b32 v{48+4*cc+p}, v{16+4*(2*p+1)+(cc>>1)}, v{16+4*(2*p)+(cc>>1)}, s{9+(cc&1)}")
        a(f"buffer_store_dwordx4 {vr(48+4*cc,4)}, v5, s[40:43], 0 offen offset:{16*cc}{' sc1' if 'csc1' in EXP else ''}")
    k1end()
    a.lab("K1_TR_SMALL")
    a("s_cmp_lg_u32 s3, 0")
    a("s_cbranch_scc1 K1_EXIT")
    a("s_cmp_lt_u32 s11, 4")
    a("s_cbranch_scc1 K1_EXIT")
    a("v_and_b32 v1, 255, v0")
    a("v_lshlrev_b32 v2, 1, v1")
    a(f"s_add_u32 s6, s{PW1}, 0x20000")
    a(f"s_addc_u32 s7, s{PW1+1}, 0")
    a("global_load_ushort v8, v2, s[6:7]")
    a(f"global_load_ushort v9, v2, s[{PB1}:{PB1+1}]")
    a(f"s_add_u32 s6, s32, {hex(WS_WE)}")
    a("s_addc_u32 s7, s33, 0")
    a(f"v_mov_b32 v10, {hex(S_LOG2E)}")
    a("v_lshlrev_b32 v3, 2, v1")
    a("s_waitcnt vmcnt(0)")
    a("v_lshlrev_b32 v8, 16, v8")
    a("v_lshlrev_b32 v9, 16, v9")
    a("v_mul_f32 v8, v10, v8")
    a("v_mul_f32 v9, v10, v9")
    a("v_cvt_pk_bf16_f32 v8, v8, v8")
    a("global_store_short v2, v8, s[6:7]")
    a(f"global_store_dword v3, v9, s[6:7] offset:{WS_B1-WS_WE}")
    a("s_endpgm")
    a.lab("K1_SORT")
    a.c("bucket the edges of chunk s2 by dst&255; cell line: 8 x [rec q, rec q+8, rec q+16, (loc,loc,loc,count)]")
    LC = 32768
    a("v_lshlrev_b32 v1, 2, v0")
    a("v_mov_b32 v2, 0")
    a(f"ds_write_b32 v1, v2 offset:{LC}")
    a("v_lshlrev_b32 v3, 4, v0")
    a("v_lshlrev_b32 v4, 3, v0")
    a("v_mov_b32 v5, 1")
    a(f"s_mul_i32 s3, s2, {CH_E*4}")
    a(f"s_mul_i32 s4, s2, {CH_E*2}")
    a("s_lshl_b32 s5, s2, 8")
    a("s_add_u32 s6, s3, 8192")
    a("s_add_u32 s7, s4, 4096")
    a("s_mov_b32 s8, 0x05040100"); a("s_mov_b32 s9, 0x05040302")
    a("s_waitcnt lgkmcnt(0)")
    srd(a, 36, PDST, E*4)
    srd(a, 40, PSRC, E*4)
    srd(a, 44, PE, E*2)
    srd(a, 48, 32, 256*NCH*256, add=WS_CELLS)
    DST, SRC, EA = 16, 24, 32
    RK, BK, REC = 36, 44, 52
    A0, A1 = 60, 68
    nlast = CH_E - 2048
    a("v_lshlrev_b32 v6, 1, v0")
    a(f"buffer_load_dwordx4 {vr(DST,4)}, v3, s[36:39], s3 offen")
    a(f"buffer_load_dword v{DST+4}, v1, s[36:39], s6 offen")
    a(f"buffer_load_dwordx4 {vr(SRC,4)}, v3, s[40:43], s3 offen")
    a(f"buffer_load_dwordx2 {vr(EA,2)}, v4, s[44:47], s4 offen")
    a(f"buffer_load_dword v{SRC+4}, v1, s[40:43], s6 offen")
    a(f"buffer_load_ushort v{EA+2}, v6, s[44:47], s7 offen")
    a(f"v_cmp_gt_u32 vcc, {nlast}, v0")
    a(f"v_mov_b32 v{RK+4}, 0")
    a(f"v_mov_b32 v{BK+4}, 0")
    a(f"v_mov_b32 v7, {CAP1}")
    a("s_mov_b64 s[10:11], vcc")
    a("s_barrier")
    st1(1)
    def atomic(k):
        a(f"v_and_b32 v{BK+k}, 0xff, v{DST+k}")
        a(f"v_lshlrev_b32 v8, 2, v{BK+k}")
        a(f"ds_add_rtn_u32 v{RK+k}, v8, v5 offset:{LC}")
    a("s_waitcnt vmcnt(5)")
    st1(2)
    for k in range(4): atomic(k)
    a("s_waitcnt vmcnt(4)")
    a("s_mov_b64 exec, s[10:11]")
    atomic(4)
    a("s_mov_b64 exec, -1")
    for k in range(5):
        a(f"v_lshrrev_b32 v{DST+k}, 6, v{DST+k}")
        a(f"v_and_b32 v{DST+k}, 0xfc, v{DST+k}")
        a(f"v_lshlrev_b32 v{BK+k}, 7, v{BK+k}")
    a("s_waitcnt vmcnt(0)")
    for k in range(5):
        if SRCMASK: a(f"v_and_b32 v{SRC+k}, {SRCMASK}, v{SRC+k}")
        a(f"v_perm_b32 v{REC+k}, v{SRC+k}, v{EA+(k>>1)}, s{8+(k&1)}")
    a("s_waitcnt lgkmcnt(0)")
    st1(3)
    for k in range(5):
        a(f"v_and_b32 v8, 7, v{RK+k}")
        a(f"v_lshl_add_u32 v8, v8, 4, v{BK+k}")
        a(f"v_lshrrev_b32 v9, 3, v{RK+k}")
        a(f"v_lshl_add_u32 v{A0+k}, v9, 2, v8")
        a(f"v_add_u32 v{A1+k}, v9, v8")
        if k == 4: a("s_mov_b64 exec, s[10:11]")
        a(f"v_cmpx_gt_u32 vcc, v7, v{RK+k}")
        a(f"ds_write_b32 v{A0+k}, v{REC+k}")
        a(f"ds_write_b8 v{A1+k}, v{DST+k} offset:12")
        a("s_mov_b64 exec, -1")
    a(f"v_max3_u32 v8, v{RK}, v{RK+1}, v{RK+2}")
    a(f"v_max3_u32 v8, v8, v{RK+3}, v{RK+4}")
    a("v_cmp_le_u32 vcc, v7, v8")
    a("s_cbranch_vccz K1_NOOV")
    for k in range(5):
        a(f"v_lshlrev_b32 v12, 7, v{BK+k}")
        a(f"v_sub_u32 v12, v12, v{BK+k}")
        a(f"v_sub_u32 v13, {CAP-1}, v{RK+k}")
        a(f"v_subrev_u32 v14, {CAP1}, v{RK+k}")
        a("v_or_b32 v13, v13, v14")
        a(f"v_and_b32 v13, 0x80000000, v13")
        a("v_or_b32 v12, v12, v13")
        a(f"v_add_u32 v10, v{A0+k}, v12")
        a(f"v_add_u32 v11, v{A1+k}, v12")
        a(f"buffer_store_dword v{REC+k}, v10, s[48:51], s5 offen offset:{128-12}")
        a(f"buffer_store_byte v{DST+k}, v11, s[48:51], s5 offen offset:{128+12-3}")
    a.lab("K1_NOOV")
    a("v_lshrrev_b32 v6, 3, v0")
    a("v_lshlrev_b32 v7, 2, v6")
    a("v_and_b32 v8, 0x70, v3")
    a("v_lshl_add_u32 v8, v6, 14, v8")
    a("v_mov_b32 v9, 0xffffff")
    a("s_waitcnt vmcnt(0) lgkmcnt(0)")
    a("s_barrier")
    st1(4)
    for i in range(4):
        a(f"ds_read_b128 {vr(16+4*i,4)}, v3 offset:{8192*i}")
        a(f"ds_read_b32 v{32+i}, v7 offset:{LC+256*i}")
    for i in range(4):
        a(f"s_waitcnt lgkmcnt({6-2*i})")
        a(f"v_min_u32 v{32+i}, 0xff, v{32+i}")
        a(f"v_lshlrev_b32 v{32+i}, 24, v{32+i}")
        a(f"v_and_or_b32 v{19+4*i}, v{19+4*i}, v9, v{32+i}")
        a(f"buffer_store_dwordx4 {vr(16+4*i,4)}, v8, s[48:51], s5 offen{' nt' if 'cnt' in EXP else ' sc1' if 'csc1' in EXP else ''}")
        if i < 3: a(f"s_add_u32 s5, s5, {64*16384}")
    k1end()
    a.lab("K1_EXIT")
    a("s_endpgm")
    if "helper" in EXP:
        a.lab("K1_HELPER")
        a("s_getpc_b64 s[64:65]")
        a.lab("K1_HPC")
        a("s_sub_u32 s64, s64, K1_HPC-k1_kernel")
        a("s_subb_u32 s65, s65, 0")
        a("s_lshr_b32 s68, s2, 3")
        a("s_and_b32 s68, s68, 1")
        a("s_lshl_b32 s68, s68, 13")
        a("v_and_b32 v1, 63, v0")
        a("v_lshlrev_b32 v1, 7, v1")
        a("v_add_u32 v1, s68, v1")
        a("v_min_u32 v1, TEXT_END-k1_kernel-4, v1")
        a("global_load_dword v2, v1, s[64:65]")
        a("s_waitcnt vmcnt(0) lgkmcnt(0)")
        a("s_mov_b32 s2, 0")
        a("s_mov_b64 exec, 0")
        a("s_branch k2_kernel")
    return GRID

ROWP = 1040
SBROW = 528
BATCH = 1024
NSLOT = BATCH + 16
L_EP = 0
L_IDX = L_EP + NSLOT*16
L_CNT = L_IDX + NSLOT*4
L_HN = L_CNT + 256
L_ZERO = L_HN + 128
L_BZEND = L_ZERO + 256
L_DEG = L_BZEND
L_FLAG = L_DEG + 256
L_ZEND = L_FLAG + 32
L_S = L_ZEND
L_Q = L_S + 40*ROWP
XROW = 272
L_CR = L_Q + 40*ROWP
L_XS = L_CR
L_SB = L_CR + 32*ROWP
L_END = L_SB + 40*SBROW
QS = L_Q - L_S

def gen_k2(a, DP):
    assert DP % 2 == 0
    INF = 0x7fffffff
    SMAP = {0:0, 1:1, 2:2, 3:3, 4:4, 5:5, 6:6, 7:7}
    if "fine" in EXP: SMAP = {0:0, 1:1, "a":2, "b":3, 2:4, 3:5, "c":6, "d":7}
    if "fine2" in EXP: SMAP = {0:0, 4:1, 5:2, "e":3, "f":4, "g":5, 6:6, 7:7}
    def stamp(i):
        if not DEBUG or i not in SMAP: return
        a("s_memtime s[94:95]")
        a("s_waitcnt lgkmcnt(0)")
        a(f"s_mov_b32 s{84+SMAP[i]}, s94")
    a.raw(".globl k2_kernel"); a.raw(".p2align 8"); a.raw(".type k2_kernel,@function")
    a.lab("k2_kernel")
    a("s_cmp_ge_u32 s2, 256")
    a("s_cbranch_scc1 K2_EXIT")
    a("s_load_dwordx16 s[16:31], s[0:1], 0")
    a("s_load_dwordx2 s[32:33], s[0:1], 64")
    a("s_load_dwordx2 s[34:35], s[0:1], 80")
    if "vpf" in EXP:
        a("s_getpc_b64 s[6:7]")
        a.lab("K2_PC")
        a(f"v_cmp_le_u32 vcc, {1024-VPFN}, v0")
        a("s_and_saveexec_b64 s[8:9], vcc")
        a("s_cbranch_execz K2_NOVPF")
        a("s_lshr_b32 s10, s2, 3")
        a(f"s_and_b32 s10, s10, {128//VPFN - 1}")
        a(f"s_mul_i32 s10, s10, {VPFN*128}")
        a(f"v_and_b32 v1, {VPFN-1}, v0")
        a("v_lshlrev_b32 v1, 7, v1")
        a("v_add_u32 v1, s10, v1")
        a("v_min_u32 v1, TEXT_END-K2_PC-4, v1")
        a("global_load_dword v100, v1, s[6:7]")
        a.lab("K2_NOVPF")
        a("s_mov_b64 exec, s[8:9]")
    if DEBUG: a("s_memrealtime s[96:97]")
    stamp(0)
    assert DP == 4
    U = [8, 16]; EX, ACC, Q = 24, 32, 40
    IP = [56, 58]
    AB = 60
    ES = [62, 66]
    BS = 70
    M = 118
    VEA, VIA, VES, VEND, VQA, VSTA, VEO, VH, VXA, VQW = range(M, M+10)
    T0, T1, T3 = 1, 2, 4
    WF = 8
    R0 = 8
    HD = 16
    RK = 17
    LA = 23
    PS = 29
    XP = 40
    VC = 53
    PB = 54
    XF = 40
    QA = 102
    ZT = 102
    B1 = 106
    BI = 110
    WE = 48
    sW, sNE = 3, 56
    sV = [52, 54, 10, 12, 14, 36]
    sT, sT2, sREM, sTEV, sSLOW, sBATCH, sLEFT, sX = 58, 59, 60, 61, 62, 63, 66, 68
    sMASK = [70, 72]; sPOS = [74, 75]; sEND = [76, 77]; sSEGL = [78, 79]; sHEAD = [80, 81]; sCR = [82, 83]
    sROW = [4, 5]
    sSM = 100
    sWQ = 64
    sTT = 67
    sLD = 65
    sROLE = 93 if not DEBUG else 38
    uid0 = [0]
    def L(p):
        uid0[0] += 1
        return f"K2_{p}{uid0[0]}"
    def exec_half(x):
        a(f"s_mov_b32 exec_lo, {-1 if x == 0 else 0}")
        a(f"s_mov_b32 exec_hi, {0 if x == 0 else -1}")
    wpos = [0, 1, 6, 7]
    a("v_lshlrev_b32 v4, 4, v0")
    for k in range(4): a(f"v_mov_b32 v{ZT+k}, 0")
    a("v_lshrrev_b32 v1, 6, v0")
    a("v_and_b32 v5, 0x3f0, v4")
    a(f"v_mov_b32 v{VXA}, v5")
    a(f"ds_write_b128 v5, {vr(ZT,4)} offset:{L_ZEND-1024}")
    a("v_readfirstlane_b32 s3, v1")
    a(f"v_and_b32 v{IP[0]+1}, 0x1f0, v4")
    a("v_lshlrev_b32 v2, 5, v0")
    a("v_and_b32 v3, 0xffffff00, v2")
    a("s_lshl_b32 s4, s2, 14")
    a(f"s_add_u32 s4, s4, {hex(WS_CELLS)}")
    a("s_lshl_b32 s5, s2, 8")
    a("v_and_b32 v2, 0x70, v4")
    a("v_add_u32 v3, v3, v2")
    a("s_waitcnt lgkmcnt(0)")
    srd(a, 40, 34, WS_END)
    a(f"s_add_u32 s6, s34, {hex(WS_WE)}")
    a(f"s_addc_u32 s7, s35, 0")
    if "helper" in EXP: a("s_cbranch_execz K2_EXIT")
    a(f"s_cmp_ge_u32 s{sW}, 8")
    a("s_cbranch_scc1 K2_GEMMER")
    a(f"buffer_load_dwordx4 {vr(R0,4)}, v3, s[40:43], s4 offen")
    a(f"global_load_dwordx4 {vr(WE,4)}, v{IP[0]+1}, s[6:7]")
    if "sprio" in EXP: a("s_setprio 3")
    a("s_barrier")
    stamp(1)

    def lane_consts():
        srd(a, 44, 34, N, stride=512, add=WS_P)
        srd(a, 48, 32, N*256)
        a(f"s_mov_b32 s{sSLOW}, 0")
        a(f"s_mov_b32 s{sROLE}, s{sW}")
        a(f"s_mov_b32 s{sBATCH}, 0")
        a(f"s_mov_b64 s[{sSM}:{sSM+1}], 0")
        a(f"v_mov_b32 v{IP[1]+1}, v{IP[0]+1}")
        a(f"v_mov_b32 v{IP[0]}, 0")
        a(f"v_mov_b32 v{IP[1]}, 0")
        a(f"v_lshlrev_b32 v{VQA}, 1, v{IP[0]+1}")
        a(f"v_add_u32 v{VQA}, {L_Q}, v{VQA}")
        a("s_mov_b32 s10, 0x00f0000f")
        a("s_mov_b32 s11, 0xf0000f00")
        a("s_mov_b32 s12, 0x00300003")
        a("s_mov_b32 s13, 0x30000300")
        a("s_mov_b32 s14, 0x00c0000c")
        a("s_mov_b32 s15, 0xc0000c00")
        a(f"v_and_b32 v6, 16, v4")
        a(f"v_mov_b32 v{PB}, 0x3f80")
        a(f"v_lshlrev_b32 v{PB}, v6, v{PB}")
        for k in (0, 4, 8):
            a(f"v_cndmask_b32 v{AB+k}, 0, v{PB}, s[12:13]")
            a(f"v_cndmask_b32 v{AB+k+1}, 0, v{PB}, s[14:15]")
        a(f"v_lshrrev_b32 v6, 1, v6")
        a(f"v_mov_b32 v{VEO}, {L_ZERO}")
        a(f"v_or_b32 v{PB}, 4, v6")
        a(f"v_cndmask_b32 v{VEO}, v{VEO}, v{PB}, s[12:13]")
        a(f"v_cndmask_b32 v{VEO}, v{VEO}, v6, s[14:15]")
        a(f"v_cndmask_b32 v{VES}, 0, 4, s[10:11]")
        a(f"v_bfe_u32 v{VH}, v0, 5, 1")
        a(f"v_mov_b32 v7, 4")
        a(f"v_lshrrev_b32 v5, 2, v5")
    def wscale():
        r = []
        for d in range(DP):
            r.append(f"v_pk_mov_b32 {vr(BS+8*d,2)}, {vr(WE,2)}, {vr(WE,2)} op_sel:[0,1]")
            r.append(f"v_pk_mov_b32 {vr(BS+8*d+6,2)}, {vr(WE+2,2)}, {vr(WE+2,2)} op_sel:[0,1]")
        return r
    dpp = [f"row_shr:{sh} row_mask:0xf bank_mask:0xf bound_ctrl:0" for sh in (1, 2, 4, 8)] + \
          ["row_bcast:15 row_mask:0xa bank_mask:0xf", "row_bcast:31 row_mask:0xc bank_mask:0xf"]
    def scan():
        a(f"ds_read_b32 v{VC}, v5 offset:{L_CNT}")
        a(f"ds_read_b32 v3, v7 offset:{L_FLAG-4}")
        a("s_waitcnt lgkmcnt(0)")
        a(f"v_mov_b32 v{VEND}, v{VC}")
        a(f"v_readfirstlane_b32 s8, v3")
        a(f"v_cmp_ne_u32 s[{sNE}:{sNE+1}], 0, v{VC}")
        for i, d in enumerate(dpp):
            if i: a("s_nop 1")
            a(f"v_add_u32_dpp v{VEND}, v{VEND}, v{VEND} {d}")
        a(f"v_sub_u32 v{VSTA}, v{VEND}, v{VC}")
        a(f"v_readlane_b32 s{sT}, v{VEND}, 63")
        a("s_nop 0")
    def ranges():
        a(f"s_lshr_b32 s{sT}, s{sT}, 2")
        if DEBUG: a(f"s_mov_b32 s92, s{sT}")
        a(f"s_add_u32 s{sTT}, s{sT}, 1")
        a(f"s_lshr_b32 s{sTT}, s{sTT}, 1")
        a(f"s_mul_i32 s{sPOS[0]}, s{sTT}, s{sW}")
        a(f"s_add_u32 s{sEND[1]}, s{sPOS[0]}, s{sTT}")
        a(f"s_lshr_b32 s{sPOS[0]}, s{sPOS[0]}, 4")
        a(f"s_lshr_b32 s{sEND[1]}, s{sEND[1]}, 4")
        a(f"s_add_u32 s{sPOS[1]}, s{sPOS[0]}, s{sEND[1]}")
        a(f"s_min_u32 s{sPOS[1]}, s{sPOS[1]}, s{sT}")
        a(f"s_lshl_b32 s{sPOS[1]}, s{sPOS[1]}, 2")
        a(f"s_lshl_b32 s{sEND[1]}, s{sEND[1]}, 1")
        a(f"s_min_u32 s{sEND[1]}, s{sEND[1]}, s{sT}")
        a(f"s_lshl_b32 s{sEND[1]}, s{sEND[1]}, 2")
        a(f"s_lshl_b32 s{sPOS[0]}, s{sPOS[0]}, 3")
        a(f"s_mov_b32 s{sEND[0]}, s{sPOS[1]}")
        a(f"s_sub_u32 s{sT2}, s{sPOS[1]}, s{sPOS[0]}")
        a(f"v_mul_u32_u24 v{VIA}, s{sT2}, v{VH}")
        a(f"v_add_u32 v{VIA}, s{sPOS[0]}, v{VIA}")
        a(f"v_mad_u32_u24 v{VEA}, v{VIA}, v{VES}, v{VEO}")
        a(f"v_add_u32 v{VIA}, {L_IDX}, v{VIA}")
    def seg_next(x, lbl):
        a(f"s_lshl2_add_u32 s{sT2}, s{sSEGL[x]}, s{sPOS[x]}")
        a(f"s_mov_b32 s{sROW[x]}, -1")
        a(f"s_cmp_ge_u32 s{sT2}, s{sEND[x]}")
        a(f"s_cselect_b32 s{sSEGL[x]}, {hex(INF)}, s{sSEGL[x]}")
        a(f"s_cbranch_scc1 {lbl}")
        a(f"s_ff1_i32_b64 s{sT2}, s[{sMASK[x]}:{sMASK[x]+1}]")
        a(f"s_and_b32 s{sT2}, s{sT2}, 63")
        a(f"s_bitset0_b64 s[{sMASK[x]}:{sMASK[x]+1}], s{sT2}")
        a(f"v_readlane_b32 s{sT}, v{VEND}, s{sT2}")
        a(f"s_mul_i32 s{sROW[x]}, s{sT2}, {ROWP}")
        a(f"s_add_u32 s{sSEGL[x]}, s{sSEGL[x]}, 1")
        a(f"s_min_u32 s{sT}, s{sT}, s{sEND[x]}")
        a(f"s_sub_u32 s{sT}, s{sT}, s{sPOS[x]}")
        a(f"s_ashr_i32 s{sT}, s{sT}, 2")
        a(f"s_max_i32 s{sSEGL[x]}, s{sSEGL[x]}, s{sT}")
        a.lab(lbl)
    def stream_setup():
        a(f"v_cmp_lt_u32 s[{sMASK[0]}:{sMASK[0]+1}], s{sPOS[0]}, v{VEND}")
        a(f"v_cmp_lt_u32 s[{sMASK[1]}:{sMASK[1]+1}], s{sPOS[1]}, v{VEND}")
        for x in range(2):
            lj = L("INJ")
            a(f"s_and_b64 s[{sMASK[x]}:{sMASK[x]+1}], s[{sMASK[x]}:{sMASK[x]+1}], s[{sNE}:{sNE+1}]")
            a(f"s_mov_b32 s{sSEGL[x]}, 0")
            a(f"s_mov_b32 s{sHEAD[x]}, 0")
            seg_next(x, L("INI"))
            a(f"s_max_i32 s{sCR[x]}, s{sROW[x]}, 0")
            a(f"s_sub_u32 s{sCR[x]}, s{sCR[x]}, {QS}")
            a(f"s_cmp_lt_i32 s{sROW[x]}, 0")
            a(f"s_cbranch_scc1 {lj}")
            a(f"v_readlane_b32 s{sT}, v{VSTA}, s{sT2}")
            a(f"s_add_u32 s{sT2}, s{sT2}, 1")
            a(f"v_mov_b32 v{T3}, s{sT2}")
            a(f"s_lshl_b32 s{sT2}, s{sW}, 1")
            a(f"s_add_u32 s{sT2}, s{sT2}, {x}")
            a(f"s_cmp_ge_u32 s{sT}, s{sPOS[x]}")
            a(f"s_cbranch_scc1 {lj}")
            a(f"s_mov_b32 s{sHEAD[x]}, 1")
            a(f"s_mul_i32 s{sCR[x]}, s{sT2}, {ROWP}")
            a(f"s_add_u32 s{sCR[x]}, s{sCR[x]}, {L_CR-L_Q}")
            a(f"s_lshl_b32 s{sT2}, s{sT2}, 2")
            a(f"v_mov_b32 v6, s{sT2}")
            a(f"ds_write_b32 v6, v{T3} offset:{L_HN}")
            a.lab(lj)
            a(f"s_max_i32 s{sROW[x]}, s{sROW[x]}, 0")
        a(f"v_add_u32 v{T0}, s{sROW[0]}, v{VQA}")
        a(f"v_add_u32 v{T1}, s{sCR[0]}, v{VQA}")
        exec_half(1)
        a(f"v_add_u32 v{T0}, s{sROW[1]}, v{VQA}")
        a(f"v_add_u32 v{T1}, s{sCR[1]}, v{VQA}")
        a("s_mov_b64 exec, -1")
        a(f"v_lshlrev_b32 v3, {2 + (DP.bit_length()-1)}, v{VES}")
        a(f"s_min_u32 s{sTEV}, s{sSEGL[0]}, s{sSEGL[1]}")
        a(f"s_sub_u32 s{sREM}, s{sTEV}, 1")
        a(f"s_sub_u32 s{sLEFT}, s{sEND[0]}, s{sPOS[0]}")
        a(f"s_lshr_b32 s{sLEFT}, s{sLEFT}, 2")
        a(f"s_sub_u32 s{sLD}, s{sLEFT}, {DP}")
        a(f"s_max_i32 s{sLD}, s{sLD}, 0")
        a(f"s_sub_u32 s6, s{sHEAD[0]}, 1")
        a(f"s_sub_u32 s7, s{sHEAD[1]}, 1")
        a(f"s_and_b64 s[6:7], s[6:7], s[{sSM}:{sSM+1}]")
        a(f"v_mov_b32 v5, {L_ZERO}")
        a(f"v_cndmask_b32 v{T3}, v5, v{T1}, s[6:7]")
    def first_loads():
        FI = 40
        a(f"ds_read2_b32 {vr(FI,2)}, v{VIA} offset0:0 offset1:1")
        a(f"ds_read2_b32 {vr(FI+2,2)}, v{VIA} offset0:2 offset1:3")
        a(f"ds_read2_b32 {vr(ES[0],2)}, v{VEA} offset0:0 offset1:1")
        a(f"ds_read2_b32 {vr(ES[1],2)}, v{VEA} offset0:4 offset1:5")
        a("s_waitcnt lgkmcnt(2)")
        for t in range(DP):
            a(f"v_mov_b32 v{IP[t&1]}, v{FI+t}")
            a(f"buffer_load_dwordx4 {vr(BS+8*t+2,4)}, {vr(IP[t&1],2)}, s[44:47], 0 idxen offen")
        a(f"ds_read_b32 v{IP[0]}, v{VIA} offset:{4*DP}")
        a(f"ds_read_b32 v{IP[1]}, v{VIA} offset:{4*(DP+1)}")
    def ldcut():
        if "nocut" in EXP: return
        a(f"s_sub_u32 s{sLD}, s{sLD}, 1")
        a(f"s_cselect_b32 s46, 0, s46")
    def pload(slot, pair):
        if "novm" in EXP: return
        a(f"buffer_load_dwordx4 {vr(BS+8*slot+2,4)}, {vr(pair,2)}, s[44:47], 0 idxen offen")
    cold = []
    def groups(n, body):
        body(0); body(1)
        l = L("SK")
        a(f"s_cmp_eq_u64 s[{sV[2]}:{sV[2]+1}], 0")
        a(f"s_cbranch_scc1 {l}")
        body(2)
        lo = L("OL")
        a(f"s_cmp_lg_u64 s[{sV[3]}:{sV[3]+1}], 0")
        a(f"s_cbranch_scc1 {lo}")
        a.lab(l)
        cold.append((lo, l, lambda: [body(i) for i in (3, 4, 5)]))
    def rec(i): return R0 + i + (i // 3)
    def meta(i): return R0 + 3 + 4*(i // 3)
    def rank_atomics(n):
        def body(i):
            a(f"v_bfe_u32 v{LA+i}, v{meta(i)}, {8*(i%3)}, 8")
            a(f"s_mov_b64 exec, s[{sV[i]}:{sV[i]+1}]")
            a(f"ds_add_rtn_u32 v{RK+i}, v{LA+i}, v7 offset:{L_CNT}")
            a("s_mov_b64 exec, -1")
        groups(n, body)
    def zero_batch(upto):
        assert 16384 < upto <= 2*16384 and upto % 16 == 0
        a(f"ds_write_b128 v4, {vr(ZT,4)} offset:{upto-16384}")
        a(f"ds_write_b128 v4, {vr(ZT,4)}")
    XFB = [70, 86, 40]
    def gemm():
        for nt in range(3):
            for s in range(4):
                a(f"ds_read_b128 {vr(XFB[nt]+4*s,4)}, v{VXA} offset:{16*nt*XROW+64*s}")
        a(f"v_mov_b32 v{VSTA}, {hex(S_LOG2E)}")
        QB = [QA, XFB[0], QA]
        def post(nt):
            r = []
            if nt == 2: r += ["s_mov_b32 exec_lo, 0x00ff00ff", "s_mov_b32 exec_hi, 0x00ff00ff"]
            for t in range(2):
                for k in range(4): r.append(f"v_fma_f32 v{QB[nt]+4*t+k}, v{QB[nt]+4*t+k}, v{VSTA}, v{BI+4*t+k}")
                r.append(f"ds_write_b128 v{VQW}, {vr(QB[nt]+4*t,4)} offset:{16*nt*ROWP+64*t}")
            if nt == 2: r.append("s_mov_b64 exec, -1")
            return r
        a("s_waitcnt vmcnt(0) lgkmcnt(8)")
        for nt in range(3):
            if nt == 1: a("s_waitcnt lgkmcnt(4)")
            if nt == 2: a("s_waitcnt lgkmcnt(2)")
            for s in range(4):
                for t in range(2):
                    a(f"v_mfma_f32_16x16x32_bf16 {vr(QB[nt]+4*t,4)}, {vr(WF+16*t+4*s,4)}, {vr(XFB[nt]+4*s,4)}, {'0' if s == 0 else vr(QB[nt]+4*t,4)}")
            if nt >= 1:
                for ins in post(nt-1): a(ins)
        a("s_nop 0")
        for ins in post(2): a(ins)
    def wq_loads(lo, hi):
        for f in range(lo, hi):
            t, s = divmod(f, 4)
            a(f"buffer_load_dwordx4 {vr(WF+16*t+4*s,4)}, v{VXA}, s[40:43], s{sWQ+t} offen offset:{1024*s}")

    def signal(k):
        a("s_waitcnt lgkmcnt(0)")
        a("s_mov_b64 exec, 1")
        a(f"ds_add_u32 v7, v7 offset:{L_FLAG+4*k}")
        a("s_mov_b64 exec, -1")
    def spin(k):
        l = L("SP")
        a("s_mov_b32 s8, 0x100000")
        a.lab(l)
        a(f"ds_read_b32 v6, v7 offset:{L_FLAG+4*k}")
        a("s_sub_u32 s8, s8, 1")
        a(f"s_cbranch_scc1 {l}X")
        a("s_waitcnt lgkmcnt(0)")
        a("v_readfirstlane_b32 s9, v6")
        a("s_nop 0")
        a("s_cmp_lt_u32 s9, 32")
        a(f"s_cbranch_scc1 {l}")
        a.lab(l + "X")
    def list_build():
        groups(6, lambda i: a(f"ds_bpermute_b32 v{PS+i}, v{LA+i}, v{VSTA}"))
        a("s_waitcnt lgkmcnt(0)")
        def body(i):
            a(f"v_add_u32 v{PS+i}, v{PS+i}, v{RK+i}")
            a(f"v_lshlrev_b32 v{RK+i}, 2, v{PS+i}")
            a(f"s_mov_b64 exec, s[{sV[i]}:{sV[i]+1}]")
            a(f"ds_write_b16_d16_hi v{PS+i}, v{rec(i)} offset:{L_IDX}")
            a(f"ds_write_b16 v{RK+i}, v{rec(i)} offset:{L_EP+4}")
            a(f"ds_write_b16 v{RK+i}, v{rec(i)} offset:{L_EP+14}")
            a("s_mov_b64 exec, -1")
        groups(6, body)
    assert L_CNT <= 3*8192
    a(f"ds_write_b128 v4, {vr(ZT,4)}")
    a(f"ds_write_b128 v4, {vr(ZT,4)} offset:8192")
    a(f"ds_write_b128 v4, {vr(ZT,4)} offset:{L_CNT-8192}")
    a.lab("K2_C1")
    lane_consts()
    a(f"s_cmp_ge_u32 s{sW}, 8")
    a("s_cbranch_scc1 K2_G2")
    a("v_and_b32 v2, 7, v0")
    stamp("a")
    a("s_waitcnt vmcnt(1)")
    stamp("b")
    a(f"v_lshrrev_b32 v{HD}, 24, v{R0+3}")
    a(f"v_sub_u32 v2, v{HD}, v2")
    a(f"v_cmp_lt_u32 vcc, {CAP}, v{HD}")
    for i in range(4):
        a(f"v_cmp_lt_i32 s[{sV[i]}:{sV[i]+1}], {8*i}, v2")
    a(f"s_cmp_lg_u64 s[{sV[3]}:{sV[3]+1}], 0")
    a("s_cbranch_scc1 K2_L1")
    a.lab("K2_NOL1")
    def line1():
        for i in range(4, 6): a(f"v_cmp_lt_i32 s[{sV[i]}:{sV[i]+1}], {8*i}, v2")
        a(f"buffer_load_dwordx4 {vr(R0+4,4)}, v3, s[40:43], s4 offen offset:128")
        a("s_mov_b64 exec, vcc")
        a(f"ds_write_b32 v7, v7 offset:{L_FLAG-4}")
        a("s_mov_b64 exec, -1")
        a("s_waitcnt vmcnt(0)")
    cold.append(("K2_L1", "K2_NOL1", line1))
    a.lab("K2_RANK")
    rank_atomics(6)
    a(f"s_cmp_lg_u32 s{sSLOW}, 0")
    a("s_cbranch_scc1 K2_SLOW_B0")
    signal(0)
    a("s_waitcnt vmcnt(0)")
    for ins in wscale(): a(ins)
    a.lab("K2_C2")
    spin(0)
    stamp(2)
    a.lab("K2_SCAN")
    scan()
    a(f"s_cmp_gt_u32 s{sT}, {4*BATCH}")
    a(f"s_cselect_b32 s8, 1, s8")
    a(f"s_andn2_b32 s8, s8, s{sSM}")
    a("s_cbranch_scc1 K2_SLOW_S")
    a(f"s_cmp_ge_u32 s{sROLE}, 8")
    a("s_cbranch_scc1 K2_C3")
    list_build()
    a(f"s_cmp_lg_u32 s{sW}, 0")
    a(f"s_cbranch_scc1 K2_NODEG")
    a(f"ds_add_u32 v5, v{VC} offset:{L_DEG}")
    a.lab("K2_NODEG")
    a(f"s_cmp_lg_u32 s{sSLOW}, 0")
    a("s_cbranch_scc1 K2_SLOW_B1")
    signal(1)
    a.lab("K2_C3")
    ranges()
    spin(1)
    stamp(3)
    first_loads()
    stream_setup()
    spin(3)
    def gemmer1():
        if "noprio" not in EXP: a("s_setprio 3")
        srd(a, 36, PX, N*256)
        a("s_barrier")
        stamp(1)
        a(f"global_load_dwordx4 {vr(WE,4)}, v{IP[0]+1}, s[6:7]")
        a("v_subrev_u32 v2, 512, v0")
        a("v_and_b32 v3, 15, v0")
        a("v_lshrrev_b32 v6, 4, v2")
        a("v_lshlrev_b32 v7, 16, v6")
        a("v_lshl_add_u32 v7, v3, 4, v7")
        a("v_add_u32 v7, s5, v7")
        a(f"buffer_load_dwordx4 {vr(XP,4)}, v7, s[36:39], 0 offen")
        a("v_add_u32 v7, 0x200000, v7")
        a(f"buffer_load_dwordx4 {vr(XP+4,4)}, v7, s[36:39], 0 offen")
        a("s_lshr_b32 s9, s2, 3")
        a(f"s_add_u32 s9, s9, s{sW}")
        a("s_and_b32 s9, s9, 7")
        a(f"s_lshl_b32 s{sWQ}, s9, 13")
        a(f"s_add_u32 s{sWQ}, s{sWQ}, {hex(WS_WQ)}")
        a(f"s_add_u32 s{sWQ+1}, s{sWQ}, 4096")
        a("v_and_b32 v7, 0x30, v0")
        a("s_lshl_b32 s8, s9, 7")
        a(f"v_add_u32 v{PB}, s8, v7")
        a(f"global_load_dwordx4 {vr(BI,4)}, v{PB}, s[6:7] offset:{WS_B1-WS_WE}")
        a(f"global_load_dwordx4 {vr(BI+4,4)}, v{PB}, s[6:7] offset:{WS_B1-WS_WE+64}")
        wq_loads(0, 2)
        a(f"v_mul_u32_u24 v6, {XROW}, v6")
        a(f"v_lshl_add_u32 v6, v3, 4, v6")
        a(f"v_add_u32 v1, {L_XS}, v6")
        a(f"v_mul_u32_u24 v{VQW}, {ROWP}, v3")
        a(f"s_add_u32 s8, s8, {L_Q}")
        a(f"v_add3_u32 v{VQW}, v{VQW}, v7, s8")
        a(f"v_mul_u32_u24 v2, {XROW}, v3")
        a(f"s_mov_b32 s8, {L_XS}")
        a(f"v_add3_u32 v2, v2, v7, s8")
        wq_loads(2, 4)
    def gemmer2():
        wq_loads(4, 8)
        a(f"v_mov_b32 v{VXA}, v2")
        stamp("a")
        a(f"s_waitcnt vmcnt(10)")
        stamp("b")
        a(f"ds_write_b128 v1, {vr(XP,4)}")
        a(f"s_cmp_ge_u32 s{sW}, 12")
        a("s_cbranch_scc1 K2_NOXS")
        a(f"ds_write_b128 v1, {vr(XP+4,4)} offset:{32*XROW}")
        a.lab("K2_NOXS")
        for k in range(0, 4, 2): a(f"v_pk_mov_b32 {vr(ES[k//2],2)}, {vr(WE+k,2)}, {vr(WE+k,2)} op_sel:[0,1]")
        signal(2)
        spin(2)
        gemm()
        signal(3)
        for d in range(DP):
            a(f"v_pk_mov_b32 {vr(BS+8*d,2)}, {vr(ES[0],2)}, {vr(ES[0],2)} op_sel:[0,1]")
            a(f"v_pk_mov_b32 {vr(BS+8*d+6,2)}, {vr(ES[1],2)}, {vr(ES[1],2)} op_sel:[0,1]")
        stamp("c")
    hot2 = [("K2_GEMMER", "K2_C1", gemmer1), ("K2_G2", "K2_C2", gemmer2)]
    a.lab("K2_JOIN")
    a(f"ds_read_b128 {vr(ACC,4)}, v{T3}")
    a(f"ds_read_b128 {vr(ACC+4,4)}, v{T3} offset:16")
    a("s_waitcnt lgkmcnt(0)")
    if "noprio" not in EXP: a("s_setprio 2")
    stamp("d")
    a(f"s_cmp_eq_u32 s{sTEV}, {hex(INF)}")
    a("s_cbranch_scc1 K2_LOOP_DONE")
    a(f"ds_read_b128 {vr(Q,4)}, v{T0}")
    a(f"ds_read_b128 {vr(Q+4,4)}, v{T0} offset:16")
    def mfma(slot, es, u, which):
        if "nomfma" in EXP: return
        if which == 0:
            a(f"v_mfma_f32_16x16x32_bf16 {vr(u,4)}, {vr(es,4)}, {vr(BS+8*slot,4)}, {vr(Q,4)}")
        else:
            a(f"v_mfma_f32_16x16x32_bf16 {vr(u+4,4)}, {vr(es-2,4)}, {vr(BS+8*slot+4,4)}, {vr(Q+4,4)}")
    a(f"s_waitcnt vmcnt({DP-1}) lgkmcnt(0)")
    mfma(0, ES[0], U[0], 0); mfma(0, ES[0], U[0], 1)
    ldcut()
    pload(0, IP[0])
    stamp(4)
    a(f"s_sub_u32 s{sREM}, s{sREM}, 1")
    a("s_nop 5")
    a("s_cbranch_scc1 K2_BND0")
    a("s_branch K2_SUB0")
    def rdE(k):
        if "nods" in EXP: return
        a(f"ds_read2_b32 {vr(ES[k&1],2)}, v{VEA} offset0:{4*(k+2)} offset1:{4*(k+2)+1}")
    def rdI(k):
        if "nods" in EXP: return
        a(f"ds_read_b32 v{IP[k&1]}, v{VIA} offset:{4*(k+2+DP)}")
    def ex(c, u): a(f"v_exp_f32 v{EX+c}, v{u+c}")
    def rc(c): a(f"v_rcp_f32 v{EX+c}, v{EX+c}")
    def pa(c): a(f"v_pk_add_f32 {vr(EX+c,2)}, {vr(EX+c,2)}, 1.0 op_sel_hi:[1,0]")
    def pf(c, u): a(f"v_pk_fma_f32 {vr(ACC+c,2)}, {vr(u+c,2)}, {vr(EX+c,2)}, {vr(ACC+c,2)}")
    def valu(u):
        for c in range(8): ex(c, u)
        for c in range(0, 8, 2): pa(c)
        for c in range(8): rc(c)
        for c in range(0, 8, 2): pf(c, u)
    def tail(u):
        rc(7)
        for c in range(0, 8, 2): pf(c, u)
    uid = [0]
    def prio():
        if "noprio" in EXP: return
        uid[0] += 1
        lbl = f"K2_PR{uid[0]}"
        a(f"s_cmp_gt_i32 s{sLEFT}, {PR1}")
        a(f"s_cbranch_scc1 {lbl}_D")
        a("s_setprio 1")
        a(f"s_cmp_gt_i32 s{sLEFT}, {PR0}")
        a(f"s_cbranch_scc1 {lbl}_D")
        a("s_setprio 0")
        a.lab(f"{lbl}_D")
    def advance():
        a(f"v_add_u32 v{VEA}, v3, v{VEA}")
        a(f"v_add_u32 v{VIA}, {4*DP}, v{VIA}")
        a(f"s_sub_u32 s{sLEFT}, s{sLEFT}, {DP}")
        prio()
    a.raw(".p2align 3")
    a.lab("K2_LOOP")
    advance()
    for k in range(DP):
        u = U[k & 1]
        a.lab(f"K2_SUB{k}")
        ex(0, u)
        if k == 2 and PRM >= 0 and "noprio" not in EXP:
            a(f"s_cmp_gt_i32 s{sLEFT}, {PRM}")
            a("s_cbranch_scc1 K2_PM")
            a("s_setprio 0")
            a.lab("K2_PM")
        a(f"s_waitcnt vmcnt({DP-1}) lgkmcnt(0)")
        ex(1, u)
        mfma((k+1) % DP, ES[(k+1) & 1], U[(k+1) & 1], 0)
        ex(2, u)
        mfma((k+1) % DP, ES[(k+1) & 1], U[(k+1) & 1], 1)
        ex(3, u)
        if "nocut" not in EXP: a(f"s_sub_u32 s{sLD}, s{sLD}, 1")
        ex(4, u)
        if "nocut" not in EXP: a(f"s_cselect_b32 s46, 0, s46")
        ex(5, u)
        pload((k+1) % DP, IP[(k+1) & 1])
        ex(6, u)
        rdE(k)
        ex(7, u)
        rdI(k)
        for c in range(0, 8, 2): pa(c)
        for c in range(6): rc(c)
        a(f"s_sub_u32 s{sREM}, s{sREM}, 1")
        rc(6)
        a(f"s_cbranch_scc1 K2_BNDT{k}")
        tail(u)
    a("s_branch K2_LOOP")
    for lo, ret, fn in hot2:
        a.lab(lo); fn(); a(f"s_branch {ret}")
    for k in range(DP):
        kp = (k - 1) % DP
        a.lab(f"K2_BNDT{kp}")
        tail(U[kp & 1])
        if k == 0: advance()
        a.lab(f"K2_BND{k}")
        a(f"s_mov_b64 s[{sX}:{sX+1}], 0")
        a("s_mov_b64 s[6:7], 0")
        for x in range(2):
            a(f"s_cmp_lg_u32 s{sSEGL[x]}, s{sTEV}")
            a(f"s_cbranch_scc1 K2_B{k}_N{x}")
            a(f"s_mov_b32 s{sX+x}, -1")
            seg_next(x, f"K2_B{k}_S{x}")
            a(f"s_cmp_lt_i32 s{sROW[x]}, 0")
            a(f"s_cbranch_scc1 K2_B{k}_N{x}")
            a(f"s_mov_b32 s{6+x}, -1")
            exec_half(x)
            a(f"v_add_u32 v{T0}, s{sROW[x]}, v{VQA}")
            a.lab(f"K2_B{k}_N{x}")
        a("s_mov_b64 exec, s[6:7]")
        a("s_waitcnt lgkmcnt(0)")
        a(f"ds_read_b128 {vr(Q,4)}, v{T0}")
        a(f"ds_read_b128 {vr(Q+4,4)}, v{T0} offset:16")
        a("s_mov_b64 exec, -1")
        valu(U[k & 1])
        a(f"s_mov_b64 exec, s[{sX}:{sX+1}]")
        a(f"ds_write_b128 v{T1}, {vr(ACC,4)}")
        a(f"ds_write_b128 v{T1}, {vr(ACC+4,4)} offset:16")
        a("s_mov_b64 exec, s[6:7]")
        a(f"v_subrev_u32 v{T1}, {QS}, v{T0}")
        a(f"v_cndmask_b32 v{T3}, v5, v{T1}, s[{sSM}:{sSM+1}]")
        a(f"ds_read_b128 {vr(ACC,4)}, v{T3}")
        a(f"ds_read_b128 {vr(ACC+4,4)}, v{T3} offset:16")
        a("s_mov_b64 exec, -1")
        a(f"s_sub_u32 s{sREM}, -1, s{sTEV}")
        a(f"s_min_u32 s{sTEV}, s{sSEGL[0]}, s{sSEGL[1]}")
        a(f"s_cmp_eq_u32 s{sTEV}, {hex(INF)}")
        a("s_cbranch_scc1 K2_LOOP_DONE")
        a(f"s_add_u32 s{sREM}, s{sREM}, s{sTEV}")
        a(f"s_waitcnt vmcnt({DP-1}) lgkmcnt(2)")
        mfma((k+1) % DP, ES[(k+1) & 1], U[(k+1) & 1], 0)
        mfma((k+1) % DP, ES[(k+1) & 1], U[(k+1) & 1], 1)
        ldcut()
        pload((k+1) % DP, IP[(k+1) & 1])
        rdE(k); rdI(k)
        a(f"s_sub_u32 s{sREM}, s{sREM}, 1")
        a("s_nop 3")
        if k < DP-1:
            a(f"s_cbranch_scc1 K2_BND{k+1}")
            a(f"s_branch K2_SUB{k+1}")
        else:
            a(f"s_cbranch_scc0 K2_LOOP")
            advance()
            a(f"s_branch K2_BND0")
    a.lab("K2_LOOP_DONE")
    a(f"s_mov_b32 s46, {N}")
    a("s_setprio 0")
    stamp(5)
    if DEBUG:
        a("s_lshl_b32 s93, s2, 4")
        a("s_add_u32 s93, s93, s3")
        a("s_lshl_b32 s93, s93, 5")
        a("s_add_u32 s93, s93, 0xA80000")
        a("v_mov_b32 v1, s93")
        for i in range(8): a(f"v_mov_b32 v{8+i}, s{84+i}")
        a("global_store_dwordx4 v1, v[8:11], s[34:35]")
        a("global_store_dwordx4 v1, v[12:15], s[34:35] offset:16")
    a(f"s_cmp_lg_u32 s{sSLOW}, 0")
    a("s_cbranch_scc1 K2_COMB")
    a.lab("K2_EPI")
    a.c("out = -ln2 * S @ w2 + deg*b2 ; waves 0..3 own oc pair op = w and start on node tiles 0,1 as soon as they are complete")
    AF = 56
    SF = 8
    BU = 24
    OA = 32
    CS = 40
    B2 = 120
    DG = 124
    L_DONE = L_FLAG + 20
    a(f"s_lshl_b32 s4, 1, s{sW}")
    a("v_mov_b32 v6, s4")
    a("v_mov_b32 v7, 4")
    a("s_waitcnt lgkmcnt(0)")
    a("s_mov_b64 exec, 1")
    a(f"ds_or_b32 v7, v6 offset:{L_DONE-4}")
    a("s_mov_b64 exec, -1")
    a("v_and_b32 v1, 63, v0")
    a(f"s_or_b64 s[10:11], s[{sNE}:{sNE+1}], s[{sSM}:{sSM+1}]")
    a("v_lshlrev_b32 v3, 4, v1")
    def combine(n, node0, stride):
        a(f"s_mul_i32 s4, s{node0}, {ROWP}")
        a(f"s_add_u32 s4, s4, {L_S}")
        a("v_add_u32 v6, s4, v3")
        a("v_lshrrev_b32 v2, 2, v3")
        a(f"ds_read_b32 v2, v2 offset:{L_HN}")
        for r in range(n): a(f"ds_read_b128 {vr(CS+4*r,4)}, v6 offset:{stride*r*ROWP}")
        a(f"s_add_u32 s4, s{node0}, 1")
        a(f"s_lshr_b64 s[36:37], s[10:11], s{node0}")
        a(f"s_waitcnt lgkmcnt({n})")
        a("v_subrev_u32 v2, s4, v2")
        CM = [6, 12, 14, 38]
        for r in range(n): a(f"v_cmp_eq_u32 s[{CM[r]}:{CM[r]+1}], {stride*r}, v2")
        lp = L("CBL")
        a.lab(lp)
        for r in range(n):
            l = L("CH")
            a(f"s_ff1_i32_b32 s8, s{CM[r]}")
            a(f"s_bitset0_b32 s{CM[r]}, s8")
            a(f"s_mul_i32 s9, s8, {ROWP}")
            a(f"s_add_u32 s9, s9, {L_CR}")
            a("s_cmp_lt_i32 s8, 0")
            a(f"v_add_u32 v7, s9, v3")
            a(f"s_cbranch_scc0 {l}")
            a(f"v_mov_b32 v7, {L_ZERO}")
            a.lab(l)
            a(f"ds_read_b128 {vr(8+4*r,4)}, v7")
        for r in range(n):
            l = L("CZ")
            a(f"s_bitcmp1_b64 s[36:37], {stride*r}")
            a(f"s_cbranch_scc1 {l}")
            a(f"s_waitcnt lgkmcnt({n})")
            for c in range(4): a(f"v_mov_b32 v{CS+4*r+c}, 0")
            a.lab(l)
        a(f"s_mov_b32 s8, s{CM[0]}")
        for r in range(1, n): a(f"s_or_b32 s8, s8, s{CM[r]}")
        a("s_cmp_lg_u32 s8, 0")
        a("s_waitcnt lgkmcnt(0)")
        for r in range(n):
            for c in range(0, 4, 2): a(f"v_pk_add_f32 {vr(CS+4*r+c,2)}, {vr(CS+4*r+c,2)}, {vr(8+4*r+c,2)}")
        a(f"s_cbranch_scc1 {lp}")
    def to_bf16(n, node0, stride):
        a(f"s_mul_i32 s4, s{node0}, {SBROW}")
        a(f"s_add_u32 s4, s4, {L_SB}")
        a("v_lshrrev_b32 v6, 1, v3")
        a("v_add_u32 v6, s4, v6")
        for r in range(n):
            a(f"v_cvt_pk_bf16_f32 v{CS+4*r}, v{CS+4*r}, v{CS+4*r+1}")
            a(f"v_cvt_pk_bf16_f32 v{CS+4*r+1}, v{CS+4*r+2}, v{CS+4*r+3}")
            a(f"ds_write_b64 v6, {vr(CS+4*r,2)} offset:{stride*r*SBROW}")
    def out_tile(nt):
        def sread(s): a(f"ds_read_b128 {vr(SF+4*(s%4),4)}, v4 offset:{64*s+16*nt*SBROW}")
        for s in range(4): sread(s)
        extra = [f"v_mul_f32 v{CS+k}, v{DG+nt}, v{BU+k}" for k in range(8)]
        for s in range(8):
            a(f"s_waitcnt lgkmcnt({min(3, 7-s)})")
            for t in range(2):
                o = OA + 4*t
                a(f"v_mfma_f32_16x16x32_bf16 {vr(o,4)}, {vr(AF+32*t+4*s,4)}, {vr(SF+4*(s%4),4)}, {'0' if s == 0 else vr(o,4)}")
            if s + 4 < 8: sread(s+4)
            else:
                a(extra.pop(0)); a(extra.pop(0))
        a("s_nop 5")
        for k in range(8): a(f"v_fmac_f32 v{CS+k}, v{DG+3}, v{OA+k}")
        for t in range(2):
            o = CS + 4*t
            a(f"v_cvt_pk_bf16_f32 v{o}, v{o}, v{o+1}")
            a(f"v_cvt_pk_bf16_f32 v{o+1}, v{o+2}, v{o+3}")
            a(f"buffer_store_dwordx2 {vr(o,2)}, v5, s[48:51], 0 offen offset:{32*t}{OUTFL}")
        if nt < 2: a(f"v_add_u32 v5, 0x100000, v5")
    a(f"s_cmp_ge_u32 s{sW}, 4")
    a("s_cbranch_scc1 K2_LAST")
    a(f"v_readlane_b32 s{sT}, v{VEND}, 15")
    a(f"v_readlane_b32 s{sT2}, v{VEND}, 31")
    a(f"v_mul_u32_u24 v6, s{sTT}, v1")
    a("v_lshrrev_b32 v6, 4, v6")
    a("v_lshlrev_b32 v6, 3, v6")
    a(f"v_cmp_gt_u32 s[70:71], s{sT}, v6")
    a(f"v_cmp_gt_u32 s[72:73], s{sT2}, v6")
    a("s_waitcnt vmcnt(0)")
    a("s_lshr_b32 s4, s2, 3")
    a(f"s_add_u32 s4, s4, s{sW}")
    a("s_and_b32 s74, s4, 3")
    a(f"s_lshl_b32 s6, s74, 14")
    a(f"s_add_u32 s6, s6, {hex(WS_W2)}")
    for q in range(4):
        if q: a("s_add_u32 s6, s6, 4096")
        for s in range(4):
            a(f"buffer_load_dwordx4 {vr(AF+16*q+4*s,4)}, v3, s[40:43], s6 offen offset:{1024*s}")
    a("v_bfe_u32 v7, v0, 4, 2")
    a(f"s_lshl_b32 s7, s74, 6")
    a("v_lshlrev_b32 v5, 3, v7")
    a("v_add_u32 v5, s7, v5")
    a(f"global_load_dwordx2 {vr(B2,2)}, v5, s[{PB2}:{PB2+1}]")
    a(f"global_load_dwordx2 {vr(B2+2,2)}, v5, s[{PB2}:{PB2+1}] offset:32")
    a("v_and_b32 v2, 15, v0")
    a(f"v_mul_u32_u24 v4, {SBROW}, v2")
    a("v_lshl_add_u32 v4, v7, 4, v4")
    a(f"v_add_u32 v4, {L_SB}, v4")
    a(f"v_lshlrev_b32 v6, 2, v2")
    for nt in range(3): a(f"ds_read_b32 v{DG+nt}, v6 offset:{L_DEG+64*nt}")
    a("v_lshl_add_u32 v5, v2, 16, v5")
    a("s_lshl_b32 s9, s2, 8")
    a("v_add_u32 v5, s9, v5")
    a(f"v_mov_b32 v{DG+3}, {hex(S_LN2)}")
    a("s_and_b32 s70, s70, 0xffff")
    a("s_and_b32 s72, s72, 0xffff")
    a("s_waitcnt lgkmcnt(0)")
    for nt in range(3):
        a(f"v_cvt_f32_u32 v{DG+nt}, v{DG+nt}")
        a(f"v_mul_f32 v{DG+nt}, 0.25, v{DG+nt}")
    for nt in range(1):
        l = L("DN")
        a("s_mov_b32 s8, 0x100000")
        a("v_mov_b32 v7, 4")
        a.lab(l)
        a(f"ds_read_b32 v6, v7 offset:{L_DONE-4}")
        a("s_sub_u32 s8, s8, 1")
        a(f"s_cbranch_scc1 {l}X")
        a("s_sleep 1")
        a("s_waitcnt lgkmcnt(0)")
        a("v_readfirstlane_b32 s9, v6")
        a("s_nop 0")
        a(f"s_andn2_b32 s9, s{70+2*nt}, s9")
        a(f"s_cbranch_scc1 {l}")
        a.lab(l + "X")
        a(f"s_add_u32 s75, s{sW}, {16*nt}")
        combine(4, 75, 4)
        to_bf16(4, 75, 4)
        a("v_mov_b32 v7, 4")
        a("v_mov_b32 v6, 8")
        a("s_waitcnt lgkmcnt(0)")
        a("s_mov_b64 exec, 1")
        a(f"ds_add_u32 v7, v6 offset:{L_FLAG+4*(5+nt)}")
        a("s_mov_b64 exec, -1")
        if nt == 0:
            a("s_waitcnt vmcnt(0)")
            for t in range(2):
                a(f"v_lshlrev_b32 v{BU+4*t}, 16, v{B2+2*t}")
                a(f"v_and_b32 v{BU+4*t+1}, 0xffff0000, v{B2+2*t}")
                a(f"v_lshlrev_b32 v{BU+4*t+2}, 16, v{B2+2*t+1}")
                a(f"v_and_b32 v{BU+4*t+3}, 0xffff0000, v{B2+2*t+1}")
        spin(5+nt)
        out_tile(nt)
    a.lab("K2_LAST")
    stamp("e")
    a("s_waitcnt lgkmcnt(0)")
    a("s_barrier")
    stamp("f")
    a(f"s_add_u32 s75, s{sW}, 16")
    a(f"s_cmp_lt_u32 s{sW}, 8")
    a("s_cbranch_scc1 K2_LAST1")
    combine(2, 75, 8)
    to_bf16(2, 75, 8)
    a("s_branch K2_LAST2")
    a.lab("K2_LAST1")
    combine(1, 75, 1)
    to_bf16(1, 75, 1)
    a.lab("K2_LAST2")
    stamp("g")
    a("s_waitcnt lgkmcnt(0)")
    a("s_barrier")
    a(f"s_cmp_ge_u32 s{sW}, 4")
    a("s_cbranch_scc1 K2_EXIT")
    stamp(6)
    out_tile(1)
    out_tile(2)
    if DEBUG:
        stamp(7)
        a("s_cmp_lg_u32 s3, 0")
        a("s_cbranch_scc1 K2_EXIT")
        a("s_memrealtime s[98:99]")
        a("s_lshl_b32 s93, s2, 6")
        a("s_add_u32 s93, s93, 0xA00000")
        a("v_mov_b32 v1, s93")
        a("s_waitcnt lgkmcnt(0)")
        for i in range(8):
            a(f"s_sub_u32 s93, s{84+i}, s84")
            a("v_mov_b32 v2, s93")
            a(f"global_store_dword v1, v2, s[34:35] offset:{4*i}")
        for off, sr_ in ((32, 96), (36, 98), (40, 92)):
            a(f"v_mov_b32 v2, s{sr_}")
            a(f"global_store_dword v1, v2, s[34:35] offset:{off}")
    a.lab("K2_EXIT")
    a("s_endpgm")
    a.lab("K2_COMB")
    a("v_and_b32 v1, 63, v0")
    a("v_lshlrev_b32 v3, 4, v1")
    a("s_mov_b64 s[10:11], -1")
    a("s_waitcnt vmcnt(0) lgkmcnt(0)")
    a("s_barrier")
    combine(3, sW, 16)
    a(f"ds_write_b128 v6, {vr(CS,4)}")
    a(f"ds_write_b128 v6, {vr(CS+4,4)} offset:{16*ROWP}")
    a(f"s_cmp_ge_u32 s{sW}, 8")
    a("s_cbranch_scc1 K2_SLOW_SYNC")
    a(f"ds_write_b128 v6, {vr(CS+8,4)} offset:{32*ROWP}")
    a("s_branch K2_SLOW_SYNC")
    a.lab("K2_SLOW_S")
    a.lab("K2_SLOW_SET")
    a(f"s_mov_b32 s{sSLOW}, 1")
    a.lab("K2_SLOW_SYNC")
    a("s_waitcnt lgkmcnt(0)")
    a("s_barrier")
    a.lab("K2_SLOW_NEXT")
    a("v_lshlrev_b32 v4, 4, v0")
    for k in range(4): a(f"v_mov_b32 v{ZT+k}, 0")
    zero_batch(L_BZEND)
    a(f"s_cmp_lg_u32 s{sBATCH}, 0")
    a("s_cbranch_scc1 K2_SLOW_NZ")
    a(f"s_mov_b64 s[{sSM}:{sSM+1}], -1")
    a(f"ds_write_b128 v4, {vr(ZT,4)} offset:{L_S}")
    a(f"ds_write_b128 v4, {vr(ZT,4)} offset:{L_S+16384}")
    a(f"ds_write_b128 v4, {vr(ZT,4)} offset:{L_S+40*ROWP-16384}")
    a.lab("K2_SLOW_NZ")
    a(f"s_cmp_lt_u32 s{sBATCH}, {E}")
    a("s_cbranch_scc1 K2_SLOW_GO")
    a(f"s_mov_b32 s{sSLOW}, 0")
    a("s_waitcnt lgkmcnt(0)")
    a("s_barrier")
    a("s_branch K2_EPI")
    a.lab("K2_SLOW_GO")
    a(f"v_add_u32 v5, s{sBATCH}, v0")
    a(f"v_mov_b32 v6, {E}")
    a("v_cmp_lt_u32 vcc, v5, v6")
    a(f"v_min_u32 v5, {E-1}, v5")
    a("v_lshlrev_b32 v6, 2, v5")
    a("v_lshlrev_b32 v7, 1, v5")
    SD, SE, SS = 40, 41, 42
    a(f"global_load_dword v{SD}, v6, s[{PDST}:{PDST+1}]")
    a(f"global_load_dword v{SS}, v6, s[{PSRC}:{PSRC+1}]")
    a(f"global_load_ushort v{SE}, v7, s[{PE}:{PE+1}]")
    a("v_and_b32 v5, 63, v0")
    a("v_lshlrev_b32 v5, 2, v5")
    a("s_waitcnt vmcnt(0) lgkmcnt(0)")
    a("s_barrier")
    a(f"v_and_b32 v7, 0xff, v{SD}")
    a(f"v_cmp_eq_u32 s[{sV[0]}:{sV[0]+1}], s2, v7")
    a(f"v_lshl_or_b32 v{R0}, v{SS}, 16, v{SE}")
    a(f"v_lshrrev_b32 v7, 6, v{SD}")
    a(f"v_and_b32 v{R0+3}, 0xfc, v7")
    a(f"s_and_b64 s[{sV[0]}:{sV[0]+1}], s[{sV[0]}:{sV[0]+1}], vcc")
    for i in range(1, 4): a(f"s_mov_b64 s[{sV[i]}:{sV[i]+1}], 0")
    a("v_mov_b32 v7, 4")
    a(f"s_mov_b32 s{sROLE}, 0")
    a(f"s_add_u32 s{sBATCH}, s{sBATCH}, {BATCH}")
    a("s_branch K2_RANK")
    a.lab("K2_SLOW_B0")
    a("s_waitcnt lgkmcnt(0)")
    a("s_barrier")
    a("s_branch K2_SCAN")
    a.lab("K2_SLOW_B1")
    a("v_mov_b32 v6, 32")
    a(f"ds_write_b32 v7, v6 offset:{L_FLAG+4}")
    a("s_waitcnt lgkmcnt(0)")
    a("s_barrier")
    a("s_branch K2_C3")
    for lo, ret, fn in cold:
        a.lab(lo); fn(); a(f"s_branch {ret}")
    a.lab("TEXT_END")
    return 128

HEADER = open('standalone__edge_featured_mpnn_mpnn__graph.s.ref').read().split("; Override launch")[0]

def kd(name, nv, ns):
    acc = (nv + 3) // 4 * 4
    return f""".p2align 6
.amdhsa_kernel {name}
  .amdhsa_next_free_vgpr {nv}
  .amdhsa_next_free_sgpr {ns}
  .amdhsa_accum_offset {acc}
  .amdhsa_group_segment_fixed_size 0
  .amdhsa_kernarg_size 88
  .amdhsa_user_sgpr_count 2
  .amdhsa_user_sgpr_kernarg_segment_ptr 1
  .amdhsa_system_sgpr_workgroup_id_x 1
.end_amdhsa_kernel
"""

def build(TPW=4, DP=6):
    a = Asm()
    g1 = gen_k1(a, TPW)
    nv2 = gen_k2(a, DP)
    out = HEADER
    out += f"; @launch kernel=k1_kernel grid=({g1},1,1) block=({576 if 'helper' in EXP else 512},1,1) lds={K1_LDS}\n"
    out += f"; @launch kernel=k2_kernel grid=(256,1,1) block=(1024,1,1) lds={L_END}\n"
    out += '.amdgcn_target "amdgcn-amd-amdhsa--gfx950"\n.text\n'
    out += a.text()
    out += '.section .rodata,"a"\n'
    out += kd("k1_kernel", 144, 102)
    out += kd("k2_kernel", 128, 102)
    return out

if __name__ == "__main__":
    import argparse
    ap = argparse.ArgumentParser()
    ap.add_argument("-o", default="standalone__edge_featured_mpnn_mpnn__graph.s")
    ap.add_argument("--tpw", type=int, default=4)
    ap.add_argument("--dp", type=int, default=4)
    ap.add_argument("--debug", action="store_true")
    ap.add_argument("--srcmask", type=int, default=0)
    ap.add_argument("--exp", default="")
    ap.add_argument("--vpfn", type=int, default=16)
    ap.add_argument("--pr1", type=int, default=8)
    ap.add_argument("--pr0", type=int, default=4)
    ap.add_argument("--prm", type=int, default=-1)
    ap.add_argument("--wqs", type=int, default=4)
    ap.add_argument("--wqs2", type=int, default=5)
    ap.add_argument("--pf", type=int, default=0)
    args = ap.parse_args()
    DEBUG = args.debug
    SRCMASK = args.srcmask
    PF = args.pf
    VPFN = args.vpfn
    WQSPLIT = args.wqs
    PR1, PR0, PRM = args.pr1, args.pr0, args.prm
    if 'ont' in EXP: OUTFL = ' nt'
    WQSPLIT2 = args.wqs2
    EXP = set(args.exp.split(",")) if args.exp else set()
    open(args.o, "w").write(build(args.tpw, args.dp))
```

```python
import sys, struct

N, E, D_, H = 10000, 160000, 128, 256
NCH = 64
CH_E = E // NCH
WS_P = 0
WS_CELLS = 0x500000
WS_WQ = 0x900000
WS_W2 = 0x910000
WS_WE = 0x920000
WS_B1 = 0x920400
WS_END = 0x921000

def f32bits(x): return struct.unpack('<I', struct.pack('<f', x))[0]
S_LOG2E = f32bits(-1.4426950408889634)
S_LN2 = f32bits(-0.6931471805599453)

class Asm:
    def __init__(self): self.l = []
    def __call__(self, s): self.l.append("    " + s)
    def lab(self, s): self.l.append(s + ":")
    def c(self, s): self.l.append("    ; " + s)
    def raw(self, s): self.l.append(s)
    def text(self): return "\n".join(self.l) + "\n"

def vr(a, n): return f"v[{a}:{a+n-1}]"
def sr(a, n): return f"s[{a}:{a+n-1}]"

def srd(a, d, base, nrec, stride=0, add=0):
    if add:
        a(f"s_add_u32 s{d}, s{base}, {hex(add)}")
        a(f"s_addc_u32 s{d+1}, s{base+1}, 0")
    else:
        a(f"s_mov_b32 s{d}, s{base}")
        a(f"s_mov_b32 s{d+1}, s{base+1}")
    if stride:
        a(f"s_or_b32 s{d+1}, s{d+1}, {hex(stride << 16)}")
    a(f"s_mov_b32 s{d+2}, {hex(nrec)}")
    a(f"s_mov_b32 s{d+3}, 0x20000")

PX, PE, PSRC, PDST, PW1, PB1, PW2, PB2 = 16, 18, 20, 22, 24, 26, 28, 30

DEBUG = False
SRCMASK = 0
EXP = set()
PF = 0
WQSPLIT = 2
PR1 = 10
PR0 = 4
PRM = -1
VPFN = 16
OUTFL = ''
WQSPLIT2 = 5
def code_prefetch(a, tag, target, per, sa, dst, nslice_shift=3, mask=31):
    a(f"s_getpc_b64 s[{sa}:{sa+1}]")
    a.lab(f"CP_{tag}")
    a(f"s_lshr_b32 s{dst}, s2, {nslice_shift}")
    a(f"s_and_b32 s{dst}, s{dst}, {mask}")
    a(f"s_mul_i32 s{dst}, s{dst}, {per*128}")
    a(f"s_min_u32 s{dst}, s{dst}, TEXT_END-{target}-{per*128}")
    a(f"s_add_u32 s{dst}, s{dst}, {target}-CP_{tag}")
    a(f"s_add_u32 s{sa}, s{sa}, s{dst}")
    a(f"s_addc_u32 s{sa+1}, s{sa+1}, 0")
    for i in range(per):
        a(f"s_load_dword s{dst+i}, s[{sa}:{sa+1}], {128*i}")

CAP1 = 24
CAP = 48
K1_LDS = 65536
def gen_k1(a, TPW):
    assert TPW == 4
    NG = 160
    NTR = 8
    GRID = NCH + NTR + NG
    a.raw(".globl k1_kernel"); a.raw(".p2align 8"); a.raw(".type k1_kernel,@function")
    a.lab("k1_kernel")
    a(f"s_cmp_ge_u32 s2, {GRID}")
    a("s_cbranch_scc1 K1_EXIT")
    a("s_load_dwordx16 s[16:31], s[0:1], 0")
    a("s_load_dwordx2 s[32:33], s[0:1], 80")
    if "cpf" in EXP: code_prefetch(a, "A", "K1_BODY", 5, 64, 66, mask=31)
    if "helper" in EXP:
        a("v_cmp_le_u32 vcc, 512, v0")
        a("s_cbranch_vccnz K1_HELPER")
    def vpf1():
        a("s_getpc_b64 s[64:65]")
        a.lab("K1_PC")
        a(f"v_cmp_le_u32 vcc, {512-16}, v0")
        a("s_and_saveexec_b64 s[66:67], vcc")
        a("s_cbranch_execz K1_NOVPF")
        a("s_lshr_b32 s68, s2, 3")
        a(f"s_and_b32 s68, s68, 7")
        a(f"s_lshl_b32 s68, s68, 11")
        a(f"v_and_b32 v141, 15, v0")
        a("v_lshlrev_b32 v141, 7, v141")
        a("v_add_u32 v141, s68, v141")
        a("v_min_u32 v141, TEXT_END-K1_PC-4, v141")
        a("global_load_dword v143, v141, s[64:65]")
        a.lab("K1_NOVPF")
        a("s_mov_b64 exec, s[66:67]")
    if "vpf1" in EXP: vpf1()
    a.lab("K1_BODY")
    if DEBUG: a("s_memrealtime s[56:57]")
    K1S = [52, 53, 54, 55, 62, 63]
    def st1(i):
        if not (DEBUG and "k1st" in EXP): return
        a("s_memtime s[14:15]")
        a("s_waitcnt lgkmcnt(0)")
        a(f"s_mov_b32 s{K1S[i]}, s14")
    st1(0)
    def k1end():
        if DEBUG:
            a("s_waitcnt vmcnt(0)")
            a("s_memrealtime s[58:59]")
            a("s_lshl_b32 s60, s2, 4")
            a("s_add_u32 s60, s60, 0xB00000")
            a("v_mov_b32 v1, s60")
            a("s_waitcnt lgkmcnt(0)")
            a("v_mov_b32 v2, s56")
            a("v_mov_b32 v3, s58")
            a("v_cmp_eq_u32 vcc, 0, v0")
            a("s_and_saveexec_b64 s[60:61], vcc")
            a("s_cbranch_execz K1_EXIT")
            a("global_store_dwordx2 v1, v[2:3], s[32:33]")
            if "k1st" in EXP:
                st1(5)
                a("s_lshl_b32 s60, s2, 5")
                a("s_add_u32 s60, s60, 0xB80000")
                a("v_mov_b32 v1, s60")
                for i in range(6):
                    a(f"s_sub_u32 s60, s{K1S[i]}, s52")
                    a("v_mov_b32 v2, s60")
                    a(f"global_store_dword v1, v2, s[32:33] offset:{4*i}")
        a("s_endpgm")
    if "gfirst" in EXP:
        a(f"s_add_u32 s3, s2, {NCH+NTR}")
        a(f"s_sub_u32 s4, s2, {NG}")
        a(f"s_cmp_lt_u32 s2, {NG}")
        a("s_cselect_b32 s2, s3, s4")
    a(f"s_cmp_lt_u32 s2, {NCH}")
    a("s_cbranch_scc1 K1_SORT")
    a(f"s_cmp_lt_u32 s2, {NCH+NTR}")
    a("s_cbranch_scc1 K1_TRANS")
    a.c("GEMM role: P' = -log2e * x @ W1a ; WG = 128 rows x 128 channels ; W half and x staged in LDS by DMA (XOR-swizzled 16B slots)")
    LX = 32768
    a("v_lshrrev_b32 v1, 6, v0")
    a("v_bfe_u32 v3, v0, 4, 2")
    a("v_readfirstlane_b32 s3, v1")
    a("v_and_b32 v6, 15, v0")
    a("v_lshlrev_b32 v4, 2, v3")
    a("v_xor_b32 v4, v6, v4")
    a("v_lshlrev_b32 v4, 4, v4")
    a("v_lshl_add_u32 v4, v3, 9, v4")
    a("v_xor_b32 v7, v6, v3")
    a("v_lshlrev_b32 v7, 4, v7")
    a("v_lshl_add_u32 v7, v3, 8, v7")
    a(f"s_sub_u32 s4, s2, {NCH+NTR}")
    a("s_bfe_u32 s11, s4, 0x10003")
    a("s_lshr_b32 s5, s4, 4")
    a("s_lshl_b32 s5, s5, 3")
    a("s_and_b32 s4, s4, 7")
    a("s_or_b32 s4, s4, s5")
    a("s_lshl_b32 s5, s4, 15")
    a("s_lshl_b32 s6, s3, 12")
    a("s_add_u32 s5, s5, s6")
    a("s_lshr_b32 s7, s2, 4")
    a("s_add_u32 s7, s7, s3")
    a("s_and_b32 s7, s7, 7")
    a("s_lshl_b32 s8, s7, 12")
    a("s_lshl_b32 s7, s7, 13")
    a("s_lshl_b32 s9, s11, 8")
    a("s_add_u32 s7, s7, s9")
    a(f"s_add_u32 s6, s6, {LX}")
    a("s_waitcnt lgkmcnt(0)")
    srd(a, 40, PW1, 257*512)
    srd(a, 36, PX, N*256)
    for i in range(4):
        a("s_mov_b32 m0, s8")
        a("s_add_u32 s8, s8, 1024")
        a(f"buffer_load_dwordx4 v4, s[40:43], s7 offen lds")
        a("s_add_u32 s7, s7, 2048")
        a("s_mov_b32 m0, s6")
        a(f"v_xor_b32 v8, {64*i}, v7")
        a(f"buffer_load_dwordx4 v8, s[36:39], s5 offen lds")
        if i < 3:
            a("s_add_u32 s6, s6, 1024")
            a("s_add_u32 s5, s5, 1024")
    st1(1)
    srd(a, 44, 32, N*512, add=WS_P)
    a("v_lshrrev_b32 v9, 2, v6")
    a("v_and_b32 v10, 3, v6")
    a("v_and_b32 v2, 3, v1")
    a("v_xor_b32 v11, v2, v9")
    a("v_lshl_or_b32 v10, v11, 2, v10")
    a("v_lshlrev_b32 v10, 4, v10")
    a("v_lshl_add_u32 v9, v3, 3, v9")
    a("v_lshl_add_u32 v9, v9, 8, v10")
    a("v_xor_b32 v10, v3, v6")
    a("v_lshlrev_b32 v10, 4, v10")
    a("v_lshl_add_u32 v10, v6, 8, v10")
    a("s_lshr_b32 s8, s3, 2")
    a("s_lshl_b32 s9, s8, 14")
    a(f"s_add_u32 s9, s9, {LX}")
    a("v_add_u32 v10, s9, v10")
    for s in range(1, 4): a(f"v_xor_b32 v{10+s}, {64*s}, v10")
    a("v_lshlrev_b32 v14, 9, v6")
    a("v_lshl_add_u32 v14, v2, 6, v14")
    a("v_lshl_add_u32 v14, v3, 4, v14")
    a("s_lshl_b32 s5, s4, 16")
    a("s_lshl_b32 s8, s8, 15")
    a("s_add_u32 s5, s5, s8")
    a("s_lshl_b32 s9, s11, 8")
    a("s_add_u32 s5, s5, s9")
    a(f"v_mov_b32 v15, {hex(S_LOG2E)}")
    WFR = 16
    XFR = 48
    ACC = 112
    a("s_waitcnt vmcnt(0)")
    st1(2)
    a("s_barrier")
    st1(3)
    order = []
    for s in range(4):
        for t in range(2):
            for hh in range(2):
                a(f"ds_read_b64_tr_b16 {vr(WFR+16*t+4*s+2*hh,2)}, v9 offset:{(32*s+4*hh)*256+8*t}")
        a(f"ds_read_b128 {vr(XFR+4*s,4)}, v{10+s}")
        if s == 1:
            pass
    def xr(tau):
        for s in range(4): a(f"ds_read_b128 {vr(XFR+16*tau+4*s,4)}, v{10+s} offset:{4096*tau}")
    def mm(tau, s):
        for t in range(2):
            o = ACC + 8*tau + 4*t
            a(f"v_mfma_f32_16x16x32_bf16 {vr(o,4)}, {vr(WFR+16*t+4*s,4)}, {vr(XFR+16*tau+4*s,4)}, {'0' if s == 0 else vr(o,4)}")
    def epi(tau):
        r = []
        o = ACC + 8*tau
        for k in range(8): r.append(f"v_mul_f32 v{o+k}, v15, v{o+k}")
        for k in range(4): r.append(f"v_cvt_pk_bf16_f32 v{o+k}, v{o+2*k}, v{o+2*k+1}")
        r.append(f"s_add_u32 s6, s5, {8192*tau}")
        fl = " sc1" if "psc1" in EXP else " nt" if "pnt" in EXP else ""
        r.append(f"buffer_store_dwordx4 {vr(o,4)}, v14, s[44:47], s6 offen{fl}")
        return r
    for s in range(4):
        a(f"s_waitcnt lgkmcnt({5*(3-s)})")
        mm(0, s)
    xr(1); xr(2); xr(3)
    extra = []
    for tau in range(1, 4):
        a(f"s_waitcnt lgkmcnt({4*(3-tau)})")
        for s in range(4):
            mm(tau, s)
            if s == 1 or (s == 0 and tau == 1):
                if not extra and not (s == 1 and tau == 1): extra = epi(tau-1)
            if s >= 1:
                for _ in range(5):
                    if extra: a(extra.pop(0))
        assert not extra
    a("s_nop 7")
    for ins in epi(3): a(ins)
    st1(4)
    k1end()
    a.lab("K1_TRANS")
    a.c("fragment transposer for W1b (WQ) and w2 (W2F); 128 blocks per WG")
    a(f"s_sub_u32 s3, s2, {NCH}")
    a("v_lshrrev_b32 v1, 6, v0")
    a("s_and_b32 s4, s3, 3")
    a("v_readfirstlane_b32 s11, v1")
    a("s_lshl_b32 s4, s4, 7")
    a("v_add_u32 v1, s4, v0")
    a("s_mov_b32 s9, 0x05040100"); a("s_mov_b32 s10, 0x07060302")
    a("s_waitcnt lgkmcnt(0)")
    a("s_cmp_ge_u32 s11, 2")
    a("s_cbranch_scc1 K1_TR_SMALL")
    a("s_cmp_ge_u32 s3, 4")
    a("s_cbranch_scc1 K1_TR_W2")
    a("v_and_b32 v2, 31, v1")
    a("v_lshrrev_b32 v3, 5, v1")
    a("v_lshlrev_b32 v4, 4, v2")
    a("v_lshl_add_u32 v4, v3, 12, v4")
    a("v_add_u32 v4, 0x10000, v4")
    a("v_lshrrev_b32 v5, 1, v2")
    a("v_lshlrev_b32 v5, 12, v5")
    a("v_lshl_add_u32 v5, v3, 8, v5")
    a("v_and_b32 v6, 1, v2")
    a("v_lshl_add_u32 v5, v6, 7, v5")
    srd(a, 36, PW1, 257*512)
    srd(a, 40, 32, 0x10000, add=WS_WQ)
    a("s_mov_b32 s5, 512")
    a("s_branch K1_TR_GO")
    a.lab("K1_TR_W2")
    a("v_and_b32 v2, 15, v1")
    a("v_bfe_u32 v3, v1, 4, 3")
    a("v_lshrrev_b32 v7, 7, v1")
    a("v_lshlrev_b32 v4, 4, v2")
    a("v_lshl_add_u32 v4, v3, 13, v4")
    a("v_lshl_add_u32 v4, v7, 11, v4")
    a("v_lshrrev_b32 v5, 1, v2")
    a("v_lshlrev_b32 v5, 13, v5")
    a("v_lshl_add_u32 v5, v3, 10, v5")
    a("v_lshl_add_u32 v5, v7, 8, v5")
    a("v_and_b32 v6, 1, v2")
    a("v_lshl_add_u32 v5, v6, 7, v5")
    srd(a, 36, PW2, 256*256)
    srd(a, 40, 32, 0x10000, add=WS_W2)
    a("s_mov_b32 s5, 256")
    a.lab("K1_TR_GO")
    a("s_mov_b32 s6, 0")
    for m in range(8):
        a(f"buffer_load_dwordx4 {vr(16+4*m,4)}, v4, s[36:39], s6 offen")
        if m < 7: a("s_add_u32 s6, s6, s5")
    a("s_waitcnt vmcnt(0)")
    for cc in range(8):
        for p in range(4):
            a(f"v_perm_b32 v{48+4*cc+p}, v{16+4*(2*p+1)+(cc>>1)}, v{16+4*(2*p)+(cc>>1)}, s{9+(cc&1)}")
        a(f"buffer_store_dwordx4 {vr(48+4*cc,4)}, v5, s[40:43], 0 offen offset:{16*cc}{' sc1' if 'csc1' in EXP else ''}")
    k1end()
    a.lab("K1_TR_SMALL")
    a("s_cmp_lg_u32 s3, 0")
    a("s_cbranch_scc1 K1_EXIT")
    a("s_cmp_lt_u32 s11, 4")
    a("s_cbranch_scc1 K1_EXIT")
    a("v_and_b32 v1, 255, v0")
    a("v_lshlrev_b32 v2, 1, v1")
    a(f"s_add_u32 s6, s{PW1}, 0x20000")
    a(f"s_addc_u32 s7, s{PW1+1}, 0")
    a("global_load_ushort v8, v2, s[6:7]")
    a(f"global_load_ushort v9, v2, s[{PB1}:{PB1+1}]")
    a(f"s_add_u32 s6, s32, {hex(WS_WE)}")
    a("s_addc_u32 s7, s33, 0")
    a(f"v_mov_b32 v10, {hex(S_LOG2E)}")
    a("v_lshlrev_b32 v3, 2, v1")
    a("s_waitcnt vmcnt(0)")
    a("v_lshlrev_b32 v8, 16, v8")
    a("v_lshlrev_b32 v9, 16, v9")
    a("v_mul_f32 v8, v10, v8")
    a("v_mul_f32 v9, v10, v9")
    a("v_cvt_pk_bf16_f32 v8, v8, v8")
    a("global_store_short v2, v8, s[6:7]")
    a(f"global_store_dword v3, v9, s[6:7] offset:{WS_B1-WS_WE}")
    a("s_endpgm")
    a.lab("K1_SORT")
    a.c("bucket the edges of chunk s2 by dst&255; cell line: 8 x [rec q, rec q+8, rec q+16, (loc,loc,loc,count)]")
    LC = 32768
    a("v_lshlrev_b32 v1, 2, v0")
    a("v_mov_b32 v2, 0")
    a(f"ds_write_b32 v1, v2 offset:{LC}")
    a("v_lshlrev_b32 v3, 4, v0")
    a("v_lshlrev_b32 v4, 3, v0")
    a("v_mov_b32 v5, 1")
    a(f"s_mul_i32 s3, s2, {CH_E*4}")
    a(f"s_mul_i32 s4, s2, {CH_E*2}")
    a("s_lshl_b32 s5, s2, 8")
    a("s_add_u32 s6, s3, 8192")
    a("s_add_u32 s7, s4, 4096")
    a("s_mov_b32 s8, 0x05040100"); a("s_mov_b32 s9, 0x05040302")
    a("s_waitcnt lgkmcnt(0)")
    srd(a, 36, PDST, E*4)
    srd(a, 40, PSRC, E*4)
    srd(a, 44, PE, E*2)
    srd(a, 48, 32, 256*NCH*256, add=WS_CELLS)
    DST, SRC, EA = 16, 24, 32
    RK, BK, REC = 36, 44, 52
    A0, A1 = 60, 68
    nlast = CH_E - 2048
    a("v_lshlrev_b32 v6, 1, v0")
    a(f"buffer_load_dwordx4 {vr(DST,4)}, v3, s[36:39], s3 offen")
    a(f"buffer_load_dword v{DST+4}, v1, s[36:39], s6 offen")
    a(f"buffer_load_dwordx4 {vr(SRC,4)}, v3, s[40:43], s3 offen")
    a(f"buffer_load_dwordx2 {vr(EA,2)}, v4, s[44:47], s4 offen")
    a(f"buffer_load_dword v{SRC+4}, v1, s[40:43], s6 offen")
    a(f"buffer_load_ushort v{EA+2}, v6, s[44:47], s7 offen")
    a(f"v_cmp_gt_u32 vcc, {nlast}, v0")
    a(f"v_mov_b32 v{RK+4}, 0")
    a(f"v_mov_b32 v{BK+4}, 0")
    a(f"v_mov_b32 v7, {CAP1}")
    a("s_mov_b64 s[10:11], vcc")
    a("s_barrier")
    st1(1)
    def atomic(k):
        a(f"v_and_b32 v{BK+k}, 0xff, v{DST+k}")
        a(f"v_lshlrev_b32 v8, 2, v{BK+k}")
        a(f"ds_add_rtn_u32 v{RK+k}, v8, v5 offset:{LC}")
    a("s_waitcnt vmcnt(5)")
    st1(2)
    for k in range(4): atomic(k)
    a("s_waitcnt vmcnt(4)")
    a("s_mov_b64 exec, s[10:11]")
    atomic(4)
    a("s_mov_b64 exec, -1")
    for k in range(5):
        a(f"v_lshrrev_b32 v{DST+k}, 6, v{DST+k}")
        a(f"v_and_b32 v{DST+k}, 0xfc, v{DST+k}")
        a(f"v_lshlrev_b32 v{BK+k}, 7, v{BK+k}")
    a("s_waitcnt vmcnt(0)")
    for k in range(5):
        if SRCMASK: a(f"v_and_b32 v{SRC+k}, {SRCMASK}, v{SRC+k}")
        a(f"v_perm_b32 v{REC+k}, v{SRC+k}, v{EA+(k>>1)}, s{8+(k&1)}")
    a("s_waitcnt lgkmcnt(0)")
    st1(3)
    for k in range(5):
        a(f"v_and_b32 v8, 7, v{RK+k}")
        a(f"v_lshl_add_u32 v8, v8, 4, v{BK+k}")
        a(f"v_lshrrev_b32 v9, 3, v{RK+k}")
        a(f"v_lshl_add_u32 v{A0+k}, v9, 2, v8")
        a(f"v_add_u32 v{A1+k}, v9, v8")
        if k == 4: a("s_mov_b64 exec, s[10:11]")
        a(f"v_cmpx_gt_u32 vcc, v7, v{RK+k}")
        a(f"ds_write_b32 v{A0+k}, v{REC+k}")
        a(f"ds_write_b8 v{A1+k}, v{DST+k} offset:12")
        a("s_mov_b64 exec, -1")
    a(f"v_max3_u32 v8, v{RK}, v{RK+1}, v{RK+2}")
    a(f"v_max3_u32 v8, v8, v{RK+3}, v{RK+4}")
    a("v_cmp_le_u32 vcc, v7, v8")
    a("s_cbranch_vccz K1_NOOV")
    for k in range(5):
        a(f"v_lshlrev_b32 v12, 7, v{BK+k}")
        a(f"v_sub_u32 v12, v12, v{BK+k}")
        a(f"v_sub_u32 v13, {CAP-1}, v{RK+k}")
        a(f"v_subrev_u32 v14, {CAP1}, v{RK+k}")
        a("v_or_b32 v13, v13, v14")
        a(f"v_and_b32 v13, 0x80000000, v13")
        a("v_or_b32 v12, v12, v13")
        a(f"v_add_u32 v10, v{A0+k}, v12")
        a(f"v_add_u32 v11, v{A1+k}, v12")
        a(f"buffer_store_dword v{REC+k}, v10, s[48:51], s5 offen offset:{128-12}")
        a(f"buffer_store_byte v{DST+k}, v11, s[48:51], s5 offen offset:{128+12-3}")
    a.lab("K1_NOOV")
    a("v_lshrrev_b32 v6, 3, v0")
    a("v_lshlrev_b32 v7, 2, v6")
    a("v_and_b32 v8, 0x70, v3")
    a("v_lshl_add_u32 v8, v6, 14, v8")
    a("v_mov_b32 v9, 0xffffff")
    a("s_waitcnt vmcnt(0) lgkmcnt(0)")
    a("s_barrier")
    st1(4)
    for i in range(4):
        a(f"ds_read_b128 {vr(16+4*i,4)}, v3 offset:{8192*i}")
        a(f"ds_read_b32 v{32+i}, v7 offset:{LC+256*i}")
    for i in range(4):
        a(f"s_waitcnt lgkmcnt({6-2*i})")
        a(f"v_min_u32 v{32+i}, 0xff, v{32+i}")
        a(f"v_lshlrev_b32 v{32+i}, 24, v{32+i}")
        a(f"v_and_or_b32 v{19+4*i}, v{19+4*i}, v9, v{32+i}")
        a(f"buffer_store_dwordx4 {vr(16+4*i,4)}, v8, s[48:51], s5 offen{' nt' if 'cnt' in EXP else ' sc1' if 'csc1' in EXP else ''}")
        if i < 3: a(f"s_add_u32 s5, s5, {64*16384}")
    if "wb" in EXP:
        a("s_waitcnt vmcnt(0)")
        a("s_barrier")
        a("v_cmp_gt_u32 vcc, 64, v0")
        a("s_cbranch_vccz K1_NOWB")
        a("buffer_wbl2 sc1")
        a.lab("K1_NOWB")
    k1end()
    a.lab("K1_EXIT")
    a("s_endpgm")
    if "helper" in EXP:
        a.lab("K1_HELPER")
        a("s_getpc_b64 s[64:65]")
        a.lab("K1_HPC")
        a("s_sub_u32 s64, s64, K1_HPC-k1_kernel")
        a("s_subb_u32 s65, s65, 0")
        a("s_lshr_b32 s68, s2, 3")
        a("s_and_b32 s68, s68, 1")
        a("s_lshl_b32 s68, s68, 13")
        a("v_and_b32 v1, 63, v0")
        a("v_lshlrev_b32 v1, 7, v1")
        a("v_add_u32 v1, s68, v1")
        a("v_min_u32 v1, TEXT_END-k1_kernel-4, v1")
        a("global_load_dword v2, v1, s[64:65]")
        a("s_waitcnt vmcnt(0) lgkmcnt(0)")
        a("s_mov_b32 s2, 0")
        a("s_mov_b64 exec, 0")
        a("s_branch k2_kernel")
    return GRID

ROWP = 1040
SBROW = 528
BATCH = 1024
NSLOT = BATCH + 16
L_EP = 0
L_IDX = L_EP + NSLOT*16
L_CNT = L_IDX + NSLOT*4
L_HN = L_CNT + 256
L_ZERO = L_HN + 128
L_BZEND = L_ZERO + 256
L_DEG = L_BZEND
L_FLAG = L_DEG + 256
L_ZEND = L_FLAG + 32
L_S = L_ZEND
L_Q = L_S + 40*ROWP
XROW = 272
L_CR = L_Q + 40*ROWP
L_XS = L_CR
L_SB = L_CR + 32*ROWP
L_END = L_SB + 40*SBROW
QS = L_Q - L_S

def gen_k2(a, DP):
    assert DP % 2 == 0
    INF = 0x7fffffff
    SMAP = {0:0, 1:1, 2:2, 3:3, 4:4, 5:5, 6:6, 7:7}
    if "fine" in EXP: SMAP = {0:0, 1:1, "a":2, "b":3, 2:4, 3:5, "c":6, "d":7}
    if "fine2" in EXP: SMAP = {0:0, 4:1, 5:2, "e":3, "f":4, "g":5, 6:6, 7:7}
    def stamp(i):
        if not DEBUG or i not in SMAP: return
        a("s_memtime s[94:95]")
        a("s_waitcnt lgkmcnt(0)")
        a(f"s_mov_b32 s{84+SMAP[i]}, s94")
    a.raw(".globl k2_kernel"); a.raw(".p2align 8"); a.raw(".type k2_kernel,@function")
    a.lab("k2_kernel")
    a("s_cmp_ge_u32 s2, 256")
    a("s_cbranch_scc1 K2_EXIT")
    a("s_load_dwordx16 s[16:31], s[0:1], 0")
    a("s_load_dwordx2 s[32:33], s[0:1], 64")
    a("s_load_dwordx2 s[34:35], s[0:1], 80")
    if "vpf" in EXP:
        a("s_getpc_b64 s[6:7]")
        a.lab("K2_PC")
        a(f"v_cmp_le_u32 vcc, {1024-VPFN}, v0")
        a("s_and_saveexec_b64 s[8:9], vcc")
        a("s_cbranch_execz K2_NOVPF")
        a("s_lshr_b32 s10, s2, 3")
        a(f"s_and_b32 s10, s10, {128//VPFN - 1}")
        a(f"s_mul_i32 s10, s10, {VPFN*128}")
        a(f"v_and_b32 v1, {VPFN-1}, v0")
        a("v_lshlrev_b32 v1, 7, v1")
        a("v_add_u32 v1, s10, v1")
        a("v_min_u32 v1, TEXT_END-K2_PC-4, v1")
        a("global_load_dword v100, v1, s[6:7]")
        a.lab("K2_NOVPF")
        a("s_mov_b64 exec, s[8:9]")
    if DEBUG: a("s_memrealtime s[96:97]")
    stamp(0)
    assert DP == 4
    U = [8, 16]; EX, ACC, Q = 24, 32, 40
    IP = [56, 58]
    AB = 60
    ES = [62, 66]
    BS = 70
    M = 118
    VEA, VIA, VES, VEND, VQA, VSTA, VEO, VH, VXA, VQW = range(M, M+10)
    T0, T1, T3 = 1, 2, 4
    WF = 8
    R0 = 8
    HD = 16
    RK = 17
    LA = 23
    PS = 29
    XP = 40
    VC = 53
    PB = 54
    XF = 40
    QA = 102
    ZT = 102
    B1 = 106
    BI = 110
    WE = 48
    sW, sNE = 3, 56
    sV = [52, 54, 10, 12, 14, 36]
    sT, sT2, sREM, sTEV, sSLOW, sBATCH, sLEFT, sX = 58, 59, 60, 61, 62, 63, 66, 68
    sMASK = [70, 72]; sPOS = [74, 75]; sEND = [76, 77]; sSEGL = [78, 79]; sHEAD = [80, 81]; sCR = [82, 83]
    sROW = [4, 5]
    sSM = 100
    sWQ = 64
    sTT = 67
    sLD = 65
    sROLE = 93 if not DEBUG else 38
    uid0 = [0]
    def L(p):
        uid0[0] += 1
        return f"K2_{p}{uid0[0]}"
    def exec_half(x):
        a(f"s_mov_b32 exec_lo, {-1 if x == 0 else 0}")
        a(f"s_mov_b32 exec_hi, {0 if x == 0 else -1}")
    wpos = [0, 1, 6, 7]
    a("v_lshlrev_b32 v4, 4, v0")
    for k in range(4): a(f"v_mov_b32 v{ZT+k}, 0")
    a("v_lshrrev_b32 v1, 6, v0")
    a("v_and_b32 v5, 0x3f0, v4")
    a(f"v_mov_b32 v{VXA}, v5")
    a(f"ds_write_b128 v5, {vr(ZT,4)} offset:{L_ZEND-1024}")
    a("v_readfirstlane_b32 s3, v1")
    a(f"v_and_b32 v{IP[0]+1}, 0x1f0, v4")
    a("v_lshlrev_b32 v2, 5, v0")
    a("v_and_b32 v3, 0xffffff00, v2")
    a("s_lshl_b32 s4, s2, 14")
    a(f"s_add_u32 s4, s4, {hex(WS_CELLS)}")
    a("s_lshl_b32 s5, s2, 8")
    a("v_and_b32 v2, 0x70, v4")
    a("v_add_u32 v3, v3, v2")
    a("s_waitcnt lgkmcnt(0)")
    srd(a, 40, 34, WS_END)
    a(f"s_add_u32 s6, s34, {hex(WS_WE)}")
    a(f"s_addc_u32 s7, s35, 0")
    if "helper" in EXP: a("s_cbranch_execz K2_EXIT")
    a(f"s_cmp_ge_u32 s{sW}, 8")
    a("s_cbranch_scc1 K2_GEMMER")
    a(f"buffer_load_dwordx4 {vr(R0,4)}, v3, s[40:43], s4 offen")
    a(f"global_load_dwordx4 {vr(WE,4)}, v{IP[0]+1}, s[6:7]")
    if "sprio" in EXP: a("s_setprio 3")
    a("s_barrier")
    stamp(1)

    def lane_consts():
        srd(a, 44, 34, N, stride=512, add=WS_P)
        srd(a, 48, 32, N*256)
        a(f"s_mov_b32 s{sSLOW}, 0")
        a(f"s_mov_b32 s{sROLE}, s{sW}")
        a(f"s_mov_b32 s{sBATCH}, 0")
        a(f"s_mov_b64 s[{sSM}:{sSM+1}], 0")
        a(f"v_mov_b32 v{IP[1]+1}, v{IP[0]+1}")
        a(f"v_mov_b32 v{IP[0]}, 0")
        a(f"v_mov_b32 v{IP[1]}, 0")
        a(f"v_lshlrev_b32 v{VQA}, 1, v{IP[0]+1}")
        a(f"v_add_u32 v{VQA}, {L_Q}, v{VQA}")
        a("s_mov_b32 s10, 0x00f0000f")
        a("s_mov_b32 s11, 0xf0000f00")
        a("s_mov_b32 s12, 0x00300003")
        a("s_mov_b32 s13, 0x30000300")
        a("s_mov_b32 s14, 0x00c0000c")
        a("s_mov_b32 s15, 0xc0000c00")
        a(f"v_and_b32 v6, 16, v4")
        a(f"v_mov_b32 v{PB}, 0x3f80")
        a(f"v_lshlrev_b32 v{PB}, v6, v{PB}")
        for k in (0, 4, 8):
            a(f"v_cndmask_b32 v{AB+k}, 0, v{PB}, s[12:13]")
            a(f"v_cndmask_b32 v{AB+k+1}, 0, v{PB}, s[14:15]")
        a(f"v_lshrrev_b32 v6, 1, v6")
        a(f"v_mov_b32 v{VEO}, {L_ZERO}")
        a(f"v_or_b32 v{PB}, 4, v6")
        a(f"v_cndmask_b32 v{VEO}, v{VEO}, v{PB}, s[12:13]")
        a(f"v_cndmask_b32 v{VEO}, v{VEO}, v6, s[14:15]")
        a(f"v_cndmask_b32 v{VES}, 0, 4, s[10:11]")
        a(f"v_bfe_u32 v{VH}, v0, 5, 1")
        a(f"v_mov_b32 v7, 4")
        a(f"v_lshrrev_b32 v5, 2, v5")
    def wscale():
        r = []
        for d in range(DP):
            r.append(f"v_pk_mov_b32 {vr(BS+8*d,2)}, {vr(WE,2)}, {vr(WE,2)} op_sel:[0,1]")
            r.append(f"v_pk_mov_b32 {vr(BS+8*d+6,2)}, {vr(WE+2,2)}, {vr(WE+2,2)} op_sel:[0,1]")
        return r
    dpp = [f"row_shr:{sh} row_mask:0xf bank_mask:0xf bound_ctrl:0" for sh in (1, 2, 4, 8)] + \
          ["row_bcast:15 row_mask:0xa bank_mask:0xf", "row_bcast:31 row_mask:0xc bank_mask:0xf"]
    def scan():
        a(f"ds_read_b32 v{VC}, v5 offset:{L_CNT}")
        a(f"ds_read_b32 v3, v7 offset:{L_FLAG-4}")
        a("s_waitcnt lgkmcnt(0)")
        a(f"v_mov_b32 v{VEND}, v{VC}")
        a(f"v_readfirstlane_b32 s8, v3")
        a(f"v_cmp_ne_u32 s[{sNE}:{sNE+1}], 0, v{VC}")
        for i, d in enumerate(dpp):
            if i: a("s_nop 1")
            a(f"v_add_u32_dpp v{VEND}, v{VEND}, v{VEND} {d}")
        a(f"v_sub_u32 v{VSTA}, v{VEND}, v{VC}")
        a(f"v_readlane_b32 s{sT}, v{VEND}, 63")
        a("s_nop 0")
    def ranges():
        a(f"s_lshr_b32 s{sT}, s{sT}, 2")
        if DEBUG: a(f"s_mov_b32 s92, s{sT}")
        a(f"s_add_u32 s{sTT}, s{sT}, 1")
        a(f"s_lshr_b32 s{sTT}, s{sTT}, 1")
        a(f"s_mul_i32 s{sPOS[0]}, s{sTT}, s{sW}")
        a(f"s_add_u32 s{sEND[1]}, s{sPOS[0]}, s{sTT}")
        a(f"s_lshr_b32 s{sPOS[0]}, s{sPOS[0]}, 4")
        a(f"s_lshr_b32 s{sEND[1]}, s{sEND[1]}, 4")
        a(f"s_add_u32 s{sPOS[1]}, s{sPOS[0]}, s{sEND[1]}")
        a(f"s_min_u32 s{sPOS[1]}, s{sPOS[1]}, s{sT}")
        a(f"s_lshl_b32 s{sPOS[1]}, s{sPOS[1]}, 2")
        a(f"s_lshl_b32 s{sEND[1]}, s{sEND[1]}, 1")
        a(f"s_min_u32 s{sEND[1]}, s{sEND[1]}, s{sT}")
        a(f"s_lshl_b32 s{sEND[1]}, s{sEND[1]}, 2")
        a(f"s_lshl_b32 s{sPOS[0]}, s{sPOS[0]}, 3")
        a(f"s_mov_b32 s{sEND[0]}, s{sPOS[1]}")
        a(f"s_sub_u32 s{sT2}, s{sPOS[1]}, s{sPOS[0]}")
        a(f"v_mul_u32_u24 v{VIA}, s{sT2}, v{VH}")
        a(f"v_add_u32 v{VIA}, s{sPOS[0]}, v{VIA}")
        a(f"v_mad_u32_u24 v{VEA}, v{VIA}, v{VES}, v{VEO}")
        a(f"v_add_u32 v{VIA}, {L_IDX}, v{VIA}")
    def seg_next(x, lbl):
        a(f"s_lshl2_add_u32 s{sT2}, s{sSEGL[x]}, s{sPOS[x]}")
        a(f"s_mov_b32 s{sROW[x]}, -1")
        a(f"s_cmp_ge_u32 s{sT2}, s{sEND[x]}")
        a(f"s_cselect_b32 s{sSEGL[x]}, {hex(INF)}, s{sSEGL[x]}")
        a(f"s_cbranch_scc1 {lbl}")
        a(f"s_ff1_i32_b64 s{sT2}, s[{sMASK[x]}:{sMASK[x]+1}]")
        a(f"s_and_b32 s{sT2}, s{sT2}, 63")
        a(f"s_bitset0_b64 s[{sMASK[x]}:{sMASK[x]+1}], s{sT2}")
        a(f"v_readlane_b32 s{sT}, v{VEND}, s{sT2}")
        a(f"s_mul_i32 s{sROW[x]}, s{sT2}, {ROWP}")
        a(f"s_add_u32 s{sSEGL[x]}, s{sSEGL[x]}, 1")
        a(f"s_min_u32 s{sT}, s{sT}, s{sEND[x]}")
        a(f"s_sub_u32 s{sT}, s{sT}, s{sPOS[x]}")
        a(f"s_ashr_i32 s{sT}, s{sT}, 2")
        a(f"s_max_i32 s{sSEGL[x]}, s{sSEGL[x]}, s{sT}")
        a.lab(lbl)
    def stream_setup():
        a(f"v_cmp_lt_u32 s[{sMASK[0]}:{sMASK[0]+1}], s{sPOS[0]}, v{VEND}")
        a(f"v_cmp_lt_u32 s[{sMASK[1]}:{sMASK[1]+1}], s{sPOS[1]}, v{VEND}")
        for x in range(2):
            lj = L("INJ")
            a(f"s_and_b64 s[{sMASK[x]}:{sMASK[x]+1}], s[{sMASK[x]}:{sMASK[x]+1}], s[{sNE}:{sNE+1}]")
            a(f"s_mov_b32 s{sSEGL[x]}, 0")
            a(f"s_mov_b32 s{sHEAD[x]}, 0")
            seg_next(x, L("INI"))
            a(f"s_max_i32 s{sCR[x]}, s{sROW[x]}, 0")
            a(f"s_sub_u32 s{sCR[x]}, s{sCR[x]}, {QS}")
            a(f"s_cmp_lt_i32 s{sROW[x]}, 0")
            a(f"s_cbranch_scc1 {lj}")
            a(f"v_readlane_b32 s{sT}, v{VSTA}, s{sT2}")
            a(f"s_add_u32 s{sT2}, s{sT2}, 1")
            a(f"v_mov_b32 v{T3}, s{sT2}")
            a(f"s_lshl_b32 s{sT2}, s{sW}, 1")
            a(f"s_add_u32 s{sT2}, s{sT2}, {x}")
            a(f"s_cmp_ge_u32 s{sT}, s{sPOS[x]}")
            a(f"s_cbranch_scc1 {lj}")
            a(f"s_mov_b32 s{sHEAD[x]}, 1")
            a(f"s_mul_i32 s{sCR[x]}, s{sT2}, {ROWP}")
            a(f"s_add_u32 s{sCR[x]}, s{sCR[x]}, {L_CR-L_Q}")
            a(f"s_lshl_b32 s{sT2}, s{sT2}, 2")
            a(f"v_mov_b32 v6, s{sT2}")
            a(f"ds_write_b32 v6, v{T3} offset:{L_HN}")
            a.lab(lj)
            a(f"s_max_i32 s{sROW[x]}, s{sROW[x]}, 0")
        a(f"v_add_u32 v{T0}, s{sROW[0]}, v{VQA}")
        a(f"v_add_u32 v{T1}, s{sCR[0]}, v{VQA}")
        exec_half(1)
        a(f"v_add_u32 v{T0}, s{sROW[1]}, v{VQA}")
        a(f"v_add_u32 v{T1}, s{sCR[1]}, v{VQA}")
        a("s_mov_b64 exec, -1")
        a(f"v_lshlrev_b32 v3, {2 + (DP.bit_length()-1)}, v{VES}")
        a(f"s_min_u32 s{sTEV}, s{sSEGL[0]}, s{sSEGL[1]}")
        a(f"s_sub_u32 s{sREM}, s{sTEV}, 1")
        a(f"s_sub_u32 s{sLEFT}, s{sEND[0]}, s{sPOS[0]}")
        a(f"s_lshr_b32 s{sLEFT}, s{sLEFT}, 2")
        a(f"s_sub_u32 s{sLD}, s{sLEFT}, {DP}")
        a(f"s_max_i32 s{sLD}, s{sLD}, 0")
        a(f"s_sub_u32 s6, s{sHEAD[0]}, 1")
        a(f"s_sub_u32 s7, s{sHEAD[1]}, 1")
        a(f"s_and_b64 s[6:7], s[6:7], s[{sSM}:{sSM+1}]")
        a(f"v_mov_b32 v5, {L_ZERO}")
        a(f"v_cndmask_b32 v{T3}, v5, v{T1}, s[6:7]")
    def first_loads():
        FI = 40
        a(f"ds_read2_b32 {vr(FI,2)}, v{VIA} offset0:0 offset1:1")
        a(f"ds_read2_b32 {vr(FI+2,2)}, v{VIA} offset0:2 offset1:3")
        a(f"ds_read2_b32 {vr(ES[0],2)}, v{VEA} offset0:0 offset1:1")
        a(f"ds_read2_b32 {vr(ES[1],2)}, v{VEA} offset0:4 offset1:5")
        a("s_waitcnt lgkmcnt(2)")
        for t in range(DP):
            a(f"v_mov_b32 v{IP[t&1]}, v{FI+t}")
            a(f"buffer_load_dwordx4 {vr(BS+8*t+2,4)}, {vr(IP[t&1],2)}, s[44:47], 0 idxen offen")
        a(f"ds_read_b32 v{IP[0]}, v{VIA} offset:{4*DP}")
        a(f"ds_read_b32 v{IP[1]}, v{VIA} offset:{4*(DP+1)}")
    def ldcut():
        if "nocut" in EXP: return
        a(f"s_sub_u32 s{sLD}, s{sLD}, 1")
        a(f"s_cselect_b32 s46, 0, s46")
    def pload(slot, pair):
        if "novm" in EXP: return
        a(f"buffer_load_dwordx4 {vr(BS+8*slot+2,4)}, {vr(pair,2)}, s[44:47], 0 idxen offen")
    cold = []
    def groups(n, body):
        body(0); body(1)
        l = L("SK")
        a(f"s_cmp_eq_u64 s[{sV[2]}:{sV[2]+1}], 0")
        a(f"s_cbranch_scc1 {l}")
        body(2)
        lo = L("OL")
        a(f"s_cmp_lg_u64 s[{sV[3]}:{sV[3]+1}], 0")
        a(f"s_cbranch_scc1 {lo}")
        a.lab(l)
        cold.append((lo, l, lambda: [body(i) for i in (3, 4, 5)]))
    def rec(i): return R0 + i + (i // 3)
    def meta(i): return R0 + 3 + 4*(i // 3)
    def rank_atomics(n):
        def body(i):
            a(f"v_bfe_u32 v{LA+i}, v{meta(i)}, {8*(i%3)}, 8")
            a(f"s_mov_b64 exec, s[{sV[i]}:{sV[i]+1}]")
            a(f"ds_add_rtn_u32 v{RK+i}, v{LA+i}, v7 offset:{L_CNT}")
            a("s_mov_b64 exec, -1")
        groups(n, body)
    def zero_batch(upto):
        assert 16384 < upto <= 2*16384 and upto % 16 == 0
        a(f"ds_write_b128 v4, {vr(ZT,4)} offset:{upto-16384}")
        a(f"ds_write_b128 v4, {vr(ZT,4)}")
    XFB = [70, 86, 40]
    def gemm():
        for nt in range(3):
            for s in range(4):
                a(f"ds_read_b128 {vr(XFB[nt]+4*s,4)}, v{VXA} offset:{16*nt*XROW+64*s}")
        a(f"v_mov_b32 v{VSTA}, {hex(S_LOG2E)}")
        QB = [QA, XFB[0], QA]
        def post(nt):
            r = []
            if nt == 2: r += ["s_mov_b32 exec_lo, 0x00ff00ff", "s_mov_b32 exec_hi, 0x00ff00ff"]
            for t in range(2):
                for k in range(4): r.append(f"v_fma_f32 v{QB[nt]+4*t+k}, v{QB[nt]+4*t+k}, v{VSTA}, v{BI+4*t+k}")
                r.append(f"ds_write_b128 v{VQW}, {vr(QB[nt]+4*t,4)} offset:{16*nt*ROWP+64*t}")
            if nt == 2: r.append("s_mov_b64 exec, -1")
            return r
        a("s_waitcnt vmcnt(0) lgkmcnt(8)")
        for nt in range(3):
            if nt == 1: a("s_waitcnt lgkmcnt(4)")
            if nt == 2: a("s_waitcnt lgkmcnt(2)")
            for s in range(4):
                for t in range(2):
                    a(f"v_mfma_f32_16x16x32_bf16 {vr(QB[nt]+4*t,4)}, {vr(WF+16*t+4*s,4)}, {vr(XFB[nt]+4*s,4)}, {'0' if s == 0 else vr(QB[nt]+4*t,4)}")
            if nt >= 1:
                for ins in post(nt-1): a(ins)
        a("s_nop 0")
        for ins in post(2): a(ins)
    def wq_loads(lo, hi):
        for f in range(lo, hi):
            t, s = divmod(f, 4)
            a(f"buffer_load_dwordx4 {vr(WF+16*t+4*s,4)}, v{VXA}, s[40:43], s{sWQ+t} offen offset:{1024*s}")

    def signal(k):
        a("s_waitcnt lgkmcnt(0)")
        a("s_mov_b64 exec, 1")
        a(f"ds_add_u32 v7, v7 offset:{L_FLAG+4*k}")
        a("s_mov_b64 exec, -1")
    def spin(k):
        l = L("SP")
        a("s_mov_b32 s8, 0x100000")
        a.lab(l)
        a(f"ds_read_b32 v6, v7 offset:{L_FLAG+4*k}")
        a("s_sub_u32 s8, s8, 1")
        a(f"s_cbranch_scc1 {l}X")
        a("s_waitcnt lgkmcnt(0)")
        a("v_readfirstlane_b32 s9, v6")
        a("s_nop 0")
        a("s_cmp_lt_u32 s9, 32")
        a(f"s_cbranch_scc1 {l}")
        a.lab(l + "X")
    def list_build():
        groups(6, lambda i: a(f"ds_bpermute_b32 v{PS+i}, v{LA+i}, v{VSTA}"))
        a("s_waitcnt lgkmcnt(0)")
        def body(i):
            a(f"v_add_u32 v{PS+i}, v{PS+i}, v{RK+i}")
            a(f"v_lshlrev_b32 v{RK+i}, 2, v{PS+i}")
            a(f"s_mov_b64 exec, s[{sV[i]}:{sV[i]+1}]")
            a(f"ds_write_b16_d16_hi v{PS+i}, v{rec(i)} offset:{L_IDX}")
            a(f"ds_write_b16 v{RK+i}, v{rec(i)} offset:{L_EP+4}")
            a(f"ds_write_b16 v{RK+i}, v{rec(i)} offset:{L_EP+14}")
            a("s_mov_b64 exec, -1")
        groups(6, body)
    assert L_CNT <= 3*8192
    a(f"ds_write_b128 v4, {vr(ZT,4)}")
    a(f"ds_write_b128 v4, {vr(ZT,4)} offset:8192")
    a(f"ds_write_b128 v4, {vr(ZT,4)} offset:{L_CNT-8192}")
    a.lab("K2_C1")
    lane_consts()
    a(f"s_cmp_ge_u32 s{sW}, 8")
    a("s_cbranch_scc1 K2_G2")
    a("v_and_b32 v2, 7, v0")
    stamp("a")
    a("s_waitcnt vmcnt(1)")
    stamp("b")
    a(f"v_lshrrev_b32 v{HD}, 24, v{R0+3}")
    a(f"v_sub_u32 v2, v{HD}, v2")
    a(f"v_cmp_lt_u32 vcc, {CAP}, v{HD}")
    for i in range(4):
        a(f"v_cmp_lt_i32 s[{sV[i]}:{sV[i]+1}], {8*i}, v2")
    a(f"s_cmp_lg_u64 s[{sV[3]}:{sV[3]+1}], 0")
    a("s_cbranch_scc1 K2_L1")
    a.lab("K2_NOL1")
    def line1():
        for i in range(4, 6): a(f"v_cmp_lt_i32 s[{sV[i]}:{sV[i]+1}], {8*i}, v2")
        a(f"buffer_load_dwordx4 {vr(R0+4,4)}, v3, s[40:43], s4 offen offset:128")
        a("s_mov_b64 exec, vcc")
        a(f"ds_write_b32 v7, v7 offset:{L_FLAG-4}")
        a("s_mov_b64 exec, -1")
        a("s_waitcnt vmcnt(0)")
    cold.append(("K2_L1", "K2_NOL1", line1))
    a.lab("K2_RANK")
    rank_atomics(6)
    a(f"s_cmp_lg_u32 s{sSLOW}, 0")
    a("s_cbranch_scc1 K2_SLOW_B0")
    signal(0)
    a("s_waitcnt vmcnt(0)")
    for ins in wscale(): a(ins)
    a.lab("K2_C2")
    spin(0)
    stamp(2)
    a.lab("K2_SCAN")
    scan()
    a(f"s_cmp_gt_u32 s{sT}, {4*BATCH}")
    a(f"s_cselect_b32 s8, 1, s8")
    a(f"s_andn2_b32 s8, s8, s{sSM}")
    a("s_cbranch_scc1 K2_SLOW_S")
    a(f"s_cmp_ge_u32 s{sROLE}, 8")
    a("s_cbranch_scc1 K2_C3")
    list_build()
    a(f"s_cmp_lg_u32 s{sW}, 0")
    a(f"s_cbranch_scc1 K2_NODEG")
    a(f"ds_add_u32 v5, v{VC} offset:{L_DEG}")
    a.lab("K2_NODEG")
    a(f"s_cmp_lg_u32 s{sSLOW}, 0")
    a("s_cbranch_scc1 K2_SLOW_B1")
    signal(1)
    a.lab("K2_C3")
    ranges()
    spin(1)
    stamp(3)
    first_loads()
    stream_setup()
    spin(3)
    def gemmer1():
        if "noprio" not in EXP: a("s_setprio 3")
        srd(a, 36, PX, N*256)
        a("s_barrier")
        stamp(1)
        a(f"global_load_dwordx4 {vr(WE,4)}, v{IP[0]+1}, s[6:7]")
        a("v_subrev_u32 v2, 512, v0")
        a("v_and_b32 v3, 15, v0")
        a("v_lshrrev_b32 v6, 4, v2")
        a("v_lshlrev_b32 v7, 16, v6")
        a("v_lshl_add_u32 v7, v3, 4, v7")
        a("v_add_u32 v7, s5, v7")
        a(f"buffer_load_dwordx4 {vr(XP,4)}, v7, s[36:39], 0 offen")
        a("v_add_u32 v7, 0x200000, v7")
        a(f"buffer_load_dwordx4 {vr(XP+4,4)}, v7, s[36:39], 0 offen")
        a("s_lshr_b32 s9, s2, 3")
        a(f"s_add_u32 s9, s9, s{sW}")
        a("s_and_b32 s9, s9, 7")
        a(f"s_lshl_b32 s{sWQ}, s9, 13")
        a(f"s_add_u32 s{sWQ}, s{sWQ}, {hex(WS_WQ)}")
        a(f"s_add_u32 s{sWQ+1}, s{sWQ}, 4096")
        a("v_and_b32 v7, 0x30, v0")
        a("s_lshl_b32 s8, s9, 7")
        a(f"v_add_u32 v{PB}, s8, v7")
        a(f"global_load_dwordx4 {vr(BI,4)}, v{PB}, s[6:7] offset:{WS_B1-WS_WE}")
        a(f"global_load_dwordx4 {vr(BI+4,4)}, v{PB}, s[6:7] offset:{WS_B1-WS_WE+64}")
        wq_loads(0, 2)
        a(f"v_mul_u32_u24 v6, {XROW}, v6")
        a(f"v_lshl_add_u32 v6, v3, 4, v6")
        a(f"v_add_u32 v1, {L_XS}, v6")
        a(f"v_mul_u32_u24 v{VQW}, {ROWP}, v3")
        a(f"s_add_u32 s8, s8, {L_Q}")
        a(f"v_add3_u32 v{VQW}, v{VQW}, v7, s8")
        a(f"v_mul_u32_u24 v2, {XROW}, v3")
        a(f"s_mov_b32 s8, {L_XS}")
        a(f"v_add3_u32 v2, v2, v7, s8")
        wq_loads(2, 4)
    def gemmer2():
        wq_loads(4, 8)
        a(f"v_mov_b32 v{VXA}, v2")
        stamp("a")
        a(f"s_waitcnt vmcnt(10)")
        stamp("b")
        a(f"ds_write_b128 v1, {vr(XP,4)}")
        a(f"s_cmp_ge_u32 s{sW}, 12")
        a("s_cbranch_scc1 K2_NOXS")
        a(f"ds_write_b128 v1, {vr(XP+4,4)} offset:{32*XROW}")
        a.lab("K2_NOXS")
        for k in range(0, 4, 2): a(f"v_pk_mov_b32 {vr(ES[k//2],2)}, {vr(WE+k,2)}, {vr(WE+k,2)} op_sel:[0,1]")
        signal(2)
        spin(2)
        gemm()
        signal(3)
        for d in range(DP):
            a(f"v_pk_mov_b32 {vr(BS+8*d,2)}, {vr(ES[0],2)}, {vr(ES[0],2)} op_sel:[0,1]")
            a(f"v_pk_mov_b32 {vr(BS+8*d+6,2)}, {vr(ES[1],2)}, {vr(ES[1],2)} op_sel:[0,1]")
        stamp("c")
    hot2 = [("K2_GEMMER", "K2_C1", gemmer1), ("K2_G2", "K2_C2", gemmer2)]
    a.lab("K2_JOIN")
    a(f"ds_read_b128 {vr(ACC,4)}, v{T3}")
    a(f"ds_read_b128 {vr(ACC+4,4)}, v{T3} offset:16")
    a("s_waitcnt lgkmcnt(0)")
    if "noprio" not in EXP: a("s_setprio 2")
    stamp("d")
    a(f"s_cmp_eq_u32 s{sTEV}, {hex(INF)}")
    a("s_cbranch_scc1 K2_LOOP_DONE")
    a(f"ds_read_b128 {vr(Q,4)}, v{T0}")
    a(f"ds_read_b128 {vr(Q+4,4)}, v{T0} offset:16")
    def mfma(slot, es, u, which):
        if "nomfma" in EXP: return
        if which == 0:
            a(f"v_mfma_f32_16x16x32_bf16 {vr(u,4)}, {vr(es,4)}, {vr(BS+8*slot,4)}, {vr(Q,4)}")
        else:
            a(f"v_mfma_f32_16x16x32_bf16 {vr(u+4,4)}, {vr(es-2,4)}, {vr(BS+8*slot+4,4)}, {vr(Q+4,4)}")
    a(f"s_waitcnt vmcnt({DP-1}) lgkmcnt(0)")
    mfma(0, ES[0], U[0], 0); mfma(0, ES[0], U[0], 1)
    ldcut()
    pload(0, IP[0])
    stamp(4)
    a(f"s_sub_u32 s{sREM}, s{sREM}, 1")
    a("s_nop 5")
    a("s_cbranch_scc1 K2_BND0")
    a("s_branch K2_SUB0")
    def rdE(k):
        if "nods" in EXP: return
        a(f"ds_read2_b32 {vr(ES[k&1],2)}, v{VEA} offset0:{4*(k+2)} offset1:{4*(k+2)+1}")
    def rdI(k):
        if "nods" in EXP: return
        a(f"ds_read_b32 v{IP[k&1]}, v{VIA} offset:{4*(k+2+DP)}")
    def ex(c, u): a(f"v_exp_f32 v{EX+c}, v{u+c}")
    def rc(c): a(f"v_rcp_f32 v{EX+c}, v{EX+c}")
    def pa(c): a(f"v_pk_add_f32 {vr(EX+c,2)}, {vr(EX+c,2)}, 1.0 op_sel_hi:[1,0]")
    def pf(c, u): a(f"v_pk_fma_f32 {vr(ACC+c,2)}, {vr(u+c,2)}, {vr(EX+c,2)}, {vr(ACC+c,2)}")
    def valu(u):
        for c in range(8): ex(c, u)
        for c in range(0, 8, 2): pa(c)
        for c in range(8): rc(c)
        for c in range(0, 8, 2): pf(c, u)
    def tail(u):
        rc(7)
        for c in range(0, 8, 2): pf(c, u)
    uid = [0]
    def prio():
        if "noprio" in EXP: return
        uid[0] += 1
        lbl = f"K2_PR{uid[0]}"
        a(f"s_cmp_gt_i32 s{sLEFT}, {PR1}")
        a(f"s_cbranch_scc1 {lbl}_D")
        a("s_setprio 1")
        a(f"s_cmp_gt_i32 s{sLEFT}, {PR0}")
        a(f"s_cbranch_scc1 {lbl}_D")
        a("s_setprio 0")
        a.lab(f"{lbl}_D")
    def advance():
        a(f"v_add_u32 v{VEA}, v3, v{VEA}")
        a(f"v_add_u32 v{VIA}, {4*DP}, v{VIA}")
        a(f"s_sub_u32 s{sLEFT}, s{sLEFT}, {DP}")
        prio()
    a.raw(".p2align 3")
    a.lab("K2_LOOP")
    advance()
    for k in range(DP):
        u = U[k & 1]
        a.lab(f"K2_SUB{k}")
        ex(0, u)
        if k == 2 and PRM >= 0 and "noprio" not in EXP:
            a(f"s_cmp_gt_i32 s{sLEFT}, {PRM}")
            a("s_cbranch_scc1 K2_PM")
            a("s_setprio 0")
            a.lab("K2_PM")
        a(f"s_waitcnt vmcnt({DP-1}) lgkmcnt(0)")
        ex(1, u)
        mfma((k+1) % DP, ES[(k+1) & 1], U[(k+1) & 1], 0)
        ex(2, u)
        mfma((k+1) % DP, ES[(k+1) & 1], U[(k+1) & 1], 1)
        ex(3, u)
        if "nocut" not in EXP: a(f"s_sub_u32 s{sLD}, s{sLD}, 1")
        ex(4, u)
        if "nocut" not in EXP: a(f"s_cselect_b32 s46, 0, s46")
        ex(5, u)
        pload((k+1) % DP, IP[(k+1) & 1])
        ex(6, u)
        rdE(k)
        ex(7, u)
        rdI(k)
        for c in range(0, 8, 2): pa(c)
        for c in range(6): rc(c)
        a(f"s_sub_u32 s{sREM}, s{sREM}, 1")
        rc(6)
        a(f"s_cbranch_scc1 K2_BNDT{k}")
        tail(u)
    a("s_branch K2_LOOP")
    for lo, ret, fn in hot2:
        a.lab(lo); fn(); a(f"s_branch {ret}")
    for k in range(DP):
        kp = (k - 1) % DP
        a.lab(f"K2_BNDT{kp}")
        tail(U[kp & 1])
        if k == 0: advance()
        a.lab(f"K2_BND{k}")
        a(f"s_mov_b64 s[{sX}:{sX+1}], 0")
        a("s_mov_b64 s[6:7], 0")
        for x in range(2):
            a(f"s_cmp_lg_u32 s{sSEGL[x]}, s{sTEV}")
            a(f"s_cbranch_scc1 K2_B{k}_N{x}")
            a(f"s_mov_b32 s{sX+x}, -1")
            seg_next(x, f"K2_B{k}_S{x}")
            a(f"s_cmp_lt_i32 s{sROW[x]}, 0")
            a(f"s_cbranch_scc1 K2_B{k}_N{x}")
            a(f"s_mov_b32 s{6+x}, -1")
            exec_half(x)
            a(f"v_add_u32 v{T0}, s{sROW[x]}, v{VQA}")
            a.lab(f"K2_B{k}_N{x}")
        a("s_mov_b64 exec, s[6:7]")
        a("s_waitcnt lgkmcnt(0)")
        a(f"ds_read_b128 {vr(Q,4)}, v{T0}")
        a(f"ds_read_b128 {vr(Q+4,4)}, v{T0} offset:16")
        a("s_mov_b64 exec, -1")
        valu(U[k & 1])
        a(f"s_mov_b64 exec, s[{sX}:{sX+1}]")
        a(f"ds_write_b128 v{T1}, {vr(ACC,4)}")
        a(f"ds_write_b128 v{T1}, {vr(ACC+4,4)} offset:16")
        a("s_mov_b64 exec, s[6:7]")
        a(f"v_subrev_u32 v{T1}, {QS}, v{T0}")
        a(f"v_cndmask_b32 v{T3}, v5, v{T1}, s[{sSM}:{sSM+1}]")
        a(f"ds_read_b128 {vr(ACC,4)}, v{T3}")
        a(f"ds_read_b128 {vr(ACC+4,4)}, v{T3} offset:16")
        a("s_mov_b64 exec, -1")
        a(f"s_sub_u32 s{sREM}, -1, s{sTEV}")
        a(f"s_min_u32 s{sTEV}, s{sSEGL[0]}, s{sSEGL[1]}")
        a(f"s_cmp_eq_u32 s{sTEV}, {hex(INF)}")
        a("s_cbranch_scc1 K2_LOOP_DONE")
        a(f"s_add_u32 s{sREM}, s{sREM}, s{sTEV}")
        a(f"s_waitcnt vmcnt({DP-1}) lgkmcnt(2)")
        mfma((k+1) % DP, ES[(k+1) & 1], U[(k+1) & 1], 0)
        mfma((k+1) % DP, ES[(k+1) & 1], U[(k+1) & 1], 1)
        ldcut()
        pload((k+1) % DP, IP[(k+1) & 1])
        rdE(k); rdI(k)
        a(f"s_sub_u32 s{sREM}, s{sREM}, 1")
        a("s_nop 3")
        if k < DP-1:
            a(f"s_cbranch_scc1 K2_BND{k+1}")
            a(f"s_branch K2_SUB{k+1}")
        else:
            a(f"s_cbranch_scc0 K2_LOOP")
            advance()
            a(f"s_branch K2_BND0")
    a.lab("K2_LOOP_DONE")
    a(f"s_mov_b32 s46, {N}")
    a("s_setprio 0")
    stamp(5)
    if DEBUG:
        a("s_lshl_b32 s93, s2, 4")
        a("s_add_u32 s93, s93, s3")
        a("s_lshl_b32 s93, s93, 5")
        a("s_add_u32 s93, s93, 0xA80000")
        a("v_mov_b32 v1, s93")
        for i in range(8): a(f"v_mov_b32 v{8+i}, s{84+i}")
        a("global_store_dwordx4 v1, v[8:11], s[34:35]")
        a("global_store_dwordx4 v1, v[12:15], s[34:35] offset:16")
    a(f"s_cmp_lg_u32 s{sSLOW}, 0")
    a("s_cbranch_scc1 K2_COMB")
    a.lab("K2_EPI")
    a.c("out = -ln2 * S @ w2 + deg*b2 ; waves 0..3 own oc pair op = w and start on node tiles 0,1 as soon as they are complete")
    AF = 56
    SF = 8
    BU = 24
    OA = 32
    CS = 40
    B2 = 120
    DG = 124
    L_DONE = L_FLAG + 20
    a(f"s_lshl_b32 s4, 1, s{sW}")
    a("v_mov_b32 v6, s4")
    a("v_mov_b32 v7, 4")
    a("s_waitcnt lgkmcnt(0)")
    a("s_mov_b64 exec, 1")
    a(f"ds_or_b32 v7, v6 offset:{L_DONE-4}")
    a("s_mov_b64 exec, -1")
    a("v_and_b32 v1, 63, v0")
    a(f"s_or_b64 s[10:11], s[{sNE}:{sNE+1}], s[{sSM}:{sSM+1}]")
    a("v_lshlrev_b32 v3, 4, v1")
    def combine(n, node0, stride):
        a(f"s_mul_i32 s4, s{node0}, {ROWP}")
        a(f"s_add_u32 s4, s4, {L_S}")
        a("v_add_u32 v6, s4, v3")
        a("v_lshrrev_b32 v2, 2, v3")
        a(f"ds_read_b32 v2, v2 offset:{L_HN}")
        for r in range(n): a(f"ds_read_b128 {vr(CS+4*r,4)}, v6 offset:{stride*r*ROWP}")
        a(f"s_add_u32 s4, s{node0}, 1")
        a(f"s_lshr_b64 s[36:37], s[10:11], s{node0}")
        a(f"s_waitcnt lgkmcnt({n})")
        a("v_subrev_u32 v2, s4, v2")
        CM = [6, 12, 14, 38]
        for r in range(n): a(f"v_cmp_eq_u32 s[{CM[r]}:{CM[r]+1}], {stride*r}, v2")
        lp = L("CBL")
        a.lab(lp)
        for r in range(n):
            l = L("CH")
            a(f"s_ff1_i32_b32 s8, s{CM[r]}")
            a(f"s_bitset0_b32 s{CM[r]}, s8")
            a(f"s_mul_i32 s9, s8, {ROWP}")
            a(f"s_add_u32 s9, s9, {L_CR}")
            a("s_cmp_lt_i32 s8, 0")
            a(f"v_add_u32 v7, s9, v3")
            a(f"s_cbranch_scc0 {l}")
            a(f"v_mov_b32 v7, {L_ZERO}")
            a.lab(l)
            a(f"ds_read_b128 {vr(8+4*r,4)}, v7")
        for r in range(n):
            l = L("CZ")
            a(f"s_bitcmp1_b64 s[36:37], {stride*r}")
            a(f"s_cbranch_scc1 {l}")
            a(f"s_waitcnt lgkmcnt({n})")
            for c in range(4): a(f"v_mov_b32 v{CS+4*r+c}, 0")
            a.lab(l)
        a(f"s_mov_b32 s8, s{CM[0]}")
        for r in range(1, n): a(f"s_or_b32 s8, s8, s{CM[r]}")
        a("s_cmp_lg_u32 s8, 0")
        a("s_waitcnt lgkmcnt(0)")
        for r in range(n):
            for c in range(0, 4, 2): a(f"v_pk_add_f32 {vr(CS+4*r+c,2)}, {vr(CS+4*r+c,2)}, {vr(8+4*r+c,2)}")
        a(f"s_cbranch_scc1 {lp}")
    def to_bf16(n, node0, stride):
        a(f"s_mul_i32 s4, s{node0}, {SBROW}")
        a(f"s_add_u32 s4, s4, {L_SB}")
        a("v_lshrrev_b32 v6, 1, v3")
        a("v_add_u32 v6, s4, v6")
        for r in range(n):
            a(f"v_cvt_pk_bf16_f32 v{CS+4*r}, v{CS+4*r}, v{CS+4*r+1}")
            a(f"v_cvt_pk_bf16_f32 v{CS+4*r+1}, v{CS+4*r+2}, v{CS+4*r+3}")
            a(f"ds_write_b64 v6, {vr(CS+4*r,2)} offset:{stride*r*SBROW}")
    def out_tile(nt):
        def sread(s): a(f"ds_read_b128 {vr(SF+4*(s%4),4)}, v4 offset:{64*s+16*nt*SBROW}")
        for s in range(4): sread(s)
        extra = [f"v_mul_f32 v{CS+k}, v{DG+nt}, v{BU+k}" for k in range(8)]
        for s in range(8):
            a(f"s_waitcnt lgkmcnt({min(3, 7-s)})")
            for t in range(2):
                o = OA + 4*t
                a(f"v_mfma_f32_16x16x32_bf16 {vr(o,4)}, {vr(AF+32*t+4*s,4)}, {vr(SF+4*(s%4),4)}, {'0' if s == 0 else vr(o,4)}")
            if s + 4 < 8: sread(s+4)
            else:
                a(extra.pop(0)); a(extra.pop(0))
        a("s_nop 5")
        for k in range(8): a(f"v_fmac_f32 v{CS+k}, v{DG+3}, v{OA+k}")
        for t in range(2):
            o = CS + 4*t
            a(f"v_cvt_pk_bf16_f32 v{o}, v{o}, v{o+1}")
            a(f"v_cvt_pk_bf16_f32 v{o+1}, v{o+2}, v{o+3}")
            a(f"buffer_store_dwordx2 {vr(o,2)}, v5, s[48:51], 0 offen offset:{32*t}{OUTFL}")
        if nt < 2: a(f"v_add_u32 v5, 0x100000, v5")
    a(f"s_cmp_ge_u32 s{sW}, 4")
    a("s_cbranch_scc1 K2_LAST")
    a(f"v_readlane_b32 s{sT}, v{VEND}, 15")
    a(f"v_readlane_b32 s{sT2}, v{VEND}, 31")
    a(f"v_mul_u32_u24 v6, s{sTT}, v1")
    a("v_lshrrev_b32 v6, 4, v6")
    a("v_lshlrev_b32 v6, 3, v6")
    a(f"v_cmp_gt_u32 s[70:71], s{sT}, v6")
    a(f"v_cmp_gt_u32 s[72:73], s{sT2}, v6")
    a("s_waitcnt vmcnt(0)")
    a("s_lshr_b32 s4, s2, 3")
    a(f"s_add_u32 s4, s4, s{sW}")
    a("s_and_b32 s74, s4, 3")
    a(f"s_lshl_b32 s6, s74, 14")
    a(f"s_add_u32 s6, s6, {hex(WS_W2)}")
    for q in range(4):
        if q: a("s_add_u32 s6, s6, 4096")
        for s in range(4):
            a(f"buffer_load_dwordx4 {vr(AF+16*q+4*s,4)}, v3, s[40:43], s6 offen offset:{1024*s}")
    a("v_bfe_u32 v7, v0, 4, 2")
    a(f"s_lshl_b32 s7, s74, 6")
    a("v_lshlrev_b32 v5, 3, v7")
    a("v_add_u32 v5, s7, v5")
    a(f"global_load_dwordx2 {vr(B2,2)}, v5, s[{PB2}:{PB2+1}]")
    a(f"global_load_dwordx2 {vr(B2+2,2)}, v5, s[{PB2}:{PB2+1}] offset:32")
    a("v_and_b32 v2, 15, v0")
    a(f"v_mul_u32_u24 v4, {SBROW}, v2")
    a("v_lshl_add_u32 v4, v7, 4, v4")
    a(f"v_add_u32 v4, {L_SB}, v4")
    a(f"v_lshlrev_b32 v6, 2, v2")
    for nt in range(3): a(f"ds_read_b32 v{DG+nt}, v6 offset:{L_DEG+64*nt}")
    a("v_lshl_add_u32 v5, v2, 16, v5")
    a("s_lshl_b32 s9, s2, 8")
    a("v_add_u32 v5, s9, v5")
    a(f"v_mov_b32 v{DG+3}, {hex(S_LN2)}")
    a("s_and_b32 s70, s70, 0xffff")
    a("s_and_b32 s72, s72, 0xffff")
    a("s_waitcnt lgkmcnt(0)")
    for nt in range(3):
        a(f"v_cvt_f32_u32 v{DG+nt}, v{DG+nt}")
        a(f"v_mul_f32 v{DG+nt}, 0.25, v{DG+nt}")
    for nt in range(1):
        l = L("DN")
        a("s_mov_b32 s8, 0x100000")
        a("v_mov_b32 v7, 4")
        a.lab(l)
        a(f"ds_read_b32 v6, v7 offset:{L_DONE-4}")
        a("s_sub_u32 s8, s8, 1")
        a(f"s_cbranch_scc1 {l}X")
        a("s_waitcnt lgkmcnt(0)")
        a("v_readfirstlane_b32 s9, v6")
        a("s_nop 0")
        a(f"s_andn2_b32 s9, s{70+2*nt}, s9")
        a(f"s_cbranch_scc1 {l}")
        a.lab(l + "X")
        a(f"s_add_u32 s75, s{sW}, {16*nt}")
        combine(4, 75, 4)
        to_bf16(4, 75, 4)
        a("v_mov_b32 v7, 4")
        a("v_mov_b32 v6, 8")
        a("s_waitcnt lgkmcnt(0)")
        a("s_mov_b64 exec, 1")
        a(f"ds_add_u32 v7, v6 offset:{L_FLAG+4*(5+nt)}")
        a("s_mov_b64 exec, -1")
        if nt == 0:
            a("s_waitcnt vmcnt(0)")
            for t in range(2):
                a(f"v_lshlrev_b32 v{BU+4*t}, 16, v{B2+2*t}")
                a(f"v_and_b32 v{BU+4*t+1}, 0xffff0000, v{B2+2*t}")
                a(f"v_lshlrev_b32 v{BU+4*t+2}, 16, v{B2+2*t+1}")
                a(f"v_and_b32 v{BU+4*t+3}, 0xffff0000, v{B2+2*t+1}")
        spin(5+nt)
        out_tile(nt)
    a.lab("K2_LAST")
    stamp("e")
    a("s_waitcnt lgkmcnt(0)")
    a("s_barrier")
    stamp("f")
    a(f"s_add_u32 s75, s{sW}, 16")
    a(f"s_cmp_lt_u32 s{sW}, 8")
    a("s_cbranch_scc1 K2_LAST1")
    combine(2, 75, 8)
    to_bf16(2, 75, 8)
    a("s_branch K2_LAST2")
    a.lab("K2_LAST1")
    combine(1, 75, 1)
    to_bf16(1, 75, 1)
    a.lab("K2_LAST2")
    stamp("g")
    a("s_waitcnt lgkmcnt(0)")
    a("s_barrier")
    a(f"s_cmp_ge_u32 s{sW}, 4")
    a("s_cbranch_scc1 K2_EXIT")
    stamp(6)
    out_tile(1)
    out_tile(2)
    if DEBUG:
        stamp(7)
        a("s_cmp_lg_u32 s3, 0")
        a("s_cbranch_scc1 K2_EXIT")
        a("s_memrealtime s[98:99]")
        a("s_lshl_b32 s93, s2, 6")
        a("s_add_u32 s93, s93, 0xA00000")
        a("v_mov_b32 v1, s93")
        a("s_waitcnt lgkmcnt(0)")
        for i in range(8):
            a(f"s_sub_u32 s93, s{84+i}, s84")
            a("v_mov_b32 v2, s93")
            a(f"global_store_dword v1, v2, s[34:35] offset:{4*i}")
        for off, sr_ in ((32, 96), (36, 98), (40, 92)):
            a(f"v_mov_b32 v2, s{sr_}")
            a(f"global_store_dword v1, v2, s[34:35] offset:{off}")
    a.lab("K2_EXIT")
    a("s_endpgm")
    a.lab("K2_COMB")
    a("v_and_b32 v1, 63, v0")
    a("v_lshlrev_b32 v3, 4, v1")
    a("s_mov_b64 s[10:11], -1")
    a("s_waitcnt vmcnt(0) lgkmcnt(0)")
    a("s_barrier")
    combine(3, sW, 16)
    a(f"ds_write_b128 v6, {vr(CS,4)}")
    a(f"ds_write_b128 v6, {vr(CS+4,4)} offset:{16*ROWP}")
    a(f"s_cmp_ge_u32 s{sW}, 8")
    a("s_cbranch_scc1 K2_SLOW_SYNC")
    a(f"ds_write_b128 v6, {vr(CS+8,4)} offset:{32*ROWP}")
    a("s_branch K2_SLOW_SYNC")
    a.lab("K2_SLOW_S")
    a.lab("K2_SLOW_SET")
    a(f"s_mov_b32 s{sSLOW}, 1")
    a.lab("K2_SLOW_SYNC")
    a("s_waitcnt lgkmcnt(0)")
    a("s_barrier")
    a.lab("K2_SLOW_NEXT")
    a("v_lshlrev_b32 v4, 4, v0")
    for k in range(4): a(f"v_mov_b32 v{ZT+k}, 0")
    zero_batch(L_BZEND)
    a(f"s_cmp_lg_u32 s{sBATCH}, 0")
    a("s_cbranch_scc1 K2_SLOW_NZ")
    a(f"s_mov_b64 s[{sSM}:{sSM+1}], -1")
    a(f"ds_write_b128 v4, {vr(ZT,4)} offset:{L_S}")
    a(f"ds_write_b128 v4, {vr(ZT,4)} offset:{L_S+16384}")
    a(f"ds_write_b128 v4, {vr(ZT,4)} offset:{L_S+40*ROWP-16384}")
    a.lab("K2_SLOW_NZ")
    a(f"s_cmp_lt_u32 s{sBATCH}, {E}")
    a("s_cbranch_scc1 K2_SLOW_GO")
    a(f"s_mov_b32 s{sSLOW}, 0")
    a("s_waitcnt lgkmcnt(0)")
    a("s_barrier")
    a("s_branch K2_EPI")
    a.lab("K2_SLOW_GO")
    a(f"v_add_u32 v5, s{sBATCH}, v0")
    a(f"v_mov_b32 v6, {E}")
    a("v_cmp_lt_u32 vcc, v5, v6")
    a(f"v_min_u32 v5, {E-1}, v5")
    a("v_lshlrev_b32 v6, 2, v5")
    a("v_lshlrev_b32 v7, 1, v5")
    SD, SE, SS = 40, 41, 42
    a(f"global_load_dword v{SD}, v6, s[{PDST}:{PDST+1}]")
    a(f"global_load_dword v{SS}, v6, s[{PSRC}:{PSRC+1}]")
    a(f"global_load_ushort v{SE}, v7, s[{PE}:{PE+1}]")
    a("v_and_b32 v5, 63, v0")
    a("v_lshlrev_b32 v5, 2, v5")
    a("s_waitcnt vmcnt(0) lgkmcnt(0)")
    a("s_barrier")
    a(f"v_and_b32 v7, 0xff, v{SD}")
    a(f"v_cmp_eq_u32 s[{sV[0]}:{sV[0]+1}], s2, v7")
    a(f"v_lshl_or_b32 v{R0}, v{SS}, 16, v{SE}")
    a(f"v_lshrrev_b32 v7, 6, v{SD}")
    a(f"v_and_b32 v{R0+3}, 0xfc, v7")
    a(f"s_and_b64 s[{sV[0]}:{sV[0]+1}], s[{sV[0]}:{sV[0]+1}], vcc")
    for i in range(1, 4): a(f"s_mov_b64 s[{sV[i]}:{sV[i]+1}], 0")
    a("v_mov_b32 v7, 4")
    a(f"s_mov_b32 s{sROLE}, 0")
    a(f"s_add_u32 s{sBATCH}, s{sBATCH}, {BATCH}")
    a("s_branch K2_RANK")
    a.lab("K2_SLOW_B0")
    a("s_waitcnt lgkmcnt(0)")
    a("s_barrier")
    a("s_branch K2_SCAN")
    a.lab("K2_SLOW_B1")
    a("v_mov_b32 v6, 32")
    a(f"ds_write_b32 v7, v6 offset:{L_FLAG+4}")
    a("s_waitcnt lgkmcnt(0)")
    a("s_barrier")
    a("s_branch K2_C3")
    for lo, ret, fn in cold:
        a.lab(lo); fn(); a(f"s_branch {ret}")
    a.lab("TEXT_END")
    return 128

HEADER = open('standalone__edge_featured_mpnn_mpnn__graph.s.ref').read().split("; Override launch")[0]

def kd(name, nv, ns):
    acc = (nv + 3) // 4 * 4
    return f""".p2align 6
.amdhsa_kernel {name}
  .amdhsa_next_free_vgpr {nv}
  .amdhsa_next_free_sgpr {ns}
  .amdhsa_accum_offset {acc}
  .amdhsa_group_segment_fixed_size 0
  .amdhsa_kernarg_size 88
  .amdhsa_user_sgpr_count 2
  .amdhsa_user_sgpr_kernarg_segment_ptr 1
  .amdhsa_system_sgpr_workgroup_id_x 1
.end_amdhsa_kernel
"""

def build(TPW=4, DP=6):
    a = Asm()
    g1 = gen_k1(a, TPW)
    nv2 = gen_k2(a, DP)
    out = HEADER
    out += f"; @launch kernel=k1_kernel grid=({g1},1,1) block=({576 if 'helper' in EXP else 512},1,1) lds={K1_LDS}\n"
    out += f"; @launch kernel=k2_kernel grid=(256,1,1) block=(1024,1,1) lds={L_END}\n"
    out += '.amdgcn_target "amdgcn-amd-amdhsa--gfx950"\n.text\n'
    out += """; Algorithm (exact reformulation of the reference):
"""
    out += a.text()
    out += '.section .rodata,"a"\n'
    out += kd("k1_kernel", 144, 102)
    out += kd("k2_kernel", 128, 102)
    return out

if __name__ == "__main__":
    import argparse
    ap = argparse.ArgumentParser()
    ap.add_argument("-o", default="standalone__edge_featured_mpnn_mpnn__graph.s")
    ap.add_argument("--tpw", type=int, default=4)
    ap.add_argument("--dp", type=int, default=4)
    ap.add_argument("--debug", action="store_true")
    ap.add_argument("--srcmask", type=int, default=0)
    ap.add_argument("--exp", default="")
    ap.add_argument("--vpfn", type=int, default=16)
    ap.add_argument("--pr1", type=int, default=8)
    ap.add_argument("--pr0", type=int, default=4)
    ap.add_argument("--prm", type=int, default=-1)
    ap.add_argument("--wqs", type=int, default=4)
    ap.add_argument("--wqs2", type=int, default=5)
    ap.add_argument("--pf", type=int, default=0)
    args = ap.parse_args()
    DEBUG = args.debug
    SRCMASK = args.srcmask
    PF = args.pf
    VPFN = args.vpfn
    WQSPLIT = args.wqs
    PR1, PR0, PRM = args.pr1, args.pr0, args.prm
    if 'ont' in EXP: OUTFL = ' nt'
    WQSPLIT2 = args.wqs2
    EXP = set(args.exp.split(",")) if args.exp else set()
    open(args.o, "w").write(build(args.tpw, args.dp))
```
